```python
import torch

def _softmax(x, axis=-1):
    return torch.softmax(x, dim=axis)
def _gelu(x):
    return torch.nn.functional.gelu(x, approximate="tanh")
def _silu(x):
    return torch.nn.functional.silu(x)
def _sigmoid(x):
    return torch.sigmoid(x)
def _layernorm(x, axis=-1, eps=1e-5):
    m = x.mean(dim=axis, keepdim=True)
    v = x.var(dim=axis, keepdim=True, unbiased=False)
    return (x - m) / torch.sqrt(v + eps)
def _scatter_add(tgt, idx, src, axis=0):
    return tgt.clone().index_add_(axis, idx, src)
def _segment_sum(src, seg, n):
    out = torch.zeros((n,) + src.shape[1:], dtype=src.dtype)
    return out.index_add_(0, seg, src)
def _pad(x, pw):
    flat = tuple(v for pair in reversed(pw) for v in pair)
    return torch.nn.functional.pad(x, flat)

kernel_name = 'gated_mix__ssm_conv_s5__moe_arch_mod__prompt'

def setup_inputs():

    _w = (lambda a: (lambda t: t.to(torch.bfloat16) if t.is_floating_point() else t)(torch.as_tensor(a)))
    def _A_setup():
        B, S, D = 1, 2048, 1024
        P = D
        Lambda_re = -0.5 * (lambda _x: torch.exp(torch.as_tensor(_x)))((lambda *s: torch.randn(*s, dtype=torch.bfloat16) * 0.8)(P))
        Lambda_im = (lambda *s: torch.randn(*s, dtype=torch.bfloat16) * 0.8)(P) * 1.0
        B_re = (lambda *s: torch.randn(*s, dtype=torch.bfloat16) * 0.8)(P, D) * (D ** -0.5)
        B_im = (lambda *s: torch.randn(*s, dtype=torch.bfloat16) * 0.8)(P, D) * (D ** -0.5)
        C_re = (lambda *s: torch.randn(*s, dtype=torch.bfloat16) * 0.8)(D, P) * (P ** -0.5)
        C_im = (lambda *s: torch.randn(*s, dtype=torch.bfloat16) * 0.8)(D, P) * (P ** -0.5)
        log_dt = (lambda *s: torch.randn(*s, dtype=torch.bfloat16) * 0.8)(P) * 0.3 - 2.0
        Dskip = (lambda *s: torch.randn(*s, dtype=torch.bfloat16) * 0.8)(D)
        return {
            "x": _w((lambda *s: torch.randn(*s, dtype=torch.bfloat16) * 0.05)(B, S, D)),
            "Lambda_re": _w(Lambda_re),
            "Lambda_im": _w(Lambda_im),
            "B_re": _w(B_re),
            "B_im": _w(B_im),
            "C_re": _w(C_re),
            "C_im": _w(C_im),
            "log_dt": _w(log_dt),
            "Dskip": _w(Dskip),
        }
    _A_in = _A_setup()

    def _B_setup():
        B, S, D, F, C = 1, 2048, 1024, 3584, 8
        return {
            "x": _w((lambda *s: torch.randn(*s, dtype=torch.bfloat16) * 0.05)(B, S, D)),
            "w_r": _w((lambda *s: torch.randn(*s, dtype=torch.bfloat16) * 1.6)(D)),
            "w_gate": _w((lambda *s: torch.randn(*s, dtype=torch.bfloat16) * 0.1)(D, F)),
            "w_up": _w((lambda *s: torch.randn(*s, dtype=torch.bfloat16) * 0.1)(D, F)),
            "w_down": _w((lambda *s: torch.randn(*s, dtype=torch.bfloat16) * 0.1)(F, D)),
        }
    _B_in = _B_setup()

    return {
        "A_x": _A_in["x"],
        "A_Lambda_re": _A_in["Lambda_re"],
        "A_Lambda_im": _A_in["Lambda_im"],
        "A_B_re": _A_in["B_re"],
        "A_B_im": _A_in["B_im"],
        "A_C_re": _A_in["C_re"],
        "A_C_im": _A_in["C_im"],
        "A_log_dt": _A_in["log_dt"],
        "A_Dskip": _A_in["Dskip"],
        "B_x": _B_in["x"],
        "B_w_r": _B_in["w_r"],
        "B_w_gate": _B_in["w_gate"],
        "B_w_up": _B_in["w_up"],
        "B_w_down": _B_in["w_down"],
        "gate_w": _w((lambda *s: torch.randn(*s, dtype=torch.bfloat16) * 0.05)(1024) * 16.0),
    }

def reference(A_x, A_Lambda_re, A_Lambda_im, A_B_re, A_B_im, A_C_re, A_C_im, A_log_dt, A_Dskip, B_x, B_w_r, B_w_gate, B_w_up, B_w_down, gate_w):
    def _A_ref(x, Lambda_re, Lambda_im, B_re, B_im, C_re, C_im, log_dt, Dskip):
        Bsz, L, H = x.shape
        Lam = Lambda_re + 1j * Lambda_im
        Bmat = B_re + 1j * B_im
        Cmat = C_re + 1j * C_im
        dt = torch.exp(log_dt)
        Lam_bar = torch.exp(dt * Lam)
        B_bar = ((Lam_bar - 1.0) / Lam)[:, None] * Bmat
        Bu = torch.einsum("bld,pd->blp", x + 0j, B_bar)
        h = torch.zeros_like(Bu[:, 0, :])
        hs = []
        for t in range(L):
            h = Lam_bar[None, :] * h + Bu[:, t, :]
            hs.append(h)
        hseq = torch.stack(hs, 1)
        y = 2.0 * torch.einsum("blp,dp->bld", hseq, Cmat).real + x * Dskip[None, None, :]
        return y

    def _B_ref(x, w_r, w_gate, w_up, w_down):
        B, S, D = x.shape
        C = 8
        r = x @ w_r
        idx = torch.argsort(-r, axis=-1)[:, :C]
        idx_e = (lambda x, n, axis: torch.repeat_interleave(x, n, dim=axis))(idx.reshape(B, C, 1), D, axis=2)
        x_sel = (lambda x, i, axis: torch.take_along_dim(x, i, dim=axis))(x, idx_e, axis=1)
        g = _silu(x_sel @ w_gate)
        u = x_sel @ w_up
        y = (g * u) @ w_down
        r_sel = _sigmoid((lambda x, i, axis: torch.take_along_dim(x, i, dim=axis))(r, idx, axis=1))
        y = y * r_sel.reshape(B, C, 1)
        b_off = (torch.arange(B) * S).reshape(B, 1)
        flat_idx = (idx + b_off).reshape(B * C)
        zero = (x * 0.0).reshape(B * S, D)
        upd = _scatter_add(zero, flat_idx, y.reshape(B * C, D), axis=0)
        return x + upd.reshape(B, S, D)

    x = A_x
    g = _sigmoid((x * gate_w).sum(-1, keepdims=True))
    a = _A_ref(x, A_Lambda_re, A_Lambda_im, A_B_re, A_B_im, A_C_re, A_C_im, A_log_dt, A_Dskip)
    b = _B_ref(x, B_w_r, B_w_gate, B_w_up, B_w_down)
    return g * a + (1 - g) * b
```

```python
import re

class Asm:
    def __init__(self):
        self.lines = []
    def __call__(self, s=""):
        for ln in s.split("\n"):
            ln = ln.strip()
            if ln:
                self.lines.append(ln)
    def label(self, name):
        self.lines.append(name + ":")
    def comment(self, s):
        self.lines.append("; " + s)
    def nop(self, n):
        while n > 0:
            k = min(n, 16)
            self.lines.append(f"s_nop {k-1}")
            n -= k
    def text(self):
        out = []
        for ln in self.lines:
            if ln.endswith(":") or ln.startswith("."):
                out.append(ln)
            else:
                out.append("    " + ln)
        return "\n".join(out) + "\n"

def v(i, n=1):
    return f"v{i}" if n == 1 else f"v[{i}:{i+n-1}]"
def a(i, n=1):
    return f"a{i}" if n == 1 else f"a[{i}:{i+n-1}]"
def s(i, n=1):
    return f"s{i}" if n == 1 else f"s[{i}:{i+n-1}]"

_REG = re.compile(r"(?<![\w.])([vas])(?:(\d+)|\[(\d+):(\d+)\])(?![\w])")
def regs_of(op):
    out = set()
    for m in _REG.finditer(op):
        k = m.group(1)
        if m.group(2) is not None:
            out.add((k, int(m.group(2))))
        else:
            for i in range(int(m.group(3)), int(m.group(4)) + 1):
                out.add((k, i))
    if re.search(r"\bvcc\b", op): out.add(("s", "vcc"))
    if re.search(r"\bexec\b", op): out.add(("s", "exec"))
    if re.search(r"\bm0\b", op): out.add(("s", "m0"))
    return out

TRANS = ("v_exp_f32", "v_log_f32", "v_rcp_f32", "v_rsq_f32", "v_sqrt_f32", "v_sin_f32", "v_cos_f32", "v_rcp_iflag_f32")

def split_ops(rest):
    ops, depth, cur = [], 0, ""
    for ch in rest:
        if ch == "[": depth += 1
        if ch == "]": depth -= 1
        if ch == "," and depth == 0:
            ops.append(cur.strip()); cur = ""
        else:
            cur += ch
    if cur.strip(): ops.append(cur.strip())
    return ops

def parse(ln):
    ln = ln.split(";")[0].strip()
    if not ln or ln.endswith(":") or ln.startswith("."):
        return None
    parts = ln.split(None, 1)
    mn = parts[0]
    ops = split_ops(parts[1]) if len(parts) > 1 else []
    if ops:
        last = ops[-1].split()
        ops[-1] = last[0] if last else ""
        mods = " ".join(last[1:])
    else:
        mods = ""
    d = dict(mn=mn, ops=ops, mods=mods, text=ln)
    wr, rd = set(), set()
    isv = mn.startswith("v_")
    if mn.startswith("v_mfma"):
        wr = regs_of(ops[0]); rd = regs_of(ops[1]) | regs_of(ops[2]) | regs_of(ops[3])
        d["srcc"] = regs_of(ops[3]); d["srcab"] = regs_of(ops[1]) | regs_of(ops[2])
        d["kind"] = "mfma"; d["passes"] = 8 if "32x32" in mn else 4
    elif mn.startswith("v_cmp"):
        wr = regs_of(ops[0]); rd = set().union(*[regs_of(o) for o in ops[1:]])
        if mn.startswith("v_cmpx"): wr.add(("s", "exec"))
        d["kind"] = "valu"
    elif mn.startswith("v_permlane") and "swap" in mn:
        wr = regs_of(ops[0]) | regs_of(ops[1]); rd = set(wr); d["kind"] = "valu"
    elif isv:
        wr = regs_of(ops[0]); src = ops[1:]
        if mn.startswith(("v_add_co", "v_sub_co", "v_addc_co", "v_subb_co", "v_subrev_co", "v_div_scale", "v_mad_u64")):
            wr |= regs_of(ops[1]); src = ops[2:]
        rd = set().union(*[regs_of(o) for o in src]) if src else set()
        if mn.startswith(("v_fmac", "v_dot2c", "v_pk_fmac", "v_writelane")) or "dpp" in mn or "row_" in mods or "quad_perm" in mods:
            rd |= regs_of(ops[0])
        if mn.startswith("v_cndmask") and len(ops) == 3: rd.add(("s", "vcc"))
        d["kind"] = "valu"
    elif mn.startswith(("ds_write", "ds_add_u32", "ds_max_u32", "ds_or_b32")):
        rd = set().union(*[regs_of(o) for o in ops]); d["kind"] = "ds"
    elif mn.startswith("ds_"):
        wr = regs_of(ops[0]); rd = set().union(*[regs_of(o) for o in ops[1:]]); d["kind"] = "ds"
    elif mn.startswith(("buffer_store", "global_store")) or ("atomic" in mn and "sc0" not in mods):
        rd = set().union(*[regs_of(o) for o in ops]); d["kind"] = "vmem"
        if mn.startswith("buffer_store"): d["sdata"] = regs_of(ops[0])
        elif mn.startswith("global_store"): d["sdata"] = regs_of(ops[1])
    elif mn.startswith(("buffer_load", "global_load")) and ("lds" in mods.split() or "lds" in mn):
        rd = set().union(*[regs_of(o) for o in ops]) | {("s", "m0")}; d["kind"] = "vmem"; d["dma"] = True
    elif mn.startswith(("buffer_", "global_")):
        if ops:
            wr = regs_of(ops[0]); rd = set().union(*[regs_of(o) for o in ops[1:]]) if len(ops) > 1 else set()
            if "atomic" in mn and mn.startswith("buffer"): rd |= wr
        d["kind"] = "vmem"
    elif mn.startswith("s_"):
        d["kind"] = "salu"
        if mn.startswith(("s_cmp", "s_cbranch", "s_branch", "s_waitcnt", "s_nop", "s_barrier", "s_endpgm", "s_sleep", "s_setprio", "s_bitcmp")):
            rd = set().union(*[regs_of(o) for o in ops]) if ops else set()
        else:
            wr = regs_of(ops[0]) if ops else set()
            rd = set().union(*[regs_of(o) for o in ops[1:]]) if len(ops) > 1 else set()
            if "saveexec" in mn: wr.add(("s", "exec"))
    else:
        raise ValueError("unknown instr " + ln)
    d["wr"], d["rd"] = wr, rd
    return d

def check_hazards(lines):
    ins = []
    for n, ln in enumerate(lines):
        p = parse(ln)
        if p is not None:
            p["n"] = n
            ins.append(p)
    probs = []
    def states(p):
        if p["mn"] == "s_nop": return int(p["ops"][0], 0) + 1
        return 1
    for i, c in enumerate(ins):
        dist = 0
        for j in range(i - 1, max(-1, i - 24), -1):
            p = ins[j]
            need = 0; why = ""
            vw = {r for r in p["wr"] if r[0] in "va"}
            sw = {r for r in p["wr"] if r[0] == "s"}
            if p["kind"] == "mfma":
                n_rw = {4: 8, 8: 12}[p["passes"]]
                if c["kind"] == "mfma":
                    if vw & c["srcab"]: need, why = n_rw, "mfma D->mfma AB"
                    elif vw & c["srcc"] and (vw != c["srcc"] or p["passes"] != c["passes"]): need, why = {4: 6, 8: 10}[p["passes"]], "mfma D->mfma C partial"
                elif c["kind"] in ("valu", "ds", "vmem"):
                    if vw & (c["rd"] | c["wr"]): need, why = n_rw, "mfma D->use"
                    if c["kind"] == "valu" and (p["srcc"] & c["wr"]):
                        k = {4: 3, 8: 7}[p["passes"]]
                        if k > need: need, why = k, "mfma C WAR"
            elif p["kind"] == "valu":
                if c["kind"] == "mfma" and vw & c["rd"]: need, why = 2, "valu->mfma"
                if c["kind"] == "mfma" and ("s", "exec") in sw: need, why = 4, "exec->mfma"
                if c["kind"] == "valu":
                    isdpp = "dpp" in c["mn"] or "row_" in c["mods"] or "quad_perm" in c["mods"]
                    if (isdpp or c["mn"].startswith("v_permlane")) and vw & c["rd"]: need, why = 2, "valu->dpp/permlane"
                    if c["mn"].startswith(("v_readlane", "v_readfirstlane")) and vw & c["rd"]: need, why = max(need, 1), "valu->readlane"
                    if p["mn"].startswith(TRANS) and vw & c["rd"] and not c["mn"].startswith(TRANS): need, why = max(need, 1), "trans->valu"
                    if sw & c["rd"]:
                        k = 4 if c["mn"].startswith(("v_readlane", "v_writelane")) else 2
                        if k > need: need, why = k, "valu sgpr->valu"
                    if ("sdwa" in p["mn"] and "dst_sel:DWORD" not in p["mods"]) and vw & (c["rd"] | c["wr"]): need, why = max(need, 1), "sdwa dst"
                    if ("s", "exec") in sw and isdpp: need, why = 5, "exec->dpp"
                if c["kind"] == "vmem" and sw & c["rd"]: need, why = 5, "valu sgpr->vmem"
            elif p["kind"] == "salu":
                if ("s", "m0") in sw and c.get("dma"): need, why = 1, "m0->dma"
            elif p["kind"] == "vmem":
                if p.get("sdata") and ("x4" in p["mn"] or "x3" in p["mn"]) and p["sdata"] & c["wr"]:
                    need, why = (2 if c["kind"] == "valu" else 1), "store data WAR"
            if need > dist:
                probs.append(f"line {c['n']}: [{c['text']}] after [{p['text']}] needs {need} has {dist} ({why})")
            dist += states(p)
            if dist >= 20: break
    return probs
```

```python
from asmlib import *

WS_H     = 0
WS_AGG   = 8 << 20
WS_STAMP = 12 << 20
WS_USED  = 16 << 20

LOG2E = 0x3fb8aa3b
INV2PI = 0x3e22f983

def cmul_sq(A, d, sq):
    A(f"v_mul_f32 {v(d)}, {v(sq+1)}, {v(sq+1)}")
    A(f"v_fma_f32 {v(d)}, {v(sq)}, {v(sq)}, -{v(d)}")
    A(f"v_mul_f32 {v(d+1)}, {v(sq)}, {v(sq+1)}")
    A(f"v_add_f32 {v(d+1)}, {v(d+1)}, {v(d+1)}")

def cmul(A, dr, di, ar, ai, br, bi):
    A(f"v_mul_f32 {v(dr)}, {v(ar)}, {v(br)}")
    A(f"v_mul_f32 {v(di)}, {v(ar)}, {v(bi)}")
    A(f"v_fma_f32 {v(dr)}, -{v(ai)}, {v(bi)}, {v(dr)}")
    A(f"v_fma_f32 {v(di)}, {v(ai)}, {v(br)}, {v(di)}")

def stamp(A, idx, opt):
    if not opt.get("stamps"): return
    A(f"s_memtime s[{60+2*idx}:{61+2*idx}]")

def gen_k1_gemm(A, opt):
    NSLOT = opt.get("nslot", 5)
    sX, sB, sW, sAG = 4, 8, 12, 24
    sRB, sCB, sWV, sWM, sWN = 16, 17, 18, 19, 20
    sK = 21
    sDBG = 22
    vDA, vDB = 8, 12
    vRA, vRB, vRA2, vRB2 = 16, 20, 24, 28
    vL, vC2, vL16, vL128, vL256, vWre, vWim = 32, 34, 36, 38, 40, 42, 44
    vLane, vHf = 46, 47
    vT = 48
    ACC = 64
    FX, FY = 128, 144
    UI = 160
    LB = 192
    PP = 208
    def acc(m, part): return ACC + 16 * (2 * m + part)

    A.label("L_k1_gemm")
    stamp(A, 0, opt)
    A("s_load_dwordx2 s[4:5], s[0:1], 0")
    A("s_load_dwordx4 s[28:31], s[0:1], 8")
    A("s_load_dwordx4 s[32:35], s[0:1], 24")
    A("s_load_dwordx2 s[36:37], s[0:1], 56")
    A("s_load_dwordx4 s[40:43], s[0:1], 128")
    A(f"v_lshrrev_b32 {v(vT)}, 6, v0")
    A(f"v_and_b32 {v(vLane)}, 63, v0")
    A(f"v_readfirstlane_b32 s{sWV}, {v(vT)}")
    A("s_and_b32 s3, s2, 7")
    A("s_lshr_b32 s38, s2, 3")
    A(f"s_lshr_b32 s{sRB}, s3, 1")
    A(f"s_lshl_b32 s{sRB}, s{sRB}, 2")
    A("s_and_b32 s39, s38, 3")
    A(f"s_add_u32 s{sRB}, s{sRB}, s39")
    A(f"s_and_b32 s{sCB}, s3, 1")
    A(f"s_lshl_b32 s{sCB}, s{sCB}, 3")
    A("s_lshr_b32 s39, s38, 2")
    A(f"s_add_u32 s{sCB}, s{sCB}, s39")
    A(f"s_and_b32 s{sWM}, s{sWV}, 1")
    A(f"s_lshr_b32 s{sWN}, s{sWV}, 1")
    A(f"v_lshrrev_b32 {v(vHf)}, 5, {v(vLane)}")
    rr, cc, t1, t2 = vT, vT + 1, vT + 2, vT + 3
    A(f"v_lshrrev_b32 {v(rr)}, 3, {v(vLane)}")
    A(f"v_and_b32 {v(cc)}, 7, {v(vLane)}")
    A(f"v_lshrrev_b32 {v(t1)}, 1, {v(rr)}")
    A(f"v_xor_b32 {v(cc)}, {v(cc)}, {v(t1)}")
    A(f"v_lshlrev_b32 {v(cc)}, 4, {v(cc)}")
    A(f"v_lshrrev_b32 {v(t1)}, 2, {v(rr)}")
    A(f"v_lshlrev_b32 {v(t1)}, 5, {v(t1)}")
    A(f"v_and_b32 {v(t2)}, 1, {v(rr)}")
    A(f"v_lshl_add_u32 {v(t1)}, {v(t2)}, 4, {v(t1)}")
    A(f"v_bfe_u32 {v(t2)}, {v(rr)}, 1, 1")
    A(f"v_add_u32 {v(t1)}, {v(t1)}, {v(t2)}")
    A(f"s_lshl_b32 s38, s{sWN}, 6")
    A(f"s_lshl_b32 s39, s{sWM}, 3")
    A("s_add_u32 s38, s38, s39")
    A(f"s_lshl_b32 s39, s{sRB}, 7")
    A("s_add_u32 s38, s38, s39")
    A(f"v_add_u32 {v(t1)}, s38, {v(t1)}")
    A(f"v_lshl_add_u32 {v(t1)}, {v(t1)}, 11, {v(cc)}")
    for q in range(4):
        add = 4096 * q - 1024 * q + 3072
        if q & 1:
            A(f"v_xor_b32 {v(t2)}, 64, {v(t1)}")
            A(f"v_add_u32 {v(vDA+q)}, {add}, {v(t2)}")
        else:
            A(f"v_add_u32 {v(vDA+q)}, {add}, {v(t1)}")
    A(f"s_lshl_b32 s38, s{sCB}, 6")
    A(f"s_lshl_b32 s39, s{sWN}, 5")
    A("s_add_u32 s38, s38, s39")
    A(f"v_add_u32 {v(t1)}, s38, {v(rr)}")
    A(f"v_lshl_add_u32 {v(t1)}, {v(t1)}, 11, {v(cc)}")
    for q in range(4):
        add = 8 * 2048 * q - 1024 * q + 3072
        if q & 1:
            A(f"v_xor_b32 {v(t2)}, 64, {v(t1)}")
            A(f"v_add_u32 {v(vDB+q)}, {add}, {v(t2)}")
        else:
            A(f"v_add_u32 {v(vDB+q)}, {add}, {v(t1)}")
    A("s_waitcnt lgkmcnt(0)")
    A(f"s_sub_u32 s{sX}, s4, 3072")
    A(f"s_subb_u32 s{sX+1}, s5, 0")
    A(f"s_mov_b32 s{sX+2}, {4194304 + 3072}")
    A(f"s_mov_b32 s{sX+3}, 0x20000")
    A(f"s_cmp_eq_u32 s{sWM}, 0")
    A(f"s_cselect_b32 s{sB}, s32, s34")
    A(f"s_cselect_b32 s{sB+1}, s33, s35")
    A(f"s_sub_u32 s{sB}, s{sB}, 3072")
    A(f"s_subb_u32 s{sB+1}, s{sB+1}, 0")
    A(f"s_mov_b32 s{sB+2}, {2097152 + 3072}")
    A(f"s_mov_b32 s{sB+3}, 0x20000")
    A(f"s_mov_b32 s{sW}, s42")
    A(f"s_mov_b32 s{sW+1}, s43")
    A(f"s_mov_b32 s{sW+2}, {WS_USED}")
    A(f"s_mov_b32 s{sW+3}, 0x20000")
    A(f"s_lshl_b32 s38, s{sCB}, 13")
    A(f"s_add_u32 s38, s38, {WS_AGG}")
    A(f"s_add_u32 s{sAG}, s42, s38")
    A(f"s_addc_u32 s{sAG+1}, s43, 0")
    A(f"s_mov_b32 s{sAG+2}, 8192")
    A(f"s_mov_b32 s{sAG+3}, 0x20000")
    A(f"s_mov_b32 s{sDBG}, s40")
    A(f"s_mov_b32 s{sDBG+1}, s41")
    A(f"s_lshl_b32 s44, s{sWV}, 12")
    if opt.get("rot"):
        cx, cr, cc_ = opt["rot"]
        A("s_and_b32 s45, s2, 7")
        A(f"s_mul_i32 s45, s45, {cx*128}")
        A(f"s_mul_i32 s38, s{sRB}, {cr*128}")
        A("s_add_u32 s45, s45, s38")
        A(f"s_mul_i32 s38, s{sCB}, {cc_*128}")
        A("s_add_u32 s45, s45, s38")

    vAgO = 56
    A(f"v_and_b32 {v(t1)}, 31, {v(vLane)}")
    A(f"v_lshlrev_b32 {v(vAgO)}, 3, {v(t1)}")
    A(f"s_sub_u32 s38, 15, s{sRB}")
    A("s_lshl_b32 s38, s38, 9")
    A(f"s_lshl_b32 s39, s{sWN}, 8")
    A("s_add_u32 s38, s38, s39")
    A(f"v_add_u32 {v(vAgO)}, s38, {v(vAgO)}")
    A(f"v_mov_b32 {v(58)}, -1")
    A(f"v_mov_b32 {v(59)}, -1")
    if not opt.get("no_epi"):
        A(f"buffer_store_dwordx2 {v(58,2)}, {v(vAgO)}, {s(sAG,4)}, 0 offen sc1")

    def dma_item(i, q):
        st, op = i >> 1, i & 1
        slot = i % NSLOT
        out = []
        if q == 0:
            out.append(f"s_add_u32 m0, s44, {slot * 16384}")
            if opt.get("rot"):
                out.append(f"s_add_u32 s{sK}, s45, {st * 128}")
                out.append(f"s_and_b32 s{sK}, s{sK}, 2047")
            else:
                out.append(f"s_mov_b32 s{sK}, {st * 128}")
        vo = (vDB if op else vDA) + q
        srd = sB if op else sX
        out.append(f"buffer_load_dwordx4 {v(vo)}, {s(srd,4)}, s{sK} offen offset:{1024*q} lds")
        return out

    nitems = 32
    for i in range(min(NSLOT - 2 + 2, nitems) if False else NSLOT - 2):
        for q in range(4):
            for ln in dma_item(i, q): A(ln)
    for i in range(NSLOT - 2, NSLOT):
        for q in range(4):
            for ln in dma_item(i, q): A(ln)

    A(f"s_lshl_b32 s38, s{sCB}, 6")
    A(f"s_lshl_b32 s39, s{sWN}, 5")
    A("s_add_u32 s38, s38, s39")
    A(f"v_add_lshl_u32 {v(t2)}, s38, {v(t1)}, 1")
    A(f"global_load_ushort {v(60)}, {v(t2)}, s[28:29]")
    A(f"global_load_ushort {v(61)}, {v(t2)}, s[30:31]")
    A(f"global_load_ushort {v(62)}, {v(t2)}, s[36:37]")

    A(f"v_bfe_u32 {v(t2)}, {v(vLane)}, 1, 3")
    A(f"v_xor_b32 {v(t2)}, {v(t2)}, {v(vHf)}")
    A(f"v_lshlrev_b32 {v(t2)}, 4, {v(t2)}")
    A(f"v_lshl_add_u32 {v(t2)}, {v(t1)}, 7, {v(t2)}")
    A(f"s_lshl_b32 s38, s{sWM}, 13")
    A(f"s_lshl_b32 s39, s{sWN}, 13")
    for kk in range(4):
        A(f"v_xor_b32 {v(vT)}, {32*kk}, {v(t2)}")
        A(f"v_add_u32 {v(vRA+kk)}, s38, {v(vT)}")
        A(f"v_add_u32 {v(vRB+kk)}, s39, {v(vT)}")
        A(f"v_add_u32 {v(vRA2+kk)}, 0x10000, {v(vRA+kk)}")
        A(f"v_add_u32 {v(vRB2+kk)}, 0x10000, {v(vRB+kk)}")
        if NSLOT > 8:
            A(f"v_add_u32 {v(244+kk)}, 0x20000, {v(vRA+kk)}")
            A(f"v_add_u32 {v(248+kk)}, 0x20000, {v(vRB+kk)}")

    def rd_frags(st, kk, F):
        out = []
        for op, (r1, r2) in enumerate(((vRA, vRA2), (vRB, vRB2))):
            slot = (2 * st + op) % NSLOT
            off = slot * 16384
            base = r1
            if off >= 131072:
                off -= 131072; base = 244 + 4 * op
            elif off >= 65536:
                off -= 65536; base = r2
            for t in range(2):
                out.append(f"ds_read_b128 {v(F + 8*op + 4*t, 4)}, {v(base+kk)} offset:{off + 4096*t}")
        return out
    def mfmas(F, first):
        out = []
        for m in range(2):
            for part in range(2):
                c = "0" if first else v(acc(m, part), 16)
                out.append(f"v_mfma_f32_32x32x16_bf16 {v(acc(m,part),16)}, {v(F+4*m,4)}, {v(F+8+4*part,4)}, {c}")
        return out

    def params():
        P = []
        B = Asm()
        lre, lim, ldt = 60, 61, 62
        B(f"v_lshlrev_b32 {v(lre)}, 16, {v(lre)}")
        B(f"v_lshlrev_b32 {v(lim)}, 16, {v(lim)}")
        B(f"v_lshlrev_b32 {v(ldt)}, 16, {v(ldt)}")
        t = vT
        B(f"v_mul_f32 {v(t)}, {LOG2E}, {v(ldt)}")
        B(f"v_exp_f32 {v(t)}, {v(t)}")
        B("s_nop 0")
        B(f"v_cvt_pk_bf16_f32 {v(t)}, {v(t)}, {v(t)}")
        B(f"v_lshlrev_b32 {v(t)}, 16, {v(t)}")
        B(f"v_mul_f32 {v(t+1)}, {v(t)}, {v(lre)}")
        B(f"v_mul_f32 {v(t+2)}, {v(t)}, {v(lim)}")
        B(f"v_mul_f32 {v(t+1)}, {LOG2E}, {v(t+1)}")
        B(f"v_exp_f32 {v(t+1)}, {v(t+1)}")
        B(f"v_mul_f32 {v(t+2)}, {INV2PI}, {v(t+2)}")
        B(f"v_rndne_f32 {v(t+3)}, {v(t+2)}")
        B(f"v_sub_f32 {v(t+2)}, {v(t+2)}, {v(t+3)}")
        B(f"v_cos_f32 {v(t+3)}, {v(t+2)}")
        B(f"v_sin_f32 {v(t+4)}, {v(t+2)}")
        B(f"v_mul_f32 {v(t+5)}, {v(lre)}, {v(lre)}")
        B(f"v_mul_f32 {v(vL)}, {v(t+1)}, {v(t+3)}")
        B(f"v_mul_f32 {v(vL+1)}, {v(t+1)}, {v(t+4)}")
        B(f"v_fma_f32 {v(t+5)}, {v(lim)}, {v(lim)}, {v(t+5)}")
        B(f"v_rcp_f32 {v(t+5)}, {v(t+5)}")
        B(f"v_add_f32 {v(t)}, -1.0, {v(vL)}")
        B(f"v_add_f32 {v(t+5)}, {v(t+5)}, {v(t+5)}")
        B(f"v_mul_f32 {v(t+1)}, {v(t)}, {v(lre)}")
        B(f"v_fma_f32 {v(t+1)}, {v(vL+1)}, {v(lim)}, {v(t+1)}")
        B(f"v_mul_f32 {v(t+2)}, {v(vL+1)}, {v(lre)}")
        B(f"v_fma_f32 {v(t+2)}, -{v(t)}, {v(lim)}, {v(t+2)}")
        B(f"v_mul_f32 {v(vC2)}, {v(t+1)}, {v(t+5)}")
        B(f"v_mul_f32 {v(vC2+1)}, {v(t+2)}, {v(t+5)}")
        cmul_sq(B, t, vL)
        cmul_sq(B, t + 2, t)
        cmul_sq(B, t, t + 2)
        cmul_sq(B, vL16, t)
        cmul_sq(B, t, vL16)
        cmul_sq(B, t + 2, t)
        cmul_sq(B, vL128, t + 2)
        cmul_sq(B, vL256, vL128)
        B(f"v_cmp_eq_u32 vcc, 1, {v(vHf)}")
        B(f"s_cmp_eq_u32 s{sWM}, 1")
        B("s_cselect_b64 s[38:39], -1, 0")
        B(f"v_cndmask_b32 {v(t)}, 1.0, {v(t)}, vcc")
        B(f"v_cndmask_b32 {v(t+1)}, 0, {v(t+1)}, vcc")
        B(f"v_cndmask_b32 {v(t+2)}, 1.0, {v(t+2)}, s[38:39]")
        B(f"v_cndmask_b32 {v(t+3)}, 0, {v(t+3)}, s[38:39]")
        cmul(B, vWre, vWim, t, t + 1, t + 2, t + 3)
        cmul(B, vWre + 1, vWim + 1, vWre, vWim, vL16, vL16 + 1)
        return B.lines

    do_mfma = not opt.get("no_mfma")
    do_lds = not opt.get("no_lds")
    PST = NSLOT // 2 + 1
    npar = 3
    par_lines = params()
    stamp(A, 1, opt)
    for st in range(16):
        issued = min(nitems, NSLOT + 2 * st - (2 if st > 0 else 0) + (0 if st == 0 else 0))
        issued = NSLOT if st == 0 else min(nitems, NSLOT + 2 * (st - 1))
        allowed = max(0, issued - (2 * st + 2)) * 4
        if st == 0:
            allowed += npar
        elif 2 * st + 2 <= NSLOT:
            allowed += npar
        if st == 14 and not opt.get("no_epi"):
            pass
        A(f"s_waitcnt vmcnt({allowed}) lgkmcnt(0)")
        A("s_barrier")
        if st == 0: stamp(A, 2, opt)
        dm = []
        if st >= 1:
            for i in (NSLOT + 2 * (st - 1), NSLOT + 2 * (st - 1) + 1):
                if i < nitems:
                    for q in range(4):
                        dm.append(dma_item(i, q))
        extra = []
        if st == 1 and not opt.get("no_epi"):
            extra = ["SIGNAL"]
        seq = []
        groups = []
        groups.append((rd_frags(st, 0, FX), mfmas(FY, False) if st > 0 else [], None))
        groups.append((rd_frags(st, 1, FY), mfmas(FX, st == 0), 4))
        groups.append((rd_frags(st, 2, FX), mfmas(FY, False), 4))
        groups.append((rd_frags(st, 3, FY), mfmas(FX, False), 4))
        di = 0
        for g, (rds, mf, wt) in enumerate(groups):
            if do_lds:
                for r in rds: A(r)
                if wt is not None: A(f"s_waitcnt lgkmcnt({wt})")
            for k, m in enumerate(mf):
                if do_mfma: A(m)
                if k in (0, 2) and di < len(dm):
                    for ln in dm[di]: A(ln)
                    di += 1
                if st == PST and par_lines:
                    for _ in range(6):
                        if par_lines: A(par_lines.pop(0))
            if not mf:
                pass
        while di < len(dm):
            for ln in dm[di]: A(ln)
            di += 1
        if st == PST:
            while par_lines: A(par_lines.pop(0))
        if extra:
            A(f"s_cmp_lg_u32 s{sWV}, 0")
            A("s_cbranch_scc1 L_k1_nosig")
            A(f"s_lshl_b32 s38, s{sCB}, 2")
            A(f"v_mov_b32 {v(58)}, s38")
            A(f"v_mov_b32 {v(59)}, 1")
            A("s_mov_b64 exec, 1")
            A(f"global_atomic_add {v(58)}, {v(59)}, s[{sDBG}:{sDBG+1}] sc1")
            A("s_mov_b64 exec, -1")
            A.label("L_k1_nosig")
        if st == 15 and not opt.get("no_epi"):
            A(f"s_lshl_b32 s38, s{sCB}, 2")
            A(f"v_mov_b32 {v(58)}, s38")
            A(f"global_load_dword {v(57)}, {v(58)}, s[{sDBG}:{sDBG+1}] sc1")
    A("s_waitcnt lgkmcnt(0)")
    if do_mfma:
        for m in mfmas(FY, False): A(m)
    stamp(A, 3, opt)
    if opt.get("no_epi"):
        A.nop(16)
        A(f"v_lshlrev_b32 {v(vT)}, 4, v0")
        A(f"s_lshl_b32 s38, s2, 12")
        A(f"buffer_store_dwordx4 {v(ACC,4)}, {v(vT)}, {s(sW,4)}, s38 offen")
    else:
        gen_k1_epilogue(A, opt, locals())
    stamp(A, 7, opt)
    if opt.get("stamps"):
        A("s_waitcnt lgkmcnt(0) vmcnt(0)")
        A("s_memtime s[76:77]")
        A("s_waitcnt lgkmcnt(0)")
        for i in range(9):
            A(f"v_mov_b32 {v(100+i)}, s{60+2*i}")
        A("s_memrealtime s[78:79]")
        A("s_waitcnt lgkmcnt(0)")
        A(f"v_mov_b32 {v(109)}, s78")
        A(f"s_lshl_b32 s38, s2, 2")
        A(f"s_add_u32 s38, s38, s{sWV}")
        A(f"s_lshl_b32 s38, s38, 6")
        A(f"s_add_u32 s38, s38, {WS_STAMP}")
        A(f"v_mov_b32 {v(vT)}, 0")
        A("s_mov_b64 exec, 1")
        A(f"buffer_store_dwordx4 {v(100,4)}, {v(vT)}, {s(sW,4)}, s38 offen")
        A(f"buffer_store_dwordx4 {v(104,4)}, {v(vT)}, {s(sW,4)}, s38 offen offset:16")
        A(f"buffer_store_dwordx2 {v(108,2)}, {v(vT)}, {s(sW,4)}, s38 offen offset:32")
    A("s_endpgm")

def pk_fma(d, a, asel, b, c, neg=False):
    n = " neg_lo:[1,0,0] neg_hi:[1,0,0]" if neg else ""
    return f"v_pk_fma_f32 {v(d,2)}, {v(a,2)}, {v(b,2)}, {v(c,2)} op_sel:[{asel},0,0] op_sel_hi:[{asel},1,1]{n}"
def pk_mul(d, a, asel, b):
    return f"v_pk_mul_f32 {v(d,2)}, {v(a,2)}, {v(b,2)} op_sel:[{asel},0] op_sel_hi:[{asel},1]"

def gen_k1_epilogue(A, opt, L):
    g = lambda n: L[n]
    NSLOT = g("NSLOT"); acc = g("acc"); vT = g("vT"); vL = g("vL"); vC2 = g("vC2"); vL16 = g("vL16")
    vL128 = g("vL128"); vL256 = g("vL256"); vWre = g("vWre"); vWim = g("vWim"); vLane = g("vLane"); vHf = g("vHf")
    UI = g("UI"); LB = g("LB"); PP = g("PP"); sAG = g("sAG"); sW = g("sW"); sRB = g("sRB"); sCB = g("sCB")
    sWV = g("sWV"); sWM = g("sWM"); sWN = g("sWN"); sDBG = g("sDBG"); vAgO = g("vAgO"); FX = g("FX")
    used = {30 % NSLOT, 31 % NSLOT}
    free = [x for x in range(NSLOT) if x not in used]
    base = None
    for x in free:
        if x + 1 in free and x + 2 in free: base = x * 16384; break
    if base is None:
        A("s_barrier"); base = 0
    EX = base
    TR = base + 4096
    def ure(q): return acc(q >> 3, 0) + 2 * (q & 7)
    def uim(q): return acc(q >> 3, 1) + 2 * (q & 7)
    hr, hi, tr_, ti = vT, vT + 2, vT + 4, vT + 6
    ch = FX; ea = FX + 1; eb = FX + 2; la = FX + 3; la2 = FX + 4; wa = FX + 5; ra = FX + 6; ga = FX + 7; t9 = FX + 8
    A(f"v_and_b32 {v(ch)}, 31, {v(vLane)}")
    A(f"s_lshl_b32 s38, s{sWN}, 8")
    A(f"s_add_u32 s38, s38, {EX}")
    A(f"v_lshl_add_u32 {v(eb)}, {v(ch)}, 3, s38")
    A(f"s_lshl_b32 s39, s{sWM}, 11")
    A(f"v_lshl_add_u32 {v(ea)}, {v(vHf)}, 10, {v(eb)}")
    A(f"v_add_u32 {v(ea)}, s39, {v(ea)}")
    A(f"v_lshl_add_u32 {v(la)}, {v(vHf)}, 9, {v(vAgO)}")
    A(f"v_add_u32 {v(la)}, 512, {v(la)}")
    A(f"v_add_u32 {v(la2)}, 4096, {v(la)}")
    A(f"s_mul_i32 s38, s{sWV}, 9216")
    A(f"s_add_u32 s38, s38, {TR}")
    A(f"v_mul_u32_u24 {v(wa)}, 144, {v(ch)}")
    A(f"v_lshl_add_u32 {v(wa)}, {v(vHf)}, 6, {v(wa)}")
    A(f"v_add_u32 {v(wa)}, s38, {v(wa)}")
    A(f"v_bfe_u32 {v(ra)}, {v(vLane)}, 2, 2")
    A(f"v_lshl_add_u32 {v(ra)}, {v(vHf)}, 3, {v(ra)}")
    A(f"v_mul_u32_u24 {v(ra)}, 144, {v(ra)}")
    A(f"v_bfe_u32 {v(t9)}, {v(vLane)}, 4, 1")
    A(f"v_lshl_add_u32 {v(ra)}, {v(t9)}, 5, {v(ra)}")
    A(f"v_and_b32 {v(t9)}, 3, {v(vLane)}")
    A(f"v_lshl_add_u32 {v(ra)}, {v(t9)}, 3, {v(ra)}")
    A(f"v_add_u32 {v(ra)}, s38, {v(ra)}")
    A(f"v_lshlrev_b32 {v(ga)}, 4, {v(vLane)}")
    for q in range(1, 16):
        pr = ure(0) if q == 1 else hr
        pi = uim(0) if q == 1 else hi
        A(pk_fma(tr_, vL, 1, pi, ure(q), neg=True))
        A(pk_fma(ti, vL, 1, pr, uim(q)))
        A(pk_fma(hr, vL, 0, pr, tr_))
        A(pk_fma(hi, vL, 0, pi, ti))
    A(f"ds_write_b64 {v(ea)}, {v(hr,2)}")
    A(f"ds_write_b64 {v(ea)}, {v(hi,2)} offset:512")
    A("s_waitcnt vmcnt(0) lgkmcnt(0)")
    A("s_barrier")
    for sp in range(4):
        A(f"ds_read_b64 {v(PP + 4*sp, 2)}, {v(eb)} offset:{sp*1024}")
        A(f"ds_read_b64 {v(PP + 4*sp + 2, 2)}, {v(eb)} offset:{sp*1024 + 512}")
    A.label("L_k1_clr")
    A(f"v_readfirstlane_b32 s38, v57")
    A("s_nop 1")
    A("s_cmp_ge_u32 s38, 16")
    A("s_cbranch_scc1 L_k1_clr_ok")
    A("s_sleep 2")
    A(f"global_load_dword v57, v58, s[{sDBG}:{sDBG+1}] sc1")
    A("s_waitcnt vmcnt(0)")
    A("s_branch L_k1_clr")
    A.label("L_k1_clr_ok")
    PQ = PP + 16
    def er(sx): return PP + 4 * (sx >> 1) + (sx & 1)
    def ei(sx): return er(sx) + 2
    def pr_(sx): return er(0) if sx == 1 else PQ + 2 * sx
    def pi_(sx): return ei(0) if sx == 1 else PQ + 2 * sx + 1
    A("s_waitcnt lgkmcnt(0)")
    for sx in range(1, 8):
        d = sx + 1
        A(f"v_fma_f32 {v(pr_(d))}, -{v(vL16+1)}, {v(pi_(sx))}, {v(er(sx))}")
        A(f"v_fma_f32 {v(pi_(d))}, {v(vL16+1)}, {v(pr_(sx))}, {v(ei(sx))}")
        A(f"v_fma_f32 {v(pr_(d))}, {v(vL16)}, {v(pr_(sx))}, {v(pr_(d))}")
        A(f"v_fma_f32 {v(pi_(d))}, {v(vL16)}, {v(pi_(sx))}, {v(pi_(d))}")
    A(f"s_mov_b32 s38, 0xfffffffe")
    A(f"v_min_u32 {v(tr_)}, s38, {v(pr_(8))}")
    A(f"v_min_u32 {v(tr_+1)}, s38, {v(pi_(8))}")
    A(f"s_cmp_lg_u32 s{sWM}, 0")
    A("s_cbranch_scc1 L_k1_nopub")
    A(f"buffer_store_dwordx2 {v(tr_,2)}, {v(vAgO)}, {s(sAG,4)}, 0 offen sc1")
    A.label("L_k1_nopub")
    stamp(A, 4, opt)
    def lb_loads():
        for i in range(8):
            A(f"buffer_load_dwordx2 {v(LB+2*i,2)}, {v(la if i < 4 else la2)}, {s(sAG,4)}, 0 offen offset:{1024*(i&3)} sc1")
    lb_loads()
    A(f"v_cmp_eq_u32 vcc, 1, {v(vHf)}")
    A(f"s_cmp_eq_u32 s{sWM}, 1")
    A("s_cselect_b64 s[38:39], -1, 0")
    for e in range(2):
        for (dst, f) in ((hr + e, pr_), (hi + e, pi_)):
            a0 = "0" if e == 0 else v(f(1))
            A(f"v_cndmask_b32 {v(dst)}, {a0}, {v(f(2+e))}, vcc")
            A(f"v_cndmask_b32 {v(t9)}, {v(f(4+e))}, {v(f(6+e))}, vcc")
            A(f"v_cndmask_b32 {v(dst)}, {v(dst)}, {v(t9)}, s[38:39]")
    for q in range(16):
        A(pk_mul(UI + 2*q, vC2, 0, uim(q)))
        A(pk_fma(UI + 2*q, vC2, 1, ure(q), UI + 2*q))
        A(pk_mul(ure(q), vC2, 0, ure(q)))
        A(pk_fma(ure(q), vC2, 1, uim(q), ure(q), neg=True))
    A.label("L_k1_poll")
    A("s_waitcnt vmcnt(0)")
    A(f"v_max3_u32 {v(t9)}, {v(LB)}, {v(LB+1)}, {v(LB+2)}")
    for i in range(3, 15, 2):
        A(f"v_max3_u32 {v(t9)}, {v(t9)}, {v(LB+i)}, {v(LB+i+1)}")
    A(f"v_max_u32 {v(t9)}, {v(t9)}, {v(LB+15)}")
    A(f"v_cmp_eq_u32 vcc, -1, {v(t9)}")
    A("s_nop 1")
    A("s_cmp_eq_u64 vcc, 0")
    A("s_cbranch_scc1 L_k1_got")
    lb_loads()
    A("s_branch L_k1_poll")
    A.label("L_k1_got")
    stamp(A, 5, opt)
    cr_, ci_ = LB + 14, LB + 15
    for i in range(6, -1, -1):
        ar, ai = LB + 2 * i, LB + 2 * i + 1
        A(f"v_fma_f32 {v(ar)}, -{v(vL256+1)}, {v(ci_)}, {v(ar)}")
        A(f"v_fma_f32 {v(ai)}, {v(vL256+1)}, {v(cr_)}, {v(ai)}")
        A(f"v_fma_f32 {v(ar)}, {v(vL256)}, {v(cr_)}, {v(ar)}")
        A(f"v_fma_f32 {v(ai)}, {v(vL256)}, {v(ci_)}, {v(ai)}")
        cr_, ci_ = ar, ai
    A(f"v_mov_b32 {v(LB+2)}, {v(LB)}")
    A(f"v_mov_b32 {v(LB+3)}, {v(LB+1)}")
    A("s_nop 1")
    A(f"v_permlane32_swap_b32 {v(LB)}, {v(LB+2)}")
    A(f"v_permlane32_swap_b32 {v(LB+1)}, {v(LB+3)}")
    A("s_nop 0")
    A(f"v_fma_f32 {v(LB)}, -{v(vL128+1)}, {v(LB+3)}, {v(LB)}")
    A(f"v_fma_f32 {v(LB+1)}, {v(vL128+1)}, {v(LB+2)}, {v(LB+1)}")
    A(f"v_fma_f32 {v(LB)}, {v(vL128)}, {v(LB+2)}, {v(LB)}")
    A(f"v_fma_f32 {v(LB+1)}, {v(vL128)}, {v(LB+3)}, {v(LB+1)}")
    A(pk_fma(hr, LB, 0, vWre, hr))
    A(pk_fma(hi, LB, 0, vWim, hi))
    A(pk_fma(hr, LB, 1, vWim, hr, neg=True))
    A(pk_fma(hi, LB, 1, vWre, hi))
    A(pk_mul(tr_, vC2, 0, hr))
    A(pk_mul(ti, vC2, 0, hi))
    A(pk_fma(tr_, vC2, 1, hi, tr_, neg=True))
    A(pk_fma(ti, vC2, 1, hr, ti))
    PK = LB
    def pk_out(part, e, j): return PK + ((part * 2 + e) * 8 + j)
    for q in range(16):
        pr = tr_ if q == 0 else ure(q - 1)
        pi = ti if q == 0 else UI + 2 * (q - 1)
        A(pk_fma(ure(q), vL, 1, pi, ure(q), neg=True))
        A(pk_fma(UI + 2*q, vL, 1, pr, UI + 2*q))
        A(pk_fma(ure(q), vL, 0, pr, ure(q)))
        A(pk_fma(UI + 2*q, vL, 0, pi, UI + 2*q))
        if q & 1:
            j = q >> 1
            for e in range(2):
                A(f"v_cvt_pk_bf16_f32 {v(pk_out(0,e,j))}, {v(ure(q-1)+e)}, {v(ure(q)+e)}")
                A(f"v_cvt_pk_bf16_f32 {v(pk_out(1,e,j))}, -{v(UI+2*(q-1)+e)}, -{v(UI+2*q+e)}")
        if q in (7, 15):
            jj = q >> 3
            for part in range(2):
                for e in range(2):
                    A(f"ds_write_b128 {v(wa)}, {v(pk_out(part,e,4*jj),4)} offset:{part*4608 + e*32 + jj*16}")
    stamp(A, 6, opt)
    A("s_waitcnt lgkmcnt(0)")
    A(f"s_lshl_b32 s38, s{sRB}, 19")
    A(f"s_lshl_b32 s39, s{sCB}, 15")
    A("s_add_u32 s38, s38, s39")
    A(f"s_lshl_b32 s39, s{sWN}, 11")
    A("s_add_u32 s38, s38, s39")
    A(f"s_lshl_b32 s39, s{sWM}, 14")
    A("s_add_u32 s38, s38, s39")
    OUT = 64
    k = 0
    for part in range(2):
        for mt in range(2):
            for h16 in range(2):
                for rd in range(2):
                    A(f"ds_read_b64_tr_b16 {v(OUT + 4*k + 2*rd, 2)}, {v(ra)} offset:{part*4608 + h16*2304 + rd*576 + mt*64}")
                k += 1
    k = 0
    stf = opt.get("hstore", "")
    for part in range(2):
        for mt in range(2):
            A(f"s_add_u32 s39, s38, {part*4096 + mt*8192}")
            for h16 in range(2):
                A(f"s_waitcnt lgkmcnt({14 - 2*k})")
                A(f"buffer_store_dwordx4 {v(OUT + 4*k, 4)}, {v(ga)}, {s(sW,4)}, s39 offen offset:{h16*1024} {stf}")
                k += 1


def gen_k1_prefetch(A, opt):
    A("s_cmp_ge_u32 s2, 512")
    A("s_cbranch_scc1 L_pf_done")
    A("s_load_dwordx2 s[4:5], s[0:1], 0")
    A("s_load_dwordx4 s[32:35], s[0:1], 24")
    A("v_lshrrev_b32 v1, 6, v0")
    A("v_and_b32 v2, 63, v0")
    A("v_readfirstlane_b32 s18, v1")
    A("s_and_b32 s3, s2, 7")
    A("s_bfe_u32 s38, s2, 0x50003")
    A("s_cmp_eq_u32 s18, 3")
    A("s_cbranch_scc1 L_pf_done")
    A("s_lshr_b32 s16, s3, 1")
    A("s_and_b32 s17, s3, 1")
    A("s_cmp_eq_u32 s18, 0")
    A("s_cselect_b32 s16, s16, s17")
    A("s_lshl_b32 s16, s16, 9")
    A("s_lshl_b32 s38, s38, 4")
    A("s_add_u32 s16, s16, s38")
    A("v_lshrrev_b32 v3, 2, v2")
    A("v_add_u32 v3, s16, v3")
    A("v_lshlrev_b32 v3, 11, v3")
    A("v_and_b32 v4, 3, v2")
    A("v_lshl_add_u32 v3, v4, 7, v3")
    A("s_waitcnt lgkmcnt(0)")
    A("s_cmp_eq_u32 s18, 1")
    A("s_cselect_b32 s6, s32, s34")
    A("s_cselect_b32 s7, s33, s35")
    A("s_cmp_eq_u32 s18, 0")
    A("s_cselect_b32 s6, s4, s6")
    A("s_cselect_b32 s7, s5, s7")
    fl = opt["pf"] if isinstance(opt["pf"], str) else ""
    for i in range(4):
        A(f"global_load_dword v{8+i}, v3, s[6:7] offset:{512*i} {fl}")
    A("s_waitcnt vmcnt(0)")
    A.label("L_pf_done")
```

```python
from asmlib import *
from k1 import *
from side import *

class Vm:
    def __init__(self): self.ops = []
    def add(self, tag): self.ops.append(tag)
    def need(self, tag):
        idx = max(i for i, t in enumerate(self.ops) if t == tag)
        return len(self.ops) - 1 - idx

def gen_k2_gemm(A, opt):
    NS = opt.get("k2_ns", 5)
    HD = opt.get("k2_hd", 3)
    sC, sW, sX, sO = 4, 12, 8, 24
    sRB, sDB, sWV = 16, 17, 18
    sROT, sHB, sK, sH = 19, 20, 21, 22
    sTOP = 48
    vDC = 8
    vRC, vRC2 = 12, 16
    vH0, vH1 = 20, 21
    vLane, vHf, vG = 22, 23, 24
    vT = 26
    XR = 40
    GR = 56
    ACC = 64
    CF = 96
    E = 120
    DS = 152
    HR = 160
    assert HR + HD * 32 <= 256
    A.label("L_k2_gemm")
    stamp(A, 0, opt)
    A("s_load_dwordx2 s[28:29], s[0:1], 0")
    A("s_load_dwordx4 s[32:35], s[0:1], 40")
    A("s_load_dwordx2 s[36:37], s[0:1], 64")
    A("s_load_dwordx2 s[30:31], s[0:1], 120")
    A("s_load_dwordx4 s[40:43], s[0:1], 128")
    A(f"v_lshrrev_b32 {v(vT)}, 6, v0")
    A(f"v_and_b32 {v(vLane)}, 63, v0")
    A(f"v_readfirstlane_b32 s{sWV}, {v(vT)}")
    A("s_and_b32 s3, s2, 7")
    A("s_lshr_b32 s38, s2, 3")
    A(f"s_lshr_b32 s{sRB}, s3, 1")
    A(f"s_lshl_b32 s{sRB}, s{sRB}, 2")
    A("s_and_b32 s39, s38, 3")
    A(f"s_add_u32 s{sRB}, s{sRB}, s39")
    A(f"s_and_b32 s{sDB}, s3, 1")
    A(f"s_lshl_b32 s{sDB}, s{sDB}, 3")
    cx, cr, cc_ = opt.get("k2_rot", [8, 0, 0])
    A(f"s_mul_i32 s{sROT}, s3, {cx}")
    A("s_lshr_b32 s39, s38, 2")
    A(f"s_add_u32 s{sDB}, s{sDB}, s39")
    A(f"s_mul_i32 s39, s{sRB}, {cr}")
    A(f"s_add_u32 s{sROT}, s{sROT}, s39")
    A(f"s_mul_i32 s39, s{sDB}, {cc_}")
    A(f"s_add_u32 s{sROT}, s{sROT}, s39")
    A(f"v_lshrrev_b32 {v(vHf)}, 5, {v(vLane)}")
    rr, cc, t1, t2 = vT, vT + 1, vT + 2, vT + 3
    A(f"v_lshrrev_b32 {v(rr)}, 3, {v(vLane)}")
    A(f"v_and_b32 {v(cc)}, 7, {v(vLane)}")
    A(f"v_lshrrev_b32 {v(t1)}, 1, {v(rr)}")
    A(f"v_xor_b32 {v(cc)}, {v(cc)}, {v(t1)}")
    A(f"v_lshlrev_b32 {v(cc)}, 4, {v(cc)}")
    A(f"s_lshl_b32 s38, s{sDB}, 6")
    A(f"s_and_b32 s39, s{sWV}, 1")
    A("s_lshl_b32 s39, s39, 5")
    A("s_add_u32 s38, s38, s39")
    A(f"v_add_u32 {v(t1)}, s38, {v(rr)}")
    A(f"v_lshl_add_u32 {v(t1)}, {v(t1)}, 11, {v(cc)}")
    for q in range(4):
        add = 8 * 2048 * q - 1024 * q + 3072
        if q & 1:
            A(f"v_xor_b32 {v(t2)}, 64, {v(t1)}")
            A(f"v_add_u32 {v(vDC+q)}, {add}, {v(t2)}")
        else:
            A(f"v_add_u32 {v(vDC+q)}, {add}, {v(t1)}")
    A(f"v_lshlrev_b32 {v(vH0)}, 4, {v(vLane)}")
    A(f"v_add_u32 {v(vH1)}, 4096, {v(vH0)}")
    A(f"s_lshl_b32 s{sHB}, s{sRB}, 19")
    A(f"s_lshl_b32 s38, s{sWV}, 13")
    A(f"s_add_u32 s{sHB}, s{sHB}, s38")
    A(f"s_lshl_b32 s44, s{sWV}, 12")
    A("s_waitcnt lgkmcnt(0)")
    A(f"s_cmp_lt_u32 s{sWV}, 2")
    A(f"s_cselect_b32 s{sC}, s32, s34")
    A(f"s_cselect_b32 s{sC+1}, s33, s35")
    A(f"s_sub_u32 s{sC}, s{sC}, 3072")
    A(f"s_subb_u32 s{sC+1}, s{sC+1}, 0")
    A(f"s_mov_b32 s{sC+2}, {2097152 + 3072}")
    A(f"s_mov_b32 s{sC+3}, 0x20000")
    srd(A, sW, 42, 43, WS_USED)
    srd(A, sX, 28, 29, 4194304)
    srd(A, sO, 30, 31, 8388608)
    A(f"s_add_u32 s46, s42, {WS_TOP}")
    A("s_addc_u32 s47, s43, 0")
    A(f"s_load_dwordx8 s[{sTOP}:{sTOP+7}], s[46:47], 0")

    vm = Vm()
    def dma(st, q):
        out = []
        if q == 0:
            out.append(f"s_add_u32 m0, s44, {(st % NS) * 16384}")
            out.append(f"s_add_u32 s{sK}, s{sROT}, {st}")
            out.append(f"s_and_b32 s{sK}, s{sK}, 15")
            out.append(f"s_lshl_b32 s{sK}, s{sK}, 7")
        out.append(f"buffer_load_dwordx4 {v(vDC+q)}, {s(sC,4)}, s{sK} offen offset:{1024*q} lds")
        vm.add(("c", st))
        return out
    def hload(st, j):
        out = []
        if j == 0:
            out.append(f"s_add_u32 s{sH}, s{sROT}, {st}")
            out.append(f"s_and_b32 s{sH}, s{sH}, 15")
            out.append(f"s_lshl_b32 s{sH}, s{sH}, 15")
            out.append(f"s_add_u32 s{sH}, s{sH}, s{sHB}")
        r = HR + (st % HD) * 32 + 4 * j
        out.append(f"buffer_load_dwordx4 {v(r,4)}, {v(vH0 if j < 4 else vH1)}, {s(sW,4)}, s{sH} offen offset:{1024*(j&3)}")
        vm.add(("h", st, j))
        return out
    def emit(ls):
        for l in ls: A(l)
    for st in range(max(NS - 1, HD)):
        if st < NS - 1:
            for q in range(4): emit(dma(st, q))
        if st < HD:
            for j in range(8): emit(hload(st, j))
        if st == 1:
            A(f"v_lshrrev_b32 {v(t1)}, 4, {v(vLane)}")
            A(f"v_and_b32 {v(t2)}, 15, {v(vLane)}")
            vXo, vGo = vT + 4, vT + 5
            A(f"v_lshlrev_b32 {v(vXo)}, 11, {v(t1)}")
            A(f"v_lshl_add_u32 {v(vXo)}, {v(t2)}, 3, {v(vXo)}")
            A(f"v_lshlrev_b32 {v(vGo)}, 2, {v(t1)}")
            A(f"s_lshl_b32 s45, s{sRB}, 7")
            A(f"s_lshl_b32 s38, s{sWV}, 5")
            A("s_add_u32 s45, s45, s38")
            A("s_lshl_b32 s38, s45, 11")
            A(f"s_lshl_b32 s39, s{sDB}, 7")
            A("s_add_u32 s38, s38, s39")
            for i in range(8):
                A(f"buffer_load_dwordx2 {v(XR+2*i,2)}, {v(vXo)}, {s(sX,4)}, s38 offen")
                A(f"s_add_u32 s38, s38, 8192")
                vm.add("x")
            A("s_lshl_b32 s38, s45, 2")
            A(f"s_add_u32 s38, s38, {WS_G}")
            for i in range(8):
                A(f"buffer_load_dword {v(GR+i)}, {v(vGo)}, {s(sW,4)}, s38 offen offset:{16*i}")
                vm.add("x")
            A(f"v_and_b32 {v(vT+6)}, 31, {v(vLane)}")
            A(f"v_lshlrev_b32 {v(vT+6)}, 2, {v(vT+6)}")
            A(f"buffer_load_dword {v(vG)}, {v(vT+6)}, {s(sW,4)}, s38 offen")
            vm.add("x")
            A(f"v_lshl_add_u32 {v(vT+6)}, {v(t2)}, 3, s39")
            A(f"global_load_dwordx2 {v(DS+4,2)}, {v(vT+6)}, s[36:37]")
            vm.add("x")
    A(f"v_and_b32 {v(t1)}, 31, {v(vLane)}")
    A(f"v_bfe_u32 {v(t2)}, {v(vLane)}, 1, 3")
    A(f"v_xor_b32 {v(t2)}, {v(t2)}, {v(vHf)}")
    A(f"v_lshlrev_b32 {v(t2)}, 4, {v(t2)}")
    A(f"v_lshl_add_u32 {v(t2)}, {v(t1)}, 7, {v(t2)}")
    for kk in range(4):
        A(f"v_xor_b32 {v(vRC+kk)}, {32*kk}, {v(t2)}")
        A(f"v_add_u32 {v(vRC2+kk)}, 0x10000, {v(vRC+kk)}")
    A("s_mov_b32 s23, 0xffff0000")

    B = Asm()
    B(f"v_lshlrev_b32 {v(DS)}, 16, {v(DS+4)}")
    B(f"v_and_b32 {v(DS+1)}, s23, {v(DS+4)}")
    B(f"v_lshlrev_b32 {v(DS+2)}, 16, {v(DS+5)}")
    B(f"v_and_b32 {v(DS+3)}, s23, {v(DS+5)}")
    a0, a1, a2, a3, om = vT, vT + 1, vT + 2, vT + 3, vT + 4
    for i in range(8):
        B(f"v_sub_f32 {v(om)}, 1.0, {v(GR+i)}")
        rnd_bf16(B, om, om)
        for p in range(2):
            xr = XR + 2 * i + p
            B(f"v_lshlrev_b32 {v(a0)}, 16, {v(xr)}")
            B(f"v_and_b32 {v(a1)}, s23, {v(xr)}")
            B(f"v_mul_f32 {v(a2)}, {v(a0)}, {v(DS+2*p)}")
            B(f"v_mul_f32 {v(a3)}, {v(a1)}, {v(DS+2*p+1)}")
            B(f"v_cvt_pk_bf16_f32 {v(a2)}, {v(a2)}, {v(a3)}")
            B(f"v_mul_f32 {v(a0)}, {v(a0)}, {v(om)}")
            B(f"v_mul_f32 {v(a1)}, {v(a1)}, {v(om)}")
            B(f"v_cvt_pk_bf16_f32 {v(a0)}, {v(a0)}, {v(a1)}")
            B(f"v_and_b32 {v(a3)}, s23, {v(a2)}")
            B(f"v_lshlrev_b32 {v(a2)}, 16, {v(a2)}")
            B(f"v_and_b32 {v(a1)}, s23, {v(a0)}")
            B(f"v_lshlrev_b32 {v(a0)}, 16, {v(a0)}")
            B(f"v_fma_f32 {v(E+4*i+2*p)}, {v(GR+i)}, {v(a2)}, {v(a0)}")
            B(f"v_fma_f32 {v(E+4*i+2*p+1)}, {v(GR+i)}, {v(a3)}, {v(a1)}")
    elines = B.lines

    def creads(g):
        st, j = g >> 3, g & 7
        part, kk = j >> 2, j & 3
        off = (st % NS) * 16384 + part * 8192
        base = vRC
        if off >= 65536: off -= 65536; base = vRC2
        F = CF + (g % 3) * 8
        return [f"ds_read_b128 {v(F+4*n,4)}, {v(base+kk)} offset:{off + 4096*n}" for n in range(2)]
    stamp(A, 1, opt)
    A(f"s_waitcnt vmcnt({vm.need(('c', 0))}) lgkmcnt(0)")
    A("s_barrier")
    stamp(A, 2, opt)
    emit(creads(0)); emit(creads(1))
    for g in range(128):
        st, j = g >> 3, g & 7
        if g + 2 < 128:
            if (g + 2) % 8 == 0:
                A(f"s_waitcnt vmcnt({min(63, vm.need(('c', st + 1)))}) lgkmcnt(0)")
                A("s_barrier")
            emit(creads(g + 2))
            lg = 4
        else:
            lg = 2 if g == 126 else 0
        A(f"s_waitcnt vmcnt({min(63, vm.need(('h', st, j)))}) lgkmcnt({lg})")
        F = CF + (g % 3) * 8
        hr = HR + (st % HD) * 32 + 4 * j
        for n in range(2):
            c = "0" if g == 0 else v(ACC + 16 * n, 16)
            A(f"v_mfma_f32_32x32x16_bf16 {v(ACC+16*n,16)}, {v(F+4*n,4)}, {v(hr,4)}, {c}")
        if st + HD < 16:
            emit(hload(st + HD, j))
        gg = g + 2
        stb = gg >> 3
        if (gg & 7) in (0, 2, 4, 6) and stb >= 1 and stb + NS - 2 < 16 and False:
            pass
        tgt = stb + NS - 1
        if (gg & 1) == 0 and tgt < 16 and (stb >= 1 or True):
            q = (gg & 7) >> 1
            if stb == 0:
                if q == 1: emit(dma(tgt, 0))
                emit(dma(tgt, q))
            else:
                emit(dma(tgt, q))
        if g >= 40 and elines:
            if g == 40: assert vm.need("x") > vm.need(("h", st, j))
            for _ in range(4):
                if elines: A(elines.pop(0))
    assert not elines
    stamp(A, 3, opt)
    last = 15 % NS
    base = 16384 * (last + 1) if last + 3 < NS else 0
    assert (last + 3 < NS) or last >= 3
    wa, ra, oa = vT, vT + 1, vT + 2
    A(f"s_mul_i32 s38, s{sWV}, 8704")
    A(f"s_add_u32 s56, s38, {base}")
    A(f"v_and_b32 {v(t2+1)}, 31, {v(vLane)}")
    A(f"v_mul_u32_u24 {v(wa)}, 272, {v(t2+1)}")
    A(f"v_lshl_add_u32 {v(wa)}, {v(vHf)}, 4, {v(wa)}")
    A(f"v_add_u32 {v(wa)}, s56, {v(wa)}")
    vq, vd = vT + 5, vT + 6
    A(f"v_lshrrev_b32 {v(vq)}, 4, {v(vLane)}")
    A(f"v_and_b32 {v(vd)}, 15, {v(vLane)}")
    A(f"v_mul_u32_u24 {v(ra)}, 272, {v(vq)}")
    A(f"v_lshl_add_u32 {v(ra)}, {v(vd)}, 4, {v(ra)}")
    A(f"v_add_u32 {v(ra)}, s56, {v(ra)}")
    A(f"v_lshlrev_b32 {v(oa)}, 12, {v(vq)}")
    A(f"v_lshl_add_u32 {v(oa)}, {v(vd)}, 4, {v(oa)}")
    for n in range(2):
        for q in range(4):
            r = ACC + 16 * n + 4 * q
            for e in range(4):
                A(f"v_mul_f32 {v(r+e)}, {v(r+e)}, {v(vG)}")
            A(f"ds_write_b128 {v(wa)}, {v(r,4)} offset:{n*128 + q*32}")
    A("s_mov_b32 s57, 0")
    A.label("L_k2_fix")
    A("s_mov_b32 m0, s57")
    A("s_nop 0")
    A(f"s_movrels_b32 s58, s{sTOP}")
    A("s_and_b32 s59, s58, 0x7ff")
    A("s_sub_u32 s59, 2047, s59")
    A("s_sub_u32 s38, s59, s45")
    A("s_cmp_ge_u32 s38, 32")
    A("s_cbranch_scc1 L_k2_fixnext")
    Y = HR
    A(f"s_lshr_b32 s39, s{sDB}, 2")
    A("s_lshl_b32 s39, s39, 2")
    A(f"v_mov_b32 {v(Y+60)}, s39")
    A.label("L_k2_ypoll")
    A(f"global_load_dword {v(Y+61)}, {v(Y+60)}, s[40:41] sc1")
    A("s_waitcnt vmcnt(0)")
    A(f"v_readfirstlane_b32 s39, {v(Y+61)}")
    A("s_nop 1")
    A("s_cmp_ge_u32 s39, 56")
    A("s_cbranch_scc1 L_k2_ygo")
    A("s_sleep 2")
    A("s_branch L_k2_ypoll")
    A.label("L_k2_ygo")
    A(f"s_mul_i32 s39, s57, {56*4096}")
    A(f"s_lshl_b32 s3, s{sDB}, 8")
    A("s_add_u32 s39, s39, s3")
    A(f"s_add_u32 s39, s39, {WS_YP}")
    for it in range(14):
        A(f"buffer_load_dwordx4 {v(Y+4*it,4)}, {v(oa)}, {s(sW,4)}, s39 offen sc1")
        A("s_add_u32 s39, s39, 16384")
    A("s_lshl_b32 s39, s59, 11")
    A(f"s_lshl_b32 s3, s{sDB}, 7")
    A("s_add_u32 s39, s39, s3")
    A(f"v_lshlrev_b32 {v(Y+60)}, 3, {v(vd)}")
    A(f"buffer_load_dwordx2 {v(Y+56,2)}, {v(Y+60)}, {s(sX,4)}, s39 offen")
    A("s_lshl_b32 s39, s59, 2")
    A(f"s_add_u32 s39, s39, {WS_G}")
    A(f"v_mov_b32 {v(Y+60)}, 0")
    A(f"buffer_load_dword {v(Y+58)}, {v(Y+60)}, {s(sW,4)}, s39 offen")
    A("s_ashr_i32 s39, s58, 31")
    A("s_not_b32 s39, s39")
    A("s_or_b32 s39, s39, 0x80000000")
    A("s_xor_b32 s39, s58, s39")
    A("s_and_b32 s39, s39, 0xffff0000")
    A(f"v_mov_b32 {v(Y+62)}, s39")
    sigmoid(A, Y + 59, Y + 62)
    rnd_bf16(A, Y + 59, Y + 59)
    A("s_mul_i32 s39, s38, 272")
    A("s_add_u32 s39, s39, s56")
    A(f"v_lshl_add_u32 {v(Y+60)}, {v(vd)}, 4, s39")
    A("s_waitcnt lgkmcnt(0)")
    A(f"ds_read_b128 {v(Y+64,4)}, {v(Y+60)}")
    A("s_waitcnt vmcnt(0)")
    for it in range(1, 14):
        for e in range(4):
            A(f"v_add_f32 {v(Y+e)}, {v(Y+e)}, {v(Y+4*it+e)}")
    for sw in ("v_permlane16_swap_b32", "v_permlane32_swap_b32"):
        for e in range(4): A(f"v_mov_b32 {v(Y+4+e)}, {v(Y+e)}")
        A("s_nop 1")
        for e in range(4): A(f"{sw} {v(Y+e)}, {v(Y+4+e)}")
        A("s_nop 1")
        for e in range(4): A(f"v_add_f32 {v(Y+e)}, {v(Y+e)}, {v(Y+4+e)}")
    A(f"v_sub_f32 {v(Y+58)}, 1.0, {v(Y+58)}")
    rnd_bf16(A, Y + 58, Y + 58)
    A(f"v_lshlrev_b32 {v(Y+8)}, 16, {v(Y+56)}")
    A(f"v_and_b32 {v(Y+9)}, s23, {v(Y+56)}")
    A(f"v_lshlrev_b32 {v(Y+10)}, 16, {v(Y+57)}")
    A(f"v_and_b32 {v(Y+11)}, s23, {v(Y+57)}")
    A("s_waitcnt lgkmcnt(0)")
    for e in range(4):
        rnd_bf16(A, Y + e, Y + e)
        A(f"v_mul_f32 {v(Y+e)}, {v(Y+e)}, {v(Y+59)}")
        rnd_bf16(A, Y + e, Y + e)
        A(f"v_add_f32 {v(Y+e)}, {v(Y+e)}, {v(Y+8+e)}")
        rnd_bf16(A, Y + e, Y + e)
        A(f"v_mul_f32 {v(Y+e)}, {v(Y+e)}, {v(Y+58)}")
        rnd_bf16(A, Y + e, Y + e)
        A(f"v_mul_f32 {v(Y+8+e)}, {v(Y+8+e)}, {v(Y+58)}")
        rnd_bf16(A, Y + 8 + e, Y + 8 + e)
        A(f"v_sub_f32 {v(Y+e)}, {v(Y+e)}, {v(Y+8+e)}")
        A(f"v_add_f32 {v(Y+64+e)}, {v(Y+64+e)}, {v(Y+e)}")
    A(f"ds_write_b128 {v(Y+60)}, {v(Y+64,4)}")
    A.label("L_k2_fixnext")
    A("s_add_u32 s57, s57, 1")
    A("s_cmp_lt_u32 s57, 8")
    A("s_cbranch_scc1 L_k2_fix")
    stamp(A, 4, opt)
    A("s_waitcnt lgkmcnt(0)")
    for i in range(8):
        A(f"ds_read_b128 {v(ACC+4*i,4)}, {v(ra)} offset:{i*4*272}")
    A("s_lshl_b32 s38, s45, 12")
    A(f"s_lshl_b32 s39, s{sDB}, 8")
    A("s_add_u32 s38, s38, s39")
    stf = opt.get("ostore", "")
    for i in range(8):
        A(f"s_waitcnt lgkmcnt({7-i})")
        for e in range(4):
            A(f"v_add_f32 {v(ACC+4*i+e)}, {v(ACC+4*i+e)}, {v(E+4*i+e)}")
        A(f"buffer_store_dwordx4 {v(ACC+4*i,4)}, {v(oa)}, {s(sO,4)}, s38 offen {stf}")
        A("s_add_u32 s38, s38, 16384")
    stamp(A, 7, opt)
    if opt.get("stamps"):
        A("s_waitcnt lgkmcnt(0) vmcnt(0)")
        A("s_memtime s[76:77]")
        A("s_waitcnt lgkmcnt(0)")
        for i in range(9):
            A(f"v_mov_b32 {v(100+i)}, s{60+2*i}")
        A("s_memrealtime s[78:79]")
        A("s_waitcnt lgkmcnt(0)")
        A(f"v_mov_b32 {v(109)}, s78")
        A(f"s_lshl_b32 s38, s2, 2")
        A(f"s_add_u32 s38, s38, s{sWV}")
        A(f"s_lshl_b32 s38, s38, 6")
        A(f"s_add_u32 s38, s38, {WS_STAMP + 65536}")
        A(f"v_mov_b32 {v(vT)}, 0")
        A("s_mov_b64 exec, 1")
        A(f"buffer_store_dwordx4 {v(100,4)}, {v(vT)}, {s(sW,4)}, s38 offen")
        A(f"buffer_store_dwordx4 {v(104,4)}, {v(vT)}, {s(sW,4)}, s38 offen offset:16")
        A(f"buffer_store_dwordx2 {v(108,2)}, {v(vT)}, {s(sW,4)}, s38 offen offset:32")
    A("s_endpgm")
```

```python
from asmlib import *
from k1 import *

WS_KEY = 9 << 20
WS_G   = WS_KEY + 16384
WS_TOP = WS_KEY + 24576
WS_GU  = 10 << 20
WS_YP  = 13 << 20

def srd(A, d, lo, hi, size):
    A(f"s_mov_b32 s{d}, s{lo}")
    A(f"s_mov_b32 s{d+1}, s{hi}")
    A(f"s_mov_b32 s{d+2}, {size}")
    A(f"s_mov_b32 s{d+3}, 0x20000")

def wave_sum16(A, regs):
    for r in (8, 4, 2, 1):
        A("s_nop 1") if len(regs) < 3 else None
        for x in regs:
            A(f"v_add_f32_dpp {v(x)}, {v(x)}, {v(x)} row_ror:{r} row_mask:0xf bank_mask:0xf")

def sigmoid(A, d, x):
    A(f"v_mul_f32 {v(d)}, 0xbfb8aa3b, {v(x)}")
    A(f"v_exp_f32 {v(d)}, {v(d)}")
    A("s_nop 0")
    A(f"v_add_f32 {v(d)}, 1.0, {v(d)}")
    A(f"v_rcp_f32 {v(d)}, {v(d)}")
    A("s_nop 0")

def rnd_bf16(A, d, x):
    A(f"v_cvt_pk_bf16_f32 {v(d)}, {v(x)}, {v(x)}")
    A(f"v_lshlrev_b32 {v(d)}, 16, {v(d)}")

def gen_k1_side(A, opt):
    sX, sW, sWG = 4, 12, 8
    sWV, sJ = 18, 19
    A.label("L_k1_side")
    A("s_load_dwordx2 s[28:29], s[0:1], 0")
    A("s_load_dwordx2 s[30:31], s[0:1], 80")
    A("s_load_dwordx4 s[32:35], s[0:1], 88")
    A("s_load_dwordx2 s[36:37], s[0:1], 112")
    A("s_load_dwordx4 s[40:43], s[0:1], 128")
    A("v_lshrrev_b32 v1, 6, v0")
    A("v_and_b32 v2, 63, v0")
    A(f"v_readfirstlane_b32 s{sWV}, v1")
    A(f"s_sub_u32 s{sJ}, s2, 256")
    A(f"s_and_b32 s3, s{sJ}, 7")
    A("s_lshl_b32 s3, s3, 8")
    A(f"s_lshr_b32 s38, s{sJ}, 3")
    A("s_lshl_b32 s38, s38, 3")
    A("s_add_u32 s3, s3, s38")
    A(f"s_lshl_b32 s38, s{sWV}, 1")
    A("s_add_u32 s16, s3, s38")
    A("s_lshl_b32 s17, s16, 11")
    A("v_lshlrev_b32 v3, 4, v2")
    A("s_waitcnt lgkmcnt(0)")
    srd(A, sX, 28, 29, 4194304)
    srd(A, sW, 42, 43, WS_USED)
    XR, WR, GW = 8, 24, 32
    for t in range(2):
        for h in range(2):
            A(f"buffer_load_dwordx4 {v(XR+8*t+4*h,4)}, v3, {s(sX,4)}, s17 offen offset:{2048*t + 1024*h}")
    for h in range(2):
        A(f"global_load_dwordx4 {v(WR+4*h,4)}, v3, s[30:31] offset:{1024*h}")
        A(f"global_load_dwordx4 {v(GW+4*h,4)}, v3, s[36:37] offset:{1024*h}")
    A("s_mov_b32 s20, 0xffff0000")
    A("s_mov_b32 s21, 0x3f803f80")
    R0, G0 = 40, 42
    for x in range(4): A(f"v_mov_b32 {v(40+x)}, 0")
    A("s_waitcnt vmcnt(0)")
    for i in range(8):
        A(f"v_lshlrev_b32 v44, 16, {v(GW+i)}")
        A(f"v_and_b32 v45, s20, {v(GW+i)}")
        for t in range(2):
            xr = XR + 8 * t + i
            A(f"v_dot2c_f32_bf16 {v(R0+t)}, {v(xr)}, {v(WR+i)}")
            A(f"v_lshlrev_b32 v46, 16, {v(xr)}")
            A(f"v_and_b32 v47, s20, {v(xr)}")
            A("v_mul_f32 v46, v46, v44")
            A("v_mul_f32 v47, v47, v45")
            A("v_cvt_pk_bf16_f32 v46, v46, v47")
            A(f"v_lshlrev_b32 v47, 16, v46")
            A(f"v_and_b32 v46, s20, v46")
            A(f"v_add_f32 {v(G0+t)}, {v(G0+t)}, v47")
            A(f"v_add_f32 {v(G0+t)}, {v(G0+t)}, v46")
    A("s_nop 3")
    wave_sum16(A, [40, 41, 42, 43])
    for x in range(4): A(f"v_mov_b32 {v(44+x)}, {v(40+x)}")
    A("s_nop 1")
    for x in range(4): A(f"v_permlane16_swap_b32 {v(40+x)}, {v(44+x)}")
    A("s_nop 1")
    for x in range(4): A(f"v_add_f32 {v(40+x)}, {v(40+x)}, {v(44+x)}")
    for x in range(4): A(f"v_mov_b32 {v(44+x)}, {v(40+x)}")
    A("s_nop 1")
    for x in range(4): A(f"v_permlane32_swap_b32 {v(40+x)}, {v(44+x)}")
    A("s_nop 1")
    for x in range(4): A(f"v_add_f32 {v(40+x)}, {v(40+x)}, {v(44+x)}")
    for t in range(2):
        rnd_bf16(A, 44 + t, R0 + t)
        A(f"v_ashrrev_i32 v46, 31, {v(44+t)}")
        A(f"v_or_b32 v46, 0x80000000, v46")
        A(f"v_xor_b32 {v(44+t)}, {v(44+t)}, v46")
        A(f"v_and_b32 {v(44+t)}, s20, {v(44+t)}")
        A(f"s_sub_u32 s38, {2047 - t}, s16")
        A(f"v_or_b32 {v(44+t)}, s38, {v(44+t)}")
    for t in range(2):
        rnd_bf16(A, 46, G0 + t)
        sigmoid(A, 48 + t, 46)
        rnd_bf16(A, 48 + t, 48 + t)
    A("s_lshl_b32 s38, s16, 2")
    A(f"s_add_u32 s38, s38, {WS_KEY}")
    A("v_mov_b32 v4, 0")
    A("s_mov_b64 exec, 1")
    A(f"buffer_store_dwordx2 v[44:45], v4, {s(sW,4)}, s38 offen sc1")
    A(f"s_add_u32 s38, s38, {WS_G - WS_KEY}")
    A(f"buffer_store_dwordx2 v[48:49], v4, {s(sW,4)}, s38 offen")
    A("s_mov_b64 exec, -1")
    A("s_waitcnt vmcnt(0)")
    A("s_barrier")
    A(f"s_cmp_lg_u32 s{sWV}, 0")
    A("s_cbranch_scc1 L_k1s_nosig")
    A(f"s_and_b32 s38, s{sJ}, 15")
    A("s_lshl_b32 s38, s38, 2")
    A("s_add_u32 s38, s38, 128")
    A("v_mov_b32 v4, s38")
    A("v_mov_b32 v5, 1")
    A("s_mov_b64 exec, 1")
    A("global_atomic_add v4, v5, s[40:41] sc1")
    A("s_mov_b64 exec, -1")
    A.label("L_k1s_nosig")
    A(f"s_cmp_ge_u32 s{sJ}, 224")
    A("s_cbranch_scc1 L_k1s_end")
    sCS, sKQ = 22, 23
    A(f"s_mul_hi_u32 s{sKQ}, s{sJ}, {(1 << 32) // 56 + 1}")
    A(f"s_mul_i32 s38, s{sKQ}, 56")
    A(f"s_sub_u32 s{sCS}, s{sJ}, s38")
    A(f"s_cmp_lt_u32 s{sWV}, 2")
    A(f"s_cselect_b32 s{sWG}, s32, s34")
    A(f"s_cselect_b32 s{sWG+1}, s33, s35")
    A(f"s_mov_b32 s{sWG+2}, 7340032")
    A(f"s_mov_b32 s{sWG+3}, 0x20000")
    A("v_lshrrev_b32 v4, 3, v2")
    A("v_and_b32 v5, 7, v2")
    A("v_and_b32 v6, 3, v4")
    A("v_lshlrev_b32 v6, 1, v6")
    A("v_xor_b32 v5, v5, v6")
    A("v_mul_u32_u24 v4, 7168, v4")
    A("v_lshl_add_u32 v4, v5, 4, v4")
    A(f"s_and_b32 s38, s{sWV}, 1")
    A("s_lshl_b32 s38, s38, 7")
    A(f"s_lshl_b32 s39, s{sKQ}, 8")
    A("s_add_u32 s38, s38, s39")
    A("s_mul_i32 s38, s38, 7168")
    A(f"s_lshl_b32 s39, s{sCS}, 7")
    A("s_add_u32 s38, s38, s39")
    A(f"s_lshl_b32 s39, s{sWV}, 14")
    for i in range(16):
        A(f"s_add_u32 m0, s39, {1024*i}")
        A("s_nop 0")
        A(f"buffer_load_dwordx4 v4, {s(sWG,4)}, s38 offen lds")
        A(f"s_add_u32 s38, s38, {8*7168}")
    A("v_and_b32 v5, 15, v2")
    A("v_lshlrev_b32 v5, 2, v5")
    A.label("L_k1s_poll")
    A("global_load_dword v6, v5, s[40:41] offset:128 sc1")
    A("s_waitcnt vmcnt(0)")
    A("v_cmp_ne_u32 vcc, 16, v6")
    A("s_nop 1")
    A("s_cmp_eq_u64 vcc, 0")
    A("s_cbranch_scc1 L_k1s_go")
    A("s_sleep 4")
    A("s_branch L_k1s_poll")
    A.label("L_k1s_go")
    KY = 64
    A(f"s_mov_b32 s38, {WS_KEY}")
    for i in range(8):
        if i == 4: A(f"s_mov_b32 s38, {WS_KEY + 4096}")
        A(f"buffer_load_dwordx4 {v(KY+4*i,4)}, v3, {s(sW,4)}, s38 offen offset:{1024*(i&3)} sc1")
    A("v_and_b32 v7, 7, v2")
    A("v_mov_b32 v8, 0")
    A("s_mov_b32 s24, -1")
    A("s_mov_b32 s25, 0")
    A("s_waitcnt vmcnt(0)")
    A.label("L_k1s_top")
    D = 100
    for i in range(32):
        A(f"v_sub_u32 {v(D+i)}, s24, {v(KY+i)}")
    A(f"v_min3_u32 v9, {v(D)}, {v(D+1)}, {v(D+2)}")
    for i in range(3, 31, 2):
        A(f"v_min3_u32 v9, v9, {v(D+i)}, {v(D+i+1)}")
    A(f"v_min_u32 v9, v9, {v(D+31)}")
    for r in (8, 4, 2, 1):
        A("s_nop 1")
        A(f"v_min_u32_dpp v9, v9, v9 row_ror:{r} row_mask:0xf bank_mask:0xf")
    A("s_nop 0")
    for i in range(4):
        A(f"v_readlane_b32 s{44+i}, v9, {16*i}")
    A("v_cmp_eq_u32 vcc, s25, v7")
    A("s_min_u32 s44, s44, s45")
    A("s_min_u32 s46, s46, s47")
    A("s_min_u32 s44, s44, s46")
    A("s_sub_u32 s24, s24, s44")
    A("v_mov_b32 v10, s24")
    A("v_cndmask_b32 v8, v8, v10, vcc")
    A("s_sub_u32 s24, s24, 1")
    A("s_add_u32 s25, s25, 1")
    A("s_cmp_lt_u32 s25, 8")
    A("s_cbranch_scc1 L_k1s_top")
    A(f"s_or_b32 s38, s{sJ}, s{sWV}")
    A("s_cbranch_scc1 L_k1s_notop")
    A("v_lshlrev_b32 v9, 2, v2")
    A(f"s_mov_b32 s38, {WS_TOP}")
    A("s_mov_b64 exec, 0xff")
    A(f"buffer_store_dword v8, v9, {s(sW,4)}, s38 offen")
    A("s_mov_b64 exec, -1")
    A.label("L_k1s_notop")
    A("v_and_b32 v9, 0x7ff, v8")
    A("v_sub_u32 v9, 2047, v9")
    A("v_lshlrev_b32 v9, 11, v9")
    A("v_lshrrev_b32 v10, 4, v2")
    A("v_lshl_add_u32 v9, v10, 4, v9")
    A(f"s_lshl_b32 s38, s{sKQ}, 9")
    XF = 64
    for ks in range(8):
        A(f"buffer_load_dwordx4 {v(XF+4*ks,4)}, v9, {s(sX,4)}, s38 offen offset:{64*ks}")
    A("v_bfe_u32 v11, v2, 2, 2")
    A("v_lshl_add_u32 v12, v10, 3, v11")
    A("v_lshlrev_b32 v12, 7, v12")
    A(f"v_xor_b32 v11, s{sWV}, v11")
    A("v_lshl_add_u32 v12, v11, 5, v12")
    A("v_and_b32 v11, 3, v2")
    A("v_lshl_add_u32 v12, v11, 3, v12")
    A("s_waitcnt vmcnt(0)")
    A("s_barrier")
    WF = 100
    for gu in range(2):
        for ks in range(8):
            for rd in range(2):
                A(f"ds_read_b64_tr_b16 {v(WF + (gu*8+ks)*4 + 2*rd, 2)}, v12 offset:{gu*32768 + ks*4096 + rd*512}")
        A("s_waitcnt lgkmcnt(0)")
        for ks in range(8):
            c = "0" if ks == 0 else v(16 + 4*gu, 4)
            A(f"v_mfma_f32_16x16x32_bf16 {v(16+4*gu,4)}, {v(WF+(gu*8+ks)*4,4)}, {v(XF+4*ks,4)}, {c}")
    A("v_and_b32 v11, 15, v2")
    A("v_mul_u32_u24 v13, 14336, v11")
    A("v_lshl_add_u32 v13, v10, 4, v13")
    A(f"s_mul_i32 s38, s{sKQ}, {2*8*14336}")
    A(f"s_lshl_b32 s39, s{sCS}, 8")
    A("s_add_u32 s38, s38, s39")
    A(f"s_lshl_b32 s39, s{sWV}, 6")
    A("s_add_u32 s38, s38, s39")
    A(f"s_add_u32 s38, s38, {WS_GU}")
    A(f"s_add_u32 s39, s38, {8*14336}")
    A("v_cmp_gt_u32 vcc, 8, v11")
    A("s_nop 4")
    A("s_mov_b64 exec, vcc")
    A(f"buffer_store_dwordx4 v[16:19], v13, {s(sW,4)}, s38 offen")
    A(f"buffer_store_dwordx4 v[20:23], v13, {s(sW,4)}, s39 offen")
    A.label("L_k1s_end")
    A("s_endpgm")

def gen_k2_side(A, opt):
    sW, sWD = 12, 8
    sWV, sJ, sFR, sCK = 18, 19, 22, 23
    A.label("L_k2_side")
    A(f"s_sub_u32 s{sJ}, s2, 256")
    A(f"s_cmp_ge_u32 s{sJ}, 224")
    A("s_cbranch_scc1 L_k2s_end")
    A("s_load_dwordx2 s[28:29], s[0:1], 104")
    A("s_load_dwordx4 s[40:43], s[0:1], 128")
    A("v_lshrrev_b32 v1, 6, v0")
    A("v_and_b32 v2, 63, v0")
    A(f"v_readfirstlane_b32 s{sWV}, v1")
    A(f"s_lshr_b32 s{sFR}, s{sJ}, 2")
    A(f"s_and_b32 s{sCK}, s{sJ}, 3")
    A("v_lshrrev_b32 v3, 5, v0")
    A("v_and_b32 v4, 31, v0")
    A("v_mul_u32_u24 v5, 14336, v3")
    A("v_lshl_add_u32 v5, v4, 3, v5")
    A("v_lshrrev_b32 v6, 3, v2")
    A("v_and_b32 v7, 7, v2")
    A("v_and_b32 v8, 3, v6")
    A("v_lshlrev_b32 v8, 1, v8")
    A("v_xor_b32 v7, v7, v8")
    A("v_lshlrev_b32 v6, 11, v6")
    A("v_lshl_add_u32 v6, v7, 4, v6")
    A("s_waitcnt lgkmcnt(0)")
    srd(A, sW, 42, 43, WS_USED)
    srd(A, sWD, 28, 29, 7340032)
    A(f"s_lshl_b32 s38, s{sFR}, 8")
    A(f"s_add_u32 s38, s38, {WS_GU}")
    PL = 16
    for kq in range(4):
        for gu in range(2):
            A(f"buffer_load_dwordx2 {v(PL + 4*kq + 2*gu, 2)}, v5, {s(sW,4)}, s38 offen")
            A(f"s_add_u32 s38, s38, {8*14336}")
    A(f"s_lshl_b32 s38, s{sFR}, 17")
    A(f"s_lshl_b32 s39, s{sCK}, 9")
    A("s_add_u32 s38, s38, s39")
    A(f"s_lshl_b32 s39, s{sWV}, 7")
    A("s_add_u32 s38, s38, s39")
    A(f"s_lshl_b32 s39, s{sWV}, 13")
    for i in range(8):
        A(f"s_add_u32 m0, s39, {1024*i}")
        A("s_nop 0")
        A(f"buffer_load_dwordx4 v6, {s(sWD,4)}, s38 offen lds")
        A(f"s_add_u32 s38, s38, {8*2048}")
    A("s_waitcnt vmcnt(8)")
    for e in range(4):
        A(f"v_add_f32 {v(PL+e)}, {v(PL+e)}, {v(PL+4+e)}")
        A(f"v_add_f32 {v(PL+8+e)}, {v(PL+8+e)}, {v(PL+12+e)}")
        A(f"v_add_f32 {v(PL+e)}, {v(PL+e)}, {v(PL+8+e)}")
        rnd_bf16(A, PL + e, PL + e)
    for e in range(2):
        sigmoid(A, 32 + e, PL + e)
        A(f"v_mul_f32 {v(32+e)}, {v(32+e)}, {v(PL+e)}")
        rnd_bf16(A, 32 + e, 32 + e)
        A(f"v_mul_f32 {v(32+e)}, {v(32+e)}, {v(PL+2+e)}")
    A("v_cvt_pk_bf16_f32 v32, v32, v33")
    A("v_mul_u32_u24 v9, 144, v3")
    A("v_lshl_add_u32 v9, v4, 2, v9")
    A("ds_write_b32 v9, v32 offset:32768")
    A("v_and_b32 v10, 7, v2")
    A("v_mul_u32_u24 v10, 144, v10")
    A("v_lshrrev_b32 v11, 4, v2")
    A("v_lshl_add_u32 v10, v11, 4, v10")
    A("v_bfe_u32 v12, v2, 2, 2")
    A("v_lshl_add_u32 v13, v11, 3, v12")
    A("v_lshlrev_b32 v13, 7, v13")
    A("v_and_b32 v14, 3, v2")
    A("v_lshl_add_u32 v13, v14, 3, v13")
    A("v_add_u32 v13, s39, v13")
    for nt in range(4):
        A(f"v_xor_b32 v14, {nt}, v12")
        A(f"v_lshl_add_u32 {v(36+nt)}, v14, 5, v13")
    A("s_waitcnt vmcnt(0) lgkmcnt(0)")
    A("s_barrier")
    A("ds_read_b128 v[40:43], v10 offset:32768")
    A("ds_read_b128 v[44:47], v10 offset:32832")
    WF = 64
    for nt in range(4):
        for ks in range(2):
            for rd in range(2):
                A(f"ds_read_b64_tr_b16 {v(WF + (nt*2+ks)*4 + 2*rd, 2)}, {v(36+nt)} offset:{ks*4096 + rd*512}")
    A("s_waitcnt lgkmcnt(0)")
    for ks in range(2):
        for nt in range(4):
            c = "0" if ks == 0 else v(48 + 4*nt, 4)
            A(f"v_mfma_f32_16x16x32_bf16 {v(48+4*nt,4)}, {v(WF+(nt*2+ks)*4,4)}, {v(40+4*ks,4)}, {c}")
    A("v_and_b32 v14, 15, v2")
    A(f"s_mov_b32 s38, {56*4096}")
    A("v_mul_lo_u32 v15, v14, s38")
    A("v_lshl_add_u32 v15, v11, 4, v15")
    A(f"s_lshl_b32 s38, s{sFR}, 12")
    A(f"s_lshl_b32 s39, s{sCK}, 10")
    A("s_add_u32 s38, s38, s39")
    A(f"s_lshl_b32 s39, s{sWV}, 8")
    A("s_add_u32 s38, s38, s39")
    A(f"s_add_u32 s38, s38, {WS_YP}")
    A("v_cmp_gt_u32 vcc, 8, v14")
    A("s_nop 4")
    A("s_mov_b64 exec, vcc")
    for nt in range(4):
        A(f"buffer_store_dwordx4 {v(48+4*nt,4)}, v15, {s(sW,4)}, s38 offen offset:{64*nt} sc1")
    A("s_mov_b64 exec, -1")
    A("s_waitcnt vmcnt(0)")
    A("s_barrier")
    A(f"s_cmp_lg_u32 s{sWV}, 0")
    A("s_cbranch_scc1 L_k2s_end")
    A(f"s_lshl_b32 s38, s{sCK}, 2")
    A("v_mov_b32 v4, s38")
    A("v_mov_b32 v5, 1")
    A("s_mov_b64 exec, 1")
    A("global_atomic_add v4, v5, s[40:41] sc1")
    A.label("L_k2s_end")
    A("s_endpgm")
```

```python
import sys, json
from asmlib import *
import k1, k2, side

HDR = open("gated_mix__ssm_conv_s5__moe_arch_mod__prompt.s.ref").read().split("; Override launch")[0]

def kd(name, vgpr, sgpr=96, accum=None):
    accum = accum or ((vgpr + 3) // 4 * 4)
    return f""".amdhsa_kernel {name}
  .amdhsa_next_free_vgpr {vgpr}
  .amdhsa_next_free_sgpr {sgpr}
  .amdhsa_accum_offset {accum}
  .amdhsa_group_segment_fixed_size 0
  .amdhsa_kernarg_size 144
  .amdhsa_user_sgpr_count 2
  .amdhsa_user_sgpr_kernarg_segment_ptr 1
  .amdhsa_system_sgpr_workgroup_id_x 1
  .amdhsa_float_denorm_mode_32 3
.end_amdhsa_kernel
"""

def build(opt):
    A = Asm()
    nslot = opt.get("nslot", 5)
    launches = [("k1_kernel", opt.get("k1_grid", 512), 256, nslot * 16384)]
    if not opt.get("k1_only"):
        launches.append(("k2_kernel", opt.get("k2_grid", 480), 256, opt.get("k2_ns", 5) * 16384))
    A(".globl k1_kernel"); A(".p2align 8"); A(".type k1_kernel,@function")
    A.label("k1_kernel")
    A("s_cmp_ge_u32 s2, 256")
    A("s_cbranch_scc0 L_k1_gemm")
    A("s_cmp_ge_u32 s2, 512")
    A("s_cbranch_scc0 L_k1_side")
    A("s_endpgm")
    k1.gen_k1_gemm(A, opt)
    side.gen_k1_side(A, opt)
    A(".globl k2_kernel"); A(".p2align 8"); A(".type k2_kernel,@function")
    A.label("k2_kernel")
    A("s_cmp_ge_u32 s2, 256")
    A("s_cbranch_scc1 L_k2_side")
    k2.gen_k2_gemm(A, opt)
    side.gen_k2_side(A, opt)
    probs = check_hazards(A.lines)
    for p in probs: print("HAZARD", p, file=sys.stderr)
    txt = HDR
    for n, g, b, l in launches:
        txt += f"; @launch kernel={n} grid=({g},1,1) block=({b},1,1) lds={l}\n"
    txt += '.amdgcn_target "amdgcn-amd-amdhsa--gfx950"\n.text\n' + A.text()
    txt += '.section .rodata,"a"\n.p2align 6\n' + kd("k1_kernel", 256) + ".p2align 6\n" + kd("k2_kernel", 256)
    return txt

if __name__ == "__main__":
    opt = json.loads(sys.argv[2]) if len(sys.argv) > 2 else {}
    open(sys.argv[1], "w").write(build(opt))
```

```python
from asmlib import *

WS_H     = 0
WS_AGG   = 8 << 20
WS_EPOCH = (9 << 20) + 32768

def load_tag(A, ws_lo, ws_hi, dst):
    A(f"s_add_u32 s94, s{ws_lo}, {WS_EPOCH}")
    A(f"s_addc_u32 s95, s{ws_hi}, 0")
    A(f"s_load_dword s{dst}, s[94:95], 0")

def make_tag(A, dst):
    A(f"s_mul_i32 s{dst}, s{dst}, 1664525")
    A(f"s_add_u32 s{dst}, s{dst}, 1013904223")
WS_STAMP = 12 << 20
WS_USED  = 16 << 20

LOG2E = 0x3fb8aa3b
INV2PI = 0x3e22f983

def cmul_sq(A, d, sq):
    A(f"v_mul_f32 {v(d)}, {v(sq+1)}, {v(sq+1)}")
    A(f"v_fma_f32 {v(d)}, {v(sq)}, {v(sq)}, -{v(d)}")
    A(f"v_mul_f32 {v(d+1)}, {v(sq)}, {v(sq+1)}")
    A(f"v_add_f32 {v(d+1)}, {v(d+1)}, {v(d+1)}")

def cmul(A, dr, di, ar, ai, br, bi):
    A(f"v_mul_f32 {v(dr)}, {v(ar)}, {v(br)}")
    A(f"v_mul_f32 {v(di)}, {v(ar)}, {v(bi)}")
    A(f"v_fma_f32 {v(dr)}, -{v(ai)}, {v(bi)}, {v(dr)}")
    A(f"v_fma_f32 {v(di)}, {v(ai)}, {v(br)}, {v(di)}")

def stamp(A, idx, opt):
    if not opt.get("stamps"): return
    A(f"s_memtime s[{60+2*idx}:{61+2*idx}]")
    if idx == 0: A("s_memrealtime s[80:81]")

def gen_k1_gemm(A, opt):
    NSLOT = opt.get("nslot", 5)
    sX, sB, sW, sAG = 4, 8, 12, 24
    sRB, sCB, sWV, sWM, sWN = 16, 17, 18, 19, 20
    sK = 21
    sDBG = 22
    vDA, vDB = 8, 12
    vRA, vRB, vRA2, vRB2 = 16, 20, 24, 28
    vL, vC2, vL16, vL128, vL256, vWre, vWim = 32, 34, 36, 38, 40, 42, 44
    vLane, vHf = 46, 47
    vT = 48
    ACC = 64
    FX, FY = 128, 144
    UI = 160
    LB = 192
    PP = 208
    def acc(m, part): return ACC + 16 * (2 * m + part)

    A.label("L_k1_gemm")
    stamp(A, 0, opt)
    A("s_load_dwordx2 s[4:5], s[0:1], 0")
    A("s_load_dwordx4 s[28:31], s[0:1], 8")
    A("s_load_dwordx4 s[32:35], s[0:1], 24")
    A("s_load_dwordx2 s[36:37], s[0:1], 56")
    A("s_load_dwordx4 s[40:43], s[0:1], 128")
    A("s_load_dwordx4 s[48:51], s[0:1], 40")
    A(f"v_lshrrev_b32 {v(vT)}, 6, v0")
    A(f"v_and_b32 {v(vLane)}, 63, v0")
    A(f"v_readfirstlane_b32 s{sWV}, {v(vT)}")
    A("s_and_b32 s3, s2, 7")
    A("s_lshr_b32 s38, s2, 3")
    A(f"s_lshr_b32 s{sRB}, s3, 1")
    A(f"s_lshl_b32 s{sRB}, s{sRB}, 2")
    A("s_and_b32 s39, s38, 3")
    A(f"s_add_u32 s{sRB}, s{sRB}, s39")
    A(f"s_and_b32 s{sCB}, s3, 1")
    A(f"s_lshl_b32 s{sCB}, s{sCB}, 3")
    A("s_lshr_b32 s39, s38, 2")
    A(f"s_add_u32 s{sCB}, s{sCB}, s39")
    A(f"s_and_b32 s{sWM}, s{sWV}, 1")
    A(f"s_lshr_b32 s{sWN}, s{sWV}, 1")
    A(f"v_lshrrev_b32 {v(vHf)}, 5, {v(vLane)}")
    rr, cc, t1, t2 = vT, vT + 1, vT + 2, vT + 3
    A(f"v_lshrrev_b32 {v(rr)}, 3, {v(vLane)}")
    A(f"v_and_b32 {v(cc)}, 7, {v(vLane)}")
    A(f"v_lshrrev_b32 {v(t1)}, 1, {v(rr)}")
    A(f"v_xor_b32 {v(cc)}, {v(cc)}, {v(t1)}")
    A(f"v_lshlrev_b32 {v(cc)}, 4, {v(cc)}")
    A(f"v_lshrrev_b32 {v(t1)}, 2, {v(rr)}")
    A(f"v_lshlrev_b32 {v(t1)}, 5, {v(t1)}")
    A(f"v_and_b32 {v(t2)}, 1, {v(rr)}")
    A(f"v_lshl_add_u32 {v(t1)}, {v(t2)}, 4, {v(t1)}")
    A(f"v_bfe_u32 {v(t2)}, {v(rr)}, 1, 1")
    A(f"v_add_u32 {v(t1)}, {v(t1)}, {v(t2)}")
    A(f"s_lshl_b32 s38, s{sWN}, 6")
    A(f"s_lshl_b32 s39, s{sWM}, 3")
    A("s_add_u32 s38, s38, s39")
    A(f"s_lshl_b32 s39, s{sRB}, 7")
    A("s_add_u32 s38, s38, s39")
    A(f"v_add_u32 {v(t1)}, s38, {v(t1)}")
    A(f"v_lshl_add_u32 {v(t1)}, {v(t1)}, 11, {v(cc)}")
    for q in range(4):
        add = 4096 * q - 1024 * q + 3072
        if q & 1:
            A(f"v_xor_b32 {v(t2)}, 64, {v(t1)}")
            A(f"v_add_u32 {v(vDA+q)}, {add}, {v(t2)}")
        else:
            A(f"v_add_u32 {v(vDA+q)}, {add}, {v(t1)}")
    A(f"s_lshl_b32 s38, s{sCB}, 6")
    A(f"s_lshl_b32 s39, s{sWN}, 5")
    A("s_add_u32 s38, s38, s39")
    A(f"v_add_u32 {v(t1)}, s38, {v(rr)}")
    A(f"v_lshl_add_u32 {v(t1)}, {v(t1)}, 11, {v(cc)}")
    for q in range(4):
        add = 8 * 2048 * q - 1024 * q + 3072
        if q & 1:
            A(f"v_xor_b32 {v(t2)}, 64, {v(t1)}")
            A(f"v_add_u32 {v(vDB+q)}, {add}, {v(t2)}")
        else:
            A(f"v_add_u32 {v(vDB+q)}, {add}, {v(t1)}")
    A("s_waitcnt lgkmcnt(0)")
    A(f"s_sub_u32 s{sX}, s4, 3072")
    A(f"s_subb_u32 s{sX+1}, s5, 0")
    A(f"s_mov_b32 s{sX+2}, {4194304 + 3072}")
    A(f"s_mov_b32 s{sX+3}, 0x20000")
    A(f"s_cmp_eq_u32 s{sWM}, 0")
    A(f"s_cselect_b32 s{sB}, s32, s34")
    A(f"s_cselect_b32 s{sB+1}, s33, s35")
    A(f"s_sub_u32 s{sB}, s{sB}, 3072")
    A(f"s_subb_u32 s{sB+1}, s{sB+1}, 0")
    A(f"s_mov_b32 s{sB+2}, {2097152 + 3072}")
    A(f"s_mov_b32 s{sB+3}, 0x20000")
    A(f"s_mov_b32 s{sW}, s42")
    A(f"s_mov_b32 s{sW+1}, s43")
    A(f"s_mov_b32 s{sW+2}, {WS_USED}")
    A(f"s_mov_b32 s{sW+3}, 0x20000")
    load_tag(A, 42, 43, 93)
    A(f"s_lshl_b32 s38, s{sCB}, 14")
    A(f"s_add_u32 s38, s38, {WS_AGG}")
    A(f"s_add_u32 s{sAG}, s42, s38")
    A(f"s_addc_u32 s{sAG+1}, s43, 0")
    A(f"s_mov_b32 s{sAG+2}, 16384")
    A(f"s_mov_b32 s{sAG+3}, 0x20000")
    A(f"s_mov_b32 s{sDBG}, s40")
    A(f"s_mov_b32 s{sDBG+1}, s41")
    A(f"s_lshl_b32 s44, s{sWV}, 12")
    if opt.get("rot"):
        cx, cr, cc_ = opt["rot"]
        A("s_and_b32 s45, s2, 7")
        A(f"s_mul_i32 s45, s45, {cx*128}")
        A(f"s_mul_i32 s38, s{sRB}, {cr*128}")
        A("s_add_u32 s45, s45, s38")
        A(f"s_mul_i32 s38, s{sCB}, {cc_*128}")
        A("s_add_u32 s45, s45, s38")

    vAgO = 56
    A(f"v_and_b32 {v(t1)}, 31, {v(vLane)}")
    A(f"v_lshlrev_b32 {v(vAgO)}, 4, {v(t1)}")
    A(f"s_sub_u32 s38, 15, s{sRB}")
    A("s_lshl_b32 s38, s38, 10")
    A(f"s_lshl_b32 s39, s{sWN}, 9")
    A("s_add_u32 s38, s38, s39")
    A(f"v_add_u32 {v(vAgO)}, s38, {v(vAgO)}")

    def dma_item(i, q):
        st, op = i >> 1, i & 1
        slot = i % NSLOT
        out = []
        if q == 0:
            out.append(f"s_add_u32 m0, s44, {slot * 16384}")
            if opt.get("rot"):
                out.append(f"s_add_u32 s{sK}, s45, {st * 128}")
                out.append(f"s_and_b32 s{sK}, s{sK}, 2047")
            else:
                out.append(f"s_mov_b32 s{sK}, {st * 128}")
        vo = (vDB if op else vDA) + q
        srd = sB if op else sX
        out.append(f"buffer_load_dwordx4 {v(vo)}, {s(srd,4)}, s{sK} offen offset:{1024*q} lds")
        return out

    nitems = 32
    for i in range(min(NSLOT - 2 + 2, nitems) if False else NSLOT - 2):
        for q in range(4):
            for ln in dma_item(i, q): A(ln)
    for i in range(NSLOT - 2, NSLOT):
        for q in range(4):
            for ln in dma_item(i, q): A(ln)

    A(f"s_lshl_b32 s38, s{sCB}, 6")
    A(f"s_lshl_b32 s39, s{sWN}, 5")
    A("s_add_u32 s38, s38, s39")
    A(f"v_add_lshl_u32 {v(t2)}, s38, {v(t1)}, 1")
    A(f"global_load_ushort {v(60)}, {v(t2)}, s[28:29]")
    A(f"global_load_ushort {v(61)}, {v(t2)}, s[30:31]")
    A(f"global_load_ushort {v(62)}, {v(t2)}, s[36:37]")

    A(f"v_bfe_u32 {v(t2)}, {v(vLane)}, 1, 3")
    A(f"v_xor_b32 {v(t2)}, {v(t2)}, {v(vHf)}")
    A(f"v_lshlrev_b32 {v(t2)}, 4, {v(t2)}")
    A(f"v_lshl_add_u32 {v(t2)}, {v(t1)}, 7, {v(t2)}")
    A(f"s_lshl_b32 s38, s{sWM}, 13")
    A(f"s_lshl_b32 s39, s{sWN}, 13")
    for kk in range(4):
        A(f"v_xor_b32 {v(vT)}, {32*kk}, {v(t2)}")
        A(f"v_add_u32 {v(vRA+kk)}, s38, {v(vT)}")
        A(f"v_add_u32 {v(vRB+kk)}, s39, {v(vT)}")
        A(f"v_add_u32 {v(vRA2+kk)}, 0x10000, {v(vRA+kk)}")
        A(f"v_add_u32 {v(vRB2+kk)}, 0x10000, {v(vRB+kk)}")
        if NSLOT > 8:
            A(f"v_add_u32 {v(244+kk)}, 0x20000, {v(vRA+kk)}")
            A(f"v_add_u32 {v(248+kk)}, 0x20000, {v(vRB+kk)}")

    def rd_frags(st, kk, F):
        out = []
        for op, (r1, r2) in enumerate(((vRA, vRA2), (vRB, vRB2))):
            slot = (2 * st + op) % NSLOT
            off = slot * 16384
            base = r1
            if off >= 131072:
                off -= 131072; base = 244 + 4 * op
            elif off >= 65536:
                off -= 65536; base = r2
            for t in range(2):
                out.append(f"ds_read_b128 {v(F + 8*op + 4*t, 4)}, {v(base+kk)} offset:{off + 4096*t}")
        return out
    def mfmas(F, first):
        out = []
        for m in range(2):
            for part in range(2):
                c = "0" if first else v(acc(m, part), 16)
                out.append(f"v_mfma_f32_32x32x16_bf16 {v(acc(m,part),16)}, {v(F+4*m,4)}, {v(F+8+4*part,4)}, {c}")
        return out

    def params():
        P = []
        B = Asm()
        lre, lim, ldt = 60, 61, 62
        B(f"v_lshlrev_b32 {v(lre)}, 16, {v(lre)}")
        B(f"v_lshlrev_b32 {v(lim)}, 16, {v(lim)}")
        B(f"v_lshlrev_b32 {v(ldt)}, 16, {v(ldt)}")
        t = vT
        B(f"v_mul_f32 {v(t)}, {LOG2E}, {v(ldt)}")
        B(f"v_exp_f32 {v(t)}, {v(t)}")
        B("s_nop 0")
        B(f"v_cvt_pk_bf16_f32 {v(t)}, {v(t)}, {v(t)}")
        B(f"v_lshlrev_b32 {v(t)}, 16, {v(t)}")
        B(f"v_mul_f32 {v(t+1)}, {v(t)}, {v(lre)}")
        B(f"v_mul_f32 {v(t+2)}, {v(t)}, {v(lim)}")
        B(f"v_mul_f32 {v(t+1)}, {LOG2E}, {v(t+1)}")
        B(f"v_exp_f32 {v(t+1)}, {v(t+1)}")
        B(f"v_mul_f32 {v(t+2)}, {INV2PI}, {v(t+2)}")
        B(f"v_rndne_f32 {v(t+3)}, {v(t+2)}")
        B(f"v_sub_f32 {v(t+2)}, {v(t+2)}, {v(t+3)}")
        B(f"v_cos_f32 {v(t+3)}, {v(t+2)}")
        B(f"v_sin_f32 {v(t+4)}, {v(t+2)}")
        B(f"v_mul_f32 {v(t+5)}, {v(lre)}, {v(lre)}")
        B(f"v_mul_f32 {v(vL)}, {v(t+1)}, {v(t+3)}")
        B(f"v_mul_f32 {v(vL+1)}, {v(t+1)}, {v(t+4)}")
        B(f"v_fma_f32 {v(t+5)}, {v(lim)}, {v(lim)}, {v(t+5)}")
        B(f"v_rcp_f32 {v(t+5)}, {v(t+5)}")
        B(f"v_add_f32 {v(t)}, -1.0, {v(vL)}")
        B(f"v_add_f32 {v(t+5)}, {v(t+5)}, {v(t+5)}")
        B(f"v_mul_f32 {v(t+1)}, {v(t)}, {v(lre)}")
        B(f"v_fma_f32 {v(t+1)}, {v(vL+1)}, {v(lim)}, {v(t+1)}")
        B(f"v_mul_f32 {v(t+2)}, {v(vL+1)}, {v(lre)}")
        B(f"v_fma_f32 {v(t+2)}, -{v(t)}, {v(lim)}, {v(t+2)}")
        B(f"v_mul_f32 {v(vC2)}, {v(t+1)}, {v(t+5)}")
        B(f"v_mul_f32 {v(vC2+1)}, {v(t+2)}, {v(t+5)}")
        cmul_sq(B, t, vL)
        cmul_sq(B, t + 2, t)
        cmul_sq(B, t, t + 2)
        cmul_sq(B, vL16, t)
        cmul_sq(B, t, vL16)
        cmul_sq(B, t + 2, t)
        cmul_sq(B, vL128, t + 2)
        cmul_sq(B, vL256, vL128)
        B(f"v_cmp_eq_u32 vcc, 1, {v(vHf)}")
        B(f"s_cmp_eq_u32 s{sWM}, 1")
        B("s_cselect_b64 s[38:39], -1, 0")
        B(f"v_cndmask_b32 {v(t)}, 1.0, {v(t)}, vcc")
        B(f"v_cndmask_b32 {v(t+1)}, 0, {v(t+1)}, vcc")
        B(f"v_cndmask_b32 {v(t+2)}, 1.0, {v(t+2)}, s[38:39]")
        B(f"v_cndmask_b32 {v(t+3)}, 0, {v(t+3)}, s[38:39]")
        cmul(B, vWre, vWim, t, t + 1, t + 2, t + 3)
        cmul(B, vWre + 1, vWim + 1, vWre, vWim, vL16, vL16 + 1)
        return B.lines

    do_mfma = not opt.get("no_mfma")
    do_lds = not opt.get("no_lds")
    PST = NSLOT // 2 + 1
    npar = 3
    par_lines = params()
    stamp(A, 1, opt)
    for st in range(16):
        issued = min(nitems, NSLOT + 2 * st - (2 if st > 0 else 0) + (0 if st == 0 else 0))
        issued = NSLOT if st == 0 else min(nitems, NSLOT + 2 * (st - 1))
        allowed = max(0, issued - (2 * st + 2)) * 4
        if st == 0:
            allowed += npar
        elif 2 * st + 2 <= NSLOT:
            allowed += npar
        if st == 14 and not opt.get("no_epi"):
            pass
        A(f"s_waitcnt vmcnt({allowed}) lgkmcnt(0)")
        A("s_barrier")
        if st == 0:
            stamp(A, 2, opt)
            make_tag(A, 93)
        dm = []
        if st >= 1:
            for i in (NSLOT + 2 * (st - 1), NSLOT + 2 * (st - 1) + 1):
                if i < nitems:
                    for q in range(4):
                        dm.append(dma_item(i, q))
        seq = []
        groups = []
        groups.append((rd_frags(st, 0, FX), mfmas(FY, False) if st > 0 else [], None))
        groups.append((rd_frags(st, 1, FY), mfmas(FX, st == 0), 4))
        groups.append((rd_frags(st, 2, FX), mfmas(FY, False), 4))
        groups.append((rd_frags(st, 3, FY), mfmas(FX, False), 4))
        di = 0
        for g, (rds, mf, wt) in enumerate(groups):
            if do_lds:
                for r in rds: A(r)
                if wt is not None: A(f"s_waitcnt lgkmcnt({wt})")
            for k, m in enumerate(mf):
                if do_mfma: A(m)
                if k in (0, 2) and di < len(dm):
                    for ln in dm[di]: A(ln)
                    di += 1
                if st == PST and par_lines:
                    for _ in range(6):
                        if par_lines: A(par_lines.pop(0))
            if not mf:
                pass
        while di < len(dm):
            for ln in dm[di]: A(ln)
            di += 1
        if st == PST:
            while par_lines: A(par_lines.pop(0))
        if opt.get("cpf") == st:
            c_prefetch(A, opt, vLane, sWV)
    A("s_waitcnt lgkmcnt(0)")
    if do_mfma:
        for m in mfmas(FY, False): A(m)
    stamp(A, 3, opt)
    if opt.get("no_epi"):
        A.nop(16)
        A(f"v_lshlrev_b32 {v(vT)}, 4, v0")
        A(f"s_lshl_b32 s38, s2, 12")
        A(f"buffer_store_dwordx4 {v(ACC,4)}, {v(vT)}, {s(sW,4)}, s38 offen")
    else:
        gen_k1_epilogue(A, opt, locals())
    stamp(A, 7, opt)
    if opt.get("stamps"):
        A("s_waitcnt lgkmcnt(0) vmcnt(0)")
        A("s_memtime s[76:77]")
        A("s_waitcnt lgkmcnt(0)")
        for i in range(9):
            A(f"v_mov_b32 {v(100+i)}, s{60+2*i}")
        A("s_memrealtime s[78:79]")
        A("s_waitcnt lgkmcnt(0)")
        A(f"v_mov_b32 {v(109)}, s78")
        A(f"v_mov_b32 {v(110)}, s80")
        A(f"s_lshl_b32 s38, s2, 2")
        A(f"s_add_u32 s38, s38, s{sWV}")
        A(f"s_lshl_b32 s38, s38, 6")
        A(f"s_add_u32 s38, s38, {WS_STAMP}")
        A(f"v_mov_b32 {v(vT)}, 0")
        A("s_mov_b64 exec, 1")
        A(f"buffer_store_dwordx4 {v(100,4)}, {v(vT)}, {s(sW,4)}, s38 offen")
        A(f"buffer_store_dwordx4 {v(104,4)}, {v(vT)}, {s(sW,4)}, s38 offen offset:16")
        A(f"buffer_store_dwordx4 {v(108,4)}, {v(vT)}, {s(sW,4)}, s38 offen offset:32")
    A("s_endpgm")

def c_prefetch(A, opt, vLane, sWV):
    A("s_and_b32 s52, s2, 1")
    A("s_lshl_b32 s52, s52, 9")
    A("s_lshr_b32 s53, s2, 3")
    A("s_lshl_b32 s53, s53, 4")
    A("s_add_u32 s52, s52, s53")
    A(f"s_lshl_b32 s53, s{sWV}, 2")
    A("s_add_u32 s52, s52, s53")
    A("s_lshl_b32 s52, s52, 11")
    A(f"v_lshl_add_u32 v254, {v(vLane)}, 7, s52")
    A("global_load_dword v252, v254, s[48:49]")
    A("global_load_dword v253, v254, s[50:51]")

def pk_fma(d, a, asel, b, c, neg=False):
    n = " neg_lo:[1,0,0] neg_hi:[1,0,0]" if neg else ""
    return f"v_pk_fma_f32 {v(d,2)}, {v(a,2)}, {v(b,2)}, {v(c,2)} op_sel:[{asel},0,0] op_sel_hi:[{asel},1,1]{n}"
def pk_mul(d, a, asel, b):
    return f"v_pk_mul_f32 {v(d,2)}, {v(a,2)}, {v(b,2)} op_sel:[{asel},0] op_sel_hi:[{asel},1]"

def gen_k1_epilogue(A, opt, L):
    g = lambda n: L[n]
    NSLOT = g("NSLOT"); acc = g("acc"); vT = g("vT"); vL = g("vL"); vC2 = g("vC2"); vL16 = g("vL16")
    vL128 = g("vL128"); vL256 = g("vL256"); vWre = g("vWre"); vWim = g("vWim"); vLane = g("vLane"); vHf = g("vHf")
    UI = g("UI"); LB = g("LB"); PP = g("PP"); sAG = g("sAG"); sW = g("sW"); sRB = g("sRB"); sCB = g("sCB")
    sWV = g("sWV"); sWM = g("sWM"); sWN = g("sWN"); sDBG = g("sDBG"); vAgO = g("vAgO"); FX = g("FX")
    used = {30 % NSLOT, 31 % NSLOT}
    free = [x for x in range(NSLOT) if x not in used]
    base = None
    for x in free:
        if x + 1 in free and x + 2 in free: base = x * 16384; break
    if base is None:
        A("s_barrier"); base = 0
    EX = base
    TR = base + 4096
    def ure(q): return acc(q >> 3, 0) + 2 * (q & 7)
    def uim(q): return acc(q >> 3, 1) + 2 * (q & 7)
    hr, hi, tr_, ti = vT, vT + 2, vT + 4, vT + 6
    ch = FX; ea = FX + 1; eb = FX + 2; la = FX + 3; la2 = FX + 4; wa = FX + 5; ra = FX + 6; ga = FX + 7; t9 = FX + 8
    A(f"v_and_b32 {v(ch)}, 31, {v(vLane)}")
    A(f"s_lshl_b32 s38, s{sWN}, 8")
    A(f"s_add_u32 s38, s38, {EX}")
    A(f"v_lshl_add_u32 {v(eb)}, {v(ch)}, 3, s38")
    A(f"s_lshl_b32 s39, s{sWM}, 11")
    A(f"v_lshl_add_u32 {v(ea)}, {v(vHf)}, 10, {v(eb)}")
    A(f"v_add_u32 {v(ea)}, s39, {v(ea)}")
    A(f"v_lshl_add_u32 {v(la)}, {v(vHf)}, 10, {v(vAgO)}")
    A(f"v_add_u32 {v(la)}, 1024, {v(la)}")
    A(f"v_sub_u32 {v(la2)}, s{sRB}, {v(vHf)}")
    A(f"s_mul_i32 s38, s{sWV}, 9216")
    A(f"s_add_u32 s38, s38, {TR}")
    A(f"v_mul_u32_u24 {v(wa)}, 144, {v(ch)}")
    A(f"v_lshl_add_u32 {v(wa)}, {v(vHf)}, 6, {v(wa)}")
    A(f"v_add_u32 {v(wa)}, s38, {v(wa)}")
    A(f"v_bfe_u32 {v(ra)}, {v(vLane)}, 2, 2")
    A(f"v_lshl_add_u32 {v(ra)}, {v(vHf)}, 3, {v(ra)}")
    A(f"v_mul_u32_u24 {v(ra)}, 144, {v(ra)}")
    A(f"v_bfe_u32 {v(t9)}, {v(vLane)}, 4, 1")
    A(f"v_lshl_add_u32 {v(ra)}, {v(t9)}, 5, {v(ra)}")
    A(f"v_and_b32 {v(t9)}, 3, {v(vLane)}")
    A(f"v_lshl_add_u32 {v(ra)}, {v(t9)}, 3, {v(ra)}")
    A(f"v_add_u32 {v(ra)}, s38, {v(ra)}")
    A(f"v_lshlrev_b32 {v(ga)}, 4, {v(vLane)}")
    for q in range(1, 16):
        pr = ure(0) if q == 1 else hr
        pi = uim(0) if q == 1 else hi
        A(pk_fma(tr_, vL, 1, pi, ure(q), neg=True))
        A(pk_fma(ti, vL, 1, pr, uim(q)))
        A(pk_fma(hr, vL, 0, pr, tr_))
        A(pk_fma(hi, vL, 0, pi, ti))
    A(f"ds_write_b64 {v(ea)}, {v(hr,2)}")
    A(f"ds_write_b64 {v(ea)}, {v(hi,2)} offset:512")
    A("s_waitcnt lgkmcnt(0)")
    A("s_barrier")
    for sp in range(4):
        A(f"ds_read_b64 {v(PP + 4*sp, 2)}, {v(eb)} offset:{sp*1024}")
        A(f"ds_read_b64 {v(PP + 4*sp + 2, 2)}, {v(eb)} offset:{sp*1024 + 512}")
    PQ = PP + 16
    def er(sx): return PP + 4 * (sx >> 1) + (sx & 1)
    def ei(sx): return er(sx) + 2
    def pr_(sx): return er(0) if sx == 1 else PQ + 2 * sx
    def pi_(sx): return ei(0) if sx == 1 else PQ + 2 * sx + 1
    A("s_waitcnt lgkmcnt(0)")
    for sx in range(1, 8):
        d = sx + 1
        A(f"v_fma_f32 {v(pr_(d))}, -{v(vL16+1)}, {v(pi_(sx))}, {v(er(sx))}")
        A(f"v_fma_f32 {v(pi_(d))}, {v(vL16+1)}, {v(pr_(sx))}, {v(ei(sx))}")
        A(f"v_fma_f32 {v(pr_(d))}, {v(vL16)}, {v(pr_(sx))}, {v(pr_(d))}")
        A(f"v_fma_f32 {v(pi_(d))}, {v(vL16)}, {v(pi_(sx))}, {v(pi_(d))}")
    PUB = FX + 12
    A(f"v_mov_b32 {v(PUB)}, {v(pr_(8))}")
    A(f"v_mov_b32 {v(PUB+1)}, s93")
    A(f"v_mov_b32 {v(PUB+2)}, {v(pi_(8))}")
    A(f"v_mov_b32 {v(PUB+3)}, s93")
    A(f"s_cmp_lg_u32 s{sWM}, 0")
    A("s_cbranch_scc1 L_k1_nopub")
    A("s_mov_b32 exec_hi, 0")
    A(f"buffer_store_dwordx4 {v(PUB,4)}, {v(vAgO)}, {s(sAG,4)}, 0 offen sc1")
    A("s_mov_b32 exec_hi, -1")
    A.label("L_k1_nopub")
    stamp(A, 4, opt)
    LQ = 0
    for i in range(4):
        A(f"s_mov_b32 s{46+i}, {4096*i}")
    def lb_loads():
        for i in range(8):
            A(f"buffer_load_dwordx4 {v(LQ+4*i,4)}, {v(la)}, {s(sAG,4)}, s{46+(i>>1)} offen offset:{2048*(i&1)} sc1")
    lb_loads()
    XT = FX + 16
    for i in range(8):
        A(f"v_cmp_lt_i32 vcc, {2*i}, {v(la2)}")
        A("s_nop 1")
        A(f"v_cndmask_b32 {v(XT+i)}, 0, {v(PUB+1)}, vcc")
    A(f"v_cmp_eq_u32 vcc, 1, {v(vHf)}")
    A(f"s_cmp_eq_u32 s{sWM}, 1")
    A("s_cselect_b64 s[38:39], -1, 0")
    for e in range(2):
        for (dst, f) in ((hr + e, pr_), (hi + e, pi_)):
            a0 = "0" if e == 0 else v(f(1))
            A(f"v_cndmask_b32 {v(dst)}, {a0}, {v(f(2+e))}, vcc")
            A(f"v_cndmask_b32 {v(t9)}, {v(f(4+e))}, {v(f(6+e))}, vcc")
            A(f"v_cndmask_b32 {v(dst)}, {v(dst)}, {v(t9)}, s[38:39]")
    for q in range(16):
        A(pk_mul(UI + 2*q, vC2, 0, uim(q)))
        A(pk_fma(UI + 2*q, vC2, 1, ure(q), UI + 2*q))
        A(pk_mul(ure(q), vC2, 0, ure(q)))
        A(pk_fma(ure(q), vC2, 1, uim(q), ure(q), neg=True))
    A.label("L_k1_poll")
    A("s_waitcnt vmcnt(0)")
    for i in range(8):
        A(f"v_xor_b32 {v(LQ+4*i+1)}, {v(LQ+4*i+1)}, {v(XT+i)}")
        A(f"v_xor_b32 {v(LQ+4*i+3)}, {v(LQ+4*i+3)}, {v(XT+i)}")
    A(f"v_or3_b32 {v(t9)}, {v(LQ+1)}, {v(LQ+3)}, {v(LQ+5)}")
    for i in range(7, 31, 4):
        A(f"v_or3_b32 {v(t9)}, {v(t9)}, {v(LQ+i)}, {v(LQ+i+2)}")
    A(f"v_or_b32 {v(t9)}, {v(t9)}, {v(LQ+31)}")
    A(f"v_cmp_ne_u32 vcc, 0, {v(t9)}")
    A("s_nop 1")
    A("s_cmp_eq_u64 vcc, 0")
    A("s_cbranch_scc1 L_k1_got")
    A("s_sleep 3")
    lb_loads()
    A("s_branch L_k1_poll")
    A.label("L_k1_got")
    if opt.get("cpf") == 99:
        c_prefetch(A, opt, vLane, sWV)
    stamp(A, 5, opt)
    cr_, ci_ = LQ + 28, LQ + 30
    for i in range(6, -1, -1):
        ar, ai = LQ + 4 * i, LQ + 4 * i + 2
        dr, di = (LB, LB + 1) if i == 0 else (ar, ai)
        A(f"v_fma_f32 {v(ar)}, -{v(vL256+1)}, {v(ci_)}, {v(ar)}")
        A(f"v_fma_f32 {v(ai)}, {v(vL256+1)}, {v(cr_)}, {v(ai)}")
        A(f"v_fma_f32 {v(dr)}, {v(vL256)}, {v(cr_)}, {v(ar)}")
        A(f"v_fma_f32 {v(di)}, {v(vL256)}, {v(ci_)}, {v(ai)}")
        cr_, ci_ = ar, ai
    A(f"v_mov_b32 {v(LB+2)}, {v(LB)}")
    A(f"v_mov_b32 {v(LB+3)}, {v(LB+1)}")
    A("s_nop 1")
    A(f"v_permlane32_swap_b32 {v(LB)}, {v(LB+2)}")
    A(f"v_permlane32_swap_b32 {v(LB+1)}, {v(LB+3)}")
    A("s_nop 0")
    A(f"v_fma_f32 {v(LB)}, -{v(vL128+1)}, {v(LB+3)}, {v(LB)}")
    A(f"v_fma_f32 {v(LB+1)}, {v(vL128+1)}, {v(LB+2)}, {v(LB+1)}")
    A(f"v_fma_f32 {v(LB)}, {v(vL128)}, {v(LB+2)}, {v(LB)}")
    A(f"v_fma_f32 {v(LB+1)}, {v(vL128)}, {v(LB+3)}, {v(LB+1)}")
    A(pk_fma(hr, LB, 0, vWre, hr))
    A(pk_fma(hi, LB, 0, vWim, hi))
    A(pk_fma(hr, LB, 1, vWim, hr, neg=True))
    A(pk_fma(hi, LB, 1, vWre, hi))
    A(pk_mul(tr_, vC2, 0, hr))
    A(pk_mul(ti, vC2, 0, hi))
    A(pk_fma(tr_, vC2, 1, hi, tr_, neg=True))
    A(pk_fma(ti, vC2, 1, hr, ti))
    PK = LB
    def pk_out(part, e, j): return PK + ((part * 2 + e) * 8 + j)
    for q in range(16):
        pr = tr_ if q == 0 else ure(q - 1)
        pi = ti if q == 0 else UI + 2 * (q - 1)
        A(pk_fma(ure(q), vL, 1, pi, ure(q), neg=True))
        A(pk_fma(UI + 2*q, vL, 1, pr, UI + 2*q))
        A(pk_fma(ure(q), vL, 0, pr, ure(q)))
        A(pk_fma(UI + 2*q, vL, 0, pi, UI + 2*q))
        if q & 1:
            j = q >> 1
            for e in range(2):
                A(f"v_cvt_pk_bf16_f32 {v(pk_out(0,e,j))}, {v(ure(q-1)+e)}, {v(ure(q)+e)}")
                A(f"v_cvt_pk_bf16_f32 {v(pk_out(1,e,j))}, -{v(UI+2*(q-1)+e)}, -{v(UI+2*q+e)}")
        if q in (7, 15):
            jj = q >> 3
            for part in range(2):
                for e in range(2):
                    A(f"ds_write_b128 {v(wa)}, {v(pk_out(part,e,4*jj),4)} offset:{part*4608 + e*32 + jj*16}")
    stamp(A, 6, opt)
    A("s_waitcnt lgkmcnt(0)")
    A(f"s_lshl_b32 s38, s{sRB}, 19")
    A(f"s_lshl_b32 s39, s{sCB}, 15")
    A("s_add_u32 s38, s38, s39")
    A(f"s_lshl_b32 s39, s{sWN}, 11")
    A("s_add_u32 s38, s38, s39")
    A(f"s_lshl_b32 s39, s{sWM}, 14")
    A("s_add_u32 s38, s38, s39")
    OUT = 64
    k = 0
    for part in range(2):
        for mt in range(2):
            for h16 in range(2):
                for rd in range(2):
                    A(f"ds_read_b64_tr_b16 {v(OUT + 4*k + 2*rd, 2)}, {v(ra)} offset:{part*4608 + h16*2304 + rd*576 + mt*64}")
                k += 1
    k = 0
    stf = opt.get("hstore", "")
    for part in range(2):
        for mt in range(2):
            A(f"s_add_u32 s39, s38, {part*4096 + mt*8192}")
            for h16 in range(2):
                A(f"s_waitcnt lgkmcnt({14 - 2*k})")
                A(f"buffer_store_dwordx4 {v(OUT + 4*k, 4)}, {v(ga)}, {s(sW,4)}, s39 offen offset:{h16*1024} {stf}")
                k += 1


def gen_k1_prefetch(A, opt):
    A("s_cmp_ge_u32 s2, 512")
    A("s_cbranch_scc1 L_pf_done")
    A("s_load_dwordx2 s[4:5], s[0:1], 0")
    A("s_load_dwordx4 s[32:35], s[0:1], 24")
    A("v_lshrrev_b32 v1, 6, v0")
    A("v_and_b32 v2, 63, v0")
    A("v_readfirstlane_b32 s18, v1")
    A("s_and_b32 s3, s2, 7")
    A("s_bfe_u32 s38, s2, 0x50003")
    A("s_cmp_eq_u32 s18, 3")
    A("s_cbranch_scc1 L_pf_done")
    A("s_lshr_b32 s16, s3, 1")
    A("s_and_b32 s17, s3, 1")
    A("s_cmp_eq_u32 s18, 0")
    A("s_cselect_b32 s16, s16, s17")
    A("s_lshl_b32 s16, s16, 9")
    A("s_lshl_b32 s38, s38, 4")
    A("s_add_u32 s16, s16, s38")
    A("v_lshrrev_b32 v3, 2, v2")
    A("v_add_u32 v3, s16, v3")
    A("v_lshlrev_b32 v3, 11, v3")
    A("v_and_b32 v4, 3, v2")
    A("v_lshl_add_u32 v3, v4, 7, v3")
    A("s_waitcnt lgkmcnt(0)")
    A("s_cmp_eq_u32 s18, 1")
    A("s_cselect_b32 s6, s32, s34")
    A("s_cselect_b32 s7, s33, s35")
    A("s_cmp_eq_u32 s18, 0")
    A("s_cselect_b32 s6, s4, s6")
    A("s_cselect_b32 s7, s5, s7")
    fl = opt["pf"] if isinstance(opt["pf"], str) else ""
    for i in range(4):
        A(f"global_load_dword v{8+i}, v3, s[6:7] offset:{512*i} {fl}")
    A("s_waitcnt vmcnt(0)")
    A.label("L_pf_done")
```

```python
from asmlib import *
from k1 import *
from side import *

class Vm:
    def __init__(self): self.ops = []
    def add(self, tag): self.ops.append(tag)
    def need(self, tag):
        idx = max(i for i, t in enumerate(self.ops) if t == tag)
        return len(self.ops) - 1 - idx

def gen_k2_gemm(A, opt):
    NS = opt.get("k2_ns", 5)
    HD = opt.get("k2_hd", 3)
    sC, sW, sX, sO = 4, 12, 8, 24
    sRB, sDB, sWV = 16, 17, 18
    sROT, sHB, sK, sH = 19, 20, 21, 22
    sTOP = 48
    vDC = 8
    vRC, vRC2 = 12, 16
    vH0, vH1 = 20, 21
    vLane, vHf, vG = 22, 23, 24
    vT = 26
    XR = 40
    GR = 56
    ACC = 64
    CF = 96
    E = 120
    DS = 152
    HR = 160
    assert HR + HD * 32 <= 256
    A.label("L_k2_gemm")
    stamp(A, 0, opt)
    A("s_load_dwordx2 s[28:29], s[0:1], 0")
    A("s_load_dwordx4 s[32:35], s[0:1], 40")
    A("s_load_dwordx2 s[36:37], s[0:1], 64")
    A("s_load_dwordx2 s[30:31], s[0:1], 120")
    A("s_load_dwordx4 s[40:43], s[0:1], 128")
    A(f"v_lshrrev_b32 {v(vT)}, 6, v0")
    A(f"v_and_b32 {v(vLane)}, 63, v0")
    A(f"v_readfirstlane_b32 s{sWV}, {v(vT)}")
    A("s_and_b32 s3, s2, 7")
    A("s_lshr_b32 s38, s2, 3")
    A(f"s_lshr_b32 s{sRB}, s3, 1")
    A(f"s_lshl_b32 s{sRB}, s{sRB}, 2")
    A("s_and_b32 s39, s38, 3")
    A(f"s_add_u32 s{sRB}, s{sRB}, s39")
    A(f"s_and_b32 s{sDB}, s3, 1")
    A(f"s_lshl_b32 s{sDB}, s{sDB}, 3")
    cx, cr, cc_ = opt.get("k2_rot", [8, 0, 0])
    A(f"s_mul_i32 s{sROT}, s3, {cx}")
    A("s_lshr_b32 s39, s38, 2")
    A(f"s_add_u32 s{sDB}, s{sDB}, s39")
    A(f"s_mul_i32 s39, s{sRB}, {cr}")
    A(f"s_add_u32 s{sROT}, s{sROT}, s39")
    A(f"s_mul_i32 s39, s{sDB}, {cc_}")
    A(f"s_add_u32 s{sROT}, s{sROT}, s39")
    A(f"v_lshrrev_b32 {v(vHf)}, 5, {v(vLane)}")
    rr, cc, t1, t2 = vT, vT + 1, vT + 2, vT + 3
    A(f"v_lshrrev_b32 {v(rr)}, 3, {v(vLane)}")
    A(f"v_and_b32 {v(cc)}, 7, {v(vLane)}")
    A(f"v_lshrrev_b32 {v(t1)}, 1, {v(rr)}")
    A(f"v_xor_b32 {v(cc)}, {v(cc)}, {v(t1)}")
    A(f"v_lshlrev_b32 {v(cc)}, 4, {v(cc)}")
    A(f"s_lshl_b32 s38, s{sDB}, 6")
    A(f"s_and_b32 s39, s{sWV}, 1")
    A("s_lshl_b32 s39, s39, 5")
    A("s_add_u32 s38, s38, s39")
    A(f"v_add_u32 {v(t1)}, s38, {v(rr)}")
    A(f"v_lshl_add_u32 {v(t1)}, {v(t1)}, 11, {v(cc)}")
    for q in range(4):
        add = 8 * 2048 * q - 1024 * q + 3072
        if q & 1:
            A(f"v_xor_b32 {v(t2)}, 64, {v(t1)}")
            A(f"v_add_u32 {v(vDC+q)}, {add}, {v(t2)}")
        else:
            A(f"v_add_u32 {v(vDC+q)}, {add}, {v(t1)}")
    A(f"v_lshlrev_b32 {v(vH0)}, 4, {v(vLane)}")
    A(f"v_add_u32 {v(vH1)}, 4096, {v(vH0)}")
    A(f"s_lshl_b32 s{sHB}, s{sRB}, 19")
    A(f"s_lshl_b32 s38, s{sWV}, 13")
    A(f"s_add_u32 s{sHB}, s{sHB}, s38")
    A(f"s_lshl_b32 s44, s{sWV}, 12")
    A("s_waitcnt lgkmcnt(0)")
    A(f"s_cmp_lt_u32 s{sWV}, 2")
    A(f"s_cselect_b32 s{sC}, s32, s34")
    A(f"s_cselect_b32 s{sC+1}, s33, s35")
    A(f"s_sub_u32 s{sC}, s{sC}, 3072")
    A(f"s_subb_u32 s{sC+1}, s{sC+1}, 0")
    A(f"s_mov_b32 s{sC+2}, {2097152 + 3072}")
    A(f"s_mov_b32 s{sC+3}, 0x20000")
    srd(A, sW, 42, 43, WS_USED)
    srd(A, sX, 28, 29, 4194304)
    srd(A, sO, 30, 31, 8388608)
    A(f"s_add_u32 s46, s42, {WS_TOP}")
    A("s_addc_u32 s47, s43, 0")
    A(f"s_load_dwordx8 s[{sTOP}:{sTOP+7}], s[46:47], 0")

    vm = Vm()
    def dma(st, q):
        out = []
        if q == 0:
            out.append(f"s_add_u32 m0, s44, {(st % NS) * 16384}")
            out.append(f"s_add_u32 s{sK}, s{sROT}, {st}")
            out.append(f"s_and_b32 s{sK}, s{sK}, 15")
            out.append(f"s_lshl_b32 s{sK}, s{sK}, 7")
        out.append(f"buffer_load_dwordx4 {v(vDC+q)}, {s(sC,4)}, s{sK} offen offset:{1024*q} lds")
        vm.add(("c", st))
        return out
    def hload(st, j):
        out = []
        if j == 0:
            out.append(f"s_add_u32 s{sH}, s{sROT}, {st}")
            out.append(f"s_and_b32 s{sH}, s{sH}, 15")
            out.append(f"s_lshl_b32 s{sH}, s{sH}, 15")
            out.append(f"s_add_u32 s{sH}, s{sH}, s{sHB}")
        r = HR + (st % HD) * 32 + 4 * j
        out.append(f"buffer_load_dwordx4 {v(r,4)}, {v(vH0 if j < 4 else vH1)}, {s(sW,4)}, s{sH} offen offset:{1024*(j&3)}")
        vm.add(("h", st, j))
        return out
    def emit(ls):
        for l in ls: A(l)
    for st in range(max(NS - 1, HD)):
        if st < NS - 1:
            for q in range(4): emit(dma(st, q))
        if st < HD:
            for j in range(8): emit(hload(st, j))
        if st == 1:
            A(f"v_lshrrev_b32 {v(t1)}, 4, {v(vLane)}")
            A(f"v_and_b32 {v(t2)}, 15, {v(vLane)}")
            vXo, vGo = vT + 4, vT + 5
            A(f"v_lshlrev_b32 {v(vXo)}, 11, {v(t1)}")
            A(f"v_lshl_add_u32 {v(vXo)}, {v(t2)}, 3, {v(vXo)}")
            A(f"v_lshlrev_b32 {v(vGo)}, 2, {v(t1)}")
            A(f"s_lshl_b32 s45, s{sRB}, 7")
            A(f"s_lshl_b32 s38, s{sWV}, 5")
            A("s_add_u32 s45, s45, s38")
            A("s_lshl_b32 s38, s45, 11")
            A(f"s_lshl_b32 s39, s{sDB}, 7")
            A("s_add_u32 s38, s38, s39")
            for i in range(8):
                A(f"buffer_load_dwordx2 {v(XR+2*i,2)}, {v(vXo)}, {s(sX,4)}, s38 offen")
                A(f"s_add_u32 s38, s38, 8192")
                vm.add("x")
            A("s_lshl_b32 s38, s45, 2")
            A(f"s_add_u32 s38, s38, {WS_G}")
            for i in range(8):
                A(f"buffer_load_dword {v(GR+i)}, {v(vGo)}, {s(sW,4)}, s38 offen offset:{16*i}")
                vm.add("x")
            A(f"v_and_b32 {v(vT+6)}, 31, {v(vLane)}")
            A(f"v_lshlrev_b32 {v(vT+6)}, 2, {v(vT+6)}")
            A(f"buffer_load_dword {v(vG)}, {v(vT+6)}, {s(sW,4)}, s38 offen")
            vm.add("x")
            A(f"v_lshl_add_u32 {v(vT+6)}, {v(t2)}, 3, s39")
            A(f"global_load_dwordx2 {v(DS+4,2)}, {v(vT+6)}, s[36:37]")
            vm.add("x")
    A(f"v_and_b32 {v(t1)}, 31, {v(vLane)}")
    A(f"v_bfe_u32 {v(t2)}, {v(vLane)}, 1, 3")
    A(f"v_xor_b32 {v(t2)}, {v(t2)}, {v(vHf)}")
    A(f"v_lshlrev_b32 {v(t2)}, 4, {v(t2)}")
    A(f"v_lshl_add_u32 {v(t2)}, {v(t1)}, 7, {v(t2)}")
    for kk in range(4):
        A(f"v_xor_b32 {v(vRC+kk)}, {32*kk}, {v(t2)}")
        A(f"v_add_u32 {v(vRC2+kk)}, 0x10000, {v(vRC+kk)}")
    A("s_mov_b32 s23, 0xffff0000")

    B = Asm()
    B(f"v_lshlrev_b32 {v(DS)}, 16, {v(DS+4)}")
    B(f"v_and_b32 {v(DS+1)}, s23, {v(DS+4)}")
    B(f"v_lshlrev_b32 {v(DS+2)}, 16, {v(DS+5)}")
    B(f"v_and_b32 {v(DS+3)}, s23, {v(DS+5)}")
    a0, a1, a2, a3, om = vT, vT + 1, vT + 2, vT + 3, vT + 4
    for i in range(8):
        B(f"v_sub_f32 {v(om)}, 1.0, {v(GR+i)}")
        rnd_bf16(B, om, om)
        for p in range(2):
            xr = XR + 2 * i + p
            B(f"v_lshlrev_b32 {v(a0)}, 16, {v(xr)}")
            B(f"v_and_b32 {v(a1)}, s23, {v(xr)}")
            B(f"v_mul_f32 {v(a2)}, {v(a0)}, {v(DS+2*p)}")
            B(f"v_mul_f32 {v(a3)}, {v(a1)}, {v(DS+2*p+1)}")
            B(f"v_cvt_pk_bf16_f32 {v(a2)}, {v(a2)}, {v(a3)}")
            B(f"v_mul_f32 {v(a0)}, {v(a0)}, {v(om)}")
            B(f"v_mul_f32 {v(a1)}, {v(a1)}, {v(om)}")
            B(f"v_cvt_pk_bf16_f32 {v(a0)}, {v(a0)}, {v(a1)}")
            B(f"v_and_b32 {v(a3)}, s23, {v(a2)}")
            B(f"v_lshlrev_b32 {v(a2)}, 16, {v(a2)}")
            B(f"v_and_b32 {v(a1)}, s23, {v(a0)}")
            B(f"v_lshlrev_b32 {v(a0)}, 16, {v(a0)}")
            B(f"v_fma_f32 {v(E+4*i+2*p)}, {v(GR+i)}, {v(a2)}, {v(a0)}")
            B(f"v_fma_f32 {v(E+4*i+2*p+1)}, {v(GR+i)}, {v(a3)}, {v(a1)}")
    elines = B.lines

    def creads(g):
        st, j = g >> 3, g & 7
        part, kk = j >> 2, j & 3
        off = (st % NS) * 16384 + part * 8192
        base = vRC
        if off >= 65536: off -= 65536; base = vRC2
        F = CF + (g % 3) * 8
        return [f"ds_read_b128 {v(F+4*n,4)}, {v(base+kk)} offset:{off + 4096*n}" for n in range(2)]
    stamp(A, 1, opt)
    A(f"s_waitcnt vmcnt({vm.need(('c', 0))}) lgkmcnt(0)")
    A("s_barrier")
    stamp(A, 2, opt)
    emit(creads(0)); emit(creads(1))
    for g in range(128):
        st, j = g >> 3, g & 7
        if g == 32: stamp(A, 5, opt)
        if g == 64: stamp(A, 6, opt)
        if g + 2 < 128:
            if (g + 2) % 8 == 0:
                A(f"s_waitcnt vmcnt({min(63, vm.need(('c', st + 1)))}) lgkmcnt(0)")
                A("s_barrier")
            emit(creads(g + 2))
            lg = 4
        else:
            lg = 2 if g == 126 else 0
        A(f"s_waitcnt vmcnt({min(63, vm.need(('h', st, j)))}) lgkmcnt({lg})")
        F = CF + (g % 3) * 8
        hr = HR + (st % HD) * 32 + 4 * j
        for n in range(2):
            c = "0" if g == 0 else v(ACC + 16 * n, 16)
            if not opt.get("k2_nomfma"): A(f"v_mfma_f32_32x32x16_bf16 {v(ACC+16*n,16)}, {v(F+4*n,4)}, {v(hr,4)}, {c}")
        if st + HD < 16:
            emit(hload(st + HD, j))
        gg = g + 2
        stb = gg >> 3
        if (gg & 7) in (0, 2, 4, 6) and stb >= 1 and stb + NS - 2 < 16 and False:
            pass
        tgt = stb + NS - 1
        if (gg & 1) == 0 and tgt < 16 and (stb >= 1 or True):
            q = (gg & 7) >> 1
            if stb == 0:
                if q == 1: emit(dma(tgt, 0))
                emit(dma(tgt, q))
            else:
                emit(dma(tgt, q))
        if g >= 40 and elines:
            if g == 40: assert vm.need("x") > vm.need(("h", st, j))
            for _ in range(4):
                if elines: A(elines.pop(0))
    assert not elines
    stamp(A, 3, opt)
    last = 15 % NS
    base = 16384 * (last + 1) if last + 3 < NS else 0
    assert (last + 3 < NS) or last >= 3
    wa, ra, oa = vT, vT + 1, vT + 2
    A(f"s_mul_i32 s38, s{sWV}, 8704")
    A(f"s_add_u32 s56, s38, {base}")
    A(f"v_and_b32 {v(t2+1)}, 31, {v(vLane)}")
    A(f"v_mul_u32_u24 {v(wa)}, 272, {v(t2+1)}")
    A(f"v_lshl_add_u32 {v(wa)}, {v(vHf)}, 4, {v(wa)}")
    A(f"v_add_u32 {v(wa)}, s56, {v(wa)}")
    vq, vd = vT + 5, vT + 6
    A(f"v_lshrrev_b32 {v(vq)}, 4, {v(vLane)}")
    A(f"v_and_b32 {v(vd)}, 15, {v(vLane)}")
    A(f"v_mul_u32_u24 {v(ra)}, 272, {v(vq)}")
    A(f"v_lshl_add_u32 {v(ra)}, {v(vd)}, 4, {v(ra)}")
    A(f"v_add_u32 {v(ra)}, s56, {v(ra)}")
    A(f"v_lshlrev_b32 {v(oa)}, 12, {v(vq)}")
    A(f"v_lshl_add_u32 {v(oa)}, {v(vd)}, 4, {v(oa)}")
    for n in range(2):
        for q in range(4):
            r = ACC + 16 * n + 4 * q
            for e in range(4):
                A(f"v_mul_f32 {v(r+e)}, {v(r+e)}, {v(vG)}")
            A(f"ds_write_b128 {v(wa)}, {v(r,4)} offset:{n*128 + q*32}")
    DEL = NS * 16384 + 32768 + 2048
    A("s_waitcnt lgkmcnt(0)")
    A("s_barrier")
    Y = HR
    for i in range(8):
        if opt.get("nofix"): break
        A(f"s_and_b32 s59, s{sTOP+i}, 0x7ff")
        A("s_sub_u32 s59, 2047, s59")
        A("s_sub_u32 s38, s59, s45")
        A("s_cmp_ge_u32 s38, 32")
        A(f"s_cbranch_scc1 L_k2_fx{i}")
        A("s_mul_i32 s39, s38, 272")
        A("s_add_u32 s39, s39, s56")
        A(f"v_lshl_add_u32 {v(Y+8)}, {v(vd)}, 4, s39")
        A(f"s_mov_b32 s39, {DEL + 256*i}")
        A(f"v_lshl_add_u32 {v(Y+9)}, {v(vd)}, 4, s39")
        A(f"ds_read_b128 {v(Y,4)}, {v(Y+8)}")
        A(f"ds_read_b128 {v(Y+4,4)}, {v(Y+9)}")
        A("s_waitcnt lgkmcnt(0)")
        for e in range(4):
            A(f"v_add_f32 {v(Y+e)}, {v(Y+e)}, {v(Y+4+e)}")
        A(f"ds_write_b128 {v(Y+8)}, {v(Y,4)}")
        A.label(f"L_k2_fx{i}")
    stamp(A, 4, opt)
    A("s_waitcnt lgkmcnt(0)")
    for i in range(8):
        A(f"ds_read_b128 {v(ACC+4*i,4)}, {v(ra)} offset:{i*4*272}")
    A("s_lshl_b32 s38, s45, 12")
    A(f"s_lshl_b32 s39, s{sDB}, 8")
    A("s_add_u32 s38, s38, s39")
    stf = opt.get("ostore", "")
    for i in range(8):
        A(f"s_waitcnt lgkmcnt({7-i})")
        for e in range(4):
            A(f"v_add_f32 {v(ACC+4*i+e)}, {v(ACC+4*i+e)}, {v(E+4*i+e)}")
        A(f"buffer_store_dwordx4 {v(ACC+4*i,4)}, {v(oa)}, {s(sO,4)}, s38 offen {stf}")
        A("s_add_u32 s38, s38, 16384")
    stamp(A, 7, opt)
    if opt.get("stamps"):
        A("s_waitcnt lgkmcnt(0) vmcnt(0)")
        A("s_memtime s[76:77]")
        A("s_waitcnt lgkmcnt(0)")
        for i in range(9):
            A(f"v_mov_b32 {v(100+i)}, s{60+2*i}")
        A("s_memrealtime s[78:79]")
        A("s_waitcnt lgkmcnt(0)")
        A(f"v_mov_b32 {v(109)}, s78")
        A(f"v_mov_b32 {v(110)}, s80")
        A(f"s_lshl_b32 s38, s2, 2")
        A(f"s_add_u32 s38, s38, s{sWV}")
        A(f"s_lshl_b32 s38, s38, 6")
        A(f"s_add_u32 s38, s38, {WS_STAMP + 65536}")
        A(f"v_mov_b32 {v(vT)}, 0")
        A("s_mov_b64 exec, 1")
        A(f"buffer_store_dwordx4 {v(100,4)}, {v(vT)}, {s(sW,4)}, s38 offen")
        A(f"buffer_store_dwordx4 {v(104,4)}, {v(vT)}, {s(sW,4)}, s38 offen offset:16")
        A(f"buffer_store_dwordx4 {v(108,4)}, {v(vT)}, {s(sW,4)}, s38 offen offset:32")
    A("s_endpgm")
```

```python
from asmlib import *
from k1 import *
from side import srd, wave_sum16, sigmoid, rnd_bf16, WS_KEY, WS_G, WS_TOP, WS_GU, WS_YP

class Sched:
    def __init__(self, A): self.A = A; self.nb = 0
    def bar(self, upto=None):
        tgt = self.nb + 1 if upto is None else upto
        assert tgt >= self.nb, (tgt, self.nb)
        while self.nb < tgt:
            self.A("s_barrier"); self.nb += 1
    def chunked(self, lines, per):
        c = 0
        for ln in lines:
            self.A(ln); c += 1
            if c >= per:
                self.bar(); c = 0

def sstamp(A, idx, opt):
    if opt.get("sstamps"):
        A(f"s_memtime s[{60+2*idx}:{61+2*idx}]")
        if idx == 0: A("s_memrealtime s[80:81]")

def sstamp_out(A, opt, sW, sWV, region):
    if not opt.get("sstamps"): return
    A("s_mov_b64 exec, -1")
    A("s_waitcnt lgkmcnt(0) vmcnt(0)")
    A("s_memtime s[76:77]")
    A("s_waitcnt lgkmcnt(0)")
    for i in range(9):
        A(f"v_mov_b32 {v(100+i)}, s{60+2*i}")
    A("s_memrealtime s[78:79]")
    A("s_waitcnt lgkmcnt(0)")
    A(f"v_mov_b32 {v(109)}, s78")
    A(f"v_mov_b32 {v(110)}, s80")
    A(f"s_lshl_b32 s38, s2, 2")
    A(f"s_add_u32 s38, s38, s{sWV}")
    A(f"s_lshl_b32 s38, s38, 6")
    A(f"s_add_u32 s38, s38, {WS_STAMP + 65536 * region}")
    A(f"v_mov_b32 v99, 0")
    A("s_mov_b64 exec, 1")
    A(f"buffer_store_dwordx4 {v(100,4)}, v99, {s(sW,4)}, s38 offen")
    A(f"buffer_store_dwordx4 {v(104,4)}, v99, {s(sW,4)}, s38 offen offset:16")
    A(f"buffer_store_dwordx4 {v(108,4)}, v99, {s(sW,4)}, s38 offen offset:32")

def gen_k1_side(A, opt):
    NSLOT = opt.get("nslot", 6)
    WB = NSLOT * 16384
    SCR = WB + 65536 - 256
    CNT = 72 * 1024
    sX, sW, sWG, sWU = 4, 12, 8, 24
    sWV = 18
    S = Sched(A)
    A.label("L_k1_side")
    sstamp(A, 0, opt)
    A("s_load_dwordx2 s[28:29], s[0:1], 0")
    A("s_load_dwordx2 s[30:31], s[0:1], 80")
    A("s_load_dwordx4 s[32:35], s[0:1], 88")
    A("s_load_dwordx2 s[36:37], s[0:1], 112")
    A("s_load_dwordx4 s[40:43], s[0:1], 128")
    A("s_load_dwordx4 s[48:51], s[0:1], 40")
    A("s_load_dwordx2 s[52:53], s[0:1], 104")
    A(f"s_sub_u32 s{sWV}, s{sWV}, 4")
    A("v_and_b32 v2, 63, v0")
    A("s_and_b32 s3, s2, 7")
    A("s_lshl_b32 s3, s3, 8")
    A("s_lshr_b32 s38, s2, 3")
    A("s_lshl_b32 s38, s38, 3")
    A("s_add_u32 s3, s3, s38")
    A(f"s_lshl_b32 s38, s{sWV}, 1")
    A("s_add_u32 s16, s3, s38")
    A("s_lshl_b32 s17, s16, 11")
    A("v_lshlrev_b32 v3, 4, v2")
    A("s_waitcnt lgkmcnt(0)")
    srd(A, sX, 28, 29, 4194304)
    srd(A, sW, 42, 43, WS_USED)
    srd(A, sWG, 32, 33, 7340032)
    srd(A, sWU, 34, 35, 7340032)
    load_tag(A, 42, 43, 93)
    XR, WR, GW = 8, 24, 32
    S.bar(opt.get("k1s_rld", 0))
    for t in range(2):
        for h in range(2):
            A(f"buffer_load_dwordx4 {v(XR+8*t+4*h,4)}, v3, {s(sX,4)}, s17 offen offset:{2048*t + 1024*h}")
    for h in range(2):
        A(f"global_load_dwordx4 {v(WR+4*h,4)}, v3, s[30:31] offset:{1024*h}")
        A(f"global_load_dwordx4 {v(GW+4*h,4)}, v3, s[36:37] offset:{1024*h}")
    A("s_mov_b32 s20, 0xffff0000")
    R0, G0 = 40, 42
    for x in range(4): A(f"v_mov_b32 {v(40+x)}, 0")
    S.bar()
    if opt.get("k1s_rld", 0): S.bar()
    A("s_waitcnt vmcnt(0) lgkmcnt(0)")
    make_tag(A, 93)
    B = Asm()
    for i in range(8):
        B(f"v_lshlrev_b32 v44, 16, {v(GW+i)}")
        B(f"v_and_b32 v45, s20, {v(GW+i)}")
        for t in range(2):
            xr = XR + 8 * t + i
            B(f"v_dot2c_f32_bf16 {v(R0+t)}, {v(xr)}, {v(WR+i)}")
            B(f"v_lshlrev_b32 v46, 16, {v(xr)}")
            B(f"v_and_b32 v47, s20, {v(xr)}")
            B("v_mul_f32 v46, v46, v44")
            B("v_mul_f32 v47, v47, v45")
            B("v_cvt_pk_bf16_f32 v46, v46, v47")
            B(f"v_lshlrev_b32 v47, 16, v46")
            B(f"v_and_b32 v46, s20, v46")
            B(f"v_add_f32 {v(G0+t)}, {v(G0+t)}, v47")
            B(f"v_add_f32 {v(G0+t)}, {v(G0+t)}, v46")
    B("s_nop 3")
    wave_sum16(B, [40, 41, 42, 43])
    for sw in ("v_permlane16_swap_b32", "v_permlane32_swap_b32"):
        for x in range(4): B(f"v_mov_b32 {v(44+x)}, {v(40+x)}")
        B("s_nop 1")
        for x in range(4): B(f"{sw} {v(40+x)}, {v(44+x)}")
        B("s_nop 1")
        for x in range(4): B(f"v_add_f32 {v(40+x)}, {v(40+x)}, {v(44+x)}")
    for t in range(2):
        rnd_bf16(B, 44 + t, R0 + t)
        B(f"v_ashrrev_i32 v46, 31, {v(44+t)}")
        B(f"v_or_b32 v46, 0x80000000, v46")
        B(f"v_xor_b32 {v(44+t)}, {v(44+t)}, v46")
        B(f"v_and_b32 {v(44+t)}, s20, {v(44+t)}")
        B(f"s_sub_u32 s38, {2047 - t}, s16")
        B(f"v_or_b32 {v(44+t)}, s38, {v(44+t)}")
    for t in range(2):
        rnd_bf16(B, 46, G0 + t)
        sigmoid(B, 48 + t, 46)
        rnd_bf16(B, 48 + t, 48 + t)
    S.chunked(B.lines, opt.get("k1s_chunk", 400))
    A("v_mov_b32 v46, v45")
    A("v_mov_b32 v45, s93")
    A("v_mov_b32 v47, s93")
    A("s_lshl_b32 s38, s16, 3")
    A(f"s_add_u32 s38, s38, {WS_KEY}")
    A("s_lshl_b32 s39, s16, 2")
    A(f"s_add_u32 s39, s39, {WS_G}")
    A("v_mov_b32 v4, 0")
    A("s_mov_b64 exec, 1")
    A(f"buffer_store_dwordx4 v[44:47], v4, {s(sW,4)}, s38 offen sc1")
    A(f"buffer_store_dwordx2 v[48:49], v4, {s(sW,4)}, s39 offen")
    A("s_mov_b64 exec, -1")
    sstamp(A, 1, opt)
    nb_split = S.nb
    A("s_cmp_ge_u32 s2, 224")
    A("s_cbranch_scc1 L_k1s_noffn")
    sCS, sKQ = 22, 23
    A(f"s_mul_hi_u32 s{sKQ}, s2, {(1 << 32) // 56 + 1}")
    A(f"s_mul_i32 s38, s{sKQ}, 56")
    A(f"s_sub_u32 s{sCS}, s2, s38")
    A("v_lshrrev_b32 v4, 3, v2")
    A("v_and_b32 v5, 7, v2")
    A("v_and_b32 v6, 3, v4")
    A("v_lshlrev_b32 v6, 1, v6")
    A("v_xor_b32 v5, v5, v6")
    A("v_mul_u32_u24 v4, 7168, v4")
    A("v_lshl_add_u32 v4, v5, 4, v4")
    A(f"s_lshl_b32 s38, s{sWV}, 6")
    A(f"s_lshl_b32 s39, s{sKQ}, 8")
    A("s_add_u32 s54, s38, s39")
    A("s_mul_i32 s55, s54, 7168")
    A(f"s_lshl_b32 s39, s{sCS}, 7")
    A("s_add_u32 s55, s55, s39")
    A(f"s_lshl_b32 s56, s{sWV}, 14")
    A(f"s_add_u32 s56, s56, {WB}")
    PB = opt.get("k1s_poll", 10)
    S.bar(PB)
    KG = 80
    KY = 64
    A(f"s_lshl_b32 s58, s{sWV}, 12")
    A(f"s_add_u32 s58, s58, {WS_KEY}")
    def kloads():
        for i in range(4):
            A(f"buffer_load_dwordx4 {v(KG+4*i,4)}, v3, {s(sW,4)}, s58 offen offset:{1024*i} sc1")
    kloads()
    A("v_mov_b32 v8, 0")
    A("s_mov_b32 s57, -1")
    S.bar(); S.bar()
    A.label("L_k1s_poll")
    A("s_waitcnt vmcnt(0)")
    for i in range(8):
        A(f"v_xor_b32 {v(KG+2*i+1)}, s93, {v(KG+2*i+1)}")
        A(f"v_mov_b32 {v(KY+i)}, {v(KG+2*i)}")
    A(f"v_or3_b32 v9, {v(KG+1)}, {v(KG+3)}, {v(KG+5)}")
    A(f"v_or3_b32 v9, v9, {v(KG+7)}, {v(KG+9)}")
    A(f"v_or3_b32 v9, v9, {v(KG+11)}, {v(KG+13)}")
    A(f"v_or_b32 v9, v9, {v(KG+15)}")
    A("v_cmp_ne_u32 vcc, 0, v9")
    A("s_nop 1")
    A("s_cmp_eq_u64 vcc, 0")
    A("s_cbranch_scc1 L_k1s_go")
    A("s_sleep 8")
    kloads()
    A("s_branch L_k1s_poll")
    A.label("L_k1s_go")
    sstamp(A, 2, opt)
    D = 72
    for rnd in range(8):
        for i in range(8):
            A(f"v_sub_u32 {v(D+i)}, s57, {v(KY+i)}")
        A(f"v_min3_u32 v9, {v(D)}, {v(D+1)}, {v(D+2)}")
        A(f"v_min3_u32 v10, {v(D+3)}, {v(D+4)}, {v(D+5)}")
        A(f"v_min3_u32 v9, v9, {v(D+6)}, {v(D+7)}")
        A(f"v_min_u32 v9, v9, v10")
        for r in (8, 4, 2, 1):
            A("s_nop 1")
            A(f"v_min_u32_dpp v9, v9, v9 row_ror:{r} row_mask:0xf bank_mask:0xf")
        A("s_nop 0")
        for i in range(4):
            A(f"v_readlane_b32 s{44+i}, v9, {16*i}")
        A("s_nop 0")
        A("s_min_u32 s44, s44, s45")
        A("s_min_u32 s46, s46, s47")
        A("s_min_u32 s44, s44, s46")
        A("s_sub_u32 s57, s57, s44")
        A(f"v_writelane_b32 v8, s57, {rnd}")
        A("s_sub_u32 s57, s57, 1")
        if rnd in (3,): S.bar()
    A(f"s_lshl_b32 s38, s{sWV}, 5")
    A(f"s_add_u32 s38, s38, {SCR}")
    A("v_lshl_add_u32 v9, v2, 2, s38")
    A("s_mov_b64 exec, 0xff")
    A("ds_write_b32 v9, v8")
    A("s_mov_b64 exec, -1")
    A("s_waitcnt lgkmcnt(0)")
    S.bar()
    sstamp(A, 3, opt)
    A("v_and_b32 v9, 31, v2")
    A(f"v_lshlrev_b32 v9, 2, v9")
    A(f"v_add_u32 v9, {SCR}, v9")
    A(f"v_mov_b32 v10, {SCR}")
    A("ds_read_b32 v11, v9")
    for i in range(8):
        A(f"ds_read_b128 {v(KY+4*i,4)}, v10 offset:{16*i}")
    DB = opt.get("k1s_dma", 15)
    def wdma(i):
        gu, q = i >> 3, i & 7
        A(f"s_add_u32 m0, s56, {1024*i}")
        A(f"s_add_u32 s38, s55, {q*8*7168}")
        A(f"buffer_load_dwordx4 v4, {s(sWU if gu else sWG,4)}, s38 offen lds {opt.get('k1s_wflag','')}")
    A("v_mov_b32 v12, 0")
    A("s_waitcnt lgkmcnt(0)")
    for i0 in range(0, 32, 4):
        for i in range(4):
            A(f"v_cmp_gt_u32 s[{82+2*i}:{83+2*i}], {v(KY+i0+i)}, v11")
        for i in range(4):
            A(f"v_addc_co_u32 v12, vcc, 0, v12, s[{82+2*i}:{83+2*i}]")
    A("v_lshlrev_b32 v12, 2, v12")
    A("s_mov_b32 exec_hi, 0")
    A("ds_permute_b32 v13, v12, v11")
    A("s_mov_b64 exec, -1")
    A("v_and_b32 v12, 7, v2")
    A("v_lshlrev_b32 v12, 2, v12")
    A("s_waitcnt lgkmcnt(0)")
    A("ds_bpermute_b32 v8, v12, v13")
    A("s_waitcnt lgkmcnt(0)")
    A(f"s_or_b32 s38, s2, s{sWV}")
    A("s_cbranch_scc1 L_k1s_notop")
    A("v_lshlrev_b32 v9, 2, v2")
    A(f"s_mov_b32 s38, {WS_TOP}")
    A("s_mov_b64 exec, 0xff")
    A(f"buffer_store_dword v8, v9, {s(sW,4)}, s38 offen")
    A("s_mov_b64 exec, 1")
    A(f"s_mov_b32 s38, {WS_EPOCH}")
    A("v_mov_b32 v13, s93")
    A(f"buffer_store_dword v13, v9, {s(sW,4)}, s38 offen")
    A("s_mov_b64 exec, -1")
    A.label("L_k1s_notop")
    A("v_and_b32 v9, 0x7ff, v8")
    A("v_sub_u32 v9, 2047, v9")
    A("v_lshlrev_b32 v9, 11, v9")
    A("v_lshrrev_b32 v10, 4, v2")
    A("v_lshl_add_u32 v9, v10, 4, v9")
    A("s_lshl_b32 s38, s54, 1")
    XF = 64
    for ks in range(2):
        A(f"buffer_load_dwordx4 {v(XF+4*ks,4)}, v9, {s(sX,4)}, s38 offen offset:{64*ks}")
    A("v_bfe_u32 v11, v2, 2, 2")
    A("v_lshl_add_u32 v12, v10, 3, v11")
    A("v_lshlrev_b32 v12, 7, v12")
    A("v_and_b32 v13, 3, v2")
    A("v_lshl_add_u32 v12, v13, 3, v12")
    A("v_add_u32 v12, s56, v12")
    for nt in range(4):
        A(f"v_xor_b32 v13, {nt}, v11")
        A(f"v_lshl_add_u32 {v(16+nt)}, v13, 5, v12")
    S.bar(max(DB, S.nb))
    sstamp(A, 4, opt)
    TH = opt.get("k1s_thr", 4)
    i = 0
    while S.nb < 17:
        for _ in range(TH):
            if i < 15: wdma(i); i += 1
        if S.nb == 16:
            A(f"s_cmp_lg_u32 s{sWV}, 0")
            A("s_cbranch_scc1 L_k1s_nocz")
            A(f"v_mov_b32 v13, {CNT}")
            A("v_mov_b32 v14, 0")
            A("ds_write_b32 v13, v14")
            A("s_waitcnt lgkmcnt(0)")
            A.label("L_k1s_nocz")
        S.bar()
    while i < 16:
        A(f"s_waitcnt vmcnt({TH-1})")
        wdma(i); i += 1
    A("s_waitcnt vmcnt(0)")
    sstamp(A, 5, opt)
    def cpf():
        if not opt.get("k1s_cpf", 1): return
        A("s_and_b32 s38, s2, 1")
        A("s_lshl_b32 s38, s38, 9")
        A("s_lshr_b32 s39, s2, 3")
        A("s_lshl_b32 s39, s39, 4")
        A("s_add_u32 s38, s38, s39")
        A(f"s_lshl_b32 s39, s{sWV}, 2")
        A("s_add_u32 s38, s38, s39")
        A("s_lshl_b32 s38, s38, 11")
        A("v_lshl_add_u32 v60, v2, 7, s38")
        A("global_load_dword v61, v60, s[48:49]")
        if opt.get("k1s_cpf", 1) == 2: A("s_waitcnt vmcnt(0)")
        A("global_load_dword v62, v60, s[50:51]")
    cpf()
    WF = 100
    for gu in range(2):
        for nt in range(4):
            for ks in range(2):
                for rd in range(2):
                    A(f"ds_read_b64_tr_b16 {v(WF + ((gu*4+nt)*2+ks)*4 + 2*rd, 2)}, {v(16+nt)} offset:{gu*8192 + ks*4096 + rd*512}")
        A("s_waitcnt lgkmcnt(0)")
    OC = 24
    for ks in range(2):
        for gu in range(2):
            for nt in range(4):
                o = OC + (gu * 4 + nt) * 4
                c = "0" if ks == 0 else v(o, 4)
                A(f"v_mfma_f32_16x16x32_bf16 {v(o,4)}, {v(WF+((gu*4+nt)*2+ks)*4,4)}, {v(XF+4*ks,4)}, {c}")
    A("v_add_u32 v13, s56, v3")
    A(f"v_mov_b32 v14, {CNT}")
    A("v_mov_b32 v15, 1")
    A("s_nop 7")
    for t in range(8):
        A(f"ds_write_b128 v13, {v(OC+4*t,4)} offset:{1024*t}")
    A("s_waitcnt lgkmcnt(0)")
    A("s_mov_b64 exec, 1")
    A("ds_add_rtn_u32 v15, v14, v15")
    A("s_mov_b64 exec, -1")
    A("s_waitcnt lgkmcnt(0)")
    A("v_readfirstlane_b32 s38, v15")
    A("s_nop 1")
    A("s_cmp_lg_u32 s38, 3")
    A("s_cbranch_scc1 L_k1s_end")
    A(f"v_add_u32 v13, {WB}, v3")
    for w in range(4):
        for t in range(8):
            A(f"ds_read_b128 {v(WF+(w*8+t)*4,4)}, v13 offset:{w*16384 + 1024*t}")
        if w & 1: A("s_waitcnt lgkmcnt(0)")
    for r in range(32):
        A(f"v_add_f32 {v(WF+r)}, {v(WF+r)}, {v(WF+32+r)}")
        A(f"v_add_f32 {v(WF+64+r)}, {v(WF+64+r)}, {v(WF+96+r)}")
        A(f"v_add_f32 {v(WF+r)}, {v(WF+r)}, {v(WF+64+r)}")
    A("v_and_b32 v11, 15, v2")
    A("v_mul_u32_u24 v13, 14336, v11")
    A("v_lshl_add_u32 v13, v10, 4, v13")
    A(f"s_mul_i32 s38, s{sKQ}, {2*8*14336}")
    A(f"s_lshl_b32 s39, s{sCS}, 8")
    A("s_add_u32 s38, s38, s39")
    A(f"s_add_u32 s38, s38, {WS_GU}")
    A(f"s_add_u32 s39, s38, {8*14336}")
    A("v_cmp_gt_u32 vcc, 8, v11")
    A("s_nop 1")
    A("s_mov_b64 exec, vcc")
    for gu in range(2):
        for nt in range(4):
            A(f"buffer_store_dwordx4 {v(WF+(gu*4+nt)*4,4)}, v13, {s(sW,4)}, s{38+gu} offen offset:{64*nt}")
    A("s_branch L_k1s_end")
    A.label("L_k1s_noffn")
    S.nb = nb_split
    S.bar(max(DB, S.nb))
    cpf()
    A.label("L_k1s_end")
    sstamp_out(A, opt, sW, sWV, 2)
    A("s_endpgm")


def gen_k2_side(A, opt):
    NS = opt.get("k2_ns", 5)
    WD = NS * 16384
    ACT = WD + 32768
    DEL = ACT + 2048
    sW, sWD, sX = 12, 8, 4
    sWV, sFR, sCK, sRB, sDB = 18, 22, 23, 16, 17
    sTOP = 48
    S = Sched(A)
    A.label("L_k2_side")
    sstamp(A, 0, opt)
    A("s_load_dwordx2 s[28:29], s[0:1], 104")
    A("s_load_dwordx2 s[30:31], s[0:1], 0")
    A("s_load_dwordx4 s[40:43], s[0:1], 128")
    A(f"s_sub_u32 s{sWV}, s{sWV}, 4")
    A("v_and_b32 v2, 63, v0")
    A("v_and_b32 v1, 255, v0")
    A(f"s_lshr_b32 s{sFR}, s2, 2")
    A(f"s_and_b32 s{sCK}, s2, 3")
    A("s_and_b32 s3, s2, 7")
    A("s_lshr_b32 s38, s2, 3")
    A(f"s_lshr_b32 s{sRB}, s3, 1")
    A(f"s_lshl_b32 s{sRB}, s{sRB}, 2")
    A("s_and_b32 s39, s38, 3")
    A(f"s_add_u32 s{sRB}, s{sRB}, s39")
    A(f"s_and_b32 s{sDB}, s3, 1")
    A(f"s_lshl_b32 s{sDB}, s{sDB}, 3")
    A("s_lshr_b32 s39, s38, 2")
    A(f"s_add_u32 s{sDB}, s{sDB}, s39")
    A(f"s_and_b32 s58, s38, {opt.get('k2s_stag', 3)}")
    A(f"s_add_u32 s58, s58, {opt.get('k2s_pre', 1)}")
    A("v_lshrrev_b32 v3, 5, v1")
    A("v_and_b32 v4, 31, v1")
    A("v_mul_u32_u24 v5, 14336, v3")
    A("v_lshl_add_u32 v5, v4, 3, v5")
    A("v_lshrrev_b32 v6, 3, v2")
    A("v_and_b32 v7, 7, v2")
    A("v_and_b32 v8, 3, v6")
    A("v_lshlrev_b32 v8, 1, v8")
    A("v_xor_b32 v7, v7, v8")
    A("v_lshlrev_b32 v6, 11, v6")
    A("v_lshl_add_u32 v6, v7, 4, v6")
    A("s_waitcnt lgkmcnt(0)")
    srd(A, sW, 42, 43, WS_USED)
    srd(A, sWD, 28, 29, 7340032)
    srd(A, sX, 30, 31, 4194304)
    A(f"s_add_u32 s46, s42, {WS_TOP}")
    A("s_addc_u32 s47, s43, 0")
    A(f"s_load_dwordx8 s[{sTOP}:{sTOP+7}], s[46:47], 0")
    CB = 13
    A(f"s_mov_b32 s59, {CB}")
    A("s_cmp_ge_u32 s2, 224")
    A("s_cbranch_scc1 L_k2s_cons")
    A("s_sub_u32 s59, s59, s58")
    A("s_sub_u32 s59, s59, 6")
    A.label("L_k2s_prel")
    A("s_cmp_eq_u32 s58, 0")
    A("s_cbranch_scc1 L_k2s_pred")
    A("s_barrier")
    A("s_sub_u32 s58, s58, 1")
    A("s_branch L_k2s_prel")
    A.label("L_k2s_pred")
    A(f"s_lshl_b32 s38, s{sFR}, 8")
    A(f"s_add_u32 s38, s38, {WS_GU}")
    PL = 16
    for kq in range(4):
        for gu in range(2):
            A(f"buffer_load_dwordx2 {v(PL + 4*kq + 2*gu, 2)}, v5, {s(sW,4)}, s38 offen")
            A(f"s_add_u32 s38, s38, {8*14336}")
    A(f"s_lshl_b32 s38, s{sFR}, 17")
    A(f"s_lshl_b32 s39, s{sCK}, 9")
    A("s_add_u32 s38, s38, s39")
    A(f"s_lshl_b32 s39, s{sWV}, 7")
    A("s_add_u32 s38, s38, s39")
    A(f"s_lshl_b32 s39, s{sWV}, 13")
    A(f"s_add_u32 s39, s39, {WD}")
    for i in range(8):
        A(f"s_add_u32 m0, s39, {1024*i}")
        A("s_nop 0")
        A(f"buffer_load_dwordx4 v6, {s(sWD,4)}, s38 offen lds")
        A(f"s_add_u32 s38, s38, {8*2048}")
    A("s_barrier"); A("s_barrier")
    A("s_waitcnt vmcnt(8)")
    for e in range(4):
        A(f"v_add_f32 {v(PL+e)}, {v(PL+e)}, {v(PL+4+e)}")
        A(f"v_add_f32 {v(PL+8+e)}, {v(PL+8+e)}, {v(PL+12+e)}")
        A(f"v_add_f32 {v(PL+e)}, {v(PL+e)}, {v(PL+8+e)}")
        rnd_bf16(A, PL + e, PL + e)
    for e in range(2):
        sigmoid(A, 32 + e, PL + e)
        A(f"v_mul_f32 {v(32+e)}, {v(32+e)}, {v(PL+e)}")
        rnd_bf16(A, 32 + e, 32 + e)
        A(f"v_mul_f32 {v(32+e)}, {v(32+e)}, {v(PL+2+e)}")
    A("v_cvt_pk_bf16_f32 v32, v32, v33")
    A("v_mul_u32_u24 v9, 144, v3")
    A("v_lshl_add_u32 v9, v4, 2, v9")
    A(f"v_add_u32 v9, {ACT}, v9")
    A("ds_write_b32 v9, v32")
    A("v_and_b32 v10, 7, v2")
    A("v_mul_u32_u24 v10, 144, v10")
    A("v_lshrrev_b32 v11, 4, v2")
    A("v_lshl_add_u32 v10, v11, 4, v10")
    A(f"v_add_u32 v10, {ACT}, v10")
    A("v_bfe_u32 v12, v2, 2, 2")
    A("v_lshl_add_u32 v13, v11, 3, v12")
    A("v_lshlrev_b32 v13, 7, v13")
    A("v_and_b32 v14, 3, v2")
    A("v_lshl_add_u32 v13, v14, 3, v13")
    A("v_add_u32 v13, s39, v13")
    for nt in range(4):
        A(f"v_xor_b32 v14, {nt}, v12")
        A(f"v_lshl_add_u32 {v(36+nt)}, v14, 5, v13")
    A("s_waitcnt lgkmcnt(0)")
    A("s_barrier")
    A("s_waitcnt vmcnt(0)")
    A("ds_read_b128 v[40:43], v10")
    A("ds_read_b128 v[44:47], v10 offset:64")
    WF = 64
    for nt in range(4):
        for ks in range(2):
            for rd in range(2):
                A(f"ds_read_b64_tr_b16 {v(WF + (nt*2+ks)*4 + 2*rd, 2)}, {v(36+nt)} offset:{ks*4096 + rd*512}")
    A("s_waitcnt lgkmcnt(0)")
    for ks in range(2):
        for nt in range(4):
            c = "0" if ks == 0 else v(48 + 4*nt, 4)
            A(f"v_mfma_f32_16x16x32_bf16 {v(48+4*nt,4)}, {v(WF+(nt*2+ks)*4,4)}, {v(40+4*ks,4)}, {c}")
    A("v_and_b32 v14, 15, v2")
    A(f"s_mov_b32 s38, {56*4096}")
    A("v_mul_lo_u32 v15, v14, s38")
    A("v_lshl_add_u32 v15, v11, 4, v15")
    A(f"s_lshl_b32 s38, s{sFR}, 12")
    A(f"s_lshl_b32 s39, s{sCK}, 10")
    A("s_add_u32 s38, s38, s39")
    A(f"s_lshl_b32 s39, s{sWV}, 8")
    A("s_add_u32 s38, s38, s39")
    A(f"s_add_u32 s38, s38, {WS_YP}")
    A("v_cmp_gt_u32 vcc, 8, v14")
    A("s_nop 4")
    A("s_mov_b64 exec, vcc")
    for nt in range(4):
        A(f"buffer_store_dwordx4 {v(48+4*nt,4)}, v15, {s(sW,4)}, s38 offen offset:{64*nt} sc1")
    A("s_mov_b64 exec, -1")
    A("s_barrier"); A("s_barrier")
    A("s_waitcnt vmcnt(0)")
    A("s_barrier")
    A(f"s_cmp_lg_u32 s{sWV}, 0")
    A("s_cbranch_scc1 L_k2s_cons")
    A(f"s_lshl_b32 s38, s{sCK}, 2")
    A("v_mov_b32 v4, s38")
    A("v_mov_b32 v5, 1")
    A("s_mov_b64 exec, 1")
    A("global_atomic_add v4, v5, s[40:41] sc1")
    A("s_mov_b64 exec, -1")
    A.label("L_k2s_cons")
    sstamp(A, 1, opt)
    A("s_waitcnt lgkmcnt(0)")
    A(f"s_mov_b32 m0, s{sWV}")
    A(f"s_lshl_b32 s45, s{sRB}, 7")
    A(f"s_movrels_b32 s24, s{sTOP}")
    A(f"s_movrels_b32 s25, s{sTOP+4}")
    for t in range(2):
        A(f"s_and_b32 s{26+t}, s{24+t}, 0x7ff")
        A(f"s_sub_u32 s{26+t}, 2047, s{26+t}")
        A(f"s_sub_u32 s{56+t}, s{26+t}, s45")
    A("s_min_u32 s38, s56, s57")
    A("s_cmp_ge_u32 s38, 128")
    A("s_cbranch_scc1 L_k2s_end")
    A.label("L_k2s_cl")
    A("s_cmp_eq_u32 s59, 0")
    A("s_cbranch_scc1 L_k2s_cd")
    A("s_barrier")
    A("s_sub_u32 s59, s59, 1")
    A("s_branch L_k2s_cl")
    A.label("L_k2s_cd")
    S.nb = CB
    A(f"s_lshr_b32 s39, s{sDB}, 2")
    A("s_lshl_b32 s39, s39, 2")
    A("v_mov_b32 v4, s39")
    A("global_load_dword v5, v4, s[40:41] sc1")
    A("v_lshrrev_b32 v6, 4, v2")
    A("v_and_b32 v7, 15, v2")
    A("v_lshlrev_b32 v8, 12, v6")
    A("v_lshl_add_u32 v8, v7, 4, v8")
    A("v_lshlrev_b32 v9, 3, v7")
    A("v_mov_b32 v10, 0")
    A("s_mov_b32 s23, 0xffff0000")
    S.bar()
    A.label("L_k2s_poll")
    A("s_waitcnt vmcnt(0)")
    A("v_readfirstlane_b32 s39, v5")
    A("s_nop 1")
    A("s_cmp_ge_u32 s39, 56")
    A("s_cbranch_scc1 L_k2s_go")
    A("s_sleep 4")
    A("global_load_dword v5, v4, s[40:41] sc1")
    A("s_branch L_k2s_poll")
    A.label("L_k2s_go")
    sstamp(A, 2, opt)
    for t in range(2):
        Y = 16 + 64 * t
        A(f"s_cmp_ge_u32 s{56+t}, 128")
        A(f"s_cbranch_scc1 L_k2s_sk{t}")
        A(f"s_add_u32 s39, s{sWV}, {4*t}")
        A(f"s_mul_i32 s39, s39, {56*4096}")
        A(f"s_lshl_b32 s3, s{sDB}, 8")
        A("s_add_u32 s39, s39, s3")
        A(f"s_add_u32 s39, s39, {WS_YP}")
        for it in range(14):
            A(f"buffer_load_dwordx4 {v(Y+4*it,4)}, v8, {s(sW,4)}, s39 offen sc1")
            A("s_add_u32 s39, s39, 16384")
        A(f"s_lshl_b32 s39, s{26+t}, 11")
        A(f"s_lshl_b32 s3, s{sDB}, 7")
        A("s_add_u32 s39, s39, s3")
        A(f"buffer_load_dwordx2 {v(Y+56,2)}, v9, {s(sX,4)}, s39 offen")
        A(f"s_lshl_b32 s39, s{26+t}, 2")
        A(f"s_add_u32 s39, s39, {WS_G}")
        A(f"buffer_load_dword {v(Y+58)}, v10, {s(sW,4)}, s39 offen")
        A.label(f"L_k2s_sk{t}")
    S.bar(16)
    A("s_waitcnt vmcnt(0)")
    for t in range(2):
        Y = 16 + 64 * t
        A(f"s_cmp_ge_u32 s{56+t}, 128")
        A(f"s_cbranch_scc1 L_k2s_sc{t}")
        A(f"s_ashr_i32 s39, s{24+t}, 31")
        A("s_not_b32 s39, s39")
        A("s_or_b32 s39, s39, 0x80000000")
        A(f"s_xor_b32 s39, s{24+t}, s39")
        A("s_and_b32 s39, s39, 0xffff0000")
        A(f"v_mov_b32 {v(Y+62)}, s39")
        sigmoid(A, Y + 59, Y + 62)
        rnd_bf16(A, Y + 59, Y + 59)
        for it in range(1, 14):
            for e in range(4):
                A(f"v_add_f32 {v(Y+e)}, {v(Y+e)}, {v(Y+4*it+e)}")
        for sw in ("v_permlane16_swap_b32", "v_permlane32_swap_b32"):
            for e in range(4): A(f"v_mov_b32 {v(Y+4+e)}, {v(Y+e)}")
            A("s_nop 1")
            for e in range(4): A(f"{sw} {v(Y+e)}, {v(Y+4+e)}")
            A("s_nop 1")
            for e in range(4): A(f"v_add_f32 {v(Y+e)}, {v(Y+e)}, {v(Y+4+e)}")
        A(f"v_sub_f32 {v(Y+58)}, 1.0, {v(Y+58)}")
        rnd_bf16(A, Y + 58, Y + 58)
        A(f"v_lshlrev_b32 {v(Y+8)}, 16, {v(Y+56)}")
        A(f"v_and_b32 {v(Y+9)}, s23, {v(Y+56)}")
        A(f"v_lshlrev_b32 {v(Y+10)}, 16, {v(Y+57)}")
        A(f"v_and_b32 {v(Y+11)}, s23, {v(Y+57)}")
        for e in range(4):
            rnd_bf16(A, Y + e, Y + e)
            A(f"v_mul_f32 {v(Y+e)}, {v(Y+e)}, {v(Y+59)}")
            rnd_bf16(A, Y + e, Y + e)
            A(f"v_add_f32 {v(Y+e)}, {v(Y+e)}, {v(Y+8+e)}")
            rnd_bf16(A, Y + e, Y + e)
            A(f"v_mul_f32 {v(Y+e)}, {v(Y+e)}, {v(Y+58)}")
            rnd_bf16(A, Y + e, Y + e)
            A(f"v_mul_f32 {v(Y+8+e)}, {v(Y+8+e)}, {v(Y+58)}")
            rnd_bf16(A, Y + 8 + e, Y + 8 + e)
            A(f"v_sub_f32 {v(Y+e)}, {v(Y+e)}, {v(Y+8+e)}")
        A(f"s_lshl_b32 s39, s{sWV}, 8")
        A(f"s_add_u32 s39, s39, {DEL + 1024*t}")
        A(f"v_lshl_add_u32 {v(Y+60)}, v7, 4, s39")
        A(f"ds_write_b128 {v(Y+60)}, {v(Y,4)}")
        A.label(f"L_k2s_sc{t}")
    A("s_waitcnt lgkmcnt(0)")
    S.bar(17)
    A.label("L_k2s_end")
    sstamp_out(A, opt, sW, sWV, 3)
    A("s_endpgm")
```

```python
import sys, json
from asmlib import *
import k1, k2, side2

HDR = open("gated_mix__ssm_conv_s5__moe_arch_mod__prompt.s.ref").read().split("; Override launch")[0]

def kd(name, vgpr, sgpr=96, accum=None):
    accum = accum or ((vgpr + 3) // 4 * 4)
    return f""".amdhsa_kernel {name}
  .amdhsa_next_free_vgpr {vgpr}
  .amdhsa_next_free_sgpr {sgpr}
  .amdhsa_accum_offset {accum}
  .amdhsa_group_segment_fixed_size 0
  .amdhsa_kernarg_size 144
  .amdhsa_user_sgpr_count 2
  .amdhsa_user_sgpr_kernarg_segment_ptr 1
  .amdhsa_system_sgpr_workgroup_id_x 1
  .amdhsa_float_denorm_mode_32 3
.end_amdhsa_kernel
"""

def entry(A, name, opt):
    A(f".globl {name}_kernel"); A(".p2align 8"); A(f".type {name}_kernel,@function")
    A.label(f"{name}_kernel")
    A("v_lshrrev_b32 v1, 6, v0")
    A("s_cmp_ge_u32 s2, 256")
    A(f"s_cbranch_scc1 L_{name}_exit")
    A("v_readfirstlane_b32 s18, v1")
    A("s_nop 1")
    A("s_cmp_ge_u32 s18, 4")
    A(f"s_cbranch_scc0 L_{name}_gemm")
    if not opt.get("noside"):
        A(f"s_branch L_{name}_side")
    A.label(f"L_{name}_exit")
    A("s_endpgm")

def build(opt):
    A = Asm()
    opt.setdefault("nslot", 6)
    launches = [("k1_kernel", 256, 512, 163840)]
    if not opt.get("k1_only"):
        launches.append(("k2_kernel", 256, 512, opt.get("k2_ns", 5) * 16384 + 32768 + 4096))
    if opt.get("k2_twice"): launches.append(launches[-1])
    entry(A, "k1", opt)
    k1.gen_k1_gemm(A, opt)
    side2.gen_k1_side(A, opt)
    entry(A, "k2", opt)
    k2.gen_k2_gemm(A, opt)
    side2.gen_k2_side(A, opt)
    probs = check_hazards(A.lines)
    for p in probs: print("HAZARD", p, file=sys.stderr)
    txt = HDR
    for n, g, b, l in launches:
        txt += f"; @launch kernel={n} grid=({g},1,1) block=({b},1,1) lds={l}\n"
    txt += '.amdgcn_target "amdgcn-amd-amdhsa--gfx950"\n.text\n' + A.text()
    txt += '.section .rodata,"a"\n.p2align 6\n' + kd("k1_kernel", 256) + ".p2align 6\n" + kd("k2_kernel", 256)
    return txt

if __name__ == "__main__":
    opt = json.loads(sys.argv[2]) if len(sys.argv) > 2 else {}
    open(sys.argv[1], "w").write(build(opt))
```

```python
from asmlib import *

WS_H     = 0
WS_AGG   = 8 << 20
WS_KEY   = 9 << 20
WS_G     = WS_KEY + 16384
WS_EPOCH = WS_KEY + 32768
FSH = 8
WS_HF    = WS_KEY + 65536
WS_GF    = WS_KEY + 131072
WS_YF    = WS_KEY + 196608
WS_XC    = WS_KEY + 262144
WS_GU    = 10 << 20
WS_STAMP = 12 << 20
WS_YP    = 13 << 20
WS_USED  = 16 << 20

LOG2E = 0x3fb8aa3b
INV2PI = 0x3e22f983
sTAG = 93

def srd(A, d, lo, hi, size, bias=0):
    if bias:
        A(f"s_sub_u32 s{d}, s{lo}, {bias}")
        A(f"s_subb_u32 s{d+1}, s{hi}, 0")
    else:
        if d != lo: A(f"s_mov_b32 s{d}, s{lo}")
        if d + 1 != hi: A(f"s_mov_b32 s{d+1}, s{hi}")
    A(f"s_mov_b32 s{d+2}, {size + bias}")
    A(f"s_mov_b32 s{d+3}, 0x20000")

def load_tag(A, ws_lo, ws_hi):
    A(f"s_add_u32 s94, s{ws_lo}, {WS_EPOCH}")
    A(f"s_addc_u32 s95, s{ws_hi}, 0")
    A(f"s_load_dword s{sTAG}, s[94:95], 0")

def make_tag(A):
    A(f"s_mul_i32 s{sTAG}, s{sTAG}, 1664525")
    A(f"s_add_u32 s{sTAG}, s{sTAG}, 1013904223")

def sigmoid(A, d, x):
    A(f"v_mul_f32 {v(d)}, 0xbfb8aa3b, {v(x)}")
    A(f"v_exp_f32 {v(d)}, {v(d)}")
    A("s_nop 0")
    A(f"v_add_f32 {v(d)}, 1.0, {v(d)}")
    A(f"v_rcp_f32 {v(d)}, {v(d)}")
    A("s_nop 0")

def rnd_bf16(A, d, x):
    A(f"v_cvt_pk_bf16_f32 {v(d)}, {v(x)}, {v(x)}")
    A(f"v_lshlrev_b32 {v(d)}, 16, {v(d)}")

def xsum_groups(A, regs, tmps):
    for sw in ("v_permlane16_swap_b32", "v_permlane32_swap_b32"):
        for r, t in zip(regs, tmps): A(f"v_mov_b32 {v(t)}, {v(r)}")
        A("s_nop 1")
        for r, t in zip(regs, tmps): A(f"{sw} {v(r)}, {v(t)}")
        A("s_nop 1")
        for r, t in zip(regs, tmps): A(f"v_add_f32 {v(r)}, {v(r)}, {v(t)}")

def pk_fma(d, a, asel, b, c, neg=False):
    n = " neg_lo:[1,0,0] neg_hi:[1,0,0]" if neg else ""
    lo, hi = (0, 1) if asel is None else (asel, asel)
    return f"v_pk_fma_f32 {v(d,2)}, {v(a,2)}, {v(b,2)}, {v(c,2)} op_sel:[{lo},0,0] op_sel_hi:[{hi},1,1]{n}"
def pk_mul(d, a, asel, b):
    lo, hi = (0, 1) if asel is None else (asel, asel)
    return f"v_pk_mul_f32 {v(d,2)}, {v(a,2)}, {v(b,2)} op_sel:[{lo},0] op_sel_hi:[{hi},1]"
def pk_add(d, a, b):
    return f"v_pk_add_f32 {v(d,2)}, {v(a,2)}, {v(b,2)}"

def pk_cmul(A, dr, di, ar, ai, asel, br, bi):
    A(pk_mul(dr, ar, asel, br))
    A(pk_mul(di, ar, asel, bi))
    A(pk_fma(dr, ai, asel, bi, dr, neg=True))
    A(pk_fma(di, ai, asel, br, di))
def pk_csq(A, dr, di, ar, ai):
    A(pk_mul(dr, ar, None, ar))
    A(pk_mul(di, ar, None, ai))
    A(pk_fma(dr, ai, None, ai, dr, neg=True))
    A(pk_add(di, di, di))

class Vm:
    def __init__(self): self.ops = []
    def add(self, tag): self.ops.append(tag)
    def need(self, tag):
        idx = max(i for i, t in enumerate(self.ops) if t == tag)
        return min(63, len(self.ops) - 1 - idx)

NSTAMP = 14
def stamp(A, idx, on):
    if not on: return
    assert idx < NSTAMP
    A(f"s_memtime s[{60+2*idx}:{61+2*idx}]")
    if idx == 0: A("s_memrealtime s[90:91]")

def stamp_out(A, on, sW, sWV, region):
    if not on: return
    A("s_mov_b64 exec, -1")
    A("s_waitcnt lgkmcnt(0) vmcnt(0)")
    A(f"s_memtime s[{60+2*(NSTAMP-1)}:{61+2*(NSTAMP-1)}]")
    A("s_memrealtime s[88:89]")
    A("s_waitcnt lgkmcnt(0)")
    for i in range(NSTAMP):
        A(f"v_mov_b32 {v(100+i)}, s{60+2*i}")
    A(f"v_mov_b32 {v(114)}, s88")
    A(f"v_mov_b32 {v(115)}, s90")
    A(f"s_lshl_b32 s38, s2, 2")
    A(f"s_add_u32 s38, s38, s{sWV}")
    A(f"s_lshl_b32 s38, s38, 6")
    A(f"s_add_u32 s38, s38, {WS_STAMP + 65536 * region}")
    A(f"v_mov_b32 v99, 0")
    A("s_mov_b64 exec, 1")
    for i in range(4):
        A(f"buffer_store_dwordx4 {v(100+4*i,4)}, v99, {s(sW,4)}, s38 offen offset:{16*i}")

def tile_ids(A, sRB, sCB):
    A("s_and_b32 s3, s2, 7")
    A("s_sub_u32 s39, 11, s3")
    A("s_cmp_lt_u32 s3, 4")
    A("s_cselect_b32 s3, s3, s39")
    A("s_lshr_b32 s38, s2, 3")
    A(f"s_lshl_b32 s{sRB}, s3, 1")
    A("s_and_b32 s39, s38, 1")
    A(f"s_add_u32 s{sRB}, s{sRB}, s39")
    A(f"s_lshr_b32 s{sCB}, s38, 1")

NSLOT = 6
L_EX  = 32768
L_TR  = 36864
L_CNT = 73728
L_CND = L_CNT + 64
L_W   = 98304
L_SCR = L_W + 65536 - 256
L_ACT = L_W
L_DEL = L_W + 2048
L_TOP = L_W + 4096

sSPIN = 96
def spin_guard(A, out_label):
    A(f"s_sub_u32 s{sSPIN}, s{sSPIN}, 1")
    A(f"s_cbranch_scc1 {out_label}")

def flag_store(A, vtag, voff, sW, soff, fl="sc1"):
    A("s_mov_b32 exec_hi, 0")
    A(f"buffer_store_dword {v(vtag)}, {v(voff)}, {s(sW,4)}, s{soff} offen {fl}")
    A("s_mov_b32 exec_hi, -1")
```

```python
from common import *

def gen_gemm(A, opt):
    ST = opt.get("stamps")
    sX, sB, sW, sAG, sC, sO = 4, 8, 12, 24, 28, 32
    sRB, sCB, sWV, sWM, sWN, sK, sROT, sLW = 16, 17, 18, 19, 20, 21, 22, 23
    vDA, vDB = 8, 12
    vRA, vRB, vRA2, vRB2 = 16, 18, 20, 22
    vLane, vGq, vL15, vAgO = 24, 25, 26, 27
    Lr, Li, Cr, Ci, L8r, L8i, L16r, L16i, L512r, L512i, Fr, Fi, Wr, Wi = [28 + 2 * i for i in range(14)]
    vT = 56
    ACC = 64
    FX, FY = 128, 160
    UI = FX
    EP = 192
    ea, eb, la, wa, ra, ga = [EP + i for i in range(6)]
    XT, vDC, VS = EP + 6, EP + 10, EP + 14
    PT = 224
    def acc(m, part, c2): return ACC + 4 * (m * 4 + part * 2 + c2)

    A.label("L_gemm")
    stamp(A, 0, ST)
    A("s_load_dwordx2 s[40:41], s[0:1], 0")
    A("s_load_dwordx8 s[44:51], s[0:1], 8")
    A("s_load_dwordx8 s[52:59], s[0:1], 40")
    A("s_load_dwordx2 s[42:43], s[0:1], 136")
    A("s_load_dwordx2 s[36:37], s[0:1], 120")
    if opt.get("prio", 1): A(f"s_setprio {opt.get('prio', 1)}")
    A(f"v_and_b32 {v(vLane)}, 63, v0")
    tile_ids(A, sRB, sCB)
    A(f"s_and_b32 s{sWM}, s{sWV}, 1")
    A(f"s_lshr_b32 s{sWN}, s{sWV}, 1")
    cx, cr, cc_ = opt.get("rot", [2, 0, 0])
    A(f"s_mul_i32 s{sROT}, s3, {cx}")
    A(f"s_mul_i32 s38, s{sRB}, {cr}")
    A(f"s_add_u32 s{sROT}, s{sROT}, s38")
    A(f"s_mul_i32 s38, s{sCB}, {cc_}")
    A(f"s_add_u32 s{sROT}, s{sROT}, s38")
    A(f"s_lshl_b32 s{sROT}, s{sROT}, 7")
    A(f"s_lshl_b32 s{sLW}, s{sWV}, 12")
    A(f"v_lshrrev_b32 {v(vGq)}, 4, {v(vLane)}")
    A(f"v_and_b32 {v(vL15)}, 15, {v(vLane)}")
    rr, cc, t1, t2 = vT, vT + 1, vT + 2, vT + 3
    A(f"v_lshrrev_b32 {v(rr)}, 3, {v(vLane)}")
    A(f"v_and_b32 {v(cc)}, 7, {v(vLane)}")
    A(f"v_lshrrev_b32 {v(t1)}, 1, {v(rr)}")
    A(f"v_xor_b32 {v(cc)}, {v(cc)}, {v(t1)}")
    A(f"v_lshlrev_b32 {v(cc)}, 4, {v(cc)}")
    A(f"v_lshrrev_b32 {v(t1)}, 2, {v(rr)}")
    A(f"v_lshlrev_b32 {v(t1)}, 4, {v(t1)}")
    A(f"v_and_b32 {v(t2)}, 1, {v(rr)}")
    A(f"v_lshl_add_u32 {v(t1)}, {v(t2)}, 3, {v(t1)}")
    A(f"v_bfe_u32 {v(t2)}, {v(rr)}, 1, 1")
    A(f"v_add_u32 {v(t1)}, {v(t1)}, {v(t2)}")
    A(f"s_lshl_b32 s38, s{sWN}, 6")
    A(f"s_lshl_b32 s39, s{sWM}, 2")
    A("s_add_u32 s38, s38, s39")
    A(f"s_lshl_b32 s39, s{sRB}, 7")
    A("s_add_u32 s38, s38, s39")
    A(f"v_add_u32 {v(t1)}, s38, {v(t1)}")
    A(f"v_lshl_add_u32 {v(t1)}, {v(t1)}, 11, {v(cc)}")
    A(f"v_xor_b32 {v(t2)}, 64, {v(t1)}")
    for q in range(4):
        add = (32 * (q & 1) + 2 * (q >> 1)) * 2048 - 1024 * q + 3072
        A(f"v_add_u32 {v(vDA+q)}, {add}, {v(t2 if q & 1 else t1)}")
    A(f"s_lshl_b32 s38, s{sCB}, 6")
    A(f"s_lshl_b32 s39, s{sWN}, 5")
    A("s_add_u32 s38, s38, s39")
    A(f"v_add_u32 {v(t1)}, s38, {v(rr)}")
    A(f"v_lshl_add_u32 {v(t1)}, {v(t1)}, 11, {v(cc)}")
    A(f"v_xor_b32 {v(t2)}, 64, {v(t1)}")
    for q in range(4):
        add = 8 * 2048 * q - 1024 * q + 3072
        A(f"v_add_u32 {v(vDB+q)}, {add}, {v(t2 if q & 1 else t1)}")
    A(f"v_add_lshl_u32 {v(PT+31)}, s38, {v(vL15)}, 1")
    A("s_waitcnt lgkmcnt(0)")
    srd(A, sX, 40, 41, 4194304, bias=3072)
    A(f"s_cmp_eq_u32 s{sWM}, 0")
    A(f"s_cselect_b32 s{sB}, s48, s50")
    A(f"s_cselect_b32 s{sB+1}, s49, s51")
    srd(A, sB, sB, sB + 1, 2097152, bias=3072)

    vm = Vm()
    def dma_item(i, q):
        st, op = i >> 1, i & 1
        out = []
        if q == 0:
            out.append(f"s_add_u32 m0, s{sLW}, {(i % NSLOT) * 16384}")
            if op == 0:
                out.append(f"s_add_u32 s{sK}, s{sROT}, {st * 128}")
                out.append(f"s_and_b32 s{sK}, s{sK}, 2047")
            else:
                out.append("s_nop 0")
        out.append(f"buffer_load_dwordx4 {v((vDB if op else vDA) + q)}, {s(sB if op else sX,4)}, s{sK} offen offset:{1024*q} lds")
        vm.add(("d", i))
        return out
    def emit(ls):
        for l in ls: A(l)
    for i in range(4):
        for q in range(4): emit(dma_item(i, q))
    srd(A, sW, 42, 43, WS_USED)
    load_tag(A, 42, 43)
    A(f"s_lshl_b32 s38, s{sCB}, 14")
    A(f"s_add_u32 s38, s38, {WS_AGG}")
    A(f"s_add_u32 s{sAG}, s42, s38")
    A(f"s_addc_u32 s{sAG+1}, s43, 0")
    A(f"s_mov_b32 s{sAG+2}, 16384")
    A(f"s_mov_b32 s{sAG+3}, 0x20000")
    A(f"s_cmp_lt_u32 s{sWV}, 2")
    A(f"s_cselect_b32 s{sC}, s52, s54")
    A(f"s_cselect_b32 s{sC+1}, s53, s55")
    srd(A, sC, sC, sC + 1, 2097152, bias=3072)
    srd(A, sO, 36, 37, 8388608)
    for c2 in range(2):
        A(f"global_load_ushort {v(PT+c2)}, {v(PT+31)}, s[44:45] offset:{32*c2}"); vm.add("p")
        A(f"global_load_ushort {v(PT+2+c2)}, {v(PT+31)}, s[46:47] offset:{32*c2}"); vm.add("p")
        A(f"global_load_ushort {v(PT+4+c2)}, {v(PT+31)}, s[56:57] offset:{32*c2}"); vm.add("p")
    for i in range(4, NSLOT):
        for q in range(4): emit(dma_item(i, q))
    A(f"v_bfe_u32 {v(t2)}, {v(vLane)}, 1, 3")
    A(f"v_xor_b32 {v(t2)}, {v(t2)}, {v(vGq)}")
    A(f"v_lshlrev_b32 {v(t2)}, 4, {v(t2)}")
    A(f"v_lshl_add_u32 {v(t2)}, {v(vL15)}, 7, {v(t2)}")
    A(f"s_lshl_b32 s38, s{sWM}, 13")
    A(f"s_lshl_b32 s39, s{sWN}, 13")
    for kk in range(2):
        A(f"v_xor_b32 {v(t1)}, {64*kk}, {v(t2)}")
        A(f"v_add_u32 {v(vRA+kk)}, s38, {v(t1)}")
        A(f"v_add_u32 {v(vRB+kk)}, s39, {v(t1)}")
        A(f"v_add_u32 {v(vRA2+kk)}, 0x10000, {v(vRA+kk)}")
        A(f"v_add_u32 {v(vRB2+kk)}, 0x10000, {v(vRB+kk)}")
    A(f"v_and_b32 {v(t1)}, 31, {v(vLane)}")
    A(f"v_lshlrev_b32 {v(vAgO)}, 4, {v(t1)}")
    A(f"s_sub_u32 s38, 15, s{sRB}")
    A("s_lshl_b32 s38, s38, 10")
    A(f"s_lshl_b32 s39, s{sWN}, 9")
    A("s_add_u32 s92, s38, s39")
    A(f"v_add_u32 {v(vAgO)}, s92, {v(vAgO)}")
    A(f"s_cmp_eq_u32 s{sWM}, 1")
    A("s_cselect_b64 s[82:83], -1, 0")

    def rd_frags(st, kk, F):
        out = []
        for op, (r1, r2) in enumerate(((vRA, vRA2), (vRB, vRB2))):
            off = ((2 * st + op) % NSLOT) * 16384
            base = r1
            if off >= 65536: off -= 65536; base = r2
            for t in range(4):
                out.append(f"ds_read_b128 {v(F + 16*op + 4*t, 4)}, {v(base+kk)} offset:{off + 2048*t}")
        return [out[0], out[4], out[5], out[6], out[7], out[1], out[2], out[3]]
    def mfmas(F, first):
        out = []
        for m in range(4):
            for n in range(4):
                d = ACC + 4 * (m * 4 + n)
                out.append(f"v_mfma_f32_16x16x32_bf16 {v(d,4)}, {v(F+4*m,4)}, {v(F+16+4*n,4)}, {'0' if first else v(d,4)}")
        return out

    B = Asm()
    lre, lim, ldt = PT, PT + 2, PT + 4
    t = PT + 6
    for r in range(6): B(f"v_lshlrev_b32 {v(PT+r)}, 16, {v(PT+r)}")
    for c in range(2):
        B(f"v_mul_f32 {v(t+c)}, {LOG2E}, {v(ldt+c)}")
    for c in range(2): B(f"v_exp_f32 {v(t+c)}, {v(t+c)}")
    B("s_nop 0")
    for c in range(2): rnd_bf16(B, t + c, t + c)
    B(pk_mul(t + 2, t, None, lre))
    B(pk_mul(t + 4, t, None, lim))
    for c in range(2):
        B(f"v_mul_f32 {v(t+2+c)}, {LOG2E}, {v(t+2+c)}")
        B(f"v_mul_f32 {v(t+4+c)}, {INV2PI}, {v(t+4+c)}")
    for c in range(2):
        B(f"v_exp_f32 {v(t+2+c)}, {v(t+2+c)}")
        B(f"v_rndne_f32 {v(t+6+c)}, {v(t+4+c)}")
    for c in range(2): B(f"v_sub_f32 {v(t+4+c)}, {v(t+4+c)}, {v(t+6+c)}")
    for c in range(2):
        B(f"v_cos_f32 {v(t+6+c)}, {v(t+4+c)}")
        B(f"v_sin_f32 {v(t+8+c)}, {v(t+4+c)}")
    B(pk_mul(t + 10, lre, None, lre))
    B(pk_fma(t + 10, lim, None, lim, t + 10))
    B(pk_mul(Lr, t + 2, None, t + 6))
    B(pk_mul(Li, t + 2, None, t + 8))
    for c in range(2): B(f"v_rcp_f32 {v(t+10+c)}, {v(t+10+c)}")
    for c in range(2): B(f"v_add_f32 {v(t+c)}, -1.0, {v(Lr+c)}")
    B(pk_add(t + 10, t + 10, t + 10))
    B(pk_mul(t + 2, t, None, lre))
    B(pk_fma(t + 2, Li, None, lim, t + 2))
    B(pk_mul(t + 4, Li, None, lre))
    B(pk_fma(t + 4, t, None, lim, t + 4, neg=True))
    B(pk_mul(Cr, t + 2, None, t + 10))
    B(pk_mul(Ci, t + 4, None, t + 10))
    a0, a1, b0, b1, c0, c1, d0, d1 = [PT + 2 * i for i in range(8)]
    pk_csq(B, a0, a1, Lr, Li)
    pk_csq(B, b0, b1, a0, a1)
    pk_csq(B, L8r, L8i, b0, b1)
    pk_csq(B, L16r, L16i, L8r, L8i)
    pk_csq(B, a0, a1, L16r, L16i)
    pk_csq(B, b0, b1, a0, a1)
    B(f"v_and_b32 {v(PT+16)}, 1, {v(vGq)}")
    B(f"v_cmp_eq_u32 s[84:85], 1, {v(PT+16)}")
    B(f"v_cmp_lt_u32 s[86:87], 1, {v(vGq)}")
    def sel(dr, di, sr, si, mask):
        for c in range(2):
            B(f"v_cndmask_b32 {v(dr+c)}, 1.0, {v(sr+c)}, {mask}")
            B(f"v_cndmask_b32 {v(di+c)}, 0, {v(si+c)}, {mask}")
    e0, e1 = PT + 18, PT + 20
    sel(c0, c1, L16r, L16i, "s[84:85]")
    sel(d0, d1, a0, a1, "s[86:87]")
    pk_cmul(B, e0, e1, c0, c1, None, d0, d1)
    sel(c0, c1, b0, b1, "s[82:83]")
    pk_cmul(B, Wr, Wi, e0, e1, None, c0, c1)
    pk_csq(B, a0, a1, b0, b1)
    pk_csq(B, b0, b1, a0, a1)
    pk_csq(B, L512r, L512i, b0, b1)
    sel(c0, c1, a0, a1, "s[84:85]")
    sel(d0, d1, b0, b1, "s[86:87]")
    pk_cmul(B, Fr, Fi, c0, c1, None, d0, d1)
    for c2 in range(2):
        B(f"v_mov_b32 {v(a0)}, {v(Wr+c2)}")
        B(f"v_mov_b32 {v(a1)}, {v(Wi+c2)}")
        B(f"v_mul_f32 {v(a0+1)}, {v(L8r+c2)}, {v(Wr+c2)}")
        B(f"v_mul_f32 {v(a1+1)}, {v(L8r+c2)}, {v(Wi+c2)}")
        B(f"v_fma_f32 {v(a0+1)}, -{v(L8i+c2)}, {v(Wi+c2)}, {v(a0+1)}")
        B(f"v_fma_f32 {v(a1+1)}, {v(L8i+c2)}, {v(Wr+c2)}, {v(a1+1)}")
        pk_cmul(B, VS + 4 * c2, VS + 4 * c2 + 2, Cr, Ci, c2, a0, a1)
    par = B.lines
    B = Asm()
    B(f"s_lshl_b32 s38, s{sWN}, 8")
    B(f"s_add_u32 s38, s38, {L_EX}")
    B(f"v_lshl_add_u32 {v(eb)}, {v(vL15)}, 4, s38")
    B(f"s_lshl_b32 s39, s{sWM}, 11")
    B(f"v_lshl_add_u32 {v(ea)}, {v(vGq)}, 9, {v(eb)}")
    B(f"v_add_u32 {v(ea)}, s39, {v(ea)}")
    B(f"v_lshlrev_b32 {v(la)}, 10, {v(vGq)}")
    B(f"v_lshl_add_u32 {v(la)}, {v(vL15)}, 4, {v(la)}")
    B("s_add_u32 s38, s92, 1024")
    B(f"v_add_u32 {v(la)}, s38, {v(la)}")
    B(f"v_sub_u32 {v(t1)}, s{sRB}, {v(vGq)}")
    B(f"v_mov_b32 {v(t2)}, s{sTAG}")
    for i in range(4):
        B(f"v_cmp_lt_i32 vcc, {4*i}, {v(t1)}")
        B("s_nop 1")
        B(f"v_cndmask_b32 {v(XT+i)}, 0, {v(t2)}, vcc")
    B(f"s_mul_i32 s38, s{sWV}, 9216")
    B(f"s_add_u32 s38, s38, {L_TR}")
    B(f"v_mul_u32_u24 {v(wa)}, 144, {v(vL15)}")
    B(f"v_lshl_add_u32 {v(wa)}, {v(vGq)}, 5, {v(wa)}")
    B(f"v_add_u32 {v(wa)}, s38, {v(wa)}")
    B(f"v_bfe_u32 {v(ra)}, {v(vLane)}, 2, 2")
    B(f"v_lshl_add_u32 {v(ra)}, {v(vGq)}, 3, {v(ra)}")
    B(f"v_mul_u32_u24 {v(ra)}, 144, {v(ra)}")
    B(f"v_and_b32 {v(t1)}, 3, {v(vLane)}")
    B(f"v_lshl_add_u32 {v(ra)}, {v(t1)}, 3, {v(ra)}")
    B(f"v_add_u32 {v(ra)}, s38, {v(ra)}")
    B(f"v_lshlrev_b32 {v(ga)}, 4, {v(vLane)}")
    B(f"s_lshl_b32 s38, s{sCB}, 6")
    B(f"s_lshl_b32 s39, s{sWM}, 5")
    B("s_add_u32 s38, s38, s39")
    B(f"v_add_u32 {v(t1)}, s38, {v(rr)}")
    B(f"v_lshl_add_u32 {v(t1)}, {v(t1)}, 11, {v(cc)}")
    B(f"v_xor_b32 {v(t2)}, 64, {v(t1)}")
    for q in range(4):
        B(f"v_add_u32 {v(vDC+q)}, {8*2048*q - 1024*q + 3072}, {v(t2 if q & 1 else t1)}")
    sROT2 = 55
    cx, cr, cc_ = opt.get("rot2", [2, 0, 0])
    B(f"s_mul_i32 s{sROT2}, s3, {cx}")
    B(f"s_mul_i32 s38, s{sRB}, {cr}")
    B(f"s_add_u32 s{sROT2}, s{sROT2}, s38")
    B(f"s_mul_i32 s38, s{sCB}, {cc_}")
    B(f"s_add_u32 s{sROT2}, s{sROT2}, s38")
    B(f"s_lshl_b32 s48, s{sRB}, 19")
    B(f"s_lshl_b32 s39, s{sCB}, 15")
    B("s_add_u32 s53, s48, s39")
    B(f"s_lshl_b32 s39, s{sWN}, 11")
    B("s_add_u32 s53, s53, s39")
    B(f"s_lshl_b32 s39, s{sWM}, 14")
    B("s_add_u32 s53, s53, s39")
    B("s_getreg_b32 s97, hwreg(HW_REG_XCC_ID, 0, 4)")
    B(f"s_xor_b32 s97, s97, s{sTAG}")
    B(f"s_lshl_b32 s52, s{sRB}, {FSH + 4}")
    B(f"s_add_u32 s52, s52, {WS_XC}")
    B(f"s_lshl_b32 s38, s{sCB}, {FSH}")
    B("s_add_u32 s38, s38, s52")
    B(f"v_mov_b32 {v(t1)}, s97")
    B(f"v_lshlrev_b32 {v(t2)}, 2, {v(vLane)}")
    B(f"v_lshlrev_b32 v1, {FSH}, {v(vL15)}")
    B(f"s_cmp_lg_u32 s{sWV}, 0")
    B("s_cbranch_scc1 L_noxc")
    flag_store(B, t1, t2, sW, 38)
    B.label("L_noxc")
    adr = B.lines

    stamp(A, 1, ST)
    for st in range(16):
        A(f"s_waitcnt vmcnt({vm.need(('d', 2*st+1))}) lgkmcnt(0)")
        A("s_barrier")
        if st == 0:
            stamp(A, 2, ST); make_tag(A)
        todo = []
        if st >= 1:
            for i in (NSLOT + 2 * (st - 1), NSLOT + 2 * (st - 1) + 1):
                if i < 32: todo += [(i, q) for q in range(4)]
        fill_ok = st >= 3
        if st == 3: assert vm.need("p") >= vm.need(("d", 2 * st + 1))
        for half in range(2):
            rds = rd_frags(st, half, FX if half == 0 else FY)
            if half == 0:
                mf = mfmas(FY, False) if st > 0 else []
            else:
                A("s_waitcnt lgkmcnt(0)")
                mf = mfmas(FX, st == 0)
            if not mf:
                emit(rds); rds = []
                emit(adr)
            for k, m in enumerate(mf):
                A(m)
                if rds: A(rds.pop(0))
                elif todo and (k % 2 == 0): emit(dma_item(*todo.pop(0)))
                elif fill_ok and par: A(par.pop(0))
                if fill_ok and par and k >= 8 and not todo: A(par.pop(0))
        while todo: emit(dma_item(*todo.pop(0)))
        if st == 12:
            A(f"buffer_load_dword v2, v1, {s(sW,4)}, s52 offen sc1"); vm.add("xc")
    assert not par, len(par)
    A("s_waitcnt lgkmcnt(0)")
    emit(mfmas(FY, False))
    stamp(A, 3, ST)

    def ure(c2, q): return acc(q >> 1, 0, c2) + 2 * (q & 1)
    def uim(c2, q): return acc(q >> 1, 1, c2) + 2 * (q & 1)
    def uI(c2, q): return UI + 16 * c2 + 2 * q
    HS = 8
    TT = 16
    EE = 56
    PUB = 60
    PIN = EP + 24
    t9 = EP + 22
    for i in range(4): A(f"s_mov_b32 s{44+i}, {4096*i}")
    A(f"v_mov_b32 {v(PUB+1)}, s{sTAG}")
    A(f"v_mov_b32 {v(PUB+3)}, s{sTAG}")
    A(f"v_mov_b32 {v(PIN)}, {L_CNT}")
    A(f"v_mov_b32 {v(PIN+2)}, 0")
    A(f"v_mov_b32 {v(PIN+3)}, 0")
    A(f"ds_write_b64 {v(PIN)}, {v(PIN+2,2)}")
    A(f"ds_write_b64 {v(PIN)}, {v(PIN+2,2)} offset:8")
    for q in range(1, 8):
        for c2 in range(2):
            hr, hi, tr_, ti = HS + 4 * c2, HS + 4 * c2 + 2, TT + 4 * c2, TT + 4 * c2 + 2
            pr = ure(c2, 0) if q == 1 else hr
            pi = uim(c2, 0) if q == 1 else hi
            A(pk_fma(tr_, Li, c2, pi, ure(c2, q), neg=True))
            A(pk_fma(ti, Li, c2, pr, uim(c2, q)))
            A(pk_fma(hr, Lr, c2, pr, tr_))
            A(pk_fma(hi, Lr, c2, pi, ti))
    for c2 in range(2):
        hr, hi = HS + 4 * c2, HS + 4 * c2 + 2
        A(f"v_fma_f32 {v(EE+c2)}, -{v(L8i+c2)}, {v(hi)}, {v(hr+1)}")
        A(f"v_fma_f32 {v(EE+2+c2)}, {v(L8i+c2)}, {v(hr)}, {v(hi+1)}")
    for c2 in range(2):
        hr, hi = HS + 4 * c2, HS + 4 * c2 + 2
        A(f"v_fma_f32 {v(EE+c2)}, {v(L8r+c2)}, {v(hr)}, {v(EE+c2)}")
        A(f"v_fma_f32 {v(EE+2+c2)}, {v(L8r+c2)}, {v(hi)}, {v(EE+2+c2)}")
    A(f"ds_write_b128 {v(ea)}, {v(EE,4)}")
    A("s_waitcnt lgkmcnt(0)")
    A("s_barrier")
    PE = FY
    for sp in range(8):
        A(f"ds_read_b128 {v(PE+4*sp,4)}, {v(eb)} offset:{sp*512}")
    for sp in range(1, 8):
        A(f"s_waitcnt lgkmcnt({7-sp})")
        pr, pi, er, ei = PE + 4 * (sp - 1), PE + 4 * (sp - 1) + 2, PE + 4 * sp, PE + 4 * sp + 2
        A(pk_fma(er, L16i, None, pi, er, neg=True))
        A(pk_fma(ei, L16i, None, pr, ei))
        A(pk_fma(er, L16r, None, pr, er))
        A(pk_fma(ei, L16r, None, pi, ei))
    A(f"v_cndmask_b32 {v(PUB)}, {v(PE+28)}, {v(PE+29)}, s[84:85]")
    A(f"v_cndmask_b32 {v(PUB+2)}, {v(PE+30)}, {v(PE+31)}, s[84:85]")
    A(f"s_cmp_lg_u32 s{sWM}, 0")
    A("s_cbranch_scc1 L_nopub")
    A("s_mov_b32 exec_hi, 0")
    A(f"buffer_store_dwordx4 {v(PUB,4)}, {v(vAgO)}, {s(sAG,4)}, 0 offen sc1")
    A("s_mov_b32 exec_hi, -1")
    A.label("L_nopub")
    stamp(A, 4, ST)
    LQ = PT
    def lb_loads():
        for c2 in range(2):
            for i in range(4):
                A(f"buffer_load_dwordx4 {v(LQ+16*c2+4*i,4)}, {v(la)}, {s(sAG,4)}, s{44+i} offen offset:{256*c2} sc1")
    B = Asm()
    for r in range(4):
        for g in range(4):
            lo = "0" if g == 0 else v(PE + 4 * (g - 1) + r)
            B(f"v_cndmask_b32 {v(TT+g)}, {lo}, {v(PE+4*(3+g)+r)}, s[82:83]")
        B(f"v_cndmask_b32 {v(TT)}, {v(TT)}, {v(TT+1)}, s[84:85]")
        B(f"v_cndmask_b32 {v(TT+2)}, {v(TT+2)}, {v(TT+3)}, s[84:85]")
        B(f"v_cndmask_b32 {v(PIN+r)}, {v(TT)}, {v(TT+2)}, s[86:87]")
    QS = PE
    for c2 in range(2):
        hr, hi = HS + 4 * c2, HS + 4 * c2 + 2
        qr, qi = PE + 16, PE + 18
        B(f"v_mov_b32 {v(qr)}, {v(PIN+c2)}")
        B(f"v_mov_b32 {v(qi)}, {v(PIN+2+c2)}")
        B(f"v_fma_f32 {v(qr+1)}, -{v(L8i+c2)}, {v(PIN+2+c2)}, {v(hr)}")
        B(f"v_fma_f32 {v(qi+1)}, {v(L8i+c2)}, {v(PIN+c2)}, {v(hi)}")
        B(f"v_fma_f32 {v(qr+1)}, {v(L8r+c2)}, {v(PIN+c2)}, {v(qr+1)}")
        B(f"v_fma_f32 {v(qi+1)}, {v(L8r+c2)}, {v(PIN+2+c2)}, {v(qi+1)}")
        pk_cmul(B, QS + 4 * c2, QS + 4 * c2 + 2, Cr, Ci, c2, qr, qi)
    for q in range(8):
        for c2 in range(2):
            B(pk_mul(uI(c2, q), Cr, c2, uim(c2, q)))
            B(pk_fma(uI(c2, q), Ci, c2, ure(c2, q), uI(c2, q)))
            B(pk_mul(ure(c2, q), Cr, c2, ure(c2, q)))
            B(pk_fma(ure(c2, q), Ci, c2, uim(c2, q), ure(c2, q), neg=True))
    nlb = min(opt.get("lb_at", 60), len(B.lines))
    emit(B.lines[:nlb])
    lb_loads()
    emit(B.lines[nlb:])
    A.label("L_poll")
    A("s_waitcnt vmcnt(0)")
    for c2 in range(2):
        for i in range(4):
            A(f"v_xor_b32 {v(LQ+16*c2+4*i+1)}, {v(LQ+16*c2+4*i+1)}, {v(XT+i)}")
            A(f"v_xor_b32 {v(LQ+16*c2+4*i+3)}, {v(LQ+16*c2+4*i+3)}, {v(XT+i)}")
    A(f"v_or3_b32 {v(t9)}, {v(LQ+1)}, {v(LQ+3)}, {v(LQ+5)}")
    for i in range(7, 31, 4):
        A(f"v_or3_b32 {v(t9)}, {v(t9)}, {v(LQ+i)}, {v(LQ+i+2)}")
    A(f"v_or_b32 {v(t9)}, {v(t9)}, {v(LQ+31)}")
    A(f"v_cmp_ne_u32 vcc, 0, {v(t9)}")
    A("s_nop 1")
    A("s_cmp_eq_u64 vcc, 0")
    A("s_cbranch_scc1 L_got")
    spin_guard(A, "L_got")
    A(f"s_sleep {opt.get('lb_sleep', 2)}")
    lb_loads()
    A("s_branch L_poll")
    A.label("L_got")
    stamp(A, 5, ST)
    vm = Vm()
    def slot2(st): return (st + 5) % NSLOT
    def cdma(st, q):
        out = []
        if q == 0:
            out.append(f"s_add_u32 m0, s{sLW}, {slot2(st) * 16384}")
            out.append(f"s_add_u32 s{sK}, s{sROT2}, {st}")
            out.append(f"s_and_b32 s{sK}, s{sK}, 15")
            out.append(f"s_lshl_b32 s{sK}, s{sK}, 7")
        out.append(f"buffer_load_dwordx4 {v(vDC+q)}, {s(sC,4)}, s{sK} offen offset:{1024*q} {opt.get('cflag', '')} lds")
        vm.add(("c", st))
        return out
    CE = opt.get("c_early", 0)
    for st in range(CE):
        for q in range(4): emit(cdma(st, q))
    HC = TT
    for i in range(2, -1, -1):
        for c2 in range(2):
            cr_, ci_ = LQ + 16 * c2 + 4 * (i + 1), LQ + 16 * c2 + 4 * (i + 1) + 2
            ar, ai = LQ + 16 * c2 + 4 * i, LQ + 16 * c2 + 4 * i + 2
            A(f"v_fma_f32 {v(ar)}, -{v(L512i+c2)}, {v(ci_)}, {v(ar)}")
            A(f"v_fma_f32 {v(ai)}, {v(L512i+c2)}, {v(cr_)}, {v(ai)}")
            A(f"v_fma_f32 {v(ar)}, {v(L512r+c2)}, {v(cr_)}, {v(ar)}")
            A(f"v_fma_f32 {v(ai)}, {v(L512r+c2)}, {v(ci_)}, {v(ai)}")
    for c2 in range(2):
        ar, ai = LQ + 16 * c2, LQ + 16 * c2 + 2
        A(f"v_mul_f32 {v(HC+2*c2)}, {v(Fr+c2)}, {v(ar)}")
        A(f"v_mul_f32 {v(HC+2*c2+1)}, {v(Fr+c2)}, {v(ai)}")
        A(f"v_fma_f32 {v(HC+2*c2)}, -{v(Fi+c2)}, {v(ai)}, {v(HC+2*c2)}")
        A(f"v_fma_f32 {v(HC+2*c2+1)}, {v(Fi+c2)}, {v(ar)}, {v(HC+2*c2+1)}")
    xsum_groups(A, [HC + i for i in range(4)], [HC + 4 + i for i in range(4)])
    for c2 in range(2):
        qr, qi, wr, wi = QS + 4 * c2, QS + 4 * c2 + 2, VS + 4 * c2, VS + 4 * c2 + 2
        A(pk_fma(qr, HC + 2 * c2, 0, wr, qr))
        A(pk_fma(qi, HC + 2 * c2, 0, wi, qi))
        A(pk_fma(qr, HC + 2 * c2, 1, wi, qr, neg=True))
        A(pk_fma(qi, HC + 2 * c2, 1, wr, qi))
    PK = PT
    def pko(c2, part, e, j): return PK + 16 * c2 + 8 * part + 4 * e + j
    for q in range(8):
        for c2 in range(2):
            pr = QS + 4 * c2 if q == 0 else ure(c2, q - 1)
            pi = QS + 4 * c2 + 2 if q == 0 else uI(c2, q - 1)
            A(pk_fma(ure(c2, q), Li, c2, pi, ure(c2, q), neg=True))
            A(pk_fma(uI(c2, q), Li, c2, pr, uI(c2, q)))
            A(pk_fma(ure(c2, q), Lr, c2, pr, ure(c2, q)))
            A(pk_fma(uI(c2, q), Lr, c2, pi, uI(c2, q)))
        if q & 1:
            for c2 in range(2):
                for e in range(2):
                    A(f"v_cvt_pk_bf16_f32 {v(pko(c2,0,e,q>>1))}, {v(ure(c2,q-1)+e)}, {v(ure(c2,q)+e)}")
                    A(f"v_cvt_pk_bf16_f32 {v(pko(c2,1,e,q>>1))}, -{v(uI(c2,q-1)+e)}, -{v(uI(c2,q)+e)}")
    for part in range(2):
        for c2 in range(2):
            for e in range(2):
                A(f"ds_write_b128 {v(wa)}, {v(pko(c2,part,e,0),4)} offset:{part*4608 + c2*2304 + e*16}")
    stamp(A, 6, ST)
    OUT = 64
    for part in range(2):
        A(f"s_waitcnt lgkmcnt({4 if part == 0 else 8})")
        for mt in range(4):
            for rd in range(2):
                A(f"ds_read_b64_tr_b16 {v(OUT + 16*part + 4*mt + 2*rd, 2)}, {v(ra)} offset:{part*4608 + rd*576 + mt*32}")
    A("v_cmp_ne_u32 vcc, s97, v2")
    A("s_nop 1")
    A("s_cmp_eq_u64 vcc, 0")
    A("s_cselect_b32 s97, 1, 0")
    if opt.get("force_slow"): A("s_mov_b32 s97, 0")
    A("s_cmp_eq_u32 s97, 1")
    A("s_cbranch_scc1 L_hs_fast")
    for fl in ("sc1", opt.get("hflag", "")):
        k = 0
        for part in range(2):
            for mt in range(4):
                if mt % 2 == 0: A(f"s_add_u32 s39, s53, {part*4096 + (mt>>1)*8192}")
                A(f"s_waitcnt lgkmcnt({14 - 2*k})")
                A(f"buffer_store_dwordx4 {v(OUT + 4*k, 4)}, {v(ga)}, {s(sW,4)}, s39 offen offset:{(mt&1)*1024} {fl}")
                k += 1
        if fl == "sc1":
            A("s_branch L_hs_done")
            A.label("L_hs_fast")
    A.label("L_hs_done")
    for k in range(8): vm.add("hs")
    stamp(A, 7, ST)

    HD = 2
    vRC, vRC2 = 20, 22
    vH0, vH1, vG = 8, 9, 10
    vXo, vGo, vFo, vFl = 12, 13, 14, 61
    XR, GR, DS = 28, 44, 52
    ACC2, CF, E, HR, GT = 64, 96, 128, 160, 224
    sH, sHB, sT0 = 49, 50, 51
    for q in range(4): A(f"v_mov_b32 {v(16+q)}, {v(vDC+q)}")
    vDC = 16
    A(f"v_mov_b32 {v(vH0)}, {v(ga)}")
    A(f"v_add_u32 {v(vH1)}, 4096, {v(ga)}")
    for st in range(CE, 3):
        for q in range(4): emit(cdma(st, q))
    srd(A, sX, 40, 41, 4194304)
    A(f"s_lshl_b32 s38, s{sWV}, 13")
    A(f"s_add_u32 s{sHB}, s48, s38")
    A(f"v_lshlrev_b32 {v(vXo)}, 11, {v(vGq)}")
    A(f"v_lshl_add_u32 {v(vXo)}, {v(vL15)}, 3, {v(vXo)}")
    A(f"v_lshlrev_b32 {v(vGo)}, 3, {v(vGq)}")
    A(f"s_lshl_b32 s{sT0}, s{sRB}, 7")
    A(f"s_lshl_b32 s38, s{sWV}, 5")
    A(f"s_add_u32 s{sT0}, s{sT0}, s38")
    A(f"v_bfe_u32 {v(t2)}, {v(vLane)}, 1, 3")
    A(f"v_xor_b32 {v(t2)}, {v(t2)}, {v(vGq)}")
    A(f"v_lshlrev_b32 {v(t2)}, 4, {v(t2)}")
    A(f"v_lshl_add_u32 {v(t2)}, {v(vL15)}, 7, {v(t2)}")
    for kk in range(2):
        A(f"v_xor_b32 {v(vRC+kk)}, {64*kk}, {v(t2)}")
        A(f"v_add_u32 {v(vRC2+kk)}, 0x10000, {v(vRC+kk)}")
    A(f"v_add_u32 {v(vFo)}, s{sROT2}, {v(vL15)}")
    A(f"v_and_b32 {v(vFo)}, 15, {v(vFo)}")
    A(f"v_lshlrev_b32 {v(vFo)}, {FSH}, {v(vFo)}")
    A(f"v_mov_b32 {v(t1)}, s{sTAG}")
    A(f"v_lshlrev_b32 {v(t2)}, 2, {v(vLane)}")
    A(f"v_mov_b32 {v(vT)}, {L_CNT + 4}")
    A(f"v_mov_b32 {v(vT+1)}, 1")
    A(f"s_lshl_b32 s52, s{sRB}, {FSH + 4}")
    A(f"s_add_u32 s52, s52, {WS_HF}")
    A(f"s_lshl_b32 s38, s{sCB}, {FSH}")
    A("s_add_u32 s38, s38, s52")
    A(f"s_lshl_b32 s54, s{sT0}, 3")
    A(f"s_add_u32 s54, s54, {WS_G}")
    A(f"v_lshlrev_b32 v15, 3, {v(vL15)}")
    A(f"s_waitcnt vmcnt({vm.need('hs')})")
    A("s_mov_b64 exec, 1")
    A(f"ds_add_rtn_u32 {v(vT+1)}, {v(vT)}, {v(vT+1)}")
    A("s_mov_b64 exec, -1")
    A("s_waitcnt lgkmcnt(0)")
    A(f"v_readfirstlane_b32 s39, {v(vT+1)}")
    A("s_nop 1")
    A("s_cmp_lg_u32 s39, 3")
    A("s_cbranch_scc1 L_nohf")
    A("s_cmp_eq_u32 s97, 1")
    A("s_cbranch_scc1 L_hf_fast")
    flag_store(A, t1, t2, sW, 38)
    A("s_branch L_nohf")
    A.label("L_hf_fast")
    flag_store(A, t1, t2, sW, 38, "")
    A.label("L_nohf")
    stamp(A, 8, ST)
    NF = opt.get("h_first", 16)
    def fpoll(): A(f"buffer_load_dword {v(vFl)}, {v(vFo)}, {s(sW,4)}, s52 offen sc1")
    def fcheck(mask, ok):
        A(f"v_cmp_ne_u32 vcc, s{sTAG}, {v(vFl)}")
        A("s_nop 1")
        A(f"s_and_b32 s38, vcc_lo, {mask}")
        A(f"s_cbranch_scc0 {ok}")
    A("s_mov_b64 exec, 0xffff")
    A.label("L_hpoll")
    fpoll()
    A("s_waitcnt vmcnt(0)")
    fcheck((1 << NF) - 1, "L_hgo")
    spin_guard(A, "L_hgo")
    A(f"s_sleep {opt.get('h_sleep', 2)}")
    A("s_branch L_hpoll")
    A.label("L_hgo")
    A("s_mov_b64 exec, -1")
    if opt.get("hinv"): A("buffer_inv sc1")
    stamp(A, 9, ST)
    vm = Vm()
    for st in range(3): vm.add(("c", st))
    def hload(st, j):
        out = []
        if j == 0:
            out.append(f"s_add_u32 s{sH}, s{sROT2}, {st}")
            out.append(f"s_and_b32 s{sH}, s{sH}, 15")
            out.append(f"s_lshl_b32 s{sH}, s{sH}, 15")
            out.append(f"s_add_u32 s{sH}, s{sH}, s{sHB}")
        r = HR + (st % HD) * 32 + 4 * j
        out.append(f"buffer_load_dwordx4 {v(r,4)}, {v(vH0 if j < 4 else vH1)}, {s(sW,4)}, s{sH} offen offset:{1024*(j&3)} {opt.get('hld', 'sc1')}")
        vm.add(("h", st, j))
        return out
    for j in range(4): emit(hload(0, j))
    def gloads(track):
        for i in range(8):
            A(f"buffer_load_dwordx2 {v(GT+2*i,2)}, {v(vGo)}, {s(sW,4)}, s54 offen offset:{32*i} sc1")
            if track: vm.add("x")
        for tt in range(2):
            A(f"buffer_load_dwordx2 {v(GT+16+2*tt,2)}, v15, {s(sW,4)}, s54 offen offset:{128*tt} sc1")
            if track: vm.add("x")
    def xloads():
        A(f"s_lshl_b32 s38, s{sT0}, 11")
        A(f"s_lshl_b32 s39, s{sCB}, 7")
        A("s_add_u32 s38, s38, s39")
        for i in range(8):
            A(f"buffer_load_dwordx2 {v(XR+2*i,2)}, {v(vXo)}, {s(sX,4)}, s38 offen")
            A("s_add_u32 s38, s38, 8192")
            vm.add("x")
        gloads(True)
        A(f"v_add_u32 {v(t2)}, s39, v15")
        A(f"global_load_dwordx2 v[62:63], {v(t2)}, s[58:59]")
        vm.add("x")
    def gcheck():
        A(f"s_waitcnt vmcnt({vm.need('x')})")
        A.label("L_gchk")
        for i in range(10):
            A(f"v_xor_b32 {v(GT+2*i+1)}, s{sTAG}, {v(GT+2*i+1)}")
            A(f"v_mov_b32 {v(GR+i if i < 8 else vG+i-8)}, {v(GT+2*i)}")
        A(f"v_or3_b32 {v(t1)}, {v(GT+1)}, {v(GT+3)}, {v(GT+5)}")
        for i in range(7, 19, 4):
            A(f"v_or3_b32 {v(t1)}, {v(t1)}, {v(GT+i)}, {v(GT+i+2)}")
        A(f"v_or_b32 {v(t1)}, {v(t1)}, {v(GT+19)}")
        A(f"v_cmp_ne_u32 vcc, 0, {v(t1)}")
        A("s_nop 1")
        A("s_cmp_eq_u64 vcc, 0")
        A("s_cbranch_scc1 L_gok")
        if opt.get("noside"): A("s_branch L_gok")
        spin_guard(A, "L_gok")
        gloads(False)
        A("s_waitcnt vmcnt(0)")
        A("s_branch L_gchk")
        A.label("L_gok")
    A("s_mov_b32 s53, 0xffff0000")
    B = Asm()
    B(f"v_lshlrev_b32 {v(DS)}, 16, v62")
    B(f"v_and_b32 {v(DS+1)}, s53, v62")
    B(f"v_lshlrev_b32 {v(DS+2)}, 16, v63")
    B(f"v_and_b32 {v(DS+3)}, s53, v63")
    a0, a1, a2, a3, om = vT, vT + 1, vT + 2, vT + 3, vT + 4
    for i in range(8):
        B(f"v_sub_f32 {v(om)}, 1.0, {v(GR+i)}")
        rnd_bf16(B, om, om)
        for p in range(2):
            xr = XR + 2 * i + p
            B(f"v_lshlrev_b32 {v(a0)}, 16, {v(xr)}")
            B(f"v_and_b32 {v(a1)}, s53, {v(xr)}")
            B(f"v_mul_f32 {v(a2)}, {v(a0)}, {v(DS+2*p)}")
            B(f"v_mul_f32 {v(a3)}, {v(a1)}, {v(DS+2*p+1)}")
            B(f"v_cvt_pk_bf16_f32 {v(a2)}, {v(a2)}, {v(a3)}")
            B(f"v_mul_f32 {v(a0)}, {v(a0)}, {v(om)}")
            B(f"v_mul_f32 {v(a1)}, {v(a1)}, {v(om)}")
            B(f"v_cvt_pk_bf16_f32 {v(a0)}, {v(a0)}, {v(a1)}")
            B(f"v_and_b32 {v(a3)}, s53, {v(a2)}")
            B(f"v_lshlrev_b32 {v(a2)}, 16, {v(a2)}")
            B(f"v_and_b32 {v(a1)}, s53, {v(a0)}")
            B(f"v_lshlrev_b32 {v(a0)}, 16, {v(a0)}")
            B(f"v_fma_f32 {v(E+4*i+2*p)}, {v(GR+i)}, {v(a2)}, {v(a0)}")
            B(f"v_fma_f32 {v(E+4*i+2*p+1)}, {v(GR+i)}, {v(a3)}, {v(a1)}")
    el = B.lines
    def creads(g):
        st, ks = g >> 2, g & 3
        off = slot2(st) * 16384 + (ks >> 1) * 8192
        base = vRC
        if off >= 65536: off -= 65536; base = vRC2
        F = CF + (g & 1) * 16
        return [f"ds_read_b128 {v(F+4*dt,4)}, {v(base + (ks & 1))} offset:{off + 2048*dt}" for dt in range(4)]
    A("s_barrier")
    stamp(A, 10, ST)
    emit(creads(0))
    for j in range(4, 8): emit(hload(0, j))
    for j in range(8): emit(hload(1, j))
    cq = [(st, q) for st in (3, 4, 5) for q in range(4)]
    CBURST = opt.get("c_burst", 0)
    GX, GC = opt.get("x_at", 4), opt.get("x_chk", 14)
    for g in range(64):
        st, ks = g >> 2, g & 3
        if g == GX: xloads()
        if g == GC: gcheck()
        if NF < 16:
            gchk = 4 * (NF - HD)
            if g == gchk - 6:
                A("s_mov_b64 exec, 0xffff"); fpoll(); A("s_mov_b64 exec, -1"); vm.add("f")
            if g == gchk:
                A(f"s_waitcnt vmcnt({vm.need('f')})")
                A.label("L_h2poll")
                fcheck(0xffff, "L_h2go")
                spin_guard(A, "L_h2go")
                A(f"s_sleep {opt.get('h_sleep', 2)}")
                A("s_mov_b64 exec, 0xffff"); fpoll(); A("s_mov_b64 exec, -1")
                A("s_waitcnt vmcnt(0)")
                A("s_branch L_h2poll")
                A.label("L_h2go")
        if g + 1 < 64:
            if ks == 3:
                assert st + 1 < 3 or vm.ops.count(("c", st + 1)) == 4
                A(f"s_waitcnt vmcnt({vm.need(('c', st + 1))}) lgkmcnt(0)")
                A("s_barrier")
                if CBURST:
                    if st % CBURST == CBURST - 1:
                        for s2_ in range(st + NSLOT - CBURST + 1, st + NSLOT + 1):
                            if s2_ < 16: cq += [(s2_, q) for q in range(4)]
                elif st + NSLOT < 16: cq += [(st + NSLOT, q) for q in range(4)]
                emit(creads(g + 1))
                A(f"s_waitcnt vmcnt({vm.need(('h', st, 2*ks+1))})")
            else:
                emit(creads(g + 1))
                A(f"s_waitcnt vmcnt({vm.need(('h', st, 2*ks+1))}) lgkmcnt(4)")
        else:
            A(f"s_waitcnt vmcnt({vm.need(('h', st, 2*ks+1))}) lgkmcnt(0)")
        F = CF + (g & 1) * 16
        for tt in range(2):
            hr = HR + (st % HD) * 32 + 4 * (2 * ks + tt)
            for dt in range(4):
                d = ACC2 + 4 * (tt * 4 + dt)
                A(f"v_mfma_f32_16x16x32_bf16 {v(d,4)}, {v(F+4*dt,4)}, {v(hr,4)}, {'0' if g == 0 else v(d,4)}")
                if dt < 3 and el and g >= GC: A(el.pop(0))
            if st + HD < 16: emit(hload(st + HD, 2 * ks + tt))
            if CBURST:
                while cq: emit(cdma(*cq.pop(0)))
            elif cq and (tt == 0 or len(cq) > 4): emit(cdma(*cq.pop(0)))
    assert not el and not cq
    stamp(A, 11, ST)
    assert slot2(15) == 2
    TB = 49152
    wa, ra, oa = vT, vT + 1, vT + 2
    A(f"s_mul_i32 s38, s{sWV}, 8704")
    A(f"s_add_u32 s56, s38, {TB}")
    A(f"v_mul_u32_u24 {v(wa)}, 272, {v(vL15)}")
    A(f"v_lshl_add_u32 {v(wa)}, {v(vGq)}, 4, {v(wa)}")
    A(f"v_add_u32 {v(wa)}, s56, {v(wa)}")
    A(f"v_mul_u32_u24 {v(ra)}, 272, {v(vGq)}")
    A(f"v_lshl_add_u32 {v(ra)}, {v(vL15)}, 4, {v(ra)}")
    A(f"v_add_u32 {v(ra)}, s56, {v(ra)}")
    A(f"v_lshlrev_b32 {v(oa)}, 12, {v(vGq)}")
    A(f"v_lshl_add_u32 {v(oa)}, {v(vL15)}, 4, {v(oa)}")
    A(f"v_lshlrev_b32 {v(vT+3)}, 2, {v(vLane)}")
    A(f"v_add_u32 {v(vT+3)}, {L_TOP}, {v(vT+3)}")
    A(f"ds_read_b32 {v(vT+4)}, {v(vT+3)}")
    for tt in range(2):
        for dt in range(4):
            r = ACC2 + 4 * (tt * 4 + dt)
            A(pk_mul(r, vG, tt, r))
            A(pk_mul(r + 2, vG, tt, r + 2))
            A(f"ds_write_b128 {v(wa)}, {v(r,4)} offset:{tt*16*272 + dt*64}")
    A("s_waitcnt lgkmcnt(8)")
    A(f"v_and_b32 {v(vT+4)}, 0x7ff, {v(vT+4)}")
    A(f"s_sub_u32 s38, 2047, s{sT0}")
    A(f"v_sub_u32 {v(vT+4)}, s38, {v(vT+4)}")
    A(f"v_cmp_gt_u32 vcc, 32, {v(vT+4)}")
    A("s_waitcnt lgkmcnt(0)")
    A("s_barrier")
    A("s_and_b32 s57, vcc_lo, 0xff")
    Y = HR
    A.label("L_fix")
    A("s_cmp_eq_u32 s57, 0")
    A("s_cbranch_scc1 L_fixd")
    A("s_ff1_i32_b32 s38, s57")
    A("s_bitset0_b32 s57, s38")
    A(f"v_readlane_b32 s39, {v(vT+4)}, s38")
    A("s_lshl_b32 s38, s38, 8")
    A(f"s_add_u32 s38, s38, {L_DEL}")
    A(f"v_lshl_add_u32 {v(Y+9)}, {v(vL15)}, 4, s38")
    A("s_mul_i32 s39, s39, 272")
    A("s_add_u32 s39, s39, s56")
    A(f"v_lshl_add_u32 {v(Y+8)}, {v(vL15)}, 4, s39")
    A(f"ds_read_b128 {v(Y,4)}, {v(Y+8)}")
    A(f"ds_read_b128 {v(Y+4,4)}, {v(Y+9)}")
    A("s_waitcnt lgkmcnt(0)")
    A(pk_add(Y, Y, Y + 4))
    A(pk_add(Y + 2, Y + 2, Y + 6))
    A(f"ds_write_b128 {v(Y+8)}, {v(Y,4)}")
    A("s_waitcnt lgkmcnt(0)")
    A("s_branch L_fix")
    A.label("L_fixd")
    for i in range(8):
        A(f"ds_read_b128 {v(ACC2+4*i,4)}, {v(ra)} offset:{i*4*272}")
    A(f"s_lshl_b32 s38, s{sT0}, 12")
    A(f"s_lshl_b32 s39, s{sCB}, 8")
    A("s_add_u32 s38, s38, s39")
    stf = opt.get("ostore", "")
    for i in range(8):
        A(f"s_waitcnt lgkmcnt({7-i})")
        A(pk_add(ACC2 + 4 * i, ACC2 + 4 * i, E + 4 * i))
        A(pk_add(ACC2 + 4 * i + 2, ACC2 + 4 * i + 2, E + 4 * i + 2))
        A(f"buffer_store_dwordx4 {v(ACC2+4*i,4)}, {v(oa)}, {s(sO,4)}, s38 offen {stf}")
        A("s_add_u32 s38, s38, 16384")
    stamp(A, 12, ST)
    stamp_out(A, ST, sW, sWV, 0)
    A("s_endpgm")
```

```python
from common import *

class Sched:
    def __init__(self, A): self.A = A; self.nb = 0
    def bar(self, upto=None):
        tgt = self.nb + 1 if upto is None else upto
        assert tgt >= self.nb, (tgt, self.nb)
        while self.nb < tgt:
            self.A("s_barrier"); self.nb += 1

def dyn_bars(A, sreg, name):
    A.label(f"L_{name}_l")
    A(f"s_cmp_eq_u32 s{sreg}, 0")
    A(f"s_cbranch_scc1 L_{name}_d")
    A("s_barrier")
    A(f"s_sub_u32 s{sreg}, s{sreg}, 1")
    A(f"s_branch L_{name}_l")
    A.label(f"L_{name}_d")

def gen_side(A, opt):
    ST = opt.get("sstamps")
    sX, sW, sWG, sWU, sWD, sPC = 4, 12, 8, 24, 28, 32
    sWV, sRB, sDB, sCS, sKQ = 18, 16, 17, 22, 23
    S = Sched(A)
    A.label("L_side")
    stamp(A, 0, ST)
    A("s_load_dwordx2 s[40:41], s[0:1], 0")
    A("s_load_dwordx8 s[44:51], s[0:1], 80")
    A("s_load_dwordx2 s[36:37], s[0:1], 112")
    A("s_load_dwordx2 s[42:43], s[0:1], 136")
    A("s_load_dwordx4 s[52:55], s[0:1], 40")
    A(f"s_sub_u32 s{sWV}, s{sWV}, 4")
    A("v_and_b32 v2, 63, v0")
    A("v_lshlrev_b32 v3, 4, v2")
    A("s_getpc_b64 s[32:33]")
    A.label("L_pc")
    A("s_sub_u32 s32, s32, L_pc-L_code_start")
    A("s_subb_u32 s33, s33, 0")
    A("s_mov_b32 s34, L_code_end-L_code_start")
    A("s_mov_b32 s35, 0x20000")
    A("s_lshr_b32 s59, s2, 3")
    A("s_lshl_b32 s59, s59, 2")
    A(f"s_add_u32 s59, s59, s{sWV}")
    A("s_lshl_b32 s59, s59, 10")
    if opt.get("codepf", 1):
        A(f"buffer_load_dwordx4 v[60:63], v3, {s(sPC,4)}, s59 offen")
    tile_ids(A, sRB, sDB)
    A("s_lshl_b32 s3, s3, 8")
    A("s_lshl_b32 s38, s38, 3")
    A("s_add_u32 s3, s3, s38")
    A(f"s_lshl_b32 s38, s{sWV}, 1")
    A("s_add_u32 s19, s3, s38")
    A("s_lshl_b32 s20, s19, 11")
    A(f"s_mul_hi_u32 s{sKQ}, s2, {(1 << 32) // 56 + 1}")
    A(f"s_mul_i32 s38, s{sKQ}, 56")
    A(f"s_sub_u32 s{sCS}, s2, s38")
    A("s_waitcnt lgkmcnt(0)")
    srd(A, sX, 40, 41, 4194304)
    XR, WR, GW = 8, 24, 32
    for t in range(2):
        for h in range(2):
            A(f"buffer_load_dwordx4 {v(XR+8*t+4*h,4)}, v3, {s(sX,4)}, s20 offen offset:{2048*t + 1024*h}")
    for h in range(2):
        A(f"global_load_dwordx4 {v(WR+4*h,4)}, v3, s[44:45] offset:{1024*h}")
        A(f"global_load_dwordx4 {v(GW+4*h,4)}, v3, s[36:37] offset:{1024*h}")
    srd(A, sW, 42, 43, WS_USED)
    srd(A, sWG, 46, 47, 7340032)
    srd(A, sWU, 48, 49, 7340032)
    srd(A, sWD, 50, 51, 7340032)
    load_tag(A, 42, 43)
    A("s_mov_b32 s21, 0xffff0000")
    R0, G0 = 40, 42
    for x in range(4): A(f"v_mov_b32 {v(40+x)}, 0")
    S.bar()
    A("s_waitcnt vmcnt(0) lgkmcnt(0)")
    make_tag(A)
    for i in range(8):
        A(f"v_lshlrev_b32 v44, 16, {v(GW+i)}")
        A(f"v_and_b32 v45, s21, {v(GW+i)}")
        for t in range(2):
            xr = XR + 8 * t + i
            A(f"v_dot2c_f32_bf16 {v(R0+t)}, {v(xr)}, {v(WR+i)}")
            A(f"v_lshlrev_b32 v46, 16, {v(xr)}")
            A(f"v_and_b32 v47, s21, {v(xr)}")
            A(pk_mul(46, 46, None, 44))
            A("v_cvt_pk_bf16_f32 v46, v46, v47")
            A(f"v_lshlrev_b32 v47, 16, v46")
            A(f"v_and_b32 v46, s21, v46")
            A(f"v_add_f32 {v(G0+t)}, {v(G0+t)}, v47")
            A(f"v_add_f32 {v(G0+t)}, {v(G0+t)}, v46")
        if i == 4 and opt.get("s_split", 1): S.bar()
    A("s_nop 3")
    for r in (8, 4, 2, 1):
        for x in (40, 41, 42, 43):
            A(f"v_add_f32_dpp {v(x)}, {v(x)}, {v(x)} row_ror:{r} row_mask:0xf bank_mask:0xf")
    xsum_groups(A, [40, 41, 42, 43], [44, 45, 46, 47])
    for t in range(2):
        rnd_bf16(A, 46, G0 + t)
        sigmoid(A, 48 + t, 46)
        rnd_bf16(A, 48 + t, 48 + t)
    A("v_mov_b32 v50, v49")
    A(f"v_mov_b32 v49, s{sTAG}")
    A(f"v_mov_b32 v51, s{sTAG}")
    for t in range(2):
        k = 44 + 2 * t
        rnd_bf16(A, k, R0 + t)
        A(f"v_ashrrev_i32 v52, 31, {v(k)}")
        A(f"v_or_b32 v52, 0x80000000, v52")
        A(f"v_xor_b32 {v(k)}, {v(k)}, v52")
        A(f"v_and_b32 {v(k)}, s21, {v(k)}")
        A(f"s_sub_u32 s38, {2047 - t}, s19")
        A(f"v_or_b32 {v(k)}, s38, {v(k)}")
        A(f"v_mov_b32 {v(k+1)}, s{sTAG}")
    A(f"s_lshl_b32 s38, s{sWV}, 4")
    A(f"s_add_u32 s38, s38, {L_SCR}")
    A("v_mov_b32 v4, s38")
    A("s_mov_b64 exec, 1")
    A("ds_write_b128 v4, v[44:47]")
    A("ds_write_b128 v4, v[48:51] offset:64")
    A("s_mov_b64 exec, -1")
    A("s_waitcnt lgkmcnt(0)")
    S.bar()
    A(f"s_cmp_lg_u32 s{sWV}, 0")
    A("s_cbranch_scc1 L_s_nokey")
    A(f"v_add_u32 v4, {L_SCR}, v3")
    A("s_mov_b64 exec, 0xff")
    A("ds_read_b128 v[44:47], v4")
    A("v_and_b32 v5, 3, v2")
    A("v_lshlrev_b32 v5, 4, v5")
    A("v_lshrrev_b32 v6, 2, v2")
    A("v_lshl_add_u32 v5, v6, 14, v5")
    A("s_lshl_b32 s38, s19, 3")
    A(f"s_add_u32 s38, s38, {WS_KEY}")
    A("s_waitcnt lgkmcnt(0)")
    A(f"buffer_store_dwordx4 v[44:47], v5, {s(sW,4)}, s38 offen sc1")
    A("s_mov_b64 exec, -1")
    A.label("L_s_nokey")
    stamp(A, 1, ST)
    A("v_lshrrev_b32 v5, 3, v2")
    A("v_and_b32 v6, 7, v2")
    A("v_and_b32 v7, 3, v5")
    A("v_lshlrev_b32 v7, 1, v7")
    A("v_xor_b32 v6, v6, v7")
    A("v_mul_u32_u24 v4, 7168, v5")
    A("v_lshl_add_u32 v4, v6, 4, v4")
    A("v_lshlrev_b32 v5, 11, v5")
    A("v_lshl_add_u32 v5, v6, 4, v5")
    A(f"s_lshl_b32 s38, s{sWV}, 6")
    A(f"s_lshl_b32 s39, s{sKQ}, 8")
    A("s_add_u32 s44, s38, s39")
    A("s_mul_i32 s45, s44, 7168")
    A(f"s_lshl_b32 s39, s{sCS}, 7")
    A("s_add_u32 s45, s45, s39")
    A(f"s_lshl_b32 s46, s{sWV}, 14")
    A(f"s_add_u32 s46, s46, {L_W}")
    A("v_lshrrev_b32 v10, 4, v2")
    A("v_and_b32 v11, 15, v2")
    A("v_bfe_u32 v12, v2, 2, 2")
    A("v_lshl_add_u32 v13, v10, 3, v12")
    A("v_lshlrev_b32 v13, 7, v13")
    A("v_and_b32 v14, 3, v2")
    A("v_lshl_add_u32 v13, v14, 3, v13")
    A("v_add_u32 v13, s46, v13")
    for nt in range(4):
        A(f"v_xor_b32 v14, {nt}, v12")
        A(f"v_lshl_add_u32 {v(16+nt)}, v14, 5, v13")
    def wdma(i):
        gu, q = i >> 3, i & 7
        A(f"s_add_u32 m0, s46, {1024*i}")
        A(f"s_add_u32 s38, s45, {q*8*7168}")
        A(f"buffer_load_dwordx4 v4, {s(sWU if gu else sWG,4)}, s38 offen lds {opt.get('wflag','')}")
    A("s_cmp_ge_u32 s2, 224")
    A(f"s_cselect_b32 s{sWG+2}, 0, s{sWG+2}")
    A(f"s_cselect_b32 s{sWU+2}, 0, s{sWU+2}")
    wi = 0
    WE = opt.get("w_early", 0)
    KB = opt.get("s_key", 14)
    if WE:
        lo, msk = opt.get("w_stag", [7, 3])
        S.bar(lo)
        A("s_lshr_b32 s58, s2, 3")
        A(f"s_and_b32 s58, s58, {msk}")
        A(f"s_sub_u32 s57, {msk}, s58")
        dyn_bars(A, 58, "s_w1")
        for _ in range(WE): wdma(wi); wi += 1
        dyn_bars(A, 57, "s_w2")
        S.nb += msk
    S.bar(KB)
    KG, KY = 80, 64
    A(f"s_lshl_b32 s58, s{sWV}, 12")
    A(f"s_add_u32 s58, s58, {WS_KEY}")
    def kloads():
        for i in range(4):
            A(f"buffer_load_dwordx4 {v(KG+4*i,4)}, v3, {s(sW,4)}, s58 offen offset:{1024*i} sc1")
    kloads()
    A("v_mov_b32 v8, 0")
    A("s_mov_b32 s57, -1")
    S.bar(15)
    stamp(A, 2, ST)
    nafter = 0
    for _ in range(min(16 - wi, opt.get("w_b14", 6))): wdma(wi); wi += 1; nafter += 1
    S.bar(16)
    for _ in range(min(16 - wi, opt.get("w_b15", 2))): wdma(wi); wi += 1; nafter += 1
    S.bar(17)
    A(f"s_waitcnt vmcnt({nafter})")
    A.label("L_s_poll")
    for i in range(8):
        A(f"v_xor_b32 {v(KG+2*i+1)}, s{sTAG}, {v(KG+2*i+1)}")
    A(f"v_or3_b32 v9, {v(KG+1)}, {v(KG+3)}, {v(KG+5)}")
    A(f"v_or3_b32 v9, v9, {v(KG+7)}, {v(KG+9)}")
    A(f"v_or3_b32 v9, v9, {v(KG+11)}, {v(KG+13)}")
    A(f"v_or_b32 v9, v9, {v(KG+15)}")
    A("v_cmp_ne_u32 vcc, 0, v9")
    A("s_nop 1")
    A("s_cmp_eq_u64 vcc, 0")
    A("s_cbranch_scc1 L_s_go")
    spin_guard(A, "L_s_go")
    A("s_sleep 8")
    kloads()
    A("s_waitcnt vmcnt(0)")
    A("s_branch L_s_poll")
    A.label("L_s_go")
    TH = opt.get("w_thr", 3)
    D = 72
    for rnd in range(8):
        if wi < 16:
            A(f"s_waitcnt vmcnt({TH-1})")
            wdma(wi); wi += 1
        for i in range(8):
            A(f"v_sub_u32 {v(D+i)}, s57, {v(KG+2*i)}")
        A(f"v_min3_u32 v9, {v(D)}, {v(D+1)}, {v(D+2)}")
        A(f"v_min3_u32 v15, {v(D+3)}, {v(D+4)}, {v(D+5)}")
        A(f"v_min3_u32 v9, v9, {v(D+6)}, {v(D+7)}")
        A(f"v_min_u32 v9, v9, v15")
        for r in (8, 4, 2, 1):
            A("s_nop 1")
            A(f"v_min_u32_dpp v9, v9, v9 row_ror:{r} row_mask:0xf bank_mask:0xf")
        A("s_nop 0")
        for i in range(4):
            A(f"v_readlane_b32 s{48+i}, v9, {16*i}")
        A("s_nop 0")
        A("s_min_u32 s48, s48, s49")
        A("s_min_u32 s50, s50, s51")
        A("s_min_u32 s48, s48, s50")
        A("s_sub_u32 s57, s57, s48")
        A(f"v_writelane_b32 v8, s57, {rnd}")
        A("s_sub_u32 s57, s57, 1")
    while wi < 16:
        A(f"s_waitcnt vmcnt({TH-1})")
        wdma(wi); wi += 1
    A(f"s_lshl_b32 s38, s{sWV}, 5")
    A(f"s_add_u32 s38, s38, {L_CND}")
    A("v_lshl_add_u32 v9, v2, 2, s38")
    A(f"v_mov_b32 v14, {L_CNT + 8}")
    A("v_mov_b32 v15, 1")
    A("s_mov_b64 exec, 0xff")
    A("ds_write_b32 v9, v8")
    A("s_mov_b64 exec, 1")
    A("ds_add_u32 v14, v15")
    A("s_mov_b64 exec, -1")
    A.label("L_s_cw")
    A("ds_read_b32 v15, v14")
    A("s_waitcnt lgkmcnt(0)")
    A("v_readfirstlane_b32 s38, v15")
    A("s_nop 1")
    A("s_cmp_ge_u32 s38, 4")
    A("s_cbranch_scc1 L_s_cgo")
    spin_guard(A, "L_s_cgo")
    A("s_sleep 1")
    A("s_branch L_s_cw")
    A.label("L_s_cgo")
    stamp(A, 3, ST)
    A("v_and_b32 v9, 31, v2")
    A("v_lshlrev_b32 v9, 2, v9")
    A(f"v_add_u32 v9, {L_CND}, v9")
    A(f"v_mov_b32 v15, {L_CND}")
    A("ds_read_b32 v14, v9")
    for i in range(8):
        A(f"ds_read_b128 {v(KY+4*i,4)}, v15 offset:{16*i}")
    A("v_mov_b32 v12, 0")
    A("s_waitcnt lgkmcnt(0)")
    for i0 in range(0, 32, 2):
        for i in range(2):
            A(f"v_cmp_gt_u32 s[{48+2*i}:{49+2*i}], {v(KY+i0+i)}, v14")
        A("s_nop 0")
        for i in range(2):
            A(f"v_addc_co_u32 v12, vcc, 0, v12, s[{48+2*i}:{49+2*i}]")
    A("v_lshlrev_b32 v12, 2, v12")
    A("s_mov_b32 exec_hi, 0")
    A("ds_permute_b32 v13, v12, v14")
    A("s_mov_b64 exec, -1")
    A("v_and_b32 v12, 7, v2")
    A("v_lshlrev_b32 v12, 2, v12")
    A("s_waitcnt lgkmcnt(0)")
    A("ds_bpermute_b32 v8, v12, v13")
    A("s_waitcnt lgkmcnt(0)")
    A(f"s_or_b32 s38, s2, s{sWV}")
    A("s_cbranch_scc1 L_s_noep")
    A("s_mov_b64 exec, 1")
    A(f"s_mov_b32 s38, {WS_EPOCH}")
    A(f"v_mov_b32 v13, s{sTAG}")
    A("v_mov_b32 v9, 0")
    A(f"buffer_store_dword v13, v9, {s(sW,4)}, s38 offen")
    A("s_mov_b64 exec, -1")
    A.label("L_s_noep")
    A("v_and_b32 v9, 0x7ff, v8")
    A("v_sub_u32 v9, 2047, v9")
    A("v_lshlrev_b32 v9, 11, v9")
    A("v_lshl_add_u32 v9, v10, 4, v9")
    A("s_lshl_b32 s38, s44, 1")
    A("s_and_b32 s38, s38, 2047")
    XF = 64
    for ks in range(2):
        A(f"buffer_load_dwordx4 {v(XF+4*ks,4)}, v9, {s(sX,4)}, s38 offen offset:{64*ks}")
    stamp(A, 4, ST)
    A("s_waitcnt vmcnt(0)")
    stamp(A, 5, ST)
    CPF = opt.get("cpf", 1)
    if opt.get("codepf", 1):
        A(f"buffer_load_dwordx4 v[56:59], v3, {s(sPC,4)}, s59 offen")
    A("s_cmp_ge_u32 s2, 224")
    A("s_cbranch_scc1 L_s_gudone")
    WF = 100
    for gu in range(2):
        for nt in range(4):
            for ks in range(2):
                for rd in range(2):
                    A(f"ds_read_b64_tr_b16 {v(WF + ((gu*4+nt)*2+ks)*4 + 2*rd, 2)}, {v(16+nt)} offset:{gu*8192 + ks*4096 + rd*512}")
        A("s_waitcnt lgkmcnt(0)")
    OC = 24
    for ks in range(2):
        for gu in range(2):
            for nt in range(4):
                o = OC + (gu * 4 + nt) * 4
                A(f"v_mfma_f32_16x16x32_bf16 {v(o,4)}, {v(WF+((gu*4+nt)*2+ks)*4,4)}, {v(XF+4*ks,4)}, {'0' if ks == 0 else v(o,4)}")
    A("v_add_u32 v13, s46, v3")
    A(f"v_mov_b32 v14, {L_CNT}")
    A("v_mov_b32 v15, 1")
    A("s_nop 7")
    for t in range(8):
        A(f"ds_write_b128 v13, {v(OC+4*t,4)} offset:{1024*t}")
    A("s_waitcnt lgkmcnt(0)")
    A("s_mov_b64 exec, 1")
    A("ds_add_rtn_u32 v15, v14, v15")
    A("s_mov_b64 exec, -1")
    A("s_waitcnt lgkmcnt(0)")
    A("v_readfirstlane_b32 s47, v15")
    A("s_nop 1")
    A("s_cmp_lg_u32 s47, 3")
    A("s_cbranch_scc1 L_s_gudone")
    A(f"v_add_u32 v13, {L_W}, v3")
    for w in range(4):
        for t in range(8):
            A(f"ds_read_b128 {v(WF+(w*8+t)*4,4)}, v13 offset:{w*16384 + 1024*t}")
        if w & 1: A("s_waitcnt lgkmcnt(0)")
    for r in range(0, 32, 2):
        A(pk_add(WF + r, WF + r, WF + 32 + r))
        A(pk_add(WF + 64 + r, WF + 64 + r, WF + 96 + r))
        A(pk_add(WF + r, WF + r, WF + 64 + r))
    A("v_mul_u32_u24 v13, 14336, v11")
    A("v_lshl_add_u32 v13, v10, 4, v13")
    A(f"s_mul_i32 s38, s{sKQ}, {2*8*14336}")
    A(f"s_lshl_b32 s39, s{sCS}, 8")
    A("s_add_u32 s38, s38, s39")
    A(f"s_add_u32 s38, s38, {WS_GU}")
    A(f"s_add_u32 s39, s38, {8*14336}")
    A("v_cmp_gt_u32 vcc, 8, v11")
    A("s_nop 1")
    A("s_mov_b64 exec, vcc")
    for gu in range(2):
        for nt in range(4):
            A(f"buffer_store_dwordx4 {v(WF+(gu*4+nt)*4,4)}, v13, {s(sW,4)}, s{38+gu} offen offset:{64*nt} sc1")
    A("s_mov_b64 exec, -1")
    A.label("L_s_gudone")
    stamp(A, 6, ST)
    S.bar(18)
    A(f"v_lshlrev_b32 v9, 2, v2")
    A(f"v_add_u32 v9, {L_TOP}, v9")
    A("s_mov_b64 exec, 0xff")
    A("ds_write_b32 v9, v8")
    A("s_mov_b64 exec, -1")
    CB = opt.get("s_cons", 30)
    A(f"s_mov_b32 s59, {CB - S.nb}")
    A("s_cmp_ge_u32 s2, 224")
    A("s_cbranch_scc1 L_s_cons")
    S.bar()
    A("s_cmp_lg_u32 s47, 3")
    A("s_cbranch_scc1 L_s_nogf")
    A("s_waitcnt vmcnt(0)")
    A(f"s_lshl_b32 s38, s{sCS}, {FSH+2}")
    A(f"s_lshl_b32 s39, s{sKQ}, {FSH}")
    A("s_add_u32 s38, s38, s39")
    A(f"s_add_u32 s38, s38, {WS_GF}")
    A(f"v_mov_b32 v13, s{sTAG}")
    A("v_lshlrev_b32 v14, 2, v2")
    flag_store(A, 13, 14, sW, 38)
    A.label("L_s_nogf")
    A("s_lshr_b32 s58, s2, 3")
    A(f"s_and_b32 s58, s58, {opt.get('d_stag', 1)}")
    NFIX = 8
    A("s_sub_u32 s59, s59, s58")
    A(f"s_sub_u32 s59, s59, {NFIX}")
    dyn_bars(A, 58, "s_pre")
    A(f"s_lshl_b32 s38, s{sCS}, 17")
    A(f"s_lshl_b32 s39, s{sKQ}, 9")
    A("s_add_u32 s38, s38, s39")
    A(f"s_lshl_b32 s39, s{sWV}, 7")
    A("s_add_u32 s38, s38, s39")
    for i in range(8):
        A(f"s_add_u32 m0, s46, {8192 + 1024*i}")
        A("s_nop 0")
        A(f"buffer_load_dwordx4 v5, {s(sWD,4)}, s38 offen lds {opt.get('wflag','')}")
        A(f"s_add_u32 s38, s38, {8*2048}")
    A("s_barrier")
    A(f"s_lshl_b32 s56, s{sCS}, {FSH+2}")
    A(f"s_add_u32 s56, s56, {WS_GF}")
    A("v_and_b32 v13, 3, v2")
    A(f"v_lshlrev_b32 v13, {FSH}, v13")
    A(f"buffer_load_dword v14, v13, {s(sW,4)}, s56 offen sc1")
    A("v_and_b32 v1, 255, v0")
    A("v_lshrrev_b32 v6, 5, v1")
    A("v_and_b32 v7, 31, v1")
    A("v_mul_u32_u24 v9, 14336, v6")
    A("v_lshl_add_u32 v9, v7, 3, v9")
    A("s_barrier")
    A.label("L_s_gpoll")
    A("s_waitcnt vmcnt(0)")
    A(f"v_cmp_ne_u32 vcc, s{sTAG}, v14")
    A("s_nop 1")
    A("s_cmp_eq_u64 vcc, 0")
    A("s_cbranch_scc1 L_s_ggo")
    spin_guard(A, "L_s_ggo")
    A("s_sleep 4")
    A(f"buffer_load_dword v14, v13, {s(sW,4)}, s56 offen sc1")
    A("s_branch L_s_gpoll")
    A.label("L_s_ggo")
    stamp(A, 7, ST)
    A(f"s_lshl_b32 s38, s{sCS}, 8")
    A(f"s_add_u32 s38, s38, {WS_GU}")
    PL = 24
    for kq in range(4):
        for gu in range(2):
            A(f"buffer_load_dwordx2 {v(PL + 4*kq + 2*gu, 2)}, v9, {s(sW,4)}, s38 offen sc1")
            A(f"s_add_u32 s38, s38, {8*14336}")
    A("s_barrier"); A("s_barrier")
    A("s_waitcnt vmcnt(0)")
    for e in range(4):
        A(f"v_add_f32 {v(PL+e)}, {v(PL+e)}, {v(PL+4+e)}")
        A(f"v_add_f32 {v(PL+8+e)}, {v(PL+8+e)}, {v(PL+12+e)}")
        A(f"v_add_f32 {v(PL+e)}, {v(PL+e)}, {v(PL+8+e)}")
        rnd_bf16(A, PL + e, PL + e)
    for e in range(2):
        sigmoid(A, 40 + e, PL + e)
        A(f"v_mul_f32 {v(40+e)}, {v(40+e)}, {v(PL+e)}")
        rnd_bf16(A, 40 + e, 40 + e)
        A(f"v_mul_f32 {v(40+e)}, {v(40+e)}, {v(PL+2+e)}")
    A("v_cvt_pk_bf16_f32 v40, v40, v41")
    A("v_mul_u32_u24 v9, 144, v6")
    A("v_lshl_add_u32 v9, v7, 2, v9")
    A(f"v_add_u32 v9, {L_ACT}, v9")
    A("ds_write_b32 v9, v40")
    A("v_and_b32 v9, 7, v2")
    A("v_mul_u32_u24 v9, 144, v9")
    A("v_lshl_add_u32 v9, v10, 4, v9")
    A(f"v_add_u32 v9, {L_ACT}, v9")
    WF = 64
    for nt in range(4):
        for ks in range(2):
            for rd in range(2):
                A(f"ds_read_b64_tr_b16 {v(WF + (nt*2+ks)*4 + 2*rd, 2)}, {v(16+nt)} offset:{8192 + ks*4096 + rd*512}")
    A("s_waitcnt lgkmcnt(0)")
    A("s_barrier")
    A("ds_read_b128 v[40:43], v9")
    A("ds_read_b128 v[44:47], v9 offset:64")
    A(f"s_mov_b32 s38, {56*4096}")
    A("v_mul_lo_u32 v15, v11, s38")
    A("v_lshl_add_u32 v15, v10, 4, v15")
    A(f"s_lshl_b32 s38, s{sCS}, 12")
    A(f"s_lshl_b32 s39, s{sKQ}, 10")
    A("s_add_u32 s38, s38, s39")
    A(f"s_lshl_b32 s39, s{sWV}, 8")
    A("s_add_u32 s38, s38, s39")
    A(f"s_add_u32 s38, s38, {WS_YP}")
    A("v_cmp_gt_u32 vcc, 8, v11")
    A("s_waitcnt lgkmcnt(0)")
    for ks in range(2):
        for nt in range(4):
            A(f"v_mfma_f32_16x16x32_bf16 {v(48+4*nt,4)}, {v(WF+(nt*2+ks)*4,4)}, {v(40+4*ks,4)}, {'0' if ks == 0 else v(48+4*nt,4)}")
    A("s_nop 7")
    A("s_mov_b64 exec, vcc")
    for nt in range(4):
        A(f"buffer_store_dwordx4 {v(48+4*nt,4)}, v15, {s(sW,4)}, s38 offen offset:{64*nt} sc1")
    A("s_mov_b64 exec, -1")
    A(f"s_lshl_b32 s38, s{sKQ}, {FSH+6}")
    A(f"s_lshl_b32 s39, s{sCS}, {FSH}")
    A("s_add_u32 s38, s38, s39")
    A(f"s_add_u32 s38, s38, {WS_YF}")
    A(f"v_mov_b32 v13, s{sTAG}")
    A("v_lshlrev_b32 v14, 2, v2")
    A("s_barrier")
    A("s_waitcnt vmcnt(0)")
    A("s_barrier")
    A(f"s_cmp_lg_u32 s{sWV}, 0")
    A("s_cbranch_scc1 L_s_cons")
    flag_store(A, 13, 14, sW, 38)
    A.label("L_s_cons")
    stamp(A, 8, ST)
    A(f"s_add_u32 s38, s{sWV}, 4")
    A(f"v_readlane_b32 s24, v8, s{sWV}")
    A(f"v_readlane_b32 s25, v8, s38")
    A(f"s_lshl_b32 s45, s{sRB}, 7")
    for t in range(2):
        A(f"s_and_b32 s{26+t}, s{24+t}, 0x7ff")
        A(f"s_sub_u32 s{26+t}, 2047, s{26+t}")
        A(f"s_sub_u32 s{56+t}, s{26+t}, s45")
    A("s_waitcnt lgkmcnt(0)")
    A("s_min_u32 s38, s56, s57")
    A("s_cmp_ge_u32 s38, 128")
    A("s_cbranch_scc1 L_s_end")
    dyn_bars(A, 59, "s_cb")
    S.nb = CB
    A(f"s_lshr_b32 s58, s{sDB}, 2")
    A(f"s_lshl_b32 s58, s58, {FSH+6}")
    A(f"s_add_u32 s58, s58, {WS_YF}")
    A("v_min_u32 v4, 55, v2")
    A(f"v_lshlrev_b32 v4, {FSH}, v4")
    A(f"buffer_load_dword v5, v4, {s(sW,4)}, s58 offen sc1")
    A("v_lshlrev_b32 v6, 12, v10")
    A("v_lshl_add_u32 v6, v11, 4, v6")
    A("v_lshlrev_b32 v9, 3, v11")
    A("v_mov_b32 v7, 0")
    S.bar()
    A.label("L_s_ypoll")
    A("s_waitcnt vmcnt(0)")
    A(f"v_cmp_ne_u32 vcc, s{sTAG}, v5")
    A("s_nop 1")
    A("s_cmp_eq_u64 vcc, 0")
    A("s_cbranch_scc1 L_s_ygo")
    spin_guard(A, "L_s_ygo")
    A("s_sleep 4")
    A(f"buffer_load_dword v5, v4, {s(sW,4)}, s58 offen sc1")
    A("s_branch L_s_ypoll")
    A.label("L_s_ygo")
    stamp(A, 9, ST)
    for t in range(2):
        Y = 20 + 64 * t
        A(f"s_cmp_ge_u32 s{56+t}, 128")
        A(f"s_cbranch_scc1 L_s_sk{t}")
        A(f"s_add_u32 s39, s{sWV}, {4*t}")
        A(f"s_mul_i32 s39, s39, {56*4096}")
        A(f"s_lshl_b32 s3, s{sDB}, 8")
        A("s_add_u32 s39, s39, s3")
        A(f"s_add_u32 s39, s39, {WS_YP}")
        for it in range(14):
            A(f"buffer_load_dwordx4 {v(Y+4*it,4)}, v6, {s(sW,4)}, s39 offen sc1")
            A("s_add_u32 s39, s39, 16384")
        A(f"s_lshl_b32 s39, s{26+t}, 11")
        A(f"s_lshl_b32 s3, s{sDB}, 7")
        A("s_add_u32 s39, s39, s3")
        A(f"buffer_load_dwordx2 {v(Y+56,2)}, v9, {s(sX,4)}, s39 offen")
        A(f"s_lshl_b32 s39, s{26+t}, 3")
        A(f"s_add_u32 s39, s39, {WS_G}")
        A(f"buffer_load_dword {v(Y+58)}, v7, {s(sW,4)}, s39 offen sc1")
        A.label(f"L_s_sk{t}")
    S.bar(33)
    A("s_waitcnt vmcnt(0)")
    for t in range(2):
        Y = 20 + 64 * t
        A(f"s_cmp_ge_u32 s{56+t}, 128")
        A(f"s_cbranch_scc1 L_s_sc{t}")
        A(f"s_ashr_i32 s39, s{24+t}, 31")
        A("s_not_b32 s39, s39")
        A("s_or_b32 s39, s39, 0x80000000")
        A(f"s_xor_b32 s39, s{24+t}, s39")
        A("s_and_b32 s39, s39, 0xffff0000")
        A(f"v_mov_b32 {v(Y+62)}, s39")
        sigmoid(A, Y + 59, Y + 62)
        rnd_bf16(A, Y + 59, Y + 59)
        for it in range(1, 14):
            A(pk_add(Y, Y, Y + 4 * it))
            A(pk_add(Y + 2, Y + 2, Y + 4 * it + 2))
        xsum_groups(A, [Y + e for e in range(4)], [Y + 4 + e for e in range(4)])
        A(f"v_sub_f32 {v(Y+58)}, 1.0, {v(Y+58)}")
        rnd_bf16(A, Y + 58, Y + 58)
        A(f"v_lshlrev_b32 {v(Y+8)}, 16, {v(Y+56)}")
        A(f"v_and_b32 {v(Y+9)}, s21, {v(Y+56)}")
        A(f"v_lshlrev_b32 {v(Y+10)}, 16, {v(Y+57)}")
        A(f"v_and_b32 {v(Y+11)}, s21, {v(Y+57)}")
        for e in range(4):
            rnd_bf16(A, Y + e, Y + e)
            A(f"v_mul_f32 {v(Y+e)}, {v(Y+e)}, {v(Y+59)}")
            rnd_bf16(A, Y + e, Y + e)
            A(f"v_add_f32 {v(Y+e)}, {v(Y+e)}, {v(Y+8+e)}")
            rnd_bf16(A, Y + e, Y + e)
            A(f"v_mul_f32 {v(Y+e)}, {v(Y+e)}, {v(Y+58)}")
            rnd_bf16(A, Y + e, Y + e)
            A(f"v_mul_f32 {v(Y+8+e)}, {v(Y+8+e)}, {v(Y+58)}")
            rnd_bf16(A, Y + 8 + e, Y + 8 + e)
            A(f"v_sub_f32 {v(Y+e)}, {v(Y+e)}, {v(Y+8+e)}")
        A(f"s_lshl_b32 s39, s{sWV}, 8")
        A(f"s_add_u32 s39, s39, {L_DEL + 1024*t}")
        A(f"v_lshl_add_u32 {v(Y+60)}, v11, 4, s39")
        A(f"ds_write_b128 {v(Y+60)}, {v(Y,4)}")
        A.label(f"L_s_sc{t}")
    A("s_waitcnt lgkmcnt(0)")
    S.bar(34)
    A.label("L_s_end")
    stamp_out(A, ST, sW, sWV, 1)
    A("s_endpgm")
```

```python
import sys, json
from common import *
import gemm, side

NAME = "gated_mix__ssm_conv_s5__moe_arch_mod__prompt"
HDR = open(f"/code/{NAME}.s.ref").read().split("; Override launch")[0]

def build(opt):
    A = Asm()
    K = NAME + "_kernel"
    A(f".globl {K}"); A(".p2align 8"); A(f".type {K},@function")
    A.label(K)
    A.label("L_code_start")
    A("v_lshrrev_b32 v1, 6, v0")
    A("s_cmp_ge_u32 s2, 256")
    A("s_cbranch_scc1 L_exit")
    A("v_readfirstlane_b32 s18, v1")
    A(f"s_mov_b32 s{sSPIN}, {1 << 20}")
    A("s_nop 0")
    A("s_cmp_ge_u32 s18, 4")
    A("s_cbranch_scc1 L_exit" if opt.get("noside") else "s_cbranch_scc1 L_side")
    gemm.gen_gemm(A, opt)
    A.label("L_exit")
    A("s_endpgm")
    side.gen_side(A, opt)
    A.label("L_code_end")
    probs = check_hazards(A.lines)
    for p in probs: print("HAZARD", p, file=sys.stderr)
    txt = HDR + "; @launch grid=(256,1,1) block=(512,1,1) lds=163840\n"
    txt += '.amdgcn_target "amdgcn-amd-amdhsa--gfx950"\n.text\n' + A.text()
    txt += f""".section .rodata,"a"
.p2align 6
.amdhsa_kernel {K}
  .amdhsa_next_free_vgpr 256
  .amdhsa_next_free_sgpr 98
  .amdhsa_accum_offset 256
  .amdhsa_group_segment_fixed_size 0
  .amdhsa_kernarg_size 144
  .amdhsa_user_sgpr_count 2
  .amdhsa_user_sgpr_kernarg_segment_ptr 1
  .amdhsa_system_sgpr_workgroup_id_x 1
  .amdhsa_float_denorm_mode_32 3
.end_amdhsa_kernel
"""
    return txt

if __name__ == "__main__":
    opt = json.loads(sys.argv[2]) if len(sys.argv) > 2 else {}
    open(sys.argv[1], "w").write(build(opt))
```

```python
from asmlib import *

WS_H     = 0
WS_AGG   = 8 << 20
WS_KEY   = 9 << 20
WS_G     = WS_KEY + 16384
WS_EPOCH = WS_KEY + 32768
FSH = 8
WS_HF    = WS_KEY + 65536
WS_GF    = WS_KEY + 131072
WS_YF    = WS_KEY + 196608
WS_HL    = WS_KEY + 262144
WS_XC    = WS_KEY + 327680
WS_GU    = 10 << 20
WS_STAMP = 12 << 20
WS_YP    = 13 << 20
WS_H2    = 16 << 20
WS_USED  = 24 << 20

LOG2E = 0x3fb8aa3b
INV2PI = 0x3e22f983
sTAG = 93

def srd(A, d, lo, hi, size, bias=0):
    if bias:
        A(f"s_sub_u32 s{d}, s{lo}, {bias}")
        A(f"s_subb_u32 s{d+1}, s{hi}, 0")
    else:
        if d != lo: A(f"s_mov_b32 s{d}, s{lo}")
        if d + 1 != hi: A(f"s_mov_b32 s{d+1}, s{hi}")
    A(f"s_mov_b32 s{d+2}, {size + bias}")
    A(f"s_mov_b32 s{d+3}, 0x20000")

def load_tag(A, ws_lo, ws_hi):
    A(f"s_add_u32 s94, s{ws_lo}, {WS_EPOCH}")
    A(f"s_addc_u32 s95, s{ws_hi}, 0")
    A(f"s_load_dword s{sTAG}, s[94:95], 0")

def make_tag(A):
    A(f"s_mul_i32 s{sTAG}, s{sTAG}, 1664525")
    A(f"s_add_u32 s{sTAG}, s{sTAG}, 1013904223")

def sigmoid(A, d, x):
    A(f"v_mul_f32 {v(d)}, 0xbfb8aa3b, {v(x)}")
    A(f"v_exp_f32 {v(d)}, {v(d)}")
    A("s_nop 0")
    A(f"v_add_f32 {v(d)}, 1.0, {v(d)}")
    A(f"v_rcp_f32 {v(d)}, {v(d)}")
    A("s_nop 0")

def rnd_bf16(A, d, x):
    A(f"v_cvt_pk_bf16_f32 {v(d)}, {v(x)}, {v(x)}")
    A(f"v_lshlrev_b32 {v(d)}, 16, {v(d)}")

def xsum_groups(A, regs, tmps):
    for sw in ("v_permlane16_swap_b32", "v_permlane32_swap_b32"):
        for r, t in zip(regs, tmps): A(f"v_mov_b32 {v(t)}, {v(r)}")
        A("s_nop 1")
        for r, t in zip(regs, tmps): A(f"{sw} {v(r)}, {v(t)}")
        A("s_nop 1")
        for r, t in zip(regs, tmps): A(f"v_add_f32 {v(r)}, {v(r)}, {v(t)}")

def pk_fma(d, a, asel, b, c, neg=False):
    n = " neg_lo:[1,0,0] neg_hi:[1,0,0]" if neg else ""
    lo, hi = (0, 1) if asel is None else (asel, asel)
    return f"v_pk_fma_f32 {v(d,2)}, {v(a,2)}, {v(b,2)}, {v(c,2)} op_sel:[{lo},0,0] op_sel_hi:[{hi},1,1]{n}"
def pk_mul(d, a, asel, b):
    lo, hi = (0, 1) if asel is None else (asel, asel)
    return f"v_pk_mul_f32 {v(d,2)}, {v(a,2)}, {v(b,2)} op_sel:[{lo},0] op_sel_hi:[{hi},1]"
def pk_add(d, a, b):
    return f"v_pk_add_f32 {v(d,2)}, {v(a,2)}, {v(b,2)}"

def pk_cmul(A, dr, di, ar, ai, asel, br, bi):
    A(pk_mul(dr, ar, asel, br))
    A(pk_mul(di, ar, asel, bi))
    A(pk_fma(dr, ai, asel, bi, dr, neg=True))
    A(pk_fma(di, ai, asel, br, di))
def pk_csq(A, dr, di, ar, ai):
    A(pk_mul(dr, ar, None, ar))
    A(pk_mul(di, ar, None, ai))
    A(pk_fma(dr, ai, None, ai, dr, neg=True))
    A(pk_add(di, di, di))

class Vm:
    def __init__(self): self.ops = []
    def add(self, tag): self.ops.append(tag)
    def need(self, tag):
        idx = max(i for i, t in enumerate(self.ops) if t == tag)
        return min(63, len(self.ops) - 1 - idx)

NSTAMP = 14
def stamp(A, idx, on):
    if not on: return
    assert idx < NSTAMP
    A(f"s_memtime s[{60+2*idx}:{61+2*idx}]")
    if idx == 0: A("s_memrealtime s[90:91]")

def stamp_out(A, on, sW, sWV, region):
    if not on: return
    A("s_mov_b64 exec, -1")
    A("s_waitcnt lgkmcnt(0) vmcnt(0)")
    A(f"s_memtime s[{60+2*(NSTAMP-1)}:{61+2*(NSTAMP-1)}]")
    A("s_memrealtime s[88:89]")
    A("s_waitcnt lgkmcnt(0)")
    for i in range(NSTAMP):
        A(f"v_mov_b32 {v(100+i)}, s{60+2*i}")
    A(f"v_mov_b32 {v(114)}, s88")
    A(f"v_mov_b32 {v(115)}, s90")
    A(f"s_lshl_b32 s38, s2, 2")
    A(f"s_add_u32 s38, s38, s{sWV}")
    A(f"s_lshl_b32 s38, s38, 6")
    A(f"s_add_u32 s38, s38, {WS_STAMP + 65536 * region}")
    A(f"v_mov_b32 v99, 0")
    A("s_mov_b64 exec, 1")
    for i in range(4):
        A(f"buffer_store_dwordx4 {v(100+4*i,4)}, v99, {s(sW,4)}, s38 offen offset:{16*i}")

def tile_ids(A, sRB, sCB, amap=False):
    if amap:
        A("s_and_b32 s3, s2, 7")
        A("s_sub_u32 s39, 11, s3")
        A("s_cmp_lt_u32 s3, 4")
        A("s_cselect_b32 s3, s3, s39")
        A("s_lshr_b32 s38, s2, 3")
        A(f"s_lshl_b32 s{sRB}, s3, 1")
        A("s_and_b32 s39, s38, 1")
        A(f"s_add_u32 s{sRB}, s{sRB}, s39")
        A(f"s_lshr_b32 s{sCB}, s38, 1")
        return
    A("s_and_b32 s3, s2, 7")
    A("s_lshr_b32 s39, s3, 2")
    A("s_lshl_b32 s39, s39, 1")
    A("s_xor_b32 s3, s3, s39")
    A("s_lshr_b32 s38, s2, 3")
    A(f"s_lshr_b32 s{sRB}, s3, 1")
    A(f"s_lshl_b32 s{sRB}, s{sRB}, 2")
    A("s_and_b32 s39, s38, 3")
    A(f"s_add_u32 s{sRB}, s{sRB}, s39")
    A(f"s_and_b32 s{sCB}, s3, 1")
    A(f"s_lshl_b32 s{sCB}, s{sCB}, 3")
    A("s_lshr_b32 s39, s38, 2")
    A(f"s_add_u32 s{sCB}, s{sCB}, s39")

NSLOT = 6
L_EX  = 32768
L_TR  = 36864
L_CNT = 73728
C_GU, C_HL, C_CND, C_HF, C_ST, C_ACT, C_Y, C_H2, C_TOP, C_DF, C_TR, C_GO, C_LB = 0, 4, 8, 12, 16, 20, 24, 28, 32, 36, 68, 72, 76
L_CND = L_CNT + 128
L_TOP = L_CNT + 256
L_ACT = L_CNT + 512
L_DEL = L_CNT + 2048
L_W   = 98304
L_RT  = 65536
L_SCR = L_W - 512

def lds_wait(A, vaddr, vtmp, off, target, name, sleep=1):
    A.label(f"L_{name}")
    A(f"ds_read_b32 {v(vtmp)}, {v(vaddr)} offset:{off}")
    A("s_waitcnt lgkmcnt(0)")
    A(f"v_readfirstlane_b32 s38, {v(vtmp)}")
    A("s_nop 1")
    A(f"s_cmp_ge_u32 s38, {target}")
    A(f"s_cbranch_scc1 L_{name}_ok")
    spin_guard(A, f"L_{name}_ok")
    A(f"s_sleep {sleep}")
    A(f"s_branch L_{name}")
    A.label(f"L_{name}_ok")

def lds_add(A, vaddr, vone, off):
    A("s_mov_b64 exec, 1")
    A(f"ds_add_u32 {v(vaddr)}, {v(vone)} offset:{off}")
    A("s_mov_b64 exec, -1")

def lds_arrive_last(A, vaddr, vtmp, off, skip):
    A(f"v_mov_b32 {v(vtmp)}, 1")
    A("s_mov_b64 exec, 1")
    A(f"ds_add_rtn_u32 {v(vtmp)}, {v(vaddr)}, {v(vtmp)} offset:{off}")
    A("s_mov_b64 exec, -1")
    A("s_waitcnt lgkmcnt(0)")
    A(f"v_readfirstlane_b32 s39, {v(vtmp)}")
    A("s_nop 1")
    A("s_cmp_lg_u32 s39, 3")
    A(f"s_cbranch_scc1 {skip}")

sSPIN = 96
def spin_guard(A, out_label):
    A(f"s_sub_u32 s{sSPIN}, s{sSPIN}, 1")
    A(f"s_cbranch_scc1 {out_label}")

def flag_store(A, vtag, voff, sW, soff, fl="sc1"):
    A("s_mov_b32 exec_hi, 0")
    A(f"buffer_store_dword {v(vtag)}, {v(voff)}, {s(sW,4)}, s{soff} offen {fl}")
    A("s_mov_b32 exec_hi, -1")

def lincomb(E, sRB, sCB, dst, co):
    if not any(co):
        E(f"s_mov_b32 s{dst}, 0"); return
    if len(co) == 3:
        E(f"s_lshr_b32 s38, s{sRB}, 1")
        E(f"s_mul_i32 s{dst}, s38, {co[0]}")
        E(f"s_and_b32 s38, s{sRB}, 1")
        E(f"s_mul_i32 s38, s38, {co[1]}")
        E(f"s_add_u32 s{dst}, s{dst}, s38")
        E(f"s_mul_i32 s38, s{sCB}, {co[2]}")
        E(f"s_add_u32 s{dst}, s{dst}, s38")
        return
    cg, ce, cr, cc_ = co
    E(f"s_lshr_b32 s38, s{sRB}, 2")
    E(f"s_mul_i32 s{dst}, s38, {cg}")
    E(f"s_lshr_b32 s38, s{sCB}, 3")
    E(f"s_mul_i32 s38, s38, {ce}")
    E(f"s_add_u32 s{dst}, s{dst}, s38")
    E(f"s_and_b32 s38, s{sRB}, 3")
    E(f"s_mul_i32 s38, s38, {cr}")
    E(f"s_add_u32 s{dst}, s{dst}, s38")
    E(f"s_and_b32 s38, s{sCB}, 7")
    E(f"s_mul_i32 s38, s38, {cc_}")
    E(f"s_add_u32 s{dst}, s{dst}, s38")
```

```python
from common import *

def gen_gemm(A, opt, part):
    ST = opt.get("stamps")
    AM = opt.get("amap")
    sX, sB, sW, sAG, sC, sO = 4, 8, 12, 24, 28, 32
    sRB, sCB, sWV, sWM, sWN, sK, sROT, sLW = 16, 17, 18, 19, 20, 21, 22, 23
    vDA, vDB = 8, 12
    vRA, vRB, vRA2, vRB2 = 16, 18, 20, 22
    vLane, vGq, vL15, vAgO = 24, 25, 26, 27
    Lr, Li, Cr, Ci, L8r, L8i, L16r, L16i, L512r, L512i, Fr, Fi, Wr, Wi = [28 + 2 * i for i in range(14)]
    vT = 56
    ACC = 64
    FX, FY = 128, 160
    UI = FX
    EP = 192
    ea, eb, la, wa, ra, ga = [EP + i for i in range(6)]
    XT, vDC, VS = EP + 6, EP + 10, EP + 14
    PT = 224
    def acc(m, part, c2): return ACC + 4 * (m * 4 + part * 2 + c2)

    RX, RW, RD = PT, PT + 16, 12
    if part == "early":
        A(f"v_and_b32 {v(vL15)}, 15, v0")
        A(f"v_bfe_u32 v4, v0, 7, 1")
        A(f"v_lshl_add_u32 v4, v4, 5, {v(vL15)}")
        A(f"s_lshl_b32 s39, s{sCB}, 6")
        A(f"v_add_lshl_u32 {v(PT+31)}, s39, v4, 1")
        A("s_waitcnt lgkmcnt(0)")
        for c2 in range(2):
            A(f"global_load_ushort {v(PT+c2)}, {v(PT+31)}, s[64:65] offset:{32*c2}")
            A(f"global_load_ushort {v(PT+2+c2)}, {v(PT+31)}, s[66:67] offset:{32*c2}")
            A(f"global_load_ushort {v(PT+4+c2)}, {v(PT+31)}, s[76:77] offset:{32*c2}")
        A("s_branch L_gemm")
        return
    A.label("L_gemm")
    load_tag(A, 42, 43)
    A(f"s_lshr_b32 s{sWN}, s{sWV}, 1")
    A("s_lshl_b32 s50, s3, 8")
    A("s_lshl_b32 s39, s38, 3")
    A("s_add_u32 s50, s50, s39")
    A("s_lshl_b32 s50, s50, 11")
    A(f"s_lshl_b32 s51, s{sWV}, 9")
    A("s_add_u32 s50, s50, s51")
    A(f"s_lshl_b32 s39, s{sWV}, 14")
    A(f"s_add_u32 m0, s39, {L_W}")
    A("v_and_b32 v4, 31, v0")
    A("v_lshlrev_b32 v4, 4, v4")
    A("v_bfe_u32 v5, v0, 5, 1")
    A("v_lshl_add_u32 v5, v5, 11, v4")
    A("v_add_u32 v4, s51, v4")
    A("v_mov_b32 v6, s44")
    A("v_mov_b32 v7, s45")
    A("s_mov_b32 exec_lo, 0")
    A("v_mov_b32 v6, s80")
    A("v_mov_b32 v7, s81")
    A("s_mov_b32 exec_lo, -1")
    A("v_add_co_u32 v6, vcc, v6, v4")
    srd(A, sX, 40, 41, 4194304)
    A("v_addc_co_u32 v7, vcc, 0, v7, vcc")
    for i in range(4):
        A(f"buffer_load_dwordx4 v5, {s(sX,4)}, s50 offen lds")
        A("s_add_u32 m0, m0, 1024")
        A("s_add_u32 s50, s50, 4096")
    A("global_load_lds_dwordx4 v[6:7], off")
    if opt.get("bwarm", 1):
        if AM:
            A("s_lshl_b32 s50, s3, 7")
        else:
            A("s_and_b32 s39, s3, 1")
            A("s_lshl_b32 s50, s39, 9")
            A("s_lshr_b32 s39, s3, 1")
            A("s_lshl_b32 s39, s39, 7")
            A("s_add_u32 s50, s50, s39")
        A("s_lshl_b32 s39, s38, 2")
        A("s_add_u32 s50, s50, s39")
        A(f"s_add_u32 s50, s50, s{sWV}")
        A("s_lshl_b32 s50, s50, 11")
        A("v_and_b32 v4, 63, v0")
        A("v_lshl_add_u32 v3, v4, 5, s50")
        A("global_load_dword v10, v3, s[68:69]")
        A("global_load_dword v11, v3, s[70:71]")
        A("s_mov_b64 s[8:9], s[72:73]")
        A("s_mov_b64 s[10:11], s[74:75]")
    A("s_mov_b64 s[52:53], s[72:73]")
    A("s_mov_b64 s[54:55], s[74:75]")
    A("s_mov_b64 s[58:59], s[78:79]")
    A("s_mov_b64 s[36:37], s[82:83]")
    stamp(A, 5, opt.get("p0st"))
    A(f"v_and_b32 {v(vLane)}, 63, v0")
    A(f"s_and_b32 s{sWM}, s{sWV}, 1")
    A(f"s_lshl_b32 s{sLW}, s{sWV}, 12")
    A(f"v_lshrrev_b32 {v(vGq)}, 4, {v(vLane)}")
    rr, cc, t1, t2 = vT, vT + 1, vT + 2, vT + 3
    A(f"v_lshrrev_b32 {v(rr)}, 3, {v(vLane)}")
    A(f"v_and_b32 {v(cc)}, 7, {v(vLane)}")
    A(f"v_lshrrev_b32 {v(t1)}, 1, {v(rr)}")
    A(f"v_xor_b32 {v(cc)}, {v(cc)}, {v(t1)}")
    A(f"v_lshlrev_b32 {v(cc)}, 4, {v(cc)}")
    def emit(ls):
        for l in ls: A(l)
    srd(A, sW, 42, 43, WS_USED)
    A(f"s_lshl_b32 s38, s{sCB}, 14")
    A(f"s_add_u32 s38, s38, {WS_AGG}")
    A(f"s_add_u32 s{sAG}, s42, s38")
    A(f"s_addc_u32 s{sAG+1}, s43, 0")
    A(f"s_mov_b32 s{sAG+2}, 16384")
    A(f"s_mov_b32 s{sAG+3}, 0x20000")
    A(f"s_cmp_lt_u32 s{sWV}, 2")
    A(f"s_cselect_b32 s{sC}, s52, s54")
    A(f"s_cselect_b32 s{sC+1}, s53, s55")
    srd(A, sC, sC, sC + 1, 2097152, bias=3072)
    srd(A, sO, 36, 37, 8388608)
    A(f"v_bfe_u32 {v(t2)}, {v(vLane)}, 1, 3")
    A(f"v_xor_b32 {v(t2)}, {v(t2)}, {v(vGq)}")
    A(f"v_lshlrev_b32 {v(t2)}, 4, {v(t2)}")
    A(f"v_lshl_add_u32 {v(t2)}, {v(vL15)}, 7, {v(t2)}")
    A(f"s_lshl_b32 s38, s{sWM}, 13")
    A(f"s_lshl_b32 s39, s{sWN}, 13")
    for kk in range(2):
        A(f"v_xor_b32 {v(t1)}, {64*kk}, {v(t2)}")
        A(f"v_add_u32 {v(vRA+kk)}, s38, {v(t1)}")
        A(f"v_add_u32 {v(vRB+kk)}, s39, {v(t1)}")
        A(f"v_add_u32 {v(vRA2+kk)}, 0x10000, {v(vRA+kk)}")
        A(f"v_add_u32 {v(vRB2+kk)}, 0x10000, {v(vRB+kk)}")
    A(f"v_and_b32 {v(t1)}, 31, {v(vLane)}")
    A(f"v_lshlrev_b32 {v(vAgO)}, 4, {v(t1)}")
    A(f"s_sub_u32 s38, 15, s{sRB}")
    A("s_lshl_b32 s38, s38, 10")
    A(f"s_lshl_b32 s39, s{sWN}, 9")
    A("s_add_u32 s92, s38, s39")
    A(f"v_add_u32 {v(vAgO)}, s92, {v(vAgO)}")
    A(f"s_cmp_eq_u32 s{sWM}, 1")
    A("s_cselect_b64 s[98:99], -1, 0")

    def rd_frags(st, kk, F):
        out = []
        for op, (r1, r2) in enumerate(((vRA, vRA2), (vRB, vRB2))):
            off = ((2 * st + op) % NSLOT) * 16384
            base = r1
            if off >= 65536: off -= 65536; base = r2
            for t in range(4):
                out.append(f"ds_read_b128 {v(F + 16*op + 4*t, 4)}, {v(base+kk)} offset:{off + 2048*t}")
        return [out[0], out[4], out[5], out[6], out[7], out[1], out[2], out[3]]
    def mfmas(F, first):
        out = []
        for m in range(4):
            for n in range(4):
                d = ACC + 4 * (m * 4 + n)
                out.append(f"v_mfma_f32_16x16x32_bf16 {v(d,4)}, {v(F+4*m,4)}, {v(F+16+4*n,4)}, {'0' if first else v(d,4)}")
        return out

    B = Asm()
    lre, lim, ldt = PT, PT + 2, PT + 4
    t = PT + 6
    for r in range(6): B(f"v_lshlrev_b32 {v(PT+r)}, 16, {v(PT+r)}")
    for c in range(2):
        B(f"v_mul_f32 {v(t+c)}, {LOG2E}, {v(ldt+c)}")
    for c in range(2): B(f"v_exp_f32 {v(t+c)}, {v(t+c)}")
    B("s_nop 0")
    for c in range(2): rnd_bf16(B, t + c, t + c)
    B(pk_mul(t + 2, t, None, lre))
    B(pk_mul(t + 4, t, None, lim))
    for c in range(2):
        B(f"v_mul_f32 {v(t+2+c)}, {LOG2E}, {v(t+2+c)}")
        B(f"v_mul_f32 {v(t+4+c)}, {INV2PI}, {v(t+4+c)}")
    for c in range(2):
        B(f"v_exp_f32 {v(t+2+c)}, {v(t+2+c)}")
        B(f"v_rndne_f32 {v(t+6+c)}, {v(t+4+c)}")
    for c in range(2): B(f"v_sub_f32 {v(t+4+c)}, {v(t+4+c)}, {v(t+6+c)}")
    for c in range(2):
        B(f"v_cos_f32 {v(t+6+c)}, {v(t+4+c)}")
        B(f"v_sin_f32 {v(t+8+c)}, {v(t+4+c)}")
    B(pk_mul(t + 10, lre, None, lre))
    B(pk_fma(t + 10, lim, None, lim, t + 10))
    B(pk_mul(Lr, t + 2, None, t + 6))
    B(pk_mul(Li, t + 2, None, t + 8))
    for c in range(2): B(f"v_rcp_f32 {v(t+10+c)}, {v(t+10+c)}")
    for c in range(2): B(f"v_add_f32 {v(t+c)}, -1.0, {v(Lr+c)}")
    B(pk_add(t + 10, t + 10, t + 10))
    B(pk_mul(t + 2, t, None, lre))
    B(pk_fma(t + 2, Li, None, lim, t + 2))
    B(pk_mul(t + 4, Li, None, lre))
    B(pk_fma(t + 4, t, None, lim, t + 4, neg=True))
    B(pk_mul(Cr, t + 2, None, t + 10))
    B(pk_mul(Ci, t + 4, None, t + 10))
    a0, a1, b0, b1, c0, c1, d0, d1 = [PT + 2 * i for i in range(8)]
    pk_csq(B, a0, a1, Lr, Li)
    pk_csq(B, b0, b1, a0, a1)
    pk_csq(B, L8r, L8i, b0, b1)
    pk_csq(B, L16r, L16i, L8r, L8i)
    pk_csq(B, a0, a1, L16r, L16i)
    pk_csq(B, b0, b1, a0, a1)
    B(f"v_and_b32 {v(PT+16)}, 1, {v(vGq)}")
    B(f"v_cmp_eq_u32 s[84:85], 1, {v(PT+16)}")
    B(f"v_cmp_lt_u32 s[86:87], 1, {v(vGq)}")
    B("s_nop 0")
    def sel(dr, di, sr, si, mask):
        for c in range(2):
            B(f"v_cndmask_b32 {v(dr+c)}, 1.0, {v(sr+c)}, {mask}")
            B(f"v_cndmask_b32 {v(di+c)}, 0, {v(si+c)}, {mask}")
    e0, e1 = PT + 18, PT + 20
    sel(c0, c1, L16r, L16i, "s[84:85]")
    sel(d0, d1, a0, a1, "s[86:87]")
    pk_cmul(B, e0, e1, c0, c1, None, d0, d1)
    sel(c0, c1, b0, b1, "s[98:99]")
    pk_cmul(B, Wr, Wi, e0, e1, None, c0, c1)
    pk_csq(B, a0, a1, b0, b1)
    pk_csq(B, b0, b1, a0, a1)
    pk_csq(B, L512r, L512i, b0, b1)
    sel(c0, c1, a0, a1, "s[84:85]")
    sel(d0, d1, b0, b1, "s[86:87]")
    pk_cmul(B, Fr, Fi, c0, c1, None, d0, d1)
    for c2 in range(2):
        B(f"v_mov_b32 {v(a0)}, {v(Wr+c2)}")
        B(f"v_mov_b32 {v(a1)}, {v(Wi+c2)}")
        B(f"v_mul_f32 {v(a0+1)}, {v(L8r+c2)}, {v(Wr+c2)}")
        B(f"v_mul_f32 {v(a1+1)}, {v(L8r+c2)}, {v(Wi+c2)}")
        B(f"v_fma_f32 {v(a0+1)}, -{v(L8i+c2)}, {v(Wi+c2)}, {v(a0+1)}")
        B(f"v_fma_f32 {v(a1+1)}, {v(L8i+c2)}, {v(Wr+c2)}, {v(a1+1)}")
        pk_cmul(B, VS + 4 * c2, VS + 4 * c2 + 2, Cr, Ci, c2, a0, a1)
    par = B.lines
    B = Asm()
    B(f"s_lshl_b32 s38, s{sWN}, 8")
    B(f"s_add_u32 s38, s38, {L_EX}")
    B(f"v_lshl_add_u32 {v(eb)}, {v(vL15)}, 4, s38")
    B(f"s_lshl_b32 s39, s{sWM}, 11")
    B(f"v_lshl_add_u32 {v(ea)}, {v(vGq)}, 9, {v(eb)}")
    B(f"v_add_u32 {v(ea)}, s39, {v(ea)}")
    B(f"v_lshlrev_b32 {v(la)}, 10, {v(vGq)}")
    B(f"v_lshl_add_u32 {v(la)}, {v(vL15)}, 4, {v(la)}")
    B("s_add_u32 s38, s92, 1024")
    B(f"v_add_u32 {v(la)}, s38, {v(la)}")
    B(f"v_sub_u32 {v(t1)}, s{sRB}, {v(vGq)}")
    B(f"v_mov_b32 {v(t2)}, s{sTAG}")
    for i in range(4):
        B(f"v_cmp_lt_i32 vcc, {4*i}, {v(t1)}")
        B("s_nop 1")
        B(f"v_cndmask_b32 {v(XT+i)}, 0, {v(t2)}, vcc")
    B(f"s_mul_i32 s38, s{sWV}, 9216")
    B(f"s_add_u32 s38, s38, {L_TR}")
    B(f"v_mul_u32_u24 {v(wa)}, 144, {v(vL15)}")
    B(f"v_lshl_add_u32 {v(wa)}, {v(vGq)}, 5, {v(wa)}")
    B(f"v_add_u32 {v(wa)}, s38, {v(wa)}")
    B(f"v_bfe_u32 {v(ra)}, {v(vLane)}, 2, 2")
    B(f"v_lshl_add_u32 {v(ra)}, {v(vGq)}, 3, {v(ra)}")
    B(f"v_mul_u32_u24 {v(ra)}, 144, {v(ra)}")
    B(f"v_and_b32 {v(t1)}, 3, {v(vLane)}")
    B(f"v_lshl_add_u32 {v(ra)}, {v(t1)}, 3, {v(ra)}")
    B(f"v_add_u32 {v(ra)}, s38, {v(ra)}")
    B(f"v_lshlrev_b32 {v(ga)}, 4, {v(vLane)}")
    B(f"s_lshl_b32 s38, s{sCB}, 6")
    B(f"s_lshl_b32 s39, s{sWM}, 5")
    B("s_add_u32 s38, s38, s39")
    B(f"v_add_u32 {v(t1)}, s38, {v(rr)}")
    B(f"v_lshl_add_u32 {v(t1)}, {v(t1)}, 11, {v(cc)}")
    B(f"v_xor_b32 {v(t2)}, 64, {v(t1)}")
    for q in range(4):
        B(f"v_add_u32 {v(vDC+q)}, {8*2048*q - 1024*q + 3072}, {v(t2 if q & 1 else t1)}")
    sROT2 = 55
    lincomb(B, sRB, sCB, sROT2, opt.get("rot2", [0, 0, 0, 0]))
    sE8 = 54
    B(f"s_and_b32 s{sE8}, s{sCB}, {0 if AM else 8}")
    B(f"s_lshl_b32 s48, s{sRB}, 19")
    B(f"s_lshl_b32 s39, s{sCB}, 15")
    B("s_add_u32 s53, s48, s39")
    B(f"s_lshl_b32 s39, s{sWN}, 11")
    B("s_add_u32 s53, s53, s39")
    B(f"s_lshl_b32 s39, s{sWM}, 14")
    B("s_add_u32 s53, s53, s39")
    sT0, sGB, sXB = 51, 57, 56
    vXo, vGo, vDo = EP + 28, EP + 29, EP + 30
    B(f"s_lshl_b32 s{sT0}, s{sRB}, 7")
    B(f"s_lshl_b32 s38, s{sWV}, 5")
    B(f"s_add_u32 s{sT0}, s{sT0}, s38")
    B(f"s_lshl_b32 s{sGB}, s{sT0}, 3")
    B(f"s_add_u32 s{sGB}, s{sGB}, {WS_G}")
    B(f"s_lshl_b32 s{sXB}, s{sT0}, 11")
    B(f"s_lshl_b32 s39, s{sCB}, 7")
    B(f"s_add_u32 s{sXB}, s{sXB}, s39")
    B(f"v_lshlrev_b32 {v(vXo)}, 11, {v(vGq)}")
    B(f"v_lshl_add_u32 {v(vXo)}, {v(vL15)}, 3, {v(vXo)}")
    B(f"v_and_b32 {v(vGo)}, 31, {v(vLane)}")
    B(f"v_lshlrev_b32 {v(vGo)}, 3, {v(vGo)}")
    B(f"v_lshl_add_u32 {v(vDo)}, {v(vL15)}, 3, s39")
    B("s_getreg_b32 s97, hwreg(HW_REG_XCC_ID, 0, 4)")
    B(f"s_xor_b32 s97, s97, s{sTAG}")
    B(f"s_lshl_b32 s52, s{sRB}, {FSH + 4}")
    B(f"s_add_u32 s52, s52, {WS_XC}")
    B(f"s_lshl_b32 s38, s{sCB}, {FSH}")
    B("s_add_u32 s38, s38, s52")
    B(f"v_mov_b32 {v(t1)}, s97")
    B(f"v_lshlrev_b32 {v(t2)}, 2, {v(vLane)}")
    B(f"v_and_b32 v1, {15 if AM else 7}, {v(vLane)}")
    B(f"v_or_b32 v1, s{sE8}, v1")
    B(f"v_lshlrev_b32 v1, {FSH}, v1")
    B(f"s_cmp_lg_u32 s{sWV}, 0")
    B("s_cbranch_scc1 L_noxc")
    flag_store(B, t1, t2, sW, 38)
    B.label("L_noxc")
    adr = B.lines

    A("s_waitcnt lgkmcnt(0)")
    stamp(A, 6, opt.get("p0st"))
    make_tag(A)
    emit(adr[:-5])
    stamp(A, 7, opt.get("p0st"))
    A(f"s_lshl_b32 s39, s{sWV}, 14")
    A(f"s_add_u32 s39, s39, {L_W}")
    A(f"v_and_b32 v4, 7, {v(vLane)}")
    A("v_lshlrev_b32 v4, 9, v4")
    A(f"v_bfe_u32 v5, {v(vLane)}, 3, 1")
    A("v_lshl_add_u32 v4, v5, 6, v4")
    A(f"v_lshl_add_u32 v4, {v(vGq)}, 4, v4")
    A("v_add_u32 v4, s39, v4")
    A(f"v_and_b32 v7, 1, {v(vLane)}")
    A("v_lshlrev_b32 v5, 9, v7")
    A(f"v_bfe_u32 v6, {v(vLane)}, 1, 1")
    A("v_lshl_add_u32 v5, v6, 6, v5")
    A(f"v_lshl_add_u32 v5, {v(vGq)}, 4, v5")
    A("v_add_u32 v5, s39, v5")
    A(f"v_lshrrev_b32 v6, 1, {v(vGq)}")
    A("v_lshlrev_b32 v6, 6, v6")
    A("v_lshl_add_u32 v6, v7, 5, v6")
    A(f"v_and_b32 v7, 1, {v(vGq)}")
    A("v_lshl_add_u32 v6, v7, 4, v6")
    A(f"s_lshl_b32 s39, s{sWV}, 7")
    A(f"s_add_u32 s39, s39, {L_SCR}")
    A("v_add_u32 v6, s39, v6")
    NPRE = opt.get("par_pre", 999)
    A(f"s_waitcnt vmcnt({7 if opt.get('bwarm', 1) else 5})")
    stamp(A, 8, opt.get("p0st"))
    emit(par); par = []
    RGS = opt.get("rg_st", -1)
    rg1 = []
    for ks in range(4):
        rg1.append(f"ds_read_b128 {v(RX+4*ks,4)}, v4 offset:{128*ks}")
        rg1.append(f"ds_read_b128 {v(RW+4*ks,4)}, v5 offset:{4096 + 128*ks}")
    rg2 = [f"v_mfma_f32_16x16x32_bf16 {v(RD,4)}, {v(RX+4*ks,4)}, {v(RW+4*ks,4)}, {'0' if ks == 0 else v(RD,4)}" for ks in range(4)]
    rg3 = ["s_mov_b32 exec_lo, 0x00030003", "s_mov_b32 exec_hi, 0x000c000c", f"ds_write_b128 v6, {v(RD,4)}", "s_mov_b64 exec, -1"]
    if RGS < 0:
        A(f"s_waitcnt vmcnt({2 if opt.get('bwarm', 1) else 0})")
        emit(rg1); A("s_waitcnt lgkmcnt(0)"); emit(rg2); A("s_nop 7"); emit(rg3)
    A(f"s_cmp_lg_u32 s{sWV}, 0")
    emit(adr[-5:])
    if opt.get("prio", 0): A(f"s_setprio {opt.get('prio', 0)}")
    stamp(A, 1, ST and not opt.get('p2st') and not opt.get('p1st'))
    def xr(i): return PT + 2 * i
    GT, DR, GR, DS = PT + 16, PT + 18, PT + 20, PT + 28
    def gload(): A(f"buffer_load_dwordx2 {v(GT,2)}, {v(vGo)}, {s(sW,4)}, s{sGB} offen sc1")
    RSL = opt.get("rd_slots", [0, 1, 3, 4, 6, 7, 9, 10])
    for st in range(16):
        A("s_waitcnt lgkmcnt(0)" + (" vmcnt(0)" if st == RGS else ""))
        A("s_barrier")
        if st == 0: stamp(A, 2, ST and not opt.get('p2st') and not opt.get('p1st'))
        if opt.get("p1st") and st in (0, 1, 2, 3, 4, 6, 8, 10, 12, 14):
            stamp(A, {0: 1, 1: 2, 2: 4, 3: 5, 4: 6, 6: 7, 8: 8, 10: 9, 12: 10, 14: 11}[st], ST)
        for half in range(2):
            rds = rd_frags(st, half, FX if half == 0 else FY)
            if half == 0:
                mf = mfmas(FY, False) if st > 0 else []
            else:
                A("s_waitcnt lgkmcnt(0)")
                if st == RGS: emit(rg2)
                mf = mfmas(FX, st == 0)
            if st == RGS and half == 0: par = list(rg1)
            if not mf: emit(rds); rds = []
            for k, m in enumerate(mf):
                A(m)
                if k in RSL: A(rds.pop(0))
                else:
                    for _ in range(opt.get("par_n", 1)):
                        if par: A(par.pop(0))
            assert not rds
            if st == RGS and half == 1: emit(rg3)
        if st == opt.get("cwarm", 9):
            A("global_load_dword v10, v3, s[8:9]")
            A("global_load_dword v11, v3, s[10:11]")
        if st == opt.get("x_st", 11):
            A(f"buffer_load_dword v2, v1, {s(sW,4)}, s52 offen sc1")
            gload()
            A(f"global_load_dwordx2 {v(DR,2)}, {v(vDo)}, s[58:59]")
            par = []
            for i in range(8):
                par.append(f"buffer_load_dwordx2 {v(xr(i),2)}, {v(vXo)}, {s(sX,4)}, s{sXB} offen\ns_add_u32 s{sXB}, s{sXB}, 8192")
    assert not par, len(par)
    A("s_waitcnt lgkmcnt(0) vmcnt(0)")
    emit(mfmas(FY, False))
    stamp(A, 3, ST)

    def ure(c2, q): return acc(q >> 1, 0, c2) + 2 * (q & 1)
    def uim(c2, q): return acc(q >> 1, 1, c2) + 2 * (q & 1)
    def uI(c2, q): return UI + 16 * c2 + 2 * q
    HS = 8
    TT = 16
    EE = 56
    PUB = 60
    PIN = EP + 24
    t9 = EP + 22
    for i in range(4): A(f"s_mov_b32 s{44+i}, {4096*i}")
    A(f"v_mov_b32 {v(PUB+1)}, s{sTAG}")
    A(f"v_mov_b32 {v(PUB+3)}, s{sTAG}")
    A(f"v_and_b32 {v(PIN)}, 31, {v(vLane)}")
    A(f"v_lshlrev_b32 {v(PIN)}, 2, {v(PIN)}")
    A(f"v_add_u32 {v(PIN)}, {L_CNT}, {v(PIN)}")
    A(f"v_mov_b32 {v(PIN+2)}, 0")
    A(f"ds_write_b32 {v(PIN)}, {v(PIN+2)}")
    for q in range(1, 8):
        for c2 in range(2):
            hr, hi, tr_, ti = HS + 4 * c2, HS + 4 * c2 + 2, TT + 4 * c2, TT + 4 * c2 + 2
            pr = ure(c2, 0) if q == 1 else hr
            pi = uim(c2, 0) if q == 1 else hi
            A(pk_fma(tr_, Li, c2, pi, ure(c2, q), neg=True))
            A(pk_fma(ti, Li, c2, pr, uim(c2, q)))
            A(pk_fma(hr, Lr, c2, pr, tr_))
            A(pk_fma(hi, Lr, c2, pi, ti))
    for c2 in range(2):
        hr, hi = HS + 4 * c2, HS + 4 * c2 + 2
        A(f"v_fma_f32 {v(EE+c2)}, -{v(L8i+c2)}, {v(hi)}, {v(hr+1)}")
        A(f"v_fma_f32 {v(EE+2+c2)}, {v(L8i+c2)}, {v(hr)}, {v(hi+1)}")
    for c2 in range(2):
        hr, hi = HS + 4 * c2, HS + 4 * c2 + 2
        A(f"v_fma_f32 {v(EE+c2)}, {v(L8r+c2)}, {v(hr)}, {v(EE+c2)}")
        A(f"v_fma_f32 {v(EE+2+c2)}, {v(L8r+c2)}, {v(hi)}, {v(EE+2+c2)}")
    A(f"ds_write_b128 {v(ea)}, {v(EE,4)}")
    A("s_waitcnt lgkmcnt(0)")
    A("s_barrier")
    PE = FY
    for sp in range(8):
        A(f"ds_read_b128 {v(PE+4*sp,4)}, {v(eb)} offset:{sp*512}")
    for sp in range(1, 8):
        A(f"s_waitcnt lgkmcnt({7-sp})")
        pr, pi, er, ei = PE + 4 * (sp - 1), PE + 4 * (sp - 1) + 2, PE + 4 * sp, PE + 4 * sp + 2
        A(pk_fma(er, L16i, None, pi, er, neg=True))
        A(pk_fma(ei, L16i, None, pr, ei))
        A(pk_fma(er, L16r, None, pr, er))
        A(pk_fma(ei, L16r, None, pi, ei))
    A(f"v_cndmask_b32 {v(PUB)}, {v(PE+28)}, {v(PE+29)}, s[84:85]")
    A(f"v_cndmask_b32 {v(PUB+2)}, {v(PE+30)}, {v(PE+31)}, s[84:85]")
    A(f"s_cmp_lg_u32 s{sWM}, 0")
    A("s_cbranch_scc1 L_nopub")
    A("s_mov_b32 exec_hi, 0")
    A(f"buffer_store_dwordx4 {v(PUB,4)}, {v(vAgO)}, {s(sAG,4)}, 0 offen sc1")
    A("s_mov_b32 exec_hi, -1")
    A.label("L_nopub")
    stamp(A, 4, ST and not opt.get('p0st') and not opt.get('p2st') and not opt.get('p1st'))
    LQ = FY
    def lb_loads():
        for c2 in range(2):
            for i in range(4):
                A(f"buffer_load_dwordx4 {v(LQ+16*c2+4*i,4)}, {v(la)}, {s(sAG,4)}, s{44+i} offen offset:{256*c2} sc1")
    B = Asm()
    for r in range(4):
        for g in range(4):
            lo = "0" if g == 0 else v(PE + 4 * (g - 1) + r)
            B(f"v_cndmask_b32 {v(TT+g)}, {lo}, {v(PE+4*(3+g)+r)}, s[98:99]")
        B(f"v_cndmask_b32 {v(TT)}, {v(TT)}, {v(TT+1)}, s[84:85]")
        B(f"v_cndmask_b32 {v(TT+2)}, {v(TT+2)}, {v(TT+3)}, s[84:85]")
        B(f"v_cndmask_b32 {v(PIN+r)}, {v(TT)}, {v(TT+2)}, s[86:87]")
    QS = 56
    for c2 in range(2):
        hr, hi = HS + 4 * c2, HS + 4 * c2 + 2
        qr, qi = TT, TT + 2
        B(f"v_mov_b32 {v(qr)}, {v(PIN+c2)}")
        B(f"v_mov_b32 {v(qi)}, {v(PIN+2+c2)}")
        B(f"v_fma_f32 {v(qr+1)}, -{v(L8i+c2)}, {v(PIN+2+c2)}, {v(hr)}")
        B(f"v_fma_f32 {v(qi+1)}, {v(L8i+c2)}, {v(PIN+c2)}, {v(hi)}")
        B(f"v_fma_f32 {v(qr+1)}, {v(L8r+c2)}, {v(PIN+c2)}, {v(qr+1)}")
        B(f"v_fma_f32 {v(qi+1)}, {v(L8r+c2)}, {v(PIN+2+c2)}, {v(qi+1)}")
        pk_cmul(B, QS + 4 * c2, QS + 4 * c2 + 2, Cr, Ci, c2, qr, qi)
    for q in range(8):
        for c2 in range(2):
            B(pk_mul(uI(c2, q), Cr, c2, uim(c2, q)))
            B(pk_fma(uI(c2, q), Ci, c2, ure(c2, q), uI(c2, q)))
            B(pk_mul(ure(c2, q), Cr, c2, ure(c2, q)))
            B(pk_fma(ure(c2, q), Ci, c2, uim(c2, q), ure(c2, q), neg=True))
    nlb = max(48, min(opt.get("lb_at", 60), len(B.lines)))
    emit(B.lines[:nlb])
    lb_loads()
    emit(B.lines[nlb:])
    vm = Vm()
    def slot2(st): return [5, 0, 1, 2, 3][st % 5]
    def stage_cb(dst, st):
        if AM: return [f"s_add_u32 s{dst}, s{sROT2}, {st}", f"s_and_b32 s{dst}, s{dst}, 15"]
        o = [f"s_add_u32 s{dst}, s{sROT2}, {st & 7}", f"s_and_b32 s{dst}, s{dst}, 7", f"s_or_b32 s{dst}, s{dst}, s{sE8}"]
        if st & 8: o.append(f"s_xor_b32 s{dst}, s{dst}, 8")
        return o
    def cdma(st, q):
        out = []
        if q == 0:
            out.append(f"s_add_u32 m0, s{sLW}, {slot2(st) * 16384}")
            out += stage_cb(sK, st)
            out.append(f"s_lshl_b32 s{sK}, s{sK}, 7")
        out.append(f"buffer_load_dwordx4 {v(vDC+q)}, {s(sC,4)}, s{sK} offen offset:{1024*q} {opt.get('cflag', '')} lds")
        vm.add(("c", st))
        return out
    vG = 4
    def er(k): return ACC + 16 * (k >> 3) + 8 + (k & 7)
    A.label("L_gchk")
    A(f"v_cmp_ne_u32 vcc, s{sTAG}, {v(GT+1)}")
    A("s_nop 1")
    A("s_cmp_eq_u64 vcc, 0")
    A("s_cbranch_scc1 L_gok")
    spin_guard(A, "L_gok")
    gload()
    A("s_waitcnt vmcnt(0)")
    A("s_branch L_gchk")
    A.label("L_gok")
    A(f"v_lshlrev_b32 v6, 2, {v(vGq)}")
    A(f"v_lshlrev_b32 v7, 2, {v(vL15)}")
    for i in range(8): A(f"ds_bpermute_b32 {v(GR+i)}, v6, {v(GT)} offset:{16*i}")
    for tt in range(2): A(f"ds_bpermute_b32 {v(vG+tt)}, v7, {v(GT)} offset:{64*tt}")
    A("s_mov_b32 s10, 0xffff0000")
    B = Asm()
    B(f"v_lshlrev_b32 {v(DS)}, 16, {v(DR)}")
    B(f"v_and_b32 {v(DS+1)}, s10, {v(DR)}")
    B(f"v_lshlrev_b32 {v(DS+2)}, 16, {v(DR+1)}")
    B(f"v_and_b32 {v(DS+3)}, s10, {v(DR+1)}")
    B("s_waitcnt lgkmcnt(0)")
    a0, a2, om = HS, HS + 2, HS + 4
    for i in range(8):
        B(f"v_sub_f32 {v(om)}, 1.0, {v(GR+i)}")
        rnd_bf16(B, om, om)
        for p in range(2):
            x_ = xr(i) + p
            B(f"v_lshlrev_b32 {v(a0)}, 16, {v(x_)}")
            B(f"v_and_b32 {v(a0+1)}, s10, {v(x_)}")
            B(f"v_mul_f32 {v(a2)}, {v(a0)}, {v(DS+2*p)}")
            B(f"v_mul_f32 {v(a2+1)}, {v(a0+1)}, {v(DS+2*p+1)}")
            B(f"v_cvt_pk_bf16_f32 {v(a2)}, {v(a2)}, {v(a2+1)}")
            B(f"v_mul_f32 {v(a0)}, {v(a0)}, {v(om)}")
            B(f"v_mul_f32 {v(a0+1)}, {v(a0+1)}, {v(om)}")
            B(f"v_cvt_pk_bf16_f32 {v(a0)}, {v(a0)}, {v(a0+1)}")
            B(f"v_and_b32 {v(a2+1)}, s10, {v(a2)}")
            B(f"v_lshlrev_b32 {v(a2)}, 16, {v(a2)}")
            B(f"v_and_b32 {v(a0+1)}, s10, {v(a0)}")
            B(f"v_lshlrev_b32 {v(a0)}, 16, {v(a0)}")
            B(f"v_fma_f32 {v(er(4*i+2*p))}, {v(GR+i)}, {v(a2)}, {v(a0)}")
            B(f"v_fma_f32 {v(er(4*i+2*p+1))}, {v(GR+i)}, {v(a2+1)}, {v(a0+1)}")
    el = B.lines
    NE1 = opt.get("e_lb", 999)
    cq = [(st, q) for st in range(3) for q in range(4)]
    n = 0
    while el and n < NE1:
        if n % opt.get("c_gap", 12) == 0 and cq: emit(cdma(*cq.pop(0)))
        A(el.pop(0)); n += 1
    while cq: emit(cdma(*cq.pop(0)))
    A("s_waitcnt vmcnt(12)")
    A.label("L_poll")
    for c2 in range(2):
        for i in range(4):
            A(f"v_xor_b32 {v(LQ+16*c2+4*i+1)}, {v(LQ+16*c2+4*i+1)}, {v(XT+i)}")
            A(f"v_xor_b32 {v(LQ+16*c2+4*i+3)}, {v(LQ+16*c2+4*i+3)}, {v(XT+i)}")
    A(f"v_or3_b32 {v(t9)}, {v(LQ+1)}, {v(LQ+3)}, {v(LQ+5)}")
    for i in range(7, 31, 4):
        A(f"v_or3_b32 {v(t9)}, {v(t9)}, {v(LQ+i)}, {v(LQ+i+2)}")
    A(f"v_or_b32 {v(t9)}, {v(t9)}, {v(LQ+31)}")
    A(f"v_cmp_ne_u32 vcc, 0, {v(t9)}")
    A("s_nop 1")
    A("s_cmp_eq_u64 vcc, 0")
    A("s_cbranch_scc1 L_got")
    spin_guard(A, "L_got")
    A(f"s_sleep {opt.get('lb_sleep', 2)}")
    lb_loads()
    A("s_waitcnt vmcnt(0)")
    A("s_branch L_poll")
    A.label("L_got")
    A(f"v_mov_b32 v6, {L_CNT}")
    A("v_mov_b32 v7, 1")
    lds_add(A, 6, 7, C_LB)
    stamp(A, 5, ST and not opt.get('p1st') and not opt.get('p0st'))
    HC = TT
    for i in range(2, -1, -1):
        for c2 in range(2):
            cr_, ci_ = LQ + 16 * c2 + 4 * (i + 1), LQ + 16 * c2 + 4 * (i + 1) + 2
            ar, ai = LQ + 16 * c2 + 4 * i, LQ + 16 * c2 + 4 * i + 2
            A(f"v_fma_f32 {v(ar)}, -{v(L512i+c2)}, {v(ci_)}, {v(ar)}")
            A(f"v_fma_f32 {v(ai)}, {v(L512i+c2)}, {v(cr_)}, {v(ai)}")
            A(f"v_fma_f32 {v(ar)}, {v(L512r+c2)}, {v(cr_)}, {v(ar)}")
            A(f"v_fma_f32 {v(ai)}, {v(L512r+c2)}, {v(ci_)}, {v(ai)}")
    for c2 in range(2):
        ar, ai = LQ + 16 * c2, LQ + 16 * c2 + 2
        A(f"v_mul_f32 {v(HC+2*c2)}, {v(Fr+c2)}, {v(ar)}")
        A(f"v_mul_f32 {v(HC+2*c2+1)}, {v(Fr+c2)}, {v(ai)}")
        A(f"v_fma_f32 {v(HC+2*c2)}, -{v(Fi+c2)}, {v(ai)}, {v(HC+2*c2)}")
        A(f"v_fma_f32 {v(HC+2*c2+1)}, {v(Fi+c2)}, {v(ar)}, {v(HC+2*c2+1)}")
    xsum_groups(A, [HC + i for i in range(4)], [HC + 4 + i for i in range(4)])
    for c2 in range(2):
        qr, qi, wr, wi = QS + 4 * c2, QS + 4 * c2 + 2, VS + 4 * c2, VS + 4 * c2 + 2
        A(pk_fma(qr, HC + 2 * c2, 0, wr, qr))
        A(pk_fma(qi, HC + 2 * c2, 0, wi, qi))
        A(pk_fma(qr, HC + 2 * c2, 1, wi, qr, neg=True))
        A(pk_fma(qi, HC + 2 * c2, 1, wr, qi))
    PK = FY
    def pko(c2, part, e, j): return PK + 16 * c2 + 8 * part + 4 * e + j
    for q in range(8):
        for c2 in range(2):
            pr = QS + 4 * c2 if q == 0 else ure(c2, q - 1)
            pi = QS + 4 * c2 + 2 if q == 0 else uI(c2, q - 1)
            A(pk_fma(ure(c2, q), Li, c2, pi, ure(c2, q), neg=True))
            A(pk_fma(uI(c2, q), Li, c2, pr, uI(c2, q)))
            A(pk_fma(ure(c2, q), Lr, c2, pr, ure(c2, q)))
            A(pk_fma(uI(c2, q), Lr, c2, pi, uI(c2, q)))
        if q & 1:
            for c2 in range(2):
                for e in range(2):
                    A(f"v_cvt_pk_bf16_f32 {v(pko(c2,0,e,q>>1))}, {v(ure(c2,q-1)+e)}, {v(ure(c2,q)+e)}")
                    A(f"v_cvt_pk_bf16_f32 {v(pko(c2,1,e,q>>1))}, -{v(uI(c2,q-1)+e)}, -{v(uI(c2,q)+e)}")
    for part in range(2):
        for c2 in range(2):
            for e in range(2):
                A(f"ds_write_b128 {v(wa)}, {v(pko(c2,part,e,0),4)} offset:{part*4608 + c2*2304 + e*16}")
    stamp(A, 6, ST and not opt.get('p0st') and not opt.get('p2st') and not opt.get('p1st'))
    OUT = FX
    for part in range(2):
        A(f"s_waitcnt lgkmcnt({4 if part == 0 else 8})")
        for mt in range(4):
            for rd in range(2):
                A(f"ds_read_b64_tr_b16 {v(OUT + 16*part + 4*mt + 2*rd, 2)}, {v(ra)} offset:{part*4608 + rd*576 + mt*32}")
    def hstore(k, cp, voff):
        part, mt = k >> 2, k & 3
        return [f"s_add_u32 s39, s44, {part*4096 + (mt>>1)*8192 + cp*WS_H2}",
                f"buffer_store_dwordx4 {v(OUT + 4*k, 4)}, {v(voff)}, {s(sW,4)}, s39 offen offset:{(mt&1)*1024} {'sc1' if cp else ''}"]
    A("s_mov_b32 s44, s53")
    A("v_cmp_ne_u32 vcc, s97, v2")
    for k in range(8):
        A(f"s_waitcnt lgkmcnt({14 - 2*k})")
        emit(hstore(k, 0, ga)); vm.add("hs")
    A("s_cmp_eq_u64 vcc, 0")
    A("s_cselect_b32 s45, 1, 0")
    if opt.get("force_slow"): A("s_mov_b32 s45, 0")
    stamp(A, 7, ST and not opt.get('p0st') and not opt.get('p2st') and not opt.get('p1st'))

    HD = opt.get("hd", 2)
    vRC, vRC2 = 20, 22
    vH0, vH1 = 28, 29
    vFo, vFl = 30, 31
    ACC2, CF, HR = 128, 224, 160
    assert HD == 2
    sH, sHB, sHB2 = 49, 50, 56
    for q in range(4): A(f"v_mov_b32 {v(16+q)}, {v(vDC+q)}")
    vDC = 16
    A(f"v_mov_b32 {v(vH0)}, {v(ga)}")
    A(f"v_add_u32 {v(vH1)}, 4096, {v(ga)}")
    A(f"s_lshl_b32 s38, s{sWV}, 13")
    A(f"s_add_u32 s{sHB}, s48, s38")
    A(f"s_add_u32 s{sHB2}, s{sHB}, {WS_H2}")
    vCN, vOne, vPo = 32, 33, 34
    A(f"v_mov_b32 {v(vCN)}, {L_CNT}")
    A(f"v_mov_b32 {v(vOne)}, 1")
    A(f"v_mov_b32 {v(t1)}, s97")
    A(f"v_lshlrev_b32 {v(t2)}, 2, {v(vLane)}")
    A(f"s_lshl_b32 s52, s{sRB}, {FSH + 4}")
    A(f"s_add_u32 s52, s52, {WS_HF}")
    A(f"s_lshl_b32 s46, s{sCB}, {FSH}")
    A("s_add_u32 s46, s46, s52")
    A(f"s_add_u32 s47, s46, {WS_HL - WS_HF}")
    A(f"s_waitcnt vmcnt({vm.need('hs')})")
    lds_arrive_last(A, vCN, vT + 1, C_HL, "L_nohl")
    if not opt.get("force_slow"): flag_store(A, t1, t2, sW, 47, "")
    A.label("L_nohl")
    stamp(A, 8, ST and not opt.get('p0st') and not opt.get('p2st') and not opt.get('p1st'))
    A(f"v_bfe_u32 {v(t2)}, {v(vLane)}, 1, 3")
    A(f"v_xor_b32 {v(t2)}, {v(t2)}, {v(vGq)}")
    A(f"v_lshlrev_b32 {v(t2)}, 4, {v(t2)}")
    A(f"v_lshl_add_u32 {v(t2)}, {v(vL15)}, 7, {v(t2)}")
    for kk in range(2):
        A(f"v_xor_b32 {v(vRC+kk)}, {64*kk}, {v(t2)}")
        A(f"v_add_u32 {v(vRC2+kk)}, 0x10000, {v(vRC+kk)}")
    vEx = 35
    A(f"v_xor_b32 {v(vFo)}, s{sE8}, {v(vL15)}")
    A(f"v_lshlrev_b32 {v(vFo)}, {FSH}, {v(vFo)}")
    A(f"s_mov_b32 s38, {WS_HL - WS_HF}")
    A(f"v_mul_lo_u32 {v(t1)}, {v(vGq)}, s38")
    A(f"v_add_u32 {v(vFo)}, {v(vFo)}, {v(t1)}")
    A(f"v_mov_b32 {v(vEx)}, s{sTAG}")
    A(f"v_mov_b32 {v(t1)}, s97")
    A(f"v_cndmask_b32 {v(vEx)}, {v(vEx)}, {v(t1)}, s[84:85]")
    A("s_cmp_eq_u32 s45, 1")
    ML, MW = (0xffff0000, 0xffff) if AM else (0xff0000, 0xff)
    A(f"s_mov_b32 s9, {ML}")
    A(f"s_cselect_b32 s8, s9, {ML | MW}")
    A("s_mov_b32 s9, 0")
    def fpoll(mask):
        A(f"s_mov_b64 exec, {mask}")
        A(f"buffer_load_dword {v(vFl)}, {v(vFo)}, {s(sW,4)}, s52 offen sc1")
        A("s_mov_b64 exec, -1")
    A(f"v_mov_b32 {v(vFl)}, {v(vEx)}")
    A(f"v_not_b32 {v(vFl)}, {v(vFl)}")
    A("s_cmp_eq_u32 s45, 1")
    A("s_cbranch_scc1 L_nohf")
    for k in range(8): emit(hstore(k, 1, vH0))
    A("s_waitcnt vmcnt(0)")
    lds_arrive_last(A, vCN, vT + 1, C_HF, "L_nohf")
    A(f"v_mov_b32 {v(t1)}, s{sTAG}")
    A(f"v_lshlrev_b32 {v(t2)}, 2, {v(vLane)}")
    flag_store(A, t1, t2, sW, 46)
    A.label("L_nohf")
    fpoll("s[8:9]")
    emit(el); el = []
    A.label("L_hpoll")
    A("s_waitcnt vmcnt(0)")
    A(f"v_cmp_ne_u32 vcc, {v(vEx)}, {v(vFl)}")
    A("s_nop 1")
    A(f"s_and_b32 s38, vcc_lo, {ML}")
    A("s_cbranch_scc0 L_hgo")
    A(f"s_and_b32 s38, vcc_lo, {MW}")
    A("s_cbranch_scc0 L_hgo2")
    spin_guard(A, "L_hgo")
    A(f"s_sleep {opt.get('h_sleep', 1)}")
    fpoll("s[8:9]")
    A("s_branch L_hpoll")
    A.label("L_hgo2")
    A(f"s_mov_b32 s{sHB}, s{sHB2}")
    A.label("L_hgo")
    lds_add(A, vCN, vOne, C_GO)
    stamp(A, 9, ST and not opt.get('p1st'))
    def hload(st, j):
        out = []
        if j == 0:
            out += stage_cb(sH, st)
            out.append(f"s_lshl_b32 s{sH}, s{sH}, 15")
            out.append(f"s_add_u32 s{sH}, s{sH}, s{sHB if st < 8 or AM else sHB2}")
        r = HR + (st % HD) * 32 + 4 * j
        out.append(f"buffer_load_dwordx4 {v(r,4)}, {v(vH0 if j < 4 else vH1)}, {s(sW,4)}, s{sH} offen offset:{1024*(j&3)} {opt.get('hld', 'sc1')}")
        vm.add(("h", st, j))
        return out
    for j in range(4): emit(hload(0, j))
    def creads(g):
        st, ks = g >> 2, g & 3
        off = slot2(st) * 16384 + (ks >> 1) * 8192
        base = vRC
        if off >= 65536: off -= 65536; base = vRC2
        F = CF + (g & 1) * 16
        return [f"ds_read_b128 {v(F+4*dt,4)}, {v(base + (ks & 1))} offset:{off + 2048*dt}" for dt in range(4)]
    lds_wait(A, vCN, vPo, C_HL, 4, "sync0")
    stamp(A, 10, ST and not opt.get('p1st'))
    emit(creads(0))
    for j in range(4, 8): emit(hload(0, j))
    for j in range(8): emit(hload(1, j))
    LA = opt.get("c_la", 3)
    assert LA == 3 or (AM and LA == 4)
    cq = [(st, q) for st in range(3, LA) for q in range(4)]
    for g in range(64):
        st, ks = g >> 2, g & 3
        if opt.get("p2st") and g in (8, 16, 24, 32, 48):
            stamp(A, {8: 1, 16: 2, 24: 4, 32: 7, 48: 8}[g], ST)
        gchk = 999 if AM else 4 * (8 - HD)
        if g == gchk - 3:
            fpoll("0xff00"); vm.add("f")
        if g == gchk:
            A(f"s_waitcnt vmcnt({vm.need('f')})")
            A.label("L_h2poll")
            A(f"v_cmp_ne_u32 vcc, s{sTAG}, {v(vFl)}")
            A("s_nop 1")
            A("s_and_b32 s38, vcc_lo, 0xff00")
            A("s_cbranch_scc0 L_h2go")
            spin_guard(A, "L_h2go")
            A("s_sleep 2")
            fpoll("0xff00")
            A("s_waitcnt vmcnt(0)")
            A("s_branch L_h2poll")
            A.label("L_h2go")
            if opt.get("p2st"): stamp(A, 6, ST)
        hn = vm.need(('h', st, 2*ks+1))
        if st < 15 and ks == 1:
            assert vm.ops.count(("c", st + 1)) == 4
            emit(creads(g + 1))
            A(f"s_waitcnt vmcnt({min(hn, vm.need(('c', st + 1)))}) lgkmcnt(4)")
            lds_add(A, vCN, vOne, C_ST)
        elif st < 15 and ks == 3:
            A("s_waitcnt lgkmcnt(0)")
            A(f"v_readfirstlane_b32 s38, {v(vPo)}")
            A("s_nop 1")
            A(f"s_cmp_ge_u32 s38, {4 * (st + 1)}")
            A(f"s_cbranch_scc1 L_st{st}_ok")
            lds_wait(A, vCN, vPo, C_ST, 4 * (st + 1), f"st{st}", 0)
            if st == 0 and not AM: lds_wait(A, vCN, vPo, C_TR, 4, "trw")
            if st + LA < 16: cq += [(st + LA, q) for q in range(4)]
            emit(creads(g + 1))
            A(f"s_waitcnt vmcnt({hn})")
        elif g + 1 < 64:
            emit(creads(g + 1))
            A(f"s_waitcnt vmcnt({hn}) lgkmcnt(4)")
        else:
            A(f"s_waitcnt vmcnt({hn}) lgkmcnt(0)")
        F = CF + (g & 1) * 16
        for tt in range(2):
            hr = HR + (st % HD) * 32 + 4 * (2 * ks + tt)
            for dt in range(4):
                d = ACC2 + 4 * (tt * 4 + dt)
                A(f"v_mfma_f32_16x16x32_bf16 {v(d,4)}, {v(F+4*dt,4)}, {v(hr,4)}, {'0' if g == 0 else v(d,4)}")
            if st < 15 and ks == 2 and tt == 0: A(f"ds_read_b32 {v(vPo)}, {v(vCN)} offset:{C_ST}")
            if st + HD < 16: emit(hload(st + HD, 2 * ks + tt))
            if cq and (tt == 0 or len(cq) > 4): emit(cdma(*cq.pop(0)))
    assert not el and not cq
    stamp(A, 11, ST and not opt.get('p1st'))
    assert slot2(15) == 5 and slot2(14) == 3
    TB = 0
    wa, ra, oa = vT, vT + 1, vT + 2
    A(f"s_mul_i32 s38, s{sWV}, 8704")
    A(f"s_add_u32 s56, s38, {TB}")
    A(f"v_mul_u32_u24 {v(wa)}, 272, {v(vL15)}")
    A(f"v_lshl_add_u32 {v(wa)}, {v(vGq)}, 4, {v(wa)}")
    A(f"v_add_u32 {v(wa)}, s56, {v(wa)}")
    A(f"v_mul_u32_u24 {v(ra)}, 272, {v(vGq)}")
    A(f"v_lshl_add_u32 {v(ra)}, {v(vL15)}, 4, {v(ra)}")
    A(f"v_add_u32 {v(ra)}, s56, {v(ra)}")
    A(f"v_lshlrev_b32 {v(oa)}, 12, {v(vGq)}")
    A(f"v_lshl_add_u32 {v(oa)}, {v(vL15)}, 4, {v(oa)}")
    A(f"v_lshlrev_b32 {v(vT+3)}, 2, {v(vLane)}")
    A(f"v_add_u32 {v(vT+3)}, {L_TOP}, {v(vT+3)}")
    lds_wait(A, vCN, vPo, C_TOP, 1, "topw")
    A(f"ds_read_b32 {v(vT+4)}, {v(vT+3)}")
    for tt in range(2):
        for dt in range(4):
            r = ACC2 + 4 * (tt * 4 + dt)
            A(pk_mul(r, vG, tt, r))
            A(pk_mul(r + 2, vG, tt, r + 2))
            A(f"ds_write_b128 {v(wa)}, {v(r,4)} offset:{tt*16*272 + dt*64}")
    A("s_waitcnt lgkmcnt(8)")
    A(f"v_and_b32 {v(vT+4)}, 0x7ff, {v(vT+4)}")
    A(f"s_sub_u32 s38, 2047, s{sT0}")
    A(f"v_sub_u32 {v(vT+4)}, s38, {v(vT+4)}")
    A(f"v_cmp_gt_u32 vcc, 32, {v(vT+4)}")
    A("s_nop 1")
    A("s_and_b32 s57, vcc_lo, 0xff")
    if opt.get("nodown"): A("s_mov_b32 s57, 0")
    Y = HR
    A.label("L_fix")
    A("s_cmp_eq_u32 s57, 0")
    A("s_cbranch_scc1 L_fixd")
    A("s_ff1_i32_b32 s38, s57")
    A("s_bitset0_b32 s57, s38")
    A(f"v_readlane_b32 s39, {v(vT+4)}, s38")
    A("s_mov_b32 s49, s38")
    A(f"v_lshl_add_u32 {v(Y+10)}, s49, 2, {v(vCN)}")
    lds_wait(A, Y + 10, vPo, C_DF, 1, "dfw", 2)
    A("s_lshl_b32 s38, s49, 8")
    A(f"s_add_u32 s38, s38, {L_DEL}")
    A(f"v_lshl_add_u32 {v(Y+9)}, {v(vL15)}, 4, s38")
    A("s_mul_i32 s39, s39, 272")
    A("s_add_u32 s39, s39, s56")
    A(f"v_lshl_add_u32 {v(Y+8)}, {v(vL15)}, 4, s39")
    A(f"ds_read_b128 {v(Y,4)}, {v(Y+8)}")
    A(f"ds_read_b128 {v(Y+4,4)}, {v(Y+9)}")
    A("s_waitcnt lgkmcnt(0)")
    A(pk_add(Y, Y, Y + 4))
    A(pk_add(Y + 2, Y + 2, Y + 6))
    A(f"ds_write_b128 {v(Y+8)}, {v(Y,4)}")
    A("s_waitcnt lgkmcnt(0)")
    A("s_branch L_fix")
    A.label("L_fixd")
    for i in range(8):
        A(f"ds_read_b128 {v(ACC2+4*i,4)}, {v(ra)} offset:{i*4*272}")
    A(f"s_lshl_b32 s38, s{sT0}, 12")
    A(f"s_lshl_b32 s39, s{sCB}, 8")
    A("s_add_u32 s38, s38, s39")
    stf = opt.get("ostore", "sc1")
    for i in range(8):
        A(f"s_waitcnt lgkmcnt({7-i})")
        A(pk_add(ACC2 + 4 * i, ACC2 + 4 * i, er(4 * i)))
        A(pk_add(ACC2 + 4 * i + 2, ACC2 + 4 * i + 2, er(4 * i + 2)))
        A(f"buffer_store_dwordx4 {v(ACC2+4*i,4)}, {v(oa)}, {s(sO,4)}, s38 offen {stf}")
        A("s_add_u32 s38, s38, 16384")
    stamp(A, 12, ST and not opt.get('p1st'))
    stamp_out(A, ST, sW, sWV, 0)
    A("s_endpgm")
```

```python
from common import *

class Sched:
    def __init__(self, A): self.A = A; self.nb = 0
    def bar(self, upto=None):
        tgt = self.nb + 1 if upto is None else upto
        assert tgt >= self.nb, (tgt, self.nb)
        while self.nb < tgt:
            self.A("s_barrier"); self.nb += 1

def dyn_bars(A, sreg, name):
    A.label(f"L_{name}_l")
    A(f"s_cmp_eq_u32 s{sreg}, 0")
    A(f"s_cbranch_scc1 L_{name}_d")
    A("s_barrier")
    A(f"s_sub_u32 s{sreg}, s{sreg}, 1")
    A(f"s_branch L_{name}_l")
    A.label(f"L_{name}_d")

def gen_side(A, opt):
    ST = opt.get("sstamps")
    sX, sW, sWG, sWU, sWD, sPC = 4, 12, 52, 28, 8, 32
    sWV, sRB, sDB, sCS, sKQ = 18, 16, 17, 22, 23
    S = Sched(A)
    A.label("L_side")
    A(f"s_sub_u32 s{sWV}, s{sWV}, 4")
    A("v_and_b32 v2, 63, v0")
    A("s_lshl_b32 s19, s3, 8")
    A("s_lshl_b32 s39, s38, 3")
    A("s_add_u32 s19, s19, s39")
    vDA, vDB = 100, 104
    sXb, sBb, sROT, sK, sLW = 8, 24, 56, 57, 58
    lincomb(A, sRB, sDB, sROT, [128 * c for c in opt.get("rot", [0, 0, 0, 0])])
    A(f"s_lshl_b32 s{sLW}, s{sWV}, 12")
    A("v_lshrrev_b32 v4, 3, v2")
    A("v_and_b32 v5, 7, v2")
    A("v_lshrrev_b32 v6, 4, v2")
    A("v_xor_b32 v5, v5, v6")
    A("v_lshlrev_b32 v5, 4, v5")
    A("v_lshrrev_b32 v7, 1, v2")
    A("v_and_b32 v7, 16, v7")
    A("v_and_or_b32 v7, v2, 8, v7")
    A("v_and_or_b32 v6, v6, 1, v7")
    A(f"s_lshr_b32 s20, s{sWV}, 1")
    A(f"s_and_b32 s21, s{sWV}, 1")
    A("s_lshl_b32 s38, s20, 6")
    A("s_lshl_b32 s39, s21, 2")
    A("s_add_u32 s38, s38, s39")
    A(f"s_lshl_b32 s39, s{sRB}, 7")
    A("s_add_u32 s38, s38, s39")
    A("v_add_u32 v6, s38, v6")
    A("v_lshl_add_u32 v6, v6, 11, v5")
    A("v_xor_b32 v7, 64, v6")
    for q in range(4):
        add = (32 * (q & 1) + 2 * (q >> 1)) * 2048 - 1024 * q + 3072
        A(f"v_add_u32 {v(vDA+q)}, {add}, {'v7' if q & 1 else 'v6'}")
    A(f"s_lshl_b32 s38, s{sDB}, 6")
    A("s_lshl_b32 s39, s20, 5")
    A("s_add_u32 s38, s38, s39")
    A("v_add_u32 v6, s38, v4")
    A("v_lshl_add_u32 v6, v6, 11, v5")
    A("v_xor_b32 v7, 64, v6")
    for q in range(4):
        A(f"v_add_u32 {v(vDB+q)}, {8*2048*q - 1024*q + 3072}, {'v7' if q & 1 else 'v6'}")
    A("s_waitcnt lgkmcnt(0)")
    srd(A, sXb, 40, 41, 4194304, bias=3072)
    vm = Vm()
    def item(i):
        st, op = i >> 1, i & 1
        A(f"s_add_u32 m0, s{sLW}, {(i % NSLOT) * 16384}")
        if op == 0:
            A(f"s_add_u32 s{sK}, s{sROT}, {st * 128}")
            A(f"s_and_b32 s{sK}, s{sK}, 2047")
        else:
            A("s_nop 0")
        for q in range(4):
            A(f"buffer_load_dwordx4 {v((vDB if op else vDA) + q)}, {s(sBb if op else sXb,4)}, s{sK} offen offset:{1024*q} lds")
            vm.add(("d", i))
    item(0)
    A("s_cmp_eq_u32 s21, 0")
    A(f"s_cselect_b32 s{sBb}, s68, s70")
    A(f"s_cselect_b32 s{sBb+1}, s69, s71")
    srd(A, sBb, sBb, sBb + 1, 2097152, bias=3072)
    item(1)
    stamp(A, 3, opt.get("p0st"))
    load_tag(A, 42, 43)
    srd(A, sW, 42, 43, WS_USED)
    A("s_mov_b32 s21, 0xffff0000")
    A("v_and_b32 v11, 15, v2")
    NI = opt.get("n_init", 4)
    for i in range(2, NI): item(i)
    stamp(A, 6, opt.get("p0st"))
    XR = 24
    P = [Asm() for _ in range(4)]
    B = P[0]
    B("v_lshlrev_b32 v6, 2, v11")
    B(f"v_add_u32 v6, {L_SCR}, v6")
    for p in range(8):
        B(f"ds_read_b32 {v(XR+p)}, v6 offset:{64*p}")
    B = P[1]
    B("v_and_b32 v7, 7, v2")
    B("s_sub_u32 s38, 2047, s19")
    B("v_sub_u32 v21, s38, v7")
    B("v_lshlrev_b32 v7, 3, v7")
    B("v_bfe_u32 v20, v2, 3, 1")
    B("v_lshl_add_u32 v7, v20, 14, v7")
    B("s_waitcnt lgkmcnt(0)")
    B(pk_add(XR, XR, XR + 2)); B(pk_add(XR + 4, XR + 4, XR + 6)); B(pk_add(XR, XR, XR + 4))
    B(f"v_add_f32 {v(XR)}, {v(XR)}, {v(XR+1)}")
    B = P[2]
    rnd_bf16(B, XR, XR)
    sigmoid(B, XR + 2, XR)
    rnd_bf16(B, XR + 2, XR + 2)
    B("v_cmp_eq_u32 vcc, 1, v20")
    B = P[3]
    B(f"v_ashrrev_i32 {v(XR+1)}, 31, {v(XR)}")
    B(f"v_or_b32 {v(XR+1)}, 0x80000000, {v(XR+1)}")
    B(f"v_xor_b32 {v(XR)}, {v(XR)}, {v(XR+1)}")
    B(f"v_and_or_b32 {v(XR)}, {v(XR)}, s21, v21")
    B(f"v_cndmask_b32 {v(XR)}, {v(XR)}, {v(XR+2)}, vcc")
    B(f"v_mov_b32 {v(XR+1)}, s{sTAG}")
    B("s_lshl_b32 s38, s19, 3")
    B(f"s_add_u32 s38, s38, {WS_KEY}")
    B("s_mov_b64 exec, 0xffff")
    B(f"buffer_store_dwordx2 {v(XR,2)}, v7, {s(sW,4)}, s38 offen sc1")
    B("s_mov_b64 exec, -1")
    A("v_lshlrev_b32 v3, 4, v2")
    A(f"s_mul_hi_u32 s{sKQ}, s2, {(1 << 32) // 56 + 1}")
    A(f"s_mul_i32 s38, s{sKQ}, 56")
    A(f"s_sub_u32 s{sCS}, s2, s38")
    A("v_lshrrev_b32 v5, 3, v2")
    A("v_and_b32 v8, 7, v2")
    A("v_and_b32 v12, 3, v5")
    A("v_lshlrev_b32 v12, 1, v12")
    A("v_xor_b32 v8, v8, v12")
    A("v_mul_u32_u24 v4, 7168, v5")
    A("v_lshl_add_u32 v4, v8, 4, v4")
    A(f"s_lshl_b32 s38, s{sWV}, 6")
    A(f"s_lshl_b32 s39, s{sKQ}, 8")
    A("s_add_u32 s44, s38, s39")
    A("s_mul_i32 s45, s44, 7168")
    A(f"s_lshl_b32 s39, s{sCS}, 7")
    A("s_add_u32 s45, s45, s39")
    A(f"s_lshl_b32 s92, s{sWV}, 14")
    A(f"s_add_u32 s92, s92, {L_W}")
    srd(A, sWG, 46, 47, 7340032)
    srd(A, sWU, 48, 49, 7340032)
    A("s_mov_b32 s46, s92")
    def wdma(i):
        gu, q = i >> 3, i & 7
        A(f"s_add_u32 m0, s46, {1024*i}")
        A(f"s_add_u32 s39, s45, {q*8*7168}")
        A(f"buffer_load_dwordx4 v4, {s(sWU if gu else sWG,4)}, s39 offen lds {opt.get('wflag','')}")
    A("s_cmp_ge_u32 s2, 224")
    A(f"s_cselect_b32 s{sWG+2}, 0, s{sWG+2}")
    A(f"s_cselect_b32 s{sWU+2}, 0, s{sWU+2}")
    wi = 0
    WS = opt.get("w_sched", {})
    WS = {int(k): x for k, x in WS.items()}
    for st in range(14):
        A(f"s_waitcnt vmcnt({vm.need(('d', 2*st+1))})" + (" lgkmcnt(0)" if st == 0 else ""))
        if st == 0: stamp(A, 9, opt.get("p0st"))
        S.bar()
        if st == 0: make_tag(A)
        for i in range(NI if st == 0 else 2 * st + 4, 2 * st + 6): item(i)
        for _ in range(WS.get(st, 0)): wdma(wi); wi += 1; vm.add("w")
        pi = st - opt.get("rg_st", -1) - 1
        if 0 <= pi < 4:
            A(f"s_cmp_lg_u32 s{sWV}, 0")
            A(f"s_cbranch_scc1 L_s_nk{st}")
            for l in P[pi].lines: A(l)
            A.label(f"L_s_nk{st}")
        if pi == 3: stamp(A, 1, ST)
    B = Asm()
    B("v_lshlrev_b32 v5, 11, v5")
    B("v_lshl_add_u32 v5, v8, 4, v5")
    B("v_lshrrev_b32 v10, 4, v2")
    B("v_bfe_u32 v12, v2, 2, 2")
    B("v_lshl_add_u32 v13, v10, 3, v12")
    B("v_lshlrev_b32 v13, 7, v13")
    B("v_and_b32 v14, 3, v2")
    B("v_lshl_add_u32 v13, v14, 3, v13")
    B("v_add_u32 v13, s92, v13")
    for nt in range(4):
        B(f"v_xor_b32 v14, {nt}, v12")
        B(f"v_lshl_add_u32 {v(16+nt)}, v14, 5, v13")
    srd(B, sX, 40, 41, 4194304)
    srd(B, sWD, 50, 51, 7340032)
    wadr = B.lines
    KG, KY = 80, 64
    A(f"s_lshl_b32 s58, s{sWV}, 12")
    A(f"s_add_u32 s58, s58, {WS_KEY}")
    def kloads():
        for i in range(4):
            A(f"buffer_load_dwordx4 {v(KG+4*i,4)}, v3, {s(sW,4)}, s58 offen offset:{1024*i} sc1"); vm.add("k")
    A("s_mov_b32 s57, -1")
    kloads()
    for _ in range(min(16 - wi, opt.get("w_b13", 1))): wdma(wi); wi += 1; vm.add("w")
    A(f"s_waitcnt vmcnt({vm.need(('d', 29))})")
    S.bar(15)
    stamp(A, 2, ST)
    for _ in range(min(16 - wi, opt.get("w_b14", 10))): wdma(wi); wi += 1; vm.add("w")
    A(f"s_waitcnt vmcnt({vm.need(('d', 31))})")
    S.bar(16)
    for l in wadr: A(l)
    A("v_mov_b32 v8, 0")
    for _ in range(min(16 - wi, opt.get("w_b15", 5))): wdma(wi); wi += 1; vm.add("w")
    S.bar(17)
    A(f"s_waitcnt vmcnt({vm.need('k')})")
    A.label("L_s_poll")
    for i in range(8):
        A(f"v_xor_b32 {v(KG+2*i+1)}, s{sTAG}, {v(KG+2*i+1)}")
    A(f"v_or3_b32 v9, {v(KG+1)}, {v(KG+3)}, {v(KG+5)}")
    A(f"v_or3_b32 v9, v9, {v(KG+7)}, {v(KG+9)}")
    A(f"v_or3_b32 v9, v9, {v(KG+11)}, {v(KG+13)}")
    A(f"v_or_b32 v9, v9, {v(KG+15)}")
    A("v_cmp_ne_u32 vcc, 0, v9")
    A("s_nop 1")
    A("s_cmp_eq_u64 vcc, 0")
    A("s_cbranch_scc1 L_s_go")
    spin_guard(A, "L_s_go")
    A("s_sleep 8")
    kloads()
    A("s_waitcnt vmcnt(0)")
    A("s_branch L_s_poll")
    A.label("L_s_go")
    TH = opt.get("w_thr", 3)
    D = 72
    for rnd in range(8):
        if wi < 16 and not opt.get("w_gate"):
            A(f"s_waitcnt vmcnt({TH-1})")
            wdma(wi); wi += 1
        for i in range(8):
            A(f"v_sub_u32 {v(D+i)}, s57, {v(KG+2*i)}")
        A(f"v_min3_u32 v9, {v(D)}, {v(D+1)}, {v(D+2)}")
        A(f"v_min3_u32 v15, {v(D+3)}, {v(D+4)}, {v(D+5)}")
        A(f"v_min3_u32 v9, v9, {v(D+6)}, {v(D+7)}")
        A(f"v_min_u32 v9, v9, v15")
        for r in (8, 4, 2, 1):
            A("s_nop 1")
            A(f"v_min_u32_dpp v9, v9, v9 row_ror:{r} row_mask:0xf bank_mask:0xf")
        A("s_nop 0")
        for i in range(4):
            A(f"v_readlane_b32 s{48+i}, v9, {16*i}")
        A("s_nop 0")
        A("s_min_u32 s48, s48, s49")
        A("s_min_u32 s50, s50, s51")
        A("s_min_u32 s48, s48, s50")
        A("s_sub_u32 s57, s57, s48")
        A(f"v_writelane_b32 v8, s57, {rnd}")
        A("s_sub_u32 s57, s57, 1")
    while wi < 16 and not opt.get("w_gate"):
        A(f"s_waitcnt vmcnt({TH-1})")
        wdma(wi); wi += 1
    A(f"s_lshl_b32 s47, s{sCS}, 17")
    A(f"s_lshl_b32 s39, s{sKQ}, 9")
    A("s_add_u32 s47, s47, s39")
    A(f"s_lshl_b32 s39, s{sWV}, 7")
    A("s_add_u32 s47, s47, s39")
    if opt.get("dpf", 1):
        A("s_cmp_ge_u32 s2, 224")
        A(f"s_cselect_b32 s{sWD+2}, 0, s{sWD+2}")
        A("v_lshlrev_b32 v60, 11, v2")
        A(f"buffer_load_dword v61, v60, {s(sWD,4)}, s47 offen")
    A(f"s_lshl_b32 s38, s{sWV}, 5")
    A(f"s_add_u32 s38, s38, {L_CND}")
    A("v_lshl_add_u32 v9, v2, 2, s38")
    vCN, vOne = 20, 21
    A(f"v_mov_b32 {v(vCN)}, {L_CNT}")
    A(f"v_mov_b32 {v(vOne)}, 1")
    A("s_mov_b64 exec, 0xff")
    A("ds_write_b32 v9, v8")
    lds_add(A, vCN, vOne, C_CND)
    lds_wait(A, vCN, 15, C_CND, 4, "s_cw")
    stamp(A, 3, ST and not opt.get('p0st'))
    A("v_and_b32 v9, 31, v2")
    A("v_lshlrev_b32 v9, 2, v9")
    A(f"v_add_u32 v9, {L_CND}, v9")
    A(f"v_mov_b32 v15, {L_CND}")
    A("ds_read_b32 v14, v9")
    for i in range(8):
        A(f"ds_read_b128 {v(KY+4*i,4)}, v15 offset:{16*i}")
    A("v_mov_b32 v12, 0")
    A("s_waitcnt lgkmcnt(0)")
    for i0 in range(0, 32, 2):
        for i in range(2):
            A(f"v_cmp_gt_u32 s[{48+2*i}:{49+2*i}], {v(KY+i0+i)}, v14")
        A("s_nop 0")
        for i in range(2):
            A(f"v_addc_co_u32 v12, vcc, 0, v12, s[{48+2*i}:{49+2*i}]")
    A("v_lshlrev_b32 v12, 2, v12")
    A("s_mov_b32 exec_hi, 0")
    A("ds_permute_b32 v13, v12, v14")
    A("s_mov_b64 exec, -1")
    A("v_and_b32 v12, 7, v2")
    A("v_lshlrev_b32 v12, 2, v12")
    A("s_waitcnt lgkmcnt(0)")
    A("ds_bpermute_b32 v8, v12, v13")
    A("s_waitcnt lgkmcnt(0)")
    A(f"v_lshlrev_b32 v9, 2, v2")
    A(f"v_add_u32 v9, {L_TOP}, v9")
    A("s_mov_b64 exec, 0xff")
    A("ds_write_b32 v9, v8")
    lds_add(A, vCN, vOne, C_TOP)
    A(f"s_or_b32 s38, s2, s{sWV}")
    A("s_cbranch_scc1 L_s_noep")
    A("s_mov_b64 exec, 1")
    A(f"s_mov_b32 s38, {WS_EPOCH}")
    A(f"v_mov_b32 v13, s{sTAG}")
    A("v_mov_b32 v9, 0")
    A(f"buffer_store_dword v13, v9, {s(sW,4)}, s38 offen")
    A("s_mov_b64 exec, -1")
    A.label("L_s_noep")
    A("v_and_b32 v9, 0x7ff, v8")
    A("v_sub_u32 v9, 2047, v9")
    A("v_lshlrev_b32 v9, 11, v9")
    A("v_lshl_add_u32 v9, v10, 4, v9")
    A("s_lshl_b32 s38, s44, 1")
    A("s_and_b32 s38, s38, 2047")
    XF = 64
    for ks in range(2):
        A(f"buffer_load_dwordx4 {v(XF+4*ks,4)}, v9, {s(sX,4)}, s38 offen offset:{64*ks}")
    stamp(A, 4, ST and not opt.get('p0st'))
    if wi < 16:
        lds_wait(A, vCN, 15, C_LB, opt.get("w_gate"), "s_lw", 2)
        while wi < 16: wdma(wi); wi += 1
    A("s_waitcnt vmcnt(0)")
    stamp(A, 5, ST and not opt.get('p0st'))
    CPF = opt.get("cpf", 1)
    if opt.get("codepf2", 1):
        A("v_lshlrev_b32 v60, 3, v0")
        A("v_and_b32 v60, 2047, v60")
        A(f"buffer_load_dwordx2 v[62:63], v60, {s(sPC,4)}, s59 offen")
    A("s_mov_b32 s59, 0")
    A("s_cmp_ge_u32 s2, 224")
    A("s_cbranch_scc1 L_s_gudone")
    WF = 100
    for gu in range(2):
        for nt in range(4):
            for ks in range(2):
                for rd in range(2):
                    A(f"ds_read_b64_tr_b16 {v(WF + ((gu*4+nt)*2+ks)*4 + 2*rd, 2)}, {v(16+nt)} offset:{gu*8192 + ks*4096 + rd*512}")
        A("s_waitcnt lgkmcnt(0)")
    OC = 24
    for ks in range(2):
        for gu in range(2):
            for nt in range(4):
                o = OC + (gu * 4 + nt) * 4
                A(f"v_mfma_f32_16x16x32_bf16 {v(o,4)}, {v(WF+((gu*4+nt)*2+ks)*4,4)}, {v(XF+4*ks,4)}, {'0' if ks == 0 else v(o,4)}")
    A("v_add_u32 v13, s46, v3")
    A("s_nop 7")
    for t in range(8):
        A(f"ds_write_b128 v13, {v(OC+4*t,4)} offset:{1024*t}")
    def ddma():
        for i in range(8):
            A(f"s_add_u32 m0, s46, {8192 + 1024*i}")
            A("s_nop 0")
            A(f"buffer_load_dwordx4 v5, {s(sWD,4)}, s47 offen lds {opt.get('wflag','')}")
            A(f"s_add_u32 s47, s47, {8*2048}")
    if opt.get("d_early", 1): ddma()
    lds_arrive_last(A, vCN, 15, C_GU, "L_s_gudone")
    A(f"v_add_u32 v13, {L_W}, v3")
    for w in range(4):
        for t in range(8):
            A(f"ds_read_b128 {v(WF+(w*8+t)*4,4)}, v13 offset:{w*16384 + 1024*t}")
        if w & 1: A("s_waitcnt lgkmcnt(0)")
    for r in range(0, 32, 2):
        A(pk_add(WF + r, WF + r, WF + 32 + r))
        A(pk_add(WF + 64 + r, WF + 64 + r, WF + 96 + r))
        A(pk_add(WF + r, WF + r, WF + 64 + r))
    A("v_and_b32 v13, 7, v2")
    A("v_mul_u32_u24 v13, 14336, v13")
    A("v_lshl_add_u32 v13, v10, 4, v13")
    A("v_and_b32 v14, 8, v2")
    A("v_lshl_add_u32 v13, v14, 3, v13")
    A("v_cmp_eq_u32 vcc, 8, v14")
    A(f"s_mul_i32 s38, s{sKQ}, {2*8*14336}")
    A(f"s_lshl_b32 s39, s{sCS}, 8")
    A("s_add_u32 s38, s38, s39")
    A(f"s_add_u32 s38, s38, {WS_GU}")
    A(f"s_add_u32 s39, s38, {8*14336}")
    for t in range(0, 8, 2):
        for r in range(4):
            A(f"v_cndmask_b32 {v(WF+4*t+r)}, {v(WF+4*t+r)}, {v(WF+4*t+4+r)}, vcc")
        A(f"buffer_store_dwordx4 {v(WF+4*t,4)}, v13, {s(sW,4)}, s{38+(t>>2)} offen offset:{64*(t&3)} sc1")
    A("s_mov_b32 s59, 1")
    A.label("L_s_gudone")
    stamp(A, 6, ST and not opt.get('p0st'))
    if not opt.get("amap"):
        A(f"s_lshl_b32 s56, s{sRB}, 19")
        A(f"s_lshl_b32 s39, s{sDB}, 15")
        A("s_add_u32 s56, s56, s39")
        A(f"s_lshr_b32 s39, s{sWV}, 1")
        A("s_lshl_b32 s39, s39, 11")
        A("s_add_u32 s56, s56, s39")
        A(f"s_and_b32 s39, s{sWV}, 1")
        A("s_lshl_b32 s39, s39, 14")
        A("s_add_u32 s56, s56, s39")
        A(f"s_mul_i32 s39, s{sWV}, 9216")
        A(f"s_add_u32 s39, s39, {L_TR}")
        A("v_bfe_u32 v22, v2, 2, 2")
        A("v_lshl_add_u32 v22, v10, 3, v22")
        A("v_mul_u32_u24 v22, 144, v22")
        A("v_and_b32 v23, 3, v2")
        A("v_lshl_add_u32 v22, v23, 3, v22")
        A("v_add_u32 v22, s39, v22")
        lds_wait(A, vCN, 15, C_HL, 4, "s_hw", 2)
        HC = 140
        for part in range(2):
            for mt in range(4):
                for rd in range(2):
                    A(f"ds_read_b64_tr_b16 {v(HC + 16*part + 4*mt + 2*rd, 2)}, v22 offset:{part*4608 + rd*576 + mt*32}")
        lds_add(A, vCN, vOne, C_TR)
    A("s_cmp_eq_u32 s59, 0")
    A("s_cbranch_scc1 L_s_nogf")
    A(f"s_lshl_b32 s38, s{sCS}, {FSH+2}")
    A(f"s_lshl_b32 s39, s{sKQ}, {FSH}")
    A("s_add_u32 s38, s38, s39")
    A(f"s_add_u32 s38, s38, {WS_GF}")
    A(f"v_mov_b32 v13, s{sTAG}")
    A("v_lshlrev_b32 v14, 2, v2")
    A("s_waitcnt vmcnt(0)")
    flag_store(A, 13, 14, sW, 38)
    A.label("L_s_nogf")
    if not opt.get("amap"):
        lds_wait(A, vCN, 15, opt.get("h2_gate", C_GO), opt.get("h2_go", 1), "s_gw", 2)
        for k in range(8):
            part, mt = k >> 2, k & 3
            A(f"s_add_u32 s39, s56, {part*4096 + (mt>>1)*8192 + WS_H2}")
            A(f"s_waitcnt vmcnt({opt.get('h2_thr', 8) - 1})")
            A(f"buffer_store_dwordx4 {v(HC+4*k,4)}, v3, {s(sW,4)}, s39 offen offset:{(mt&1)*1024} sc1")
        A(f"s_lshl_b32 s38, s{sRB}, {FSH + 4}")
        A(f"s_lshl_b32 s39, s{sDB}, {FSH}")
        A("s_add_u32 s58, s38, s39")
        A(f"s_add_u32 s58, s58, {WS_HF}")
        A(f"v_mov_b32 v13, s{sTAG}")
        A("v_lshlrev_b32 v14, 2, v2")
        A("s_waitcnt vmcnt(0)")
        lds_arrive_last(A, vCN, 15, C_H2, "L_s_h2done")
        flag_store(A, 13, 14, sW, 58)
    A.label("L_s_h2done")
    stamp(A, 10, ST and not opt.get('p0st'))
    A("s_cmp_ge_u32 s2, 224")
    A("s_cbranch_scc1 L_s_cons")
    if opt.get("nodown"): A("s_branch L_s_end")
    if not opt.get("d_early", 1): ddma()
    A(f"s_lshl_b32 s56, s{sCS}, {FSH+2}")
    A(f"s_add_u32 s56, s56, {WS_GF}")
    A("v_and_b32 v13, 3, v2")
    A(f"v_lshlrev_b32 v13, {FSH}, v13")
    A("v_and_b32 v1, 255, v0")
    A("v_lshrrev_b32 v6, 5, v1")
    A("v_and_b32 v7, 31, v1")
    A("v_mul_u32_u24 v9, 14336, v6")
    A("v_lshl_add_u32 v9, v7, 3, v9")
    A.label("L_s_gpoll")
    A(f"buffer_load_dword v14, v13, {s(sW,4)}, s56 offen sc1")
    A("s_waitcnt vmcnt(0)")
    A(f"v_cmp_ne_u32 vcc, s{sTAG}, v14")
    A("s_nop 1")
    A("s_cmp_eq_u64 vcc, 0")
    A("s_cbranch_scc1 L_s_ggo")
    spin_guard(A, "L_s_ggo")
    A("s_sleep 16")
    A("s_branch L_s_gpoll")
    A.label("L_s_ggo")
    stamp(A, 7, ST and not opt.get('p0st'))
    A(f"s_lshl_b32 s38, s{sCS}, 8")
    A(f"s_add_u32 s38, s38, {WS_GU}")
    PL = 24
    for kq in range(4):
        for gu in range(2):
            A(f"buffer_load_dwordx2 {v(PL + 4*kq + 2*gu, 2)}, v9, {s(sW,4)}, s38 offen sc1")
            A(f"s_add_u32 s38, s38, {8*14336}")
    WF = 64
    for nt in range(4):
        for ks in range(2):
            for rd in range(2):
                A(f"ds_read_b64_tr_b16 {v(WF + (nt*2+ks)*4 + 2*rd, 2)}, {v(16+nt)} offset:{8192 + ks*4096 + rd*512}")
    A("s_waitcnt vmcnt(0)")
    for e in range(4):
        A(f"v_add_f32 {v(PL+e)}, {v(PL+e)}, {v(PL+4+e)}")
        A(f"v_add_f32 {v(PL+8+e)}, {v(PL+8+e)}, {v(PL+12+e)}")
        A(f"v_add_f32 {v(PL+e)}, {v(PL+e)}, {v(PL+8+e)}")
        rnd_bf16(A, PL + e, PL + e)
    for e in range(2):
        sigmoid(A, 40 + e, PL + e)
        A(f"v_mul_f32 {v(40+e)}, {v(40+e)}, {v(PL+e)}")
        rnd_bf16(A, 40 + e, 40 + e)
        A(f"v_mul_f32 {v(40+e)}, {v(40+e)}, {v(PL+2+e)}")
    A("v_cvt_pk_bf16_f32 v40, v40, v41")
    A("v_mul_u32_u24 v9, 144, v6")
    A("v_lshl_add_u32 v9, v7, 2, v9")
    A(f"v_add_u32 v9, {L_ACT}, v9")
    A("ds_write_b32 v9, v40")
    lds_add(A, vCN, vOne, C_ACT)
    A("v_and_b32 v9, 7, v2")
    A("v_mul_u32_u24 v9, 144, v9")
    A("v_lshl_add_u32 v9, v10, 4, v9")
    A(f"v_add_u32 v9, {L_ACT}, v9")
    lds_wait(A, vCN, 15, C_ACT, 4, "s_aw")
    A("ds_read_b128 v[40:43], v9")
    A("ds_read_b128 v[44:47], v9 offset:64")
    A(f"s_mov_b32 s38, {56*4096}")
    A("v_and_b32 v15, 7, v2")
    A("v_mul_lo_u32 v15, v15, s38")
    A("v_lshl_add_u32 v15, v10, 4, v15")
    A("v_and_b32 v14, 8, v2")
    A("v_lshl_add_u32 v15, v14, 3, v15")
    A(f"s_lshl_b32 s38, s{sCS}, 12")
    A(f"s_lshl_b32 s39, s{sKQ}, 10")
    A("s_add_u32 s38, s38, s39")
    A(f"s_lshl_b32 s39, s{sWV}, 8")
    A("s_add_u32 s38, s38, s39")
    A(f"s_add_u32 s38, s38, {WS_YP}")
    A("v_cmp_eq_u32 vcc, 8, v14")
    A("s_waitcnt lgkmcnt(0)")
    for ks in range(2):
        for nt in range(4):
            A(f"v_mfma_f32_16x16x32_bf16 {v(48+4*nt,4)}, {v(WF+(nt*2+ks)*4,4)}, {v(40+4*ks,4)}, {'0' if ks == 0 else v(48+4*nt,4)}")
    A("s_nop 7")
    for nt in (0, 2):
        for r in range(4):
            A(f"v_cndmask_b32 {v(48+4*nt+r)}, {v(48+4*nt+r)}, {v(52+4*nt+r)}, vcc")
        A(f"buffer_store_dwordx4 {v(48+4*nt,4)}, v15, {s(sW,4)}, s38 offen offset:{64*nt} sc1")
    A(f"s_lshl_b32 s58, s{sKQ}, {FSH+6}")
    A(f"s_lshl_b32 s39, s{sCS}, {FSH}")
    A("s_add_u32 s58, s58, s39")
    A(f"s_add_u32 s58, s58, {WS_YF}")
    A(f"v_mov_b32 v13, s{sTAG}")
    A("v_lshlrev_b32 v14, 2, v2")
    A("s_waitcnt vmcnt(0)")
    lds_arrive_last(A, vCN, 15, C_Y, "L_s_cons")
    flag_store(A, 13, 14, sW, 58)
    A.label("L_s_cons")
    stamp(A, 8, ST and not opt.get('p0st'))
    A(f"s_add_u32 s38, s{sWV}, 4")
    A(f"v_readlane_b32 s24, v8, s{sWV}")
    A(f"v_readlane_b32 s25, v8, s38")
    A(f"s_lshl_b32 s45, s{sRB}, 7")
    for t in range(2):
        A(f"s_and_b32 s{26+t}, s{24+t}, 0x7ff")
        A(f"s_sub_u32 s{26+t}, 2047, s{26+t}")
        A(f"s_sub_u32 s{56+t}, s{26+t}, s45")
    A("s_waitcnt lgkmcnt(0)")
    A("s_min_u32 s38, s56, s57")
    A("s_cmp_ge_u32 s38, 128")
    A("s_cbranch_scc1 L_s_end")
    if opt.get("nodown"): A("s_branch L_s_end")
    lds_wait(A, vCN, 15, C_ST, 4 * opt.get("s_cons", 10), "s_pw", 8)
    A(f"s_lshr_b32 s58, s{sDB}, 2")
    A(f"s_lshl_b32 s58, s58, {FSH+6}")
    A(f"s_add_u32 s58, s58, {WS_YF}")
    A("v_min_u32 v4, 55, v2")
    A(f"v_lshlrev_b32 v4, {FSH}, v4")
    A("v_lshlrev_b32 v6, 12, v10")
    A("v_lshl_add_u32 v6, v11, 4, v6")
    A("v_lshlrev_b32 v9, 3, v11")
    A("v_mov_b32 v7, 0")
    A.label("L_s_ypoll")
    A(f"buffer_load_dword v5, v4, {s(sW,4)}, s58 offen sc1")
    A("s_waitcnt vmcnt(0)")
    A(f"v_cmp_ne_u32 vcc, s{sTAG}, v5")
    A("s_nop 1")
    A("s_cmp_eq_u64 vcc, 0")
    A("s_cbranch_scc1 L_s_ygo")
    spin_guard(A, "L_s_ygo")
    A("s_sleep 12")
    A("s_branch L_s_ypoll")
    A.label("L_s_ygo")
    stamp(A, 9, ST and not opt.get('p0st'))
    for t in range(2):
        Y = 24 + 64 * t
        A(f"s_cmp_ge_u32 s{56+t}, 128")
        A(f"s_cbranch_scc1 L_s_sk{t}")
        A(f"s_add_u32 s39, s{sWV}, {4*t}")
        A(f"s_mul_i32 s39, s39, {56*4096}")
        A(f"s_lshl_b32 s3, s{sDB}, 8")
        A("s_add_u32 s39, s39, s3")
        A(f"s_add_u32 s39, s39, {WS_YP}")
        for it in range(14):
            A(f"buffer_load_dwordx4 {v(Y+4*it,4)}, v6, {s(sW,4)}, s39 offen sc1")
            A("s_add_u32 s39, s39, 16384")
        A(f"s_lshl_b32 s39, s{26+t}, 11")
        A(f"s_lshl_b32 s3, s{sDB}, 7")
        A("s_add_u32 s39, s39, s3")
        A(f"buffer_load_dwordx2 {v(Y+56,2)}, v9, {s(sX,4)}, s39 offen")
        A(f"s_lshl_b32 s39, s{26+t}, 3")
        A(f"s_add_u32 s39, s39, {WS_G}")
        A(f"buffer_load_dword {v(Y+58)}, v7, {s(sW,4)}, s39 offen sc1")
        A.label(f"L_s_sk{t}")
    A("s_waitcnt vmcnt(0)")
    for t in range(2):
        Y = 24 + 64 * t
        A(f"s_cmp_ge_u32 s{56+t}, 128")
        A(f"s_cbranch_scc1 L_s_sc{t}")
        A(f"s_ashr_i32 s39, s{24+t}, 31")
        A("s_not_b32 s39, s39")
        A("s_or_b32 s39, s39, 0x80000000")
        A(f"s_xor_b32 s39, s{24+t}, s39")
        A("s_and_b32 s39, s39, 0xffff0000")
        A(f"v_mov_b32 {v(Y+62)}, s39")
        sigmoid(A, Y + 59, Y + 62)
        rnd_bf16(A, Y + 59, Y + 59)
        for it in range(1, 14):
            A(pk_add(Y, Y, Y + 4 * it))
            A(pk_add(Y + 2, Y + 2, Y + 4 * it + 2))
        xsum_groups(A, [Y + e for e in range(4)], [Y + 4 + e for e in range(4)])
        A(f"v_sub_f32 {v(Y+58)}, 1.0, {v(Y+58)}")
        rnd_bf16(A, Y + 58, Y + 58)
        A(f"v_lshlrev_b32 {v(Y+8)}, 16, {v(Y+56)}")
        A(f"v_and_b32 {v(Y+9)}, s21, {v(Y+56)}")
        A(f"v_lshlrev_b32 {v(Y+10)}, 16, {v(Y+57)}")
        A(f"v_and_b32 {v(Y+11)}, s21, {v(Y+57)}")
        for e in range(4):
            rnd_bf16(A, Y + e, Y + e)
            A(f"v_mul_f32 {v(Y+e)}, {v(Y+e)}, {v(Y+59)}")
            rnd_bf16(A, Y + e, Y + e)
            A(f"v_add_f32 {v(Y+e)}, {v(Y+e)}, {v(Y+8+e)}")
            rnd_bf16(A, Y + e, Y + e)
            A(f"v_mul_f32 {v(Y+e)}, {v(Y+e)}, {v(Y+58)}")
            rnd_bf16(A, Y + e, Y + e)
            A(f"v_mul_f32 {v(Y+8+e)}, {v(Y+8+e)}, {v(Y+58)}")
            rnd_bf16(A, Y + 8 + e, Y + 8 + e)
            A(f"v_sub_f32 {v(Y+e)}, {v(Y+e)}, {v(Y+8+e)}")
        A(f"s_lshl_b32 s39, s{sWV}, 8")
        A(f"s_add_u32 s39, s39, {L_DEL + 1024*t}")
        A(f"v_lshl_add_u32 {v(Y+60)}, v11, 4, s39")
        A(f"ds_write_b128 {v(Y+60)}, {v(Y,4)}")
        A(f"v_lshl_add_u32 {v(Y+61)}, s{sWV}, 2, {v(vCN)}")
        lds_add(A, Y + 61, vOne, C_DF + 16 * t)
        A.label(f"L_s_sc{t}")
    A.label("L_s_end")
    stamp_out(A, ST, sW, sWV, 1)
    A("s_endpgm")
```

```python
import sys, json
from common import *
import gemm, side

NAME = "gated_mix__ssm_conv_s5__moe_arch_mod__prompt"
HDR = open(f"/code/{NAME}.s.ref").read().split("; Override launch")[0]

def build(opt):
    A = Asm()
    K = NAME + "_kernel"
    A(f".globl {K}"); A(".p2align 8"); A(f".type {K},@function")
    A.label(K)
    A.label("L_code_start")
    A("s_getpc_b64 s[32:33]")
    A("s_load_dwordx2 s[40:41], s[0:1], 0")
    A("s_load_dwordx16 s[64:79], s[0:1], 8")
    A("s_load_dwordx8 s[44:51], s[0:1], 80")
    A("s_load_dwordx4 s[80:83], s[0:1], 112")
    A("s_load_dwordx2 s[42:43], s[0:1], 136")
    stamp(A, 0, opt.get("stamps"))
    A("v_lshrrev_b32 v1, 6, v0")
    A("s_cmp_ge_u32 s2, 256")
    A("s_cbranch_scc1 L_exit")
    A("s_sub_u32 s32, s32, 4")
    A("s_subb_u32 s33, s33, 0")
    A("s_mov_b32 s34, L_code_end-L_code_start")
    A("s_mov_b32 s35, 0x20000")
    A("s_lshr_b32 s59, s2, 3")
    A("s_lshl_b32 s59, s59, 11")
    A("v_lshlrev_b32 v2, 2, v0")
    if opt.get("codepf", 1): A("buffer_load_dword v9, v2, s[32:35], s59 offen")
    A("v_readfirstlane_b32 s18, v1")
    A(f"s_mov_b32 s{sSPIN}, {1 << 20}")
    tile_ids(A, 16, 17, opt.get('amap'))
    A("s_cmp_ge_u32 s18, 4")
    A("s_cbranch_scc1 L_side")
    gemm.gen_gemm(A, opt, "early")
    side.gen_side(A, opt)
    A.label("L_exit")
    A("s_endpgm")
    gemm.gen_gemm(A, opt, "main")
    A.label("L_code_end")
    probs = check_hazards(A.lines)
    for p in probs: print("HAZARD", p, file=sys.stderr)
    txt = HDR + "; @launch grid=(256,1,1) block=(512,1,1) lds=163840\n"
    txt += '.amdgcn_target "amdgcn-amd-amdhsa--gfx950"\n.text\n' + A.text()
    txt += f""".section .rodata,"a"
.p2align 6
.amdhsa_kernel {K}
  .amdhsa_next_free_vgpr 256
  .amdhsa_next_free_sgpr 102
  .amdhsa_accum_offset 256
  .amdhsa_group_segment_fixed_size 0
  .amdhsa_kernarg_size 144
  .amdhsa_user_sgpr_count 2
  .amdhsa_user_sgpr_kernarg_segment_ptr 1
  .amdhsa_system_sgpr_workgroup_id_x 1
  .amdhsa_float_denorm_mode_32 3
.end_amdhsa_kernel
"""
    return txt

if __name__ == "__main__":
    opt = json.loads(sys.argv[2]) if len(sys.argv) > 2 else {}
    open(sys.argv[1], "w").write(build(opt))
```

```python
from common import *

def gen_gemm(A, opt, part):
    ST = opt.get("stamps")
    AM = opt.get("amap")
    sX, sB, sW, sAG, sC, sO = 4, 8, 12, 24, 28, 32
    sRB, sCB, sWV, sWM, sWN, sK, sROT, sLW = 16, 17, 18, 19, 20, 21, 22, 23
    vDA, vDB = 8, 12
    vRA, vRB, vRA2, vRB2 = 16, 18, 20, 22
    vLane, vGq, vL15, vAgO = 24, 25, 26, 27
    Lr, Li, Cr, Ci, L8r, L8i, L16r, L16i, L512r, L512i, Fr, Fi, Wr, Wi = [28 + 2 * i for i in range(14)]
    vT = 56
    ACC = 64
    FX, FY = 128, 160
    UI = FX
    EP = 192
    ea, eb, la, wa, ra, ga = [EP + i for i in range(6)]
    XT, vDC, VS = EP + 6, EP + 10, EP + 14
    PT = 224
    def acc(m, part, c2): return ACC + 4 * (m * 4 + part * 2 + c2)

    RX, RW, RD = PT, PT + 16, 12
    if part == "early":
        A(f"v_and_b32 {v(vL15)}, 15, v0")
        A(f"v_bfe_u32 v4, v0, 7, 1")
        A(f"v_lshl_add_u32 v4, v4, 5, {v(vL15)}")
        A(f"s_lshl_b32 s39, s{sCB}, 6")
        A(f"v_add_lshl_u32 {v(PT+31)}, s39, v4, 1")
        A("s_waitcnt lgkmcnt(0)")
        for c2 in range(2):
            A(f"global_load_ushort {v(PT+c2)}, {v(PT+31)}, s[64:65] offset:{32*c2}")
            A(f"global_load_ushort {v(PT+2+c2)}, {v(PT+31)}, s[66:67] offset:{32*c2}")
            A(f"global_load_ushort {v(PT+4+c2)}, {v(PT+31)}, s[76:77] offset:{32*c2}")
        A("s_branch L_gemm")
        return
    A.label("L_gemm")
    load_tag(A, 42, 43)
    A(f"s_lshr_b32 s{sWN}, s{sWV}, 1")
    A("s_lshl_b32 s50, s3, 8")
    A("s_lshl_b32 s39, s38, 3")
    A("s_add_u32 s50, s50, s39")
    A("s_lshl_b32 s50, s50, 11")
    A(f"s_lshl_b32 s51, s{sWV}, 9")
    A("s_add_u32 s50, s50, s51")
    A(f"s_lshl_b32 s39, s{sWV}, 14")
    A(f"s_add_u32 m0, s39, {L_W}")
    A("v_and_b32 v4, 31, v0")
    A("v_lshlrev_b32 v4, 4, v4")
    A("v_bfe_u32 v5, v0, 5, 1")
    A("v_lshl_add_u32 v5, v5, 11, v4")
    A("v_add_u32 v4, s51, v4")
    A("v_mov_b32 v6, s44")
    A("v_mov_b32 v7, s45")
    A("s_mov_b32 exec_lo, 0")
    A("v_mov_b32 v6, s80")
    A("v_mov_b32 v7, s81")
    A("s_mov_b32 exec_lo, -1")
    A("v_add_co_u32 v6, vcc, v6, v4")
    srd(A, sX, 40, 41, 4194304)
    A("v_addc_co_u32 v7, vcc, 0, v7, vcc")
    for i in range(4):
        A(f"buffer_load_dwordx4 v5, {s(sX,4)}, s50 offen {opt.get('aflag', '')} lds")
        A("s_add_u32 m0, m0, 1024")
        A("s_add_u32 s50, s50, 4096")
    A("global_load_lds_dwordx4 v[6:7], off")
    if opt.get("bwarm", 1):
        if AM:
            A("s_lshl_b32 s50, s3, 7")
        else:
            A("s_and_b32 s39, s3, 1")
            A("s_lshl_b32 s50, s39, 9")
            A("s_lshr_b32 s39, s3, 1")
            A("s_lshl_b32 s39, s39, 7")
            A("s_add_u32 s50, s50, s39")
        A("s_lshl_b32 s39, s38, 2")
        A("s_add_u32 s50, s50, s39")
        A(f"s_add_u32 s50, s50, s{sWV}")
        A("s_lshl_b32 s50, s50, 11")
        A("v_and_b32 v4, 63, v0")
        A("v_lshl_add_u32 v3, v4, 5, s50")
        A("global_load_dword v10, v3, s[68:69]")
        A("global_load_dword v11, v3, s[70:71]")
        A("s_mov_b64 s[8:9], s[72:73]")
        A("s_mov_b64 s[10:11], s[74:75]")
    A("s_mov_b64 s[52:53], s[72:73]")
    A("s_mov_b64 s[54:55], s[74:75]")
    A("s_mov_b64 s[58:59], s[78:79]")
    A("s_mov_b64 s[36:37], s[82:83]")
    stamp(A, 5, opt.get("p0st"))
    A(f"v_and_b32 {v(vLane)}, 63, v0")
    A(f"s_and_b32 s{sWM}, s{sWV}, 1")
    A(f"s_lshl_b32 s{sLW}, s{sWV}, 12")
    A(f"v_lshrrev_b32 {v(vGq)}, 4, {v(vLane)}")
    rr, cc, t1, t2 = vT, vT + 1, vT + 2, vT + 3
    A(f"v_lshrrev_b32 {v(rr)}, 3, {v(vLane)}")
    A(f"v_and_b32 {v(cc)}, 7, {v(vLane)}")
    A(f"v_lshrrev_b32 {v(t1)}, 1, {v(rr)}")
    A(f"v_xor_b32 {v(cc)}, {v(cc)}, {v(t1)}")
    A(f"v_lshlrev_b32 {v(cc)}, 4, {v(cc)}")
    def emit(ls):
        for l in ls: A(l)
    srd(A, sW, 42, 43, WS_USED)
    A(f"s_lshl_b32 s38, s{sCB}, 14")
    A(f"s_add_u32 s38, s38, {WS_AGG}")
    A(f"s_add_u32 s{sAG}, s42, s38")
    A(f"s_addc_u32 s{sAG+1}, s43, 0")
    A(f"s_mov_b32 s{sAG+2}, 16384")
    A(f"s_mov_b32 s{sAG+3}, 0x20000")
    A(f"s_cmp_lt_u32 s{sWV}, 2")
    A(f"s_cselect_b32 s{sC}, s52, s54")
    A(f"s_cselect_b32 s{sC+1}, s53, s55")
    srd(A, sC, sC, sC + 1, 2097152, bias=3072)
    srd(A, sO, 36, 37, 8388608)
    A(f"v_bfe_u32 {v(t2)}, {v(vLane)}, 1, 3")
    A(f"v_xor_b32 {v(t2)}, {v(t2)}, {v(vGq)}")
    A(f"v_lshlrev_b32 {v(t2)}, 4, {v(t2)}")
    A(f"v_lshl_add_u32 {v(t2)}, {v(vL15)}, 7, {v(t2)}")
    A(f"s_lshl_b32 s38, s{sWM}, 13")
    A(f"s_lshl_b32 s39, s{sWN}, 13")
    for kk in range(2):
        A(f"v_xor_b32 {v(t1)}, {64*kk}, {v(t2)}")
        A(f"v_add_u32 {v(vRA+kk)}, s38, {v(t1)}")
        A(f"v_add_u32 {v(vRB+kk)}, s39, {v(t1)}")
        A(f"v_add_u32 {v(vRA2+kk)}, 0x10000, {v(vRA+kk)}")
        A(f"v_add_u32 {v(vRB2+kk)}, 0x10000, {v(vRB+kk)}")
    A(f"v_and_b32 {v(t1)}, 31, {v(vLane)}")
    A(f"v_lshlrev_b32 {v(vAgO)}, 4, {v(t1)}")
    A(f"s_sub_u32 s38, 15, s{sRB}")
    A("s_lshl_b32 s38, s38, 10")
    A(f"s_lshl_b32 s39, s{sWN}, 9")
    A("s_add_u32 s92, s38, s39")
    A(f"v_add_u32 {v(vAgO)}, s92, {v(vAgO)}")
    A(f"s_cmp_eq_u32 s{sWM}, 1")
    A("s_cselect_b64 s[98:99], -1, 0")

    def rd_frags(st, kk, F):
        out = []
        for op, (r1, r2) in enumerate(((vRA, vRA2), (vRB, vRB2))):
            off = ((2 * st + op) % NSLOT) * 16384
            base = r1
            if off >= 65536: off -= 65536; base = r2
            for t in range(4):
                out.append(f"ds_read_b128 {v(F + 16*op + 4*t, 4)}, {v(base+kk)} offset:{off + 2048*t}")
        return [out[0], out[4], out[5], out[6], out[7], out[1], out[2], out[3]]
    def mfmas(F, first):
        out = []
        for m in range(4):
            for n in range(4):
                d = ACC + 4 * (m * 4 + n)
                out.append(f"v_mfma_f32_16x16x32_bf16 {v(d,4)}, {v(F+4*m,4)}, {v(F+16+4*n,4)}, {'0' if first else v(d,4)}")
        return out

    B = Asm()
    lre, lim, ldt = PT, PT + 2, PT + 4
    t = PT + 6
    for r in range(6): B(f"v_lshlrev_b32 {v(PT+r)}, 16, {v(PT+r)}")
    for c in range(2):
        B(f"v_mul_f32 {v(t+c)}, {LOG2E}, {v(ldt+c)}")
    for c in range(2): B(f"v_exp_f32 {v(t+c)}, {v(t+c)}")
    B("s_nop 0")
    for c in range(2): rnd_bf16(B, t + c, t + c)
    B(pk_mul(t + 2, t, None, lre))
    B(pk_mul(t + 4, t, None, lim))
    for c in range(2):
        B(f"v_mul_f32 {v(t+2+c)}, {LOG2E}, {v(t+2+c)}")
        B(f"v_mul_f32 {v(t+4+c)}, {INV2PI}, {v(t+4+c)}")
    for c in range(2):
        B(f"v_exp_f32 {v(t+2+c)}, {v(t+2+c)}")
        B(f"v_rndne_f32 {v(t+6+c)}, {v(t+4+c)}")
    for c in range(2): B(f"v_sub_f32 {v(t+4+c)}, {v(t+4+c)}, {v(t+6+c)}")
    for c in range(2):
        B(f"v_cos_f32 {v(t+6+c)}, {v(t+4+c)}")
        B(f"v_sin_f32 {v(t+8+c)}, {v(t+4+c)}")
    B(pk_mul(t + 10, lre, None, lre))
    B(pk_fma(t + 10, lim, None, lim, t + 10))
    B(pk_mul(Lr, t + 2, None, t + 6))
    B(pk_mul(Li, t + 2, None, t + 8))
    for c in range(2): B(f"v_rcp_f32 {v(t+10+c)}, {v(t+10+c)}")
    for c in range(2): B(f"v_add_f32 {v(t+c)}, -1.0, {v(Lr+c)}")
    B(pk_add(t + 10, t + 10, t + 10))
    B(pk_mul(t + 2, t, None, lre))
    B(pk_fma(t + 2, Li, None, lim, t + 2))
    B(pk_mul(t + 4, Li, None, lre))
    B(pk_fma(t + 4, t, None, lim, t + 4, neg=True))
    B(pk_mul(Cr, t + 2, None, t + 10))
    B(pk_mul(Ci, t + 4, None, t + 10))
    a0, a1, b0, b1, c0, c1, d0, d1 = [PT + 2 * i for i in range(8)]
    pk_csq(B, a0, a1, Lr, Li)
    pk_csq(B, b0, b1, a0, a1)
    pk_csq(B, L8r, L8i, b0, b1)
    pk_csq(B, L16r, L16i, L8r, L8i)
    pk_csq(B, a0, a1, L16r, L16i)
    pk_csq(B, b0, b1, a0, a1)
    B(f"v_and_b32 {v(PT+16)}, 1, {v(vGq)}")
    B(f"v_cmp_eq_u32 s[84:85], 1, {v(PT+16)}")
    B(f"v_cmp_lt_u32 s[86:87], 1, {v(vGq)}")
    B("s_nop 0")
    def sel(dr, di, sr, si, mask):
        for c in range(2):
            B(f"v_cndmask_b32 {v(dr+c)}, 1.0, {v(sr+c)}, {mask}")
            B(f"v_cndmask_b32 {v(di+c)}, 0, {v(si+c)}, {mask}")
    e0, e1 = PT + 18, PT + 20
    sel(c0, c1, L16r, L16i, "s[84:85]")
    sel(d0, d1, a0, a1, "s[86:87]")
    pk_cmul(B, e0, e1, c0, c1, None, d0, d1)
    sel(c0, c1, b0, b1, "s[98:99]")
    pk_cmul(B, Wr, Wi, e0, e1, None, c0, c1)
    pk_csq(B, a0, a1, b0, b1)
    pk_csq(B, b0, b1, a0, a1)
    pk_csq(B, L512r, L512i, b0, b1)
    sel(c0, c1, a0, a1, "s[84:85]")
    sel(d0, d1, b0, b1, "s[86:87]")
    pk_cmul(B, Fr, Fi, c0, c1, None, d0, d1)
    for c2 in range(2):
        B(f"v_mov_b32 {v(a0)}, {v(Wr+c2)}")
        B(f"v_mov_b32 {v(a1)}, {v(Wi+c2)}")
        B(f"v_mul_f32 {v(a0+1)}, {v(L8r+c2)}, {v(Wr+c2)}")
        B(f"v_mul_f32 {v(a1+1)}, {v(L8r+c2)}, {v(Wi+c2)}")
        B(f"v_fma_f32 {v(a0+1)}, -{v(L8i+c2)}, {v(Wi+c2)}, {v(a0+1)}")
        B(f"v_fma_f32 {v(a1+1)}, {v(L8i+c2)}, {v(Wr+c2)}, {v(a1+1)}")
        pk_cmul(B, VS + 4 * c2, VS + 4 * c2 + 2, Cr, Ci, c2, a0, a1)
    par = B.lines
    B = Asm()
    B(f"s_lshl_b32 s38, s{sWN}, 8")
    B(f"s_add_u32 s38, s38, {L_EX}")
    B(f"v_lshl_add_u32 {v(eb)}, {v(vL15)}, 4, s38")
    B(f"s_lshl_b32 s39, s{sWM}, 11")
    B(f"v_lshl_add_u32 {v(ea)}, {v(vGq)}, 9, {v(eb)}")
    B(f"v_add_u32 {v(ea)}, s39, {v(ea)}")
    B(f"v_lshlrev_b32 {v(la)}, 10, {v(vGq)}")
    B(f"v_lshl_add_u32 {v(la)}, {v(vL15)}, 4, {v(la)}")
    B("s_add_u32 s38, s92, 1024")
    B(f"v_add_u32 {v(la)}, s38, {v(la)}")
    B(f"v_sub_u32 {v(t1)}, s{sRB}, {v(vGq)}")
    B(f"v_mov_b32 {v(t2)}, s{sTAG}")
    for i in range(4):
        B(f"v_cmp_lt_i32 vcc, {4*i}, {v(t1)}")
        B("s_nop 1")
        B(f"v_cndmask_b32 {v(XT+i)}, 0, {v(t2)}, vcc")
    B(f"s_mul_i32 s38, s{sWV}, 9216")
    B(f"s_add_u32 s38, s38, {L_TR}")
    B(f"v_mul_u32_u24 {v(wa)}, 144, {v(vL15)}")
    B(f"v_lshl_add_u32 {v(wa)}, {v(vGq)}, 5, {v(wa)}")
    B(f"v_add_u32 {v(wa)}, s38, {v(wa)}")
    B(f"v_bfe_u32 {v(ra)}, {v(vLane)}, 2, 2")
    B(f"v_lshl_add_u32 {v(ra)}, {v(vGq)}, 3, {v(ra)}")
    B(f"v_mul_u32_u24 {v(ra)}, 144, {v(ra)}")
    B(f"v_and_b32 {v(t1)}, 3, {v(vLane)}")
    B(f"v_lshl_add_u32 {v(ra)}, {v(t1)}, 3, {v(ra)}")
    B(f"v_add_u32 {v(ra)}, s38, {v(ra)}")
    B(f"v_lshlrev_b32 {v(ga)}, 4, {v(vLane)}")
    B(f"s_lshl_b32 s38, s{sCB}, 6")
    B(f"s_lshl_b32 s39, s{sWM}, 5")
    B("s_add_u32 s38, s38, s39")
    B(f"v_add_u32 {v(t1)}, s38, {v(rr)}")
    B(f"v_lshl_add_u32 {v(t1)}, {v(t1)}, 11, {v(cc)}")
    B(f"v_xor_b32 {v(t2)}, 64, {v(t1)}")
    for q in range(4):
        B(f"v_add_u32 {v(vDC+q)}, {8*2048*q - 1024*q + 3072}, {v(t2 if q & 1 else t1)}")
    sROT2 = 55
    lincomb(B, sRB, sCB, sROT2, opt.get("rot2", [0, 0, 0, 0]))
    sE8 = 54
    B(f"s_and_b32 s{sE8}, s{sCB}, {0 if AM else 8}")
    B(f"s_lshl_b32 s48, s{sRB}, 19")
    B(f"s_lshl_b32 s39, s{sCB}, 15")
    B("s_add_u32 s53, s48, s39")
    B(f"s_lshl_b32 s39, s{sWN}, 11")
    B("s_add_u32 s53, s53, s39")
    B(f"s_lshl_b32 s39, s{sWM}, 14")
    B("s_add_u32 s53, s53, s39")
    sT0, sGB, sXB = 51, 57, 56
    vXo, vGo, vDo = EP + 28, EP + 29, EP + 30
    B(f"s_lshl_b32 s{sT0}, s{sRB}, 7")
    B(f"s_lshl_b32 s38, s{sWV}, 5")
    B(f"s_add_u32 s{sT0}, s{sT0}, s38")
    B(f"s_lshl_b32 s{sGB}, s{sT0}, 3")
    B(f"s_add_u32 s{sGB}, s{sGB}, {WS_G}")
    B(f"s_lshl_b32 s{sXB}, s{sT0}, 11")
    B(f"s_lshl_b32 s39, s{sCB}, 7")
    B(f"s_add_u32 s{sXB}, s{sXB}, s39")
    B(f"v_lshlrev_b32 {v(vXo)}, 11, {v(vGq)}")
    B(f"v_lshl_add_u32 {v(vXo)}, {v(vL15)}, 3, {v(vXo)}")
    B(f"v_and_b32 {v(vGo)}, 31, {v(vLane)}")
    B(f"v_lshlrev_b32 {v(vGo)}, 3, {v(vGo)}")
    B(f"v_lshl_add_u32 {v(vDo)}, {v(vL15)}, 3, s39")
    adr = B.lines

    A("s_waitcnt lgkmcnt(0)")
    stamp(A, 6, opt.get("p0st"))
    make_tag(A)
    emit(adr)
    stamp(A, 7, opt.get("p0st"))
    A(f"s_lshl_b32 s39, s{sWV}, 14")
    A(f"s_add_u32 s39, s39, {L_W}")
    A(f"v_and_b32 v4, 7, {v(vLane)}")
    A("v_lshlrev_b32 v4, 9, v4")
    A(f"v_bfe_u32 v5, {v(vLane)}, 3, 1")
    A("v_lshl_add_u32 v4, v5, 6, v4")
    A(f"v_lshl_add_u32 v4, {v(vGq)}, 4, v4")
    A("v_add_u32 v4, s39, v4")
    A(f"v_and_b32 v7, 1, {v(vLane)}")
    A("v_lshlrev_b32 v5, 9, v7")
    A(f"v_bfe_u32 v6, {v(vLane)}, 1, 1")
    A("v_lshl_add_u32 v5, v6, 6, v5")
    A(f"v_lshl_add_u32 v5, {v(vGq)}, 4, v5")
    A("v_add_u32 v5, s39, v5")
    A(f"v_lshrrev_b32 v6, 1, {v(vGq)}")
    A("v_lshlrev_b32 v6, 6, v6")
    A("v_lshl_add_u32 v6, v7, 5, v6")
    A(f"v_and_b32 v7, 1, {v(vGq)}")
    A("v_lshl_add_u32 v6, v7, 4, v6")
    A(f"s_lshl_b32 s39, s{sWV}, 7")
    A(f"s_add_u32 s39, s39, {L_SCR}")
    A("v_add_u32 v6, s39, v6")
    NPRE = opt.get("par_pre", 999)
    A(f"s_waitcnt vmcnt({7 if opt.get('bwarm', 1) else 5})")
    stamp(A, 8, opt.get("p0st"))
    emit(par); par = []
    RGS = opt.get("rg_st", -1)
    rg1 = []
    for ks in range(4):
        rg1.append(f"ds_read_b128 {v(RX+4*ks,4)}, v4 offset:{128*ks}")
        rg1.append(f"ds_read_b128 {v(RW+4*ks,4)}, v5 offset:{4096 + 128*ks}")
    rg2 = [f"v_mfma_f32_16x16x32_bf16 {v(RD,4)}, {v(RX+4*ks,4)}, {v(RW+4*ks,4)}, {'0' if ks == 0 else v(RD,4)}" for ks in range(4)]
    rg3 = ["s_mov_b32 exec_lo, 0x00030003", "s_mov_b32 exec_hi, 0x000c000c", f"ds_write_b128 v6, {v(RD,4)}", "s_mov_b64 exec, -1"]
    if RGS < 0:
        A(f"s_waitcnt vmcnt({2 if opt.get('bwarm', 1) else 0})")
        emit(rg1); A("s_waitcnt lgkmcnt(0)"); emit(rg2); A("s_nop 7"); emit(rg3)
    if opt.get("prio", 0): A(f"s_setprio {opt.get('prio', 0)}")
    stamp(A, 1, ST and not opt.get('p2st') and not opt.get('p1st'))
    def xr(i): return PT + 2 * i
    GT, DR, GR, DS = PT + 16, PT + 18, PT + 20, PT + 28
    def gload(): A(f"buffer_load_dwordx2 {v(GT,2)}, {v(vGo)}, {s(sW,4)}, s{sGB} offen sc1")
    RSL = opt.get("rd_slots", [0, 1, 3, 4, 6, 7, 9, 10])
    for st in range(16):
        A("s_waitcnt lgkmcnt(0)" + (" vmcnt(0)" if st == RGS else ""))
        A("s_barrier")
        if st == 0: stamp(A, 2, ST and not opt.get('p2st') and not opt.get('p1st'))
        if opt.get("p1st") and st in (0, 1, 2, 3, 4, 6, 8, 10, 12, 14):
            stamp(A, {0: 1, 1: 2, 2: 4, 3: 5, 4: 6, 6: 7, 8: 8, 10: 9, 12: 10, 14: 11}[st], ST)
        for half in range(2):
            rds = rd_frags(st, half, FX if half == 0 else FY)
            if half == 0:
                mf = mfmas(FY, False) if st > 0 else []
            else:
                A("s_waitcnt lgkmcnt(0)")
                if st == RGS: emit(rg2)
                mf = mfmas(FX, st == 0)
            if st == RGS and half == 0: par = list(rg1)
            if not mf: emit(rds); rds = []
            for k, m in enumerate(mf):
                A(m)
                if k in RSL: A(rds.pop(0))
                else:
                    for _ in range(opt.get("par_n", 1)):
                        if par: A(par.pop(0))
            assert not rds
            if st == RGS and half == 1: emit(rg3)
        if st == opt.get("cwarm", 99):
            A("global_load_dword v10, v3, s[8:9]")
            A("global_load_dword v11, v3, s[10:11]")
    assert not par, len(par)
    A("s_waitcnt lgkmcnt(0) vmcnt(0)")
    emit(mfmas(FY, False))
    stamp(A, 3, ST)

    def ure(c2, q): return acc(q >> 1, 0, c2) + 2 * (q & 1)
    def uim(c2, q): return acc(q >> 1, 1, c2) + 2 * (q & 1)
    def uI(c2, q): return UI + 16 * c2 + 2 * q
    HS = 8
    TT = 16
    EE = 56
    PUB = 60
    PIN = EP + 24
    t9 = EP + 22
    for i in range(4): A(f"s_mov_b32 s{44+i}, {4096*i}")
    A(f"v_mov_b32 {v(PUB+1)}, s{sTAG}")
    A(f"v_mov_b32 {v(PUB+3)}, s{sTAG}")
    A(f"v_and_b32 {v(PIN)}, 31, {v(vLane)}")
    A(f"v_lshlrev_b32 {v(PIN)}, 2, {v(PIN)}")
    A(f"v_add_u32 {v(PIN)}, {L_CNT}, {v(PIN)}")
    A(f"v_mov_b32 {v(PIN+2)}, 0")
    A(f"ds_write_b32 {v(PIN)}, {v(PIN+2)}")
    for q in range(1, 8):
        for c2 in range(2):
            hr, hi, tr_, ti = HS + 4 * c2, HS + 4 * c2 + 2, TT + 4 * c2, TT + 4 * c2 + 2
            pr = ure(c2, 0) if q == 1 else hr
            pi = uim(c2, 0) if q == 1 else hi
            A(pk_fma(tr_, Li, c2, pi, ure(c2, q), neg=True))
            A(pk_fma(ti, Li, c2, pr, uim(c2, q)))
            A(pk_fma(hr, Lr, c2, pr, tr_))
            A(pk_fma(hi, Lr, c2, pi, ti))
    for c2 in range(2):
        hr, hi = HS + 4 * c2, HS + 4 * c2 + 2
        A(f"v_fma_f32 {v(EE+c2)}, -{v(L8i+c2)}, {v(hi)}, {v(hr+1)}")
        A(f"v_fma_f32 {v(EE+2+c2)}, {v(L8i+c2)}, {v(hr)}, {v(hi+1)}")
    for c2 in range(2):
        hr, hi = HS + 4 * c2, HS + 4 * c2 + 2
        A(f"v_fma_f32 {v(EE+c2)}, {v(L8r+c2)}, {v(hr)}, {v(EE+c2)}")
        A(f"v_fma_f32 {v(EE+2+c2)}, {v(L8r+c2)}, {v(hi)}, {v(EE+2+c2)}")
    A(f"ds_write_b128 {v(ea)}, {v(EE,4)}")
    A("s_waitcnt lgkmcnt(0)")
    A("s_barrier")
    PE = FY
    for sp in range(8):
        A(f"ds_read_b128 {v(PE+4*sp,4)}, {v(eb)} offset:{sp*512}")
    for sp in range(1, 8):
        A(f"s_waitcnt lgkmcnt({7-sp})")
        pr, pi, er, ei = PE + 4 * (sp - 1), PE + 4 * (sp - 1) + 2, PE + 4 * sp, PE + 4 * sp + 2
        A(pk_fma(er, L16i, None, pi, er, neg=True))
        A(pk_fma(ei, L16i, None, pr, ei))
        A(pk_fma(er, L16r, None, pr, er))
        A(pk_fma(ei, L16r, None, pi, ei))
    A(f"v_cndmask_b32 {v(PUB)}, {v(PE+28)}, {v(PE+29)}, s[84:85]")
    A(f"v_cndmask_b32 {v(PUB+2)}, {v(PE+30)}, {v(PE+31)}, s[84:85]")
    A(f"s_cmp_lg_u32 s{sWM}, 0")
    A("s_cbranch_scc1 L_nopub")
    A("s_mov_b32 exec_hi, 0")
    A(f"buffer_store_dwordx4 {v(PUB,4)}, {v(vAgO)}, {s(sAG,4)}, 0 offen sc1")
    A("s_mov_b32 exec_hi, -1")
    A.label("L_nopub")
    stamp(A, 4, ST and not opt.get('p0st') and not opt.get('p2st') and not opt.get('p1st'))
    LQ = FY
    def lb_loads():
        for c2 in range(2):
            for i in range(4):
                A(f"buffer_load_dwordx4 {v(LQ+16*c2+4*i,4)}, {v(la)}, {s(sAG,4)}, s{44+i} offen offset:{256*c2} sc1")
    B = Asm()
    for r in range(4):
        for g in range(4):
            lo = "0" if g == 0 else v(PE + 4 * (g - 1) + r)
            B(f"v_cndmask_b32 {v(TT+g)}, {lo}, {v(PE+4*(3+g)+r)}, s[98:99]")
        B(f"v_cndmask_b32 {v(TT)}, {v(TT)}, {v(TT+1)}, s[84:85]")
        B(f"v_cndmask_b32 {v(TT+2)}, {v(TT+2)}, {v(TT+3)}, s[84:85]")
        B(f"v_cndmask_b32 {v(PIN+r)}, {v(TT)}, {v(TT+2)}, s[86:87]")
    QS = 56
    for c2 in range(2):
        hr, hi = HS + 4 * c2, HS + 4 * c2 + 2
        qr, qi = TT, TT + 2
        B(f"v_mov_b32 {v(qr)}, {v(PIN+c2)}")
        B(f"v_mov_b32 {v(qi)}, {v(PIN+2+c2)}")
        B(f"v_fma_f32 {v(qr+1)}, -{v(L8i+c2)}, {v(PIN+2+c2)}, {v(hr)}")
        B(f"v_fma_f32 {v(qi+1)}, {v(L8i+c2)}, {v(PIN+c2)}, {v(hi)}")
        B(f"v_fma_f32 {v(qr+1)}, {v(L8r+c2)}, {v(PIN+c2)}, {v(qr+1)}")
        B(f"v_fma_f32 {v(qi+1)}, {v(L8r+c2)}, {v(PIN+2+c2)}, {v(qi+1)}")
        pk_cmul(B, QS + 4 * c2, QS + 4 * c2 + 2, Cr, Ci, c2, qr, qi)
    for q in range(8):
        for c2 in range(2):
            B(pk_mul(uI(c2, q), Cr, c2, uim(c2, q)))
            B(pk_fma(uI(c2, q), Ci, c2, ure(c2, q), uI(c2, q)))
            B(pk_mul(ure(c2, q), Cr, c2, ure(c2, q)))
            B(pk_fma(ure(c2, q), Ci, c2, uim(c2, q), ure(c2, q), neg=True))
    nlb = max(48, min(opt.get("lb_at", 999), len(B.lines)))
    emit(B.lines[:nlb])
    if opt.get("lb_delay"): A(f"s_sleep {opt['lb_delay']}")
    lb_loads()
    emit(B.lines[nlb:])
    gload()
    A(f"global_load_dwordx2 {v(DR,2)}, {v(vDo)}, s[58:59]")
    for i in range(8):
        A(f"buffer_load_dwordx2 {v(xr(i),2)}, {v(vXo)}, {s(sX,4)}, s{sXB} offen")
        A(f"s_add_u32 s{sXB}, s{sXB}, 8192")
    vm = Vm()
    def slot2(st): return [5, 0, 1, 2, 3][st % 5]
    def stage_cb(dst, st):
        if AM: return [f"s_add_u32 s{dst}, s{sROT2}, {st}", f"s_and_b32 s{dst}, s{dst}, 15"]
        o = [f"s_add_u32 s{dst}, s{sROT2}, {st & 7}", f"s_and_b32 s{dst}, s{dst}, 7", f"s_or_b32 s{dst}, s{dst}, s{sE8}"]
        if st & 8: o.append(f"s_xor_b32 s{dst}, s{dst}, 8")
        return o
    def cdma(st, q):
        out = []
        if q == 0:
            out.append(f"s_add_u32 m0, s{sLW}, {slot2(st) * 16384}")
            out += stage_cb(sK, st)
            out.append(f"s_lshl_b32 s{sK}, s{sK}, 7")
        out.append(f"buffer_load_dwordx4 {v(vDC+q)}, {s(sC,4)}, s{sK} offen offset:{1024*q} {opt.get('cflag', '')} lds")
        vm.add(("c", st))
        return out
    A("s_waitcnt vmcnt(10)")
    A.label("L_poll")
    for c2 in range(2):
        for i in range(4):
            A(f"v_xor_b32 {v(LQ+16*c2+4*i+1)}, {v(LQ+16*c2+4*i+1)}, {v(XT+i)}")
            A(f"v_xor_b32 {v(LQ+16*c2+4*i+3)}, {v(LQ+16*c2+4*i+3)}, {v(XT+i)}")
    A(f"v_or3_b32 {v(t9)}, {v(LQ+1)}, {v(LQ+3)}, {v(LQ+5)}")
    for i in range(7, 31, 4):
        A(f"v_or3_b32 {v(t9)}, {v(t9)}, {v(LQ+i)}, {v(LQ+i+2)}")
    A(f"v_or_b32 {v(t9)}, {v(t9)}, {v(LQ+31)}")
    A(f"v_cmp_ne_u32 vcc, 0, {v(t9)}")
    A("s_nop 1")
    A("s_cmp_eq_u64 vcc, 0")
    A("s_cbranch_scc1 L_got")
    spin_guard(A, "L_got")
    A(f"s_sleep {opt.get('lb_sleep', 2)}")
    lb_loads()
    A("s_waitcnt vmcnt(0)")
    A("s_branch L_poll")
    A.label("L_got")
    A(f"v_mov_b32 v6, {L_CNT}")
    A("v_mov_b32 v7, 1")
    lds_add(A, 6, 7, C_LB)
    stamp(A, 5, ST and not opt.get('p1st') and not opt.get('p0st'))
    HC = TT
    for i in range(2, -1, -1):
        for c2 in range(2):
            cr_, ci_ = LQ + 16 * c2 + 4 * (i + 1), LQ + 16 * c2 + 4 * (i + 1) + 2
            ar, ai = LQ + 16 * c2 + 4 * i, LQ + 16 * c2 + 4 * i + 2
            A(f"v_fma_f32 {v(ar)}, -{v(L512i+c2)}, {v(ci_)}, {v(ar)}")
            A(f"v_fma_f32 {v(ai)}, {v(L512i+c2)}, {v(cr_)}, {v(ai)}")
            A(f"v_fma_f32 {v(ar)}, {v(L512r+c2)}, {v(cr_)}, {v(ar)}")
            A(f"v_fma_f32 {v(ai)}, {v(L512r+c2)}, {v(ci_)}, {v(ai)}")
    for c2 in range(2):
        ar, ai = LQ + 16 * c2, LQ + 16 * c2 + 2
        A(f"v_mul_f32 {v(HC+2*c2)}, {v(Fr+c2)}, {v(ar)}")
        A(f"v_mul_f32 {v(HC+2*c2+1)}, {v(Fr+c2)}, {v(ai)}")
        A(f"v_fma_f32 {v(HC+2*c2)}, -{v(Fi+c2)}, {v(ai)}, {v(HC+2*c2)}")
        A(f"v_fma_f32 {v(HC+2*c2+1)}, {v(Fi+c2)}, {v(ar)}, {v(HC+2*c2+1)}")
    xsum_groups(A, [HC + i for i in range(4)], [HC + 4 + i for i in range(4)])
    for c2 in range(2):
        qr, qi, wr, wi = QS + 4 * c2, QS + 4 * c2 + 2, VS + 4 * c2, VS + 4 * c2 + 2
        A(pk_fma(qr, HC + 2 * c2, 0, wr, qr))
        A(pk_fma(qi, HC + 2 * c2, 0, wi, qi))
        A(pk_fma(qr, HC + 2 * c2, 1, wi, qr, neg=True))
        A(pk_fma(qi, HC + 2 * c2, 1, wr, qi))
    PK = FY
    def pko(c2, part, e, j): return PK + 16 * c2 + 8 * part + 4 * e + j
    for q in range(8):
        for c2 in range(2):
            pr = QS + 4 * c2 if q == 0 else ure(c2, q - 1)
            pi = QS + 4 * c2 + 2 if q == 0 else uI(c2, q - 1)
            A(pk_fma(ure(c2, q), Li, c2, pi, ure(c2, q), neg=True))
            A(pk_fma(uI(c2, q), Li, c2, pr, uI(c2, q)))
            A(pk_fma(ure(c2, q), Lr, c2, pr, ure(c2, q)))
            A(pk_fma(uI(c2, q), Lr, c2, pi, uI(c2, q)))
        if q & 1:
            for c2 in range(2):
                for e in range(2):
                    A(f"v_cvt_pk_bf16_f32 {v(pko(c2,0,e,q>>1))}, {v(ure(c2,q-1)+e)}, {v(ure(c2,q)+e)}")
                    A(f"v_cvt_pk_bf16_f32 {v(pko(c2,1,e,q>>1))}, -{v(uI(c2,q-1)+e)}, -{v(uI(c2,q)+e)}")
    for part in range(2):
        for c2 in range(2):
            for e in range(2):
                A(f"ds_write_b128 {v(wa)}, {v(pko(c2,part,e,0),4)} offset:{part*4608 + c2*2304 + e*16}")
    stamp(A, 6, ST and not opt.get('p0st') and not opt.get('p2st') and not opt.get('p1st'))
    OUT = FX
    for part in range(2):
        A(f"s_waitcnt lgkmcnt({4 if part == 0 else 8})")
        for mt in range(4):
            for rd in range(2):
                A(f"ds_read_b64_tr_b16 {v(OUT + 16*part + 4*mt + 2*rd, 2)}, {v(ra)} offset:{part*4608 + rd*576 + mt*32}")
    for k in range(8):
        part, mt = k >> 2, k & 3
        if mt % 2 == 0: A(f"s_add_u32 s39, s53, {part*4096 + (mt>>1)*8192}")
        A(f"s_waitcnt lgkmcnt({14 - 2*k})")
        A(f"buffer_store_dwordx4 {v(OUT + 4*k, 4)}, {v(ga)}, {s(sW,4)}, s39 offen offset:{(mt&1)*1024} sc1")
        vm.add("hs")
    stamp(A, 7, ST and not opt.get('p0st') and not opt.get('p2st') and not opt.get('p1st'))

    HD = 2
    vRC, vRC2 = 20, 22
    vH0, vH1 = 28, 29
    vFo, vFl = 30, 31
    ACC2, CF, HR = 128, 224, 160
    sH, sHB = 49, 50
    A("s_waitcnt vmcnt(8)")
    vG = 4
    def er(k): return ACC + 16 * (k >> 3) + 8 + (k & 7)
    A.label("L_gchk")
    A(f"v_cmp_ne_u32 vcc, s{sTAG}, {v(GT+1)}")
    A("s_nop 1")
    A("s_cmp_eq_u64 vcc, 0")
    A("s_cbranch_scc1 L_gok")
    spin_guard(A, "L_gok")
    gload()
    A("s_waitcnt vmcnt(0)")
    A("s_branch L_gchk")
    A.label("L_gok")
    A(f"v_lshlrev_b32 v6, 2, {v(vGq)}")
    A(f"v_lshlrev_b32 v7, 2, {v(vL15)}")
    for i in range(8): A(f"ds_bpermute_b32 {v(GR+i)}, v6, {v(GT)} offset:{16*i}")
    for tt in range(2): A(f"ds_bpermute_b32 {v(vG+tt)}, v7, {v(GT)} offset:{64*tt}")
    A("s_mov_b32 s10, 0xffff0000")
    B = Asm()
    B(f"v_lshlrev_b32 {v(DS)}, 16, {v(DR)}")
    B(f"v_and_b32 {v(DS+1)}, s10, {v(DR)}")
    B(f"v_lshlrev_b32 {v(DS+2)}, 16, {v(DR+1)}")
    B(f"v_and_b32 {v(DS+3)}, s10, {v(DR+1)}")
    B("s_waitcnt lgkmcnt(0)")
    a0, a2, om = HS, HS + 2, HS + 4
    for i in range(8):
        B(f"v_sub_f32 {v(om)}, 1.0, {v(GR+i)}")
        rnd_bf16(B, om, om)
        for p in range(2):
            x_ = xr(i) + p
            B(f"v_lshlrev_b32 {v(a0)}, 16, {v(x_)}")
            B(f"v_and_b32 {v(a0+1)}, s10, {v(x_)}")
            B(f"v_mul_f32 {v(a2)}, {v(a0)}, {v(DS+2*p)}")
            B(f"v_mul_f32 {v(a2+1)}, {v(a0+1)}, {v(DS+2*p+1)}")
            B(f"v_cvt_pk_bf16_f32 {v(a2)}, {v(a2)}, {v(a2+1)}")
            B(f"v_mul_f32 {v(a0)}, {v(a0)}, {v(om)}")
            B(f"v_mul_f32 {v(a0+1)}, {v(a0+1)}, {v(om)}")
            B(f"v_cvt_pk_bf16_f32 {v(a0)}, {v(a0)}, {v(a0+1)}")
            B(f"v_and_b32 {v(a2+1)}, s10, {v(a2)}")
            B(f"v_lshlrev_b32 {v(a2)}, 16, {v(a2)}")
            B(f"v_and_b32 {v(a0+1)}, s10, {v(a0)}")
            B(f"v_lshlrev_b32 {v(a0)}, 16, {v(a0)}")
            B(f"v_fma_f32 {v(er(4*i+2*p))}, {v(GR+i)}, {v(a2)}, {v(a0)}")
            B(f"v_fma_f32 {v(er(4*i+2*p+1))}, {v(GR+i)}, {v(a2+1)}, {v(a0+1)}")
    el = B.lines
    cq = [(st, q) for st in range(3) for q in range(4)]
    C0 = opt.get("c_at", 999)
    for n, l in enumerate(el):
        if n >= C0 and n % opt.get("c_gap", 12) == 0 and cq: emit(cdma(*cq.pop(0)))
        A(l)
    el = []
    for q in range(4): A(f"v_mov_b32 {v(16+q)}, {v(vDC+q)}")
    vDC = 16
    A(f"v_mov_b32 {v(vH0)}, {v(ga)}")
    A(f"v_add_u32 {v(vH1)}, 4096, {v(ga)}")
    A(f"s_lshl_b32 s38, s{sWV}, 13")
    A(f"s_add_u32 s{sHB}, s48, s38")
    vCN, vOne, vPo = 32, 33, 34
    A(f"v_mov_b32 {v(vCN)}, {L_CNT}")
    A(f"v_mov_b32 {v(vOne)}, 1")
    A(f"v_bfe_u32 {v(t2)}, {v(vLane)}, 1, 3")
    A(f"v_xor_b32 {v(t2)}, {v(t2)}, {v(vGq)}")
    A(f"v_lshlrev_b32 {v(t2)}, 4, {v(t2)}")
    A(f"v_lshl_add_u32 {v(t2)}, {v(vL15)}, 7, {v(t2)}")
    for kk in range(2):
        A(f"v_xor_b32 {v(vRC+kk)}, {64*kk}, {v(t2)}")
        A(f"v_add_u32 {v(vRC2+kk)}, 0x10000, {v(vRC+kk)}")
    A(f"v_xor_b32 {v(vFo)}, s{sE8}, {v(vL15)}")
    A(f"v_lshlrev_b32 {v(vFo)}, {FSH}, {v(vFo)}")
    A(f"v_mov_b32 {v(t1)}, s{sTAG}")
    A(f"v_lshlrev_b32 {v(t2)}, 2, {v(vLane)}")
    A(f"s_lshl_b32 s52, s{sRB}, {FSH + 4}")
    A(f"s_add_u32 s52, s52, {WS_HF}")
    A(f"s_lshl_b32 s46, s{sCB}, {FSH}")
    A("s_add_u32 s46, s46, s52")
    A(f"s_waitcnt vmcnt({vm.need('hs')})")
    lds_arrive_last(A, vCN, vT + 1, C_HF, "L_nohf")
    flag_store(A, t1, t2, sW, 46)
    A.label("L_nohf")
    stamp(A, 8, ST and not opt.get('p0st') and not opt.get('p2st') and not opt.get('p1st'))
    while cq: emit(cdma(*cq.pop(0)))
    MW = 0xffff if AM else 0xff
    def fpoll(mask):
        A(f"s_mov_b64 exec, {mask}")
        A(f"buffer_load_dword {v(vFl)}, {v(vFo)}, {s(sW,4)}, s52 offen sc1")
        A("s_mov_b64 exec, -1")
    A.label("L_hpoll")
    fpoll(MW)
    A("s_waitcnt vmcnt(0)")
    A(f"v_cmp_ne_u32 vcc, s{sTAG}, {v(vFl)}")
    A("s_nop 1")
    A(f"s_and_b32 s38, vcc_lo, {MW}")
    A("s_cbranch_scc0 L_hgo")
    spin_guard(A, "L_hgo")
    A(f"s_sleep {opt.get('h_sleep', 2)}")
    A("s_branch L_hpoll")
    A.label("L_hgo")
    lds_add(A, vCN, vOne, C_GO)
    stamp(A, 9, ST and not opt.get('p1st'))
    def hload(st, j):
        out = []
        if j == 0:
            out += stage_cb(sH, st)
            out.append(f"s_lshl_b32 s{sH}, s{sH}, 15")
            out.append(f"s_add_u32 s{sH}, s{sH}, s{sHB}")
        r = HR + (st % HD) * 32 + 4 * j
        out.append(f"buffer_load_dwordx4 {v(r,4)}, {v(vH0 if j < 4 else vH1)}, {s(sW,4)}, s{sH} offen offset:{1024*(j&3)} {opt.get('hld', 'sc1')}")
        vm.add(("h", st, j))
        return out
    for j in range(4): emit(hload(0, j))
    def creads(g):
        st, ks = g >> 2, g & 3
        off = slot2(st) * 16384 + (ks >> 1) * 8192
        base = vRC
        if off >= 65536: off -= 65536; base = vRC2
        F = CF + (g & 1) * 16
        return [f"ds_read_b128 {v(F+4*dt,4)}, {v(base + (ks & 1))} offset:{off + 2048*dt}" for dt in range(4)]
    lds_wait(A, vCN, vPo, C_GO, 4, "sync0")
    stamp(A, 10, ST and not opt.get('p1st'))
    emit(creads(0))
    for j in range(4, 8): emit(hload(0, j))
    for j in range(8): emit(hload(1, j))
    LA = opt.get("c_la", 4)
    assert LA <= 4
    cq = [(st, q) for st in range(3, LA) for q in range(4)]
    for g in range(64):
        st, ks = g >> 2, g & 3
        if opt.get("p2st") and g in (8, 16, 24, 32, 48):
            stamp(A, {8: 1, 16: 2, 24: 4, 32: 7, 48: 8}[g], ST)
        gchk = 999 if AM else 4 * (8 - HD)
        if g == gchk - 3:
            fpoll("0xff00"); vm.add("f")
        if g == gchk:
            A(f"s_waitcnt vmcnt({vm.need('f')})")
            A.label("L_h2poll")
            A(f"v_cmp_ne_u32 vcc, s{sTAG}, {v(vFl)}")
            A("s_nop 1")
            A("s_and_b32 s38, vcc_lo, 0xff00")
            A("s_cbranch_scc0 L_h2go")
            spin_guard(A, "L_h2go")
            A("s_sleep 2")
            fpoll("0xff00")
            A("s_waitcnt vmcnt(0)")
            A("s_branch L_h2poll")
            A.label("L_h2go")
            if opt.get("p2st"): stamp(A, 6, ST)
        hn = vm.need(('h', st, 2*ks+1))
        if st < 15 and ks == 1:
            assert vm.ops.count(("c", st + 1)) == 4
            emit(creads(g + 1))
            A(f"s_waitcnt vmcnt({min(hn, vm.need(('c', st + 1)))}) lgkmcnt(4)")
            lds_add(A, vCN, vOne, C_ST)
        elif st < 15 and ks == 3:
            A("s_waitcnt lgkmcnt(0)")
            A(f"v_readfirstlane_b32 s38, {v(vPo)}")
            A("s_nop 1")
            A(f"s_cmp_ge_u32 s38, {4 * (st + 1)}")
            A(f"s_cbranch_scc1 L_st{st}_ok")
            lds_wait(A, vCN, vPo, C_ST, 4 * (st + 1), f"st{st}", 0)
            if st + LA < 16: cq += [(st + LA, q) for q in range(4)]
            emit(creads(g + 1))
            A(f"s_waitcnt vmcnt({hn})")
        elif g + 1 < 64:
            emit(creads(g + 1))
            A(f"s_waitcnt vmcnt({hn}) lgkmcnt(4)")
        else:
            A(f"s_waitcnt vmcnt({hn}) lgkmcnt(0)")
        F = CF + (g & 1) * 16
        for tt in range(2):
            hr = HR + (st % HD) * 32 + 4 * (2 * ks + tt)
            for dt in range(4):
                d = ACC2 + 4 * (tt * 4 + dt)
                A(f"v_mfma_f32_16x16x32_bf16 {v(d,4)}, {v(F+4*dt,4)}, {v(hr,4)}, {'0' if g == 0 else v(d,4)}")
            if st < 15 and ks == 2 and tt == 0: A(f"ds_read_b32 {v(vPo)}, {v(vCN)} offset:{C_ST}")
            if st + HD < 16: emit(hload(st + HD, 2 * ks + tt))
            if cq and (tt == 0 or len(cq) > 4): emit(cdma(*cq.pop(0)))
    assert not el and not cq
    stamp(A, 11, ST and not opt.get('p1st'))
    assert slot2(15) == 5 and slot2(14) == 3
    TB = 0
    wa, ra, oa = vT, vT + 1, vT + 2
    A(f"s_mul_i32 s38, s{sWV}, 8704")
    A(f"s_add_u32 s56, s38, {TB}")
    A(f"v_mul_u32_u24 {v(wa)}, 272, {v(vL15)}")
    A(f"v_lshl_add_u32 {v(wa)}, {v(vGq)}, 4, {v(wa)}")
    A(f"v_add_u32 {v(wa)}, s56, {v(wa)}")
    A(f"v_mul_u32_u24 {v(ra)}, 272, {v(vGq)}")
    A(f"v_lshl_add_u32 {v(ra)}, {v(vL15)}, 4, {v(ra)}")
    A(f"v_add_u32 {v(ra)}, s56, {v(ra)}")
    A(f"v_lshlrev_b32 {v(oa)}, 12, {v(vGq)}")
    A(f"v_lshl_add_u32 {v(oa)}, {v(vL15)}, 4, {v(oa)}")
    A(f"v_lshlrev_b32 {v(vT+3)}, 2, {v(vLane)}")
    A(f"v_add_u32 {v(vT+3)}, {L_TOP}, {v(vT+3)}")
    lds_wait(A, vCN, vPo, C_TOP, 1, "topw")
    A(f"ds_read_b32 {v(vT+4)}, {v(vT+3)}")
    for tt in range(2):
        for dt in range(4):
            r = ACC2 + 4 * (tt * 4 + dt)
            A(pk_mul(r, vG, tt, r))
            A(pk_mul(r + 2, vG, tt, r + 2))
            A(f"ds_write_b128 {v(wa)}, {v(r,4)} offset:{tt*16*272 + dt*64}")
    A("s_waitcnt lgkmcnt(8)")
    A(f"v_and_b32 {v(vT+4)}, 0x7ff, {v(vT+4)}")
    A(f"s_sub_u32 s38, 2047, s{sT0}")
    A(f"v_sub_u32 {v(vT+4)}, s38, {v(vT+4)}")
    A(f"v_cmp_gt_u32 vcc, 32, {v(vT+4)}")
    A("s_nop 1")
    A("s_and_b32 s57, vcc_lo, 0xff")
    if opt.get("nodown"): A("s_mov_b32 s57, 0")
    Y = HR
    A.label("L_fix")
    A("s_cmp_eq_u32 s57, 0")
    A("s_cbranch_scc1 L_fixd")
    A("s_ff1_i32_b32 s38, s57")
    A("s_bitset0_b32 s57, s38")
    A(f"v_readlane_b32 s39, {v(vT+4)}, s38")
    A("s_mov_b32 s49, s38")
    A(f"v_lshl_add_u32 {v(Y+10)}, s49, 2, {v(vCN)}")
    lds_wait(A, Y + 10, vPo, C_DF, 1, "dfw", 2)
    A("s_lshl_b32 s38, s49, 8")
    A(f"s_add_u32 s38, s38, {L_DEL}")
    A(f"v_lshl_add_u32 {v(Y+9)}, {v(vL15)}, 4, s38")
    A("s_mul_i32 s39, s39, 272")
    A("s_add_u32 s39, s39, s56")
    A(f"v_lshl_add_u32 {v(Y+8)}, {v(vL15)}, 4, s39")
    A(f"ds_read_b128 {v(Y,4)}, {v(Y+8)}")
    A(f"ds_read_b128 {v(Y+4,4)}, {v(Y+9)}")
    A("s_waitcnt lgkmcnt(0)")
    A(pk_add(Y, Y, Y + 4))
    A(pk_add(Y + 2, Y + 2, Y + 6))
    A(f"ds_write_b128 {v(Y+8)}, {v(Y,4)}")
    A("s_waitcnt lgkmcnt(0)")
    A("s_branch L_fix")
    A.label("L_fixd")
    for i in range(8):
        A(f"ds_read_b128 {v(ACC2+4*i,4)}, {v(ra)} offset:{i*4*272}")
    A(f"s_lshl_b32 s38, s{sT0}, 12")
    A(f"s_lshl_b32 s39, s{sCB}, 8")
    A("s_add_u32 s38, s38, s39")
    stf = opt.get("ostore", "sc1")
    for i in range(8):
        A(f"s_waitcnt lgkmcnt({7-i})")
        A(pk_add(ACC2 + 4 * i, ACC2 + 4 * i, er(4 * i)))
        A(pk_add(ACC2 + 4 * i + 2, ACC2 + 4 * i + 2, er(4 * i + 2)))
        A(f"buffer_store_dwordx4 {v(ACC2+4*i,4)}, {v(oa)}, {s(sO,4)}, s38 offen {stf}")
        A("s_add_u32 s38, s38, 16384")
    stamp(A, 12, ST and not opt.get('p1st'))
    stamp_out(A, ST, sW, sWV, 0)
    A("s_endpgm")
```

```python
from common import *

class Sched:
    def __init__(self, A): self.A = A; self.nb = 0
    def bar(self, upto=None):
        tgt = self.nb + 1 if upto is None else upto
        assert tgt >= self.nb, (tgt, self.nb)
        while self.nb < tgt:
            self.A("s_barrier"); self.nb += 1

def dyn_bars(A, sreg, name):
    A.label(f"L_{name}_l")
    A(f"s_cmp_eq_u32 s{sreg}, 0")
    A(f"s_cbranch_scc1 L_{name}_d")
    A("s_barrier")
    A(f"s_sub_u32 s{sreg}, s{sreg}, 1")
    A(f"s_branch L_{name}_l")
    A.label(f"L_{name}_d")

def gen_side(A, opt):
    ST = opt.get("sstamps")
    sX, sW, sWG, sWU, sWD, sPC = 8, 12, 52, 28, 4, 32
    sWV, sRB, sDB, sCS, sKQ = 18, 16, 17, 22, 23
    S = Sched(A)
    A.label("L_side")
    A(f"s_sub_u32 s{sWV}, s{sWV}, 4")
    A("v_and_b32 v2, 63, v0")
    A("s_lshl_b32 s19, s3, 8")
    A("s_lshl_b32 s39, s38, 3")
    A("s_add_u32 s19, s19, s39")
    vDA, vDB = 100, 104
    sXb, sBb, sROT, sK, sLW = 8, 24, 56, 57, 58
    lincomb(A, sRB, sDB, sROT, [128 * c for c in opt.get("rot", [0, 0, 0, 0])])
    A(f"s_lshl_b32 s{sLW}, s{sWV}, 12")
    A("v_lshrrev_b32 v4, 3, v2")
    A("v_and_b32 v5, 7, v2")
    A("v_lshrrev_b32 v6, 4, v2")
    A("v_xor_b32 v5, v5, v6")
    A("v_lshlrev_b32 v5, 4, v5")
    A("v_lshrrev_b32 v7, 1, v2")
    A("v_and_b32 v7, 16, v7")
    A("v_and_or_b32 v7, v2, 8, v7")
    A("v_and_or_b32 v6, v6, 1, v7")
    A(f"s_lshr_b32 s20, s{sWV}, 1")
    A(f"s_and_b32 s21, s{sWV}, 1")
    A("s_lshl_b32 s38, s20, 6")
    A("s_lshl_b32 s39, s21, 2")
    A("s_add_u32 s38, s38, s39")
    A(f"s_lshl_b32 s39, s{sRB}, 7")
    A("s_add_u32 s38, s38, s39")
    A("v_add_u32 v6, s38, v6")
    A("v_lshl_add_u32 v6, v6, 11, v5")
    A("v_xor_b32 v7, 64, v6")
    for q in range(4):
        add = (32 * (q & 1) + 2 * (q >> 1)) * 2048 - 1024 * q + 3072
        A(f"v_add_u32 {v(vDA+q)}, {add}, {'v7' if q & 1 else 'v6'}")
    A(f"s_lshl_b32 s38, s{sDB}, 6")
    A("s_lshl_b32 s39, s20, 5")
    A("s_add_u32 s38, s38, s39")
    A("v_add_u32 v6, s38, v4")
    A("v_lshl_add_u32 v6, v6, 11, v5")
    A("v_xor_b32 v7, 64, v6")
    for q in range(4):
        A(f"v_add_u32 {v(vDB+q)}, {8*2048*q - 1024*q + 3072}, {'v7' if q & 1 else 'v6'}")
    A("s_waitcnt lgkmcnt(0)")
    srd(A, sXb, 40, 41, 4194304, bias=3072)
    vm = Vm()
    def item(i):
        st, op = i >> 1, i & 1
        A(f"s_add_u32 m0, s{sLW}, {(i % NSLOT) * 16384}")
        if op == 0:
            A(f"s_add_u32 s{sK}, s{sROT}, {st * 128}")
            A(f"s_and_b32 s{sK}, s{sK}, 2047")
        else:
            A("s_nop 0")
        for q in range(4):
            A(f"buffer_load_dwordx4 {v((vDB if op else vDA) + q)}, {s(sBb if op else sXb,4)}, s{sK} offen offset:{1024*q} {opt.get('bflag' if op else 'aflag', '')} lds")
            vm.add(("d", i))
    item(0)
    A("s_cmp_eq_u32 s21, 0")
    A(f"s_cselect_b32 s{sBb}, s68, s70")
    A(f"s_cselect_b32 s{sBb+1}, s69, s71")
    srd(A, sBb, sBb, sBb + 1, 2097152, bias=3072)
    item(1)
    stamp(A, 3, opt.get("p0st"))
    load_tag(A, 42, 43)
    srd(A, sW, 42, 43, WS_USED)
    A("s_mov_b32 s21, 0xffff0000")
    A("v_and_b32 v11, 15, v2")
    NI = opt.get("n_init", 4)
    for i in range(2, NI): item(i)
    stamp(A, 6, opt.get("p0st"))
    XR = 24
    P = [Asm() for _ in range(4)]
    B = P[0]
    B("v_lshlrev_b32 v6, 2, v11")
    B(f"v_add_u32 v6, {L_SCR}, v6")
    for p in range(8):
        B(f"ds_read_b32 {v(XR+p)}, v6 offset:{64*p}")
    B = P[1]
    B("v_and_b32 v7, 7, v2")
    B("s_sub_u32 s38, 2047, s19")
    B("v_sub_u32 v21, s38, v7")
    B("v_lshlrev_b32 v7, 3, v7")
    B("v_bfe_u32 v20, v2, 3, 1")
    B("v_lshl_add_u32 v7, v20, 14, v7")
    B("s_waitcnt lgkmcnt(0)")
    B(pk_add(XR, XR, XR + 2)); B(pk_add(XR + 4, XR + 4, XR + 6)); B(pk_add(XR, XR, XR + 4))
    B(f"v_add_f32 {v(XR)}, {v(XR)}, {v(XR+1)}")
    B = P[2]
    rnd_bf16(B, XR, XR)
    sigmoid(B, XR + 2, XR)
    rnd_bf16(B, XR + 2, XR + 2)
    B("v_cmp_eq_u32 vcc, 1, v20")
    B = P[3]
    B(f"v_ashrrev_i32 {v(XR+1)}, 31, {v(XR)}")
    B(f"v_or_b32 {v(XR+1)}, 0x80000000, {v(XR+1)}")
    B(f"v_xor_b32 {v(XR)}, {v(XR)}, {v(XR+1)}")
    B(f"v_and_or_b32 {v(XR)}, {v(XR)}, s21, v21")
    B(f"v_cndmask_b32 {v(XR)}, {v(XR)}, {v(XR+2)}, vcc")
    B(f"v_mov_b32 {v(XR+1)}, s{sTAG}")
    B("s_lshl_b32 s38, s19, 3")
    B(f"s_add_u32 s38, s38, {WS_KEY}")
    B("s_mov_b64 exec, 0xffff")
    B(f"buffer_store_dwordx2 {v(XR,2)}, v7, {s(sW,4)}, s38 offen sc1")
    B("s_mov_b64 exec, -1")
    A("v_lshlrev_b32 v3, 4, v2")
    A(f"s_mul_hi_u32 s{sKQ}, s2, {(1 << 32) // 56 + 1}")
    A(f"s_mul_i32 s38, s{sKQ}, 56")
    A(f"s_sub_u32 s{sCS}, s2, s38")
    A("v_lshrrev_b32 v5, 3, v2")
    A("v_and_b32 v8, 7, v2")
    A("v_and_b32 v12, 3, v5")
    A("v_lshlrev_b32 v12, 1, v12")
    A("v_xor_b32 v8, v8, v12")
    A("v_mul_u32_u24 v4, 7168, v5")
    A("v_lshl_add_u32 v4, v8, 4, v4")
    A(f"s_lshl_b32 s38, s{sWV}, 6")
    A(f"s_lshl_b32 s39, s{sKQ}, 8")
    A("s_add_u32 s44, s38, s39")
    A("s_mul_i32 s45, s44, 7168")
    A(f"s_lshl_b32 s39, s{sCS}, 7")
    A("s_add_u32 s45, s45, s39")
    A(f"s_lshl_b32 s92, s{sWV}, 14")
    A(f"s_add_u32 s92, s92, {L_W}")
    srd(A, sWG, 46, 47, 7340032)
    srd(A, sWU, 48, 49, 7340032)
    A("s_mov_b32 s46, s92")
    def wdma(i):
        gu, q = i >> 3, i & 7
        A(f"s_add_u32 m0, s46, {1024*i}")
        A(f"s_add_u32 s39, s45, {q*8*7168}")
        A(f"buffer_load_dwordx4 v4, {s(sWU if gu else sWG,4)}, s39 offen {opt.get('wflag','nt')} lds")
    A("s_cmp_ge_u32 s2, 224")
    A(f"s_cselect_b32 s{sWG+2}, 0, s{sWG+2}")
    A(f"s_cselect_b32 s{sWU+2}, 0, s{sWU+2}")
    if opt.get("x_nogu"):
        A(f"s_mov_b32 s{sWG+2}, 0"); A(f"s_mov_b32 s{sWU+2}, 0")
    wi = 0
    SW = opt.get("swarm", 4)
    if SW:
        if opt.get("amap"):
            A("s_lshl_b32 s36, s3, 7")
        else:
            A("s_and_b32 s39, s3, 1")
            A("s_lshl_b32 s36, s39, 9")
            A("s_lshr_b32 s39, s3, 1")
            A("s_lshl_b32 s39, s39, 7")
            A("s_add_u32 s36, s36, s39")
        A("s_lshr_b32 s39, s2, 3")
        A("s_lshl_b32 s39, s39, 2")
        A("s_add_u32 s36, s36, s39")
        A(f"s_add_u32 s36, s36, s{sWV}")
        A("s_lshl_b32 s36, s36, 11")
        A("s_add_u32 s84, s72, s36")
        A("s_addc_u32 s85, s73, 0")
        A("s_add_u32 s86, s74, s36")
        A("s_addc_u32 s87, s75, 0")
    SST = opt.get('swarm_stride', 64)
    sq = [(m, j) for j in range(2048 // SST) for m in range(2)] if SW else []
    BA, NA = opt.get("ba_st", [3, 7]), opt.get("ba_n", 12)
    A("s_lshr_b32 s37, s2, 3")
    A(f"s_mul_i32 s37, s37, {len(BA)}")
    A("s_lshr_b32 s37, s37, 5")
    if BA: wi = NA
    A("v_lshlrev_b32 v5, 11, v5")
    A("v_lshl_add_u32 v5, v8, 4, v5")
    A(f"s_lshl_b32 s47, s{sCS}, 17")
    A(f"s_lshl_b32 s39, s{sKQ}, 9")
    A("s_add_u32 s47, s47, s39")
    A(f"s_lshl_b32 s39, s{sWV}, 7")
    A("s_add_u32 s47, s47, s39")
    srd(A, sWD, 50, 51, 7340032)
    A("s_cmp_ge_u32 s2, 224")
    A(f"s_cselect_b32 s{sWD+2}, 0, s{sWD+2}")
    DW = 200
    dq = list(range(8))
    def dload(n, thr=None):
        for _ in range(n):
            if dq:
                i = dq.pop(0)
                if thr is not None: A(f"s_waitcnt vmcnt({thr})")
                A(f"buffer_load_dwordx4 {v(DW+4*i,4)}, v5, {s(sWD,4)}, s47 offen {opt.get('wflag','nt')}"); vm.add("dw")
                A(f"s_add_u32 s47, s47, {8*2048}")
    WS = opt.get("w_sched", {})
    WS = {int(k): x for k, x in WS.items()}
    for st in range(14):
        A(f"s_waitcnt vmcnt({vm.need(('d', 2*st+1))})" + (" lgkmcnt(0)" if st == 0 else ""))
        if st == 0: stamp(A, 9, opt.get("p0st"))
        S.bar()
        if st == 0: make_tag(A)
        for i in range(NI if st == 0 else 2 * st + 4, 2 * st + 6): item(i)
        for _ in range(WS.get(st, 0)): wdma(wi); wi += 1; vm.add("w")
        if st in BA:
            A(f"s_cmp_lg_u32 s37, {BA.index(st)}")
            A(f"s_cbranch_scc1 L_s_nb{st}")
            for i in range(NA): wdma(i)
            A.label(f"L_s_nb{st}")
        if st >= opt.get("swarm_st", 0):
            for _ in range(SW):
                if sq:
                    m, j = sq.pop(0)
                    A(f"s_load_dword s36, s[{84+2*m}:{85+2*m}], {SST*j}")
        pi = st - opt.get("rg_st", -1) - 1
        if 0 <= pi < 4:
            A(f"s_cmp_lg_u32 s{sWV}, 0")
            A(f"s_cbranch_scc1 L_s_nk{st}")
            for l in P[pi].lines: A(l)
            A.label(f"L_s_nk{st}")
        if pi == 3: stamp(A, 1, ST)
    B = Asm()
    B("v_lshrrev_b32 v10, 4, v2")
    B("v_bfe_u32 v12, v2, 2, 2")
    B("v_lshl_add_u32 v13, v10, 3, v12")
    B("v_lshlrev_b32 v13, 7, v13")
    B("v_and_b32 v14, 3, v2")
    B("v_lshl_add_u32 v13, v14, 3, v13")
    B("v_add_u32 v13, s92, v13")
    for nt in range(4):
        B(f"v_xor_b32 v14, {nt}, v12")
        B(f"v_lshl_add_u32 {v(16+nt)}, v14, 5, v13")
    B("s_load_dwordx4 s[24:27], s[0:1], 40")
    srd(B, sX, 40, 41, 4194304)
    wadr = B.lines
    def spf(n):
        for _ in range(n):
            if sq:
                m, j = sq.pop(0)
                A(f"s_load_dword s36, s[{84+2*m}:{85+2*m}], {SST*j}")
    KG, KY = 80, 64
    A(f"s_lshl_b32 s58, s{sWV}, 12")
    A(f"s_add_u32 s58, s58, {WS_KEY}")
    def kloads():
        for i in range(4):
            A(f"buffer_load_dwordx4 {v(KG+4*i,4)}, v3, {s(sW,4)}, s58 offen offset:{1024*i} sc1"); vm.add("k")
    A("s_mov_b32 s57, -1")
    kloads()
    for _ in range(min(16 - wi, opt.get("w_b13", 1))): wdma(wi); wi += 1; vm.add("w")
    A(f"s_waitcnt vmcnt({vm.need(('d', 29))})")
    S.bar(15)
    stamp(A, 2, ST)
    for _ in range(min(16 - wi, opt.get("w_b14", 10))): wdma(wi); wi += 1; vm.add("w")
    dload(opt.get("d_b14", 7))
    spf(SW)
    A(f"s_waitcnt vmcnt({vm.need(('d', 31))})")
    S.bar(16)
    dload(opt.get("d_b15", 1))
    spf(2 * SW)
    for l in wadr: A(l)
    A("v_mov_b32 v8, 0")
    for _ in range(min(16 - wi, opt.get("w_b15", 5))): wdma(wi); wi += 1; vm.add("w")
    S.bar(17)
    A(f"s_waitcnt vmcnt({vm.need('k')})")
    A.label("L_s_poll")
    for i in range(8):
        A(f"v_xor_b32 {v(KG+2*i+1)}, s{sTAG}, {v(KG+2*i+1)}")
    A(f"v_or3_b32 v9, {v(KG+1)}, {v(KG+3)}, {v(KG+5)}")
    A(f"v_or3_b32 v9, v9, {v(KG+7)}, {v(KG+9)}")
    A(f"v_or3_b32 v9, v9, {v(KG+11)}, {v(KG+13)}")
    A(f"v_or_b32 v9, v9, {v(KG+15)}")
    A("v_cmp_ne_u32 vcc, 0, v9")
    A("s_nop 1")
    A("s_cmp_eq_u64 vcc, 0")
    A("s_cbranch_scc1 L_s_go")
    spin_guard(A, "L_s_go")
    A("s_sleep 8")
    kloads()
    A("s_waitcnt vmcnt(0)")
    A("s_branch L_s_poll")
    A.label("L_s_go")
    TH = opt.get("w_thr", 3)
    D = 72
    for rnd in range(8):
        spf(2 if rnd < 7 else 99)
        if wi < 16 and not opt.get("w_gate", 1):
            A(f"s_waitcnt vmcnt({TH-1})")
            wdma(wi); wi += 1
        for i in range(8):
            A(f"v_sub_u32 {v(D+i)}, s57, {v(KG+2*i)}")
        A(f"v_min3_u32 v9, {v(D)}, {v(D+1)}, {v(D+2)}")
        A(f"v_min3_u32 v15, {v(D+3)}, {v(D+4)}, {v(D+5)}")
        A(f"v_min3_u32 v9, v9, {v(D+6)}, {v(D+7)}")
        A(f"v_min_u32 v9, v9, v15")
        for r in (8, 4, 2, 1):
            A("s_nop 1")
            A(f"v_min_u32_dpp v9, v9, v9 row_ror:{r} row_mask:0xf bank_mask:0xf")
        A("s_nop 0")
        for i in range(4):
            A(f"v_readlane_b32 s{48+i}, v9, {16*i}")
        A("s_nop 0")
        A("s_min_u32 s48, s48, s49")
        A("s_min_u32 s50, s50, s51")
        A("s_min_u32 s48, s48, s50")
        A("s_sub_u32 s57, s57, s48")
        A(f"v_writelane_b32 v8, s57, {rnd}")
        A("s_sub_u32 s57, s57, 1")
    while wi < 16 and not opt.get("w_gate", 1):
        A(f"s_waitcnt vmcnt({TH-1})")
        wdma(wi); wi += 1
    A(f"s_lshl_b32 s38, s{sWV}, 5")
    A(f"s_add_u32 s38, s38, {L_CND}")
    A("v_lshl_add_u32 v9, v2, 2, s38")
    vCN, vOne = 20, 21
    A(f"v_mov_b32 {v(vCN)}, {L_CNT}")
    A(f"v_mov_b32 {v(vOne)}, 1")
    A("s_mov_b64 exec, 0xff")
    A("ds_write_b32 v9, v8")
    lds_add(A, vCN, vOne, C_CND)
    lds_wait(A, vCN, 15, C_CND, 4, "s_cw")
    stamp(A, 3, ST and not opt.get('p0st'))
    A("v_and_b32 v9, 31, v2")
    A("v_lshlrev_b32 v9, 2, v9")
    A(f"v_add_u32 v9, {L_CND}, v9")
    A(f"v_mov_b32 v15, {L_CND}")
    A("ds_read_b32 v14, v9")
    for i in range(8):
        A(f"ds_read_b128 {v(KY+4*i,4)}, v15 offset:{16*i}")
    A("v_mov_b32 v12, 0")
    A("s_waitcnt lgkmcnt(0)")
    for i0 in range(0, 32, 2):
        for i in range(2):
            A(f"v_cmp_gt_u32 s[{48+2*i}:{49+2*i}], {v(KY+i0+i)}, v14")
        A("s_nop 0")
        for i in range(2):
            A(f"v_addc_co_u32 v12, vcc, 0, v12, s[{48+2*i}:{49+2*i}]")
    A("v_lshlrev_b32 v12, 2, v12")
    A("s_mov_b32 exec_hi, 0")
    A("ds_permute_b32 v13, v12, v14")
    A("s_mov_b64 exec, -1")
    A("v_and_b32 v12, 7, v2")
    A("v_lshlrev_b32 v12, 2, v12")
    A("s_waitcnt lgkmcnt(0)")
    A("ds_bpermute_b32 v8, v12, v13")
    A("s_waitcnt lgkmcnt(0)")
    A(f"v_lshlrev_b32 v9, 2, v2")
    A(f"v_add_u32 v9, {L_TOP}, v9")
    A("s_mov_b64 exec, 0xff")
    A("ds_write_b32 v9, v8")
    lds_add(A, vCN, vOne, C_TOP)
    A(f"s_or_b32 s38, s2, s{sWV}")
    A("s_cbranch_scc1 L_s_noep")
    A("s_mov_b64 exec, 1")
    A(f"s_mov_b32 s38, {WS_EPOCH}")
    A(f"v_mov_b32 v13, s{sTAG}")
    A("v_mov_b32 v9, 0")
    A(f"buffer_store_dword v13, v9, {s(sW,4)}, s38 offen")
    A("s_mov_b64 exec, -1")
    A.label("L_s_noep")
    A("v_and_b32 v9, 0x7ff, v8")
    A("v_sub_u32 v9, 2047, v9")
    A("v_lshlrev_b32 v9, 11, v9")
    A("v_lshl_add_u32 v9, v10, 4, v9")
    A("s_lshl_b32 s38, s44, 1")
    A("s_and_b32 s38, s38, 2047")
    XF = 64
    for ks in range(2):
        A(f"buffer_load_dwordx4 {v(XF+4*ks,4)}, v9, {s(sX,4)}, s38 offen offset:{64*ks}")
    stamp(A, 4, ST and not opt.get('p0st'))
    if opt.get("amap"):
        A("s_lshl_b32 s56, s3, 7")
    else:
        A("s_and_b32 s39, s3, 1")
        A("s_lshl_b32 s56, s39, 9")
        A("s_lshr_b32 s39, s3, 1")
        A("s_lshl_b32 s39, s39, 7")
        A("s_add_u32 s56, s56, s39")
    A("s_lshr_b32 s39, s2, 3")
    A("s_lshl_b32 s39, s39, 2")
    A("s_add_u32 s56, s56, s39")
    A(f"s_add_u32 s56, s56, s{sWV}")
    A("s_lshl_b32 s56, s56, 11")
    A("v_lshl_add_u32 v60, v2, 5, s56")
    S2E = 1
    nd2 = len(dq)
    if wi < 16 or dq or not SW:
        lds_wait(A, vCN, 15, C_LB, opt.get("s2_gate", 4), "s_lw", 2)
        if not SW:
            A("global_load_dword v61, v60, s[24:25]")
            A("global_load_dword v23, v60, s[26:27]")
        for i in range(wi, 16): wdma(i)
        dload(8, opt.get("s2_thr", 9))
    A(f"s_waitcnt vmcnt({nd2})")
    stamp(A, 5, ST and not opt.get('p0st'))
    CPF = opt.get("cpf", 1)
    if opt.get("codepf2", 1):
        A("v_lshlrev_b32 v59, 3, v0")
        A("v_and_b32 v59, 2047, v59")
        A(f"buffer_load_dwordx2 v[62:63], v59, {s(sPC,4)}, s59 offen")
    A("s_mov_b32 s59, 0")
    A("s_cmp_ge_u32 s2, 224")
    A("s_cbranch_scc1 L_s_gudone")
    WF = 100
    for gu in range(2):
        for nt in range(4):
            for ks in range(2):
                for rd in range(2):
                    A(f"ds_read_b64_tr_b16 {v(WF + ((gu*4+nt)*2+ks)*4 + 2*rd, 2)}, {v(16+nt)} offset:{gu*8192 + ks*4096 + rd*512}")
        A("s_waitcnt lgkmcnt(0)")
    OC = 24
    for ks in range(2):
        for gu in range(2):
            for nt in range(4):
                o = OC + (gu * 4 + nt) * 4
                A(f"v_mfma_f32_16x16x32_bf16 {v(o,4)}, {v(WF+((gu*4+nt)*2+ks)*4,4)}, {v(XF+4*ks,4)}, {'0' if ks == 0 else v(o,4)}")
    A("v_add_u32 v13, s46, v3")
    A("s_nop 7")
    for t in range(8):
        A(f"ds_write_b128 v13, {v(OC+4*t,4)} offset:{1024*t}")
    lds_arrive_last(A, vCN, 15, C_GU, "L_s_gudone")
    A(f"v_add_u32 v13, {L_W}, v3")
    WF = 64
    for w in range(4):
        for t in range(8):
            A(f"ds_read_b128 {v(WF+(w*8+t)*4,4)}, v13 offset:{w*16384 + 1024*t}")
        if w & 1: A("s_waitcnt lgkmcnt(0)")
    for r in range(0, 32, 2):
        A(pk_add(WF + r, WF + r, WF + 32 + r))
        A(pk_add(WF + 64 + r, WF + 64 + r, WF + 96 + r))
        A(pk_add(WF + r, WF + r, WF + 64 + r))
    A("v_and_b32 v13, 7, v2")
    A("v_mul_u32_u24 v13, 14336, v13")
    A("v_lshl_add_u32 v13, v10, 4, v13")
    A("v_and_b32 v14, 8, v2")
    A("v_lshl_add_u32 v13, v14, 3, v13")
    A("v_cmp_eq_u32 vcc, 8, v14")
    A(f"s_mul_i32 s38, s{sKQ}, {2*8*14336}")
    A(f"s_lshl_b32 s39, s{sCS}, 8")
    A("s_add_u32 s38, s38, s39")
    A(f"s_add_u32 s38, s38, {WS_GU}")
    A(f"s_add_u32 s39, s38, {8*14336}")
    for t in range(0, 8, 2):
        for r in range(4):
            A(f"v_cndmask_b32 {v(WF+4*t+r)}, {v(WF+4*t+r)}, {v(WF+4*t+4+r)}, vcc")
        A(f"buffer_store_dwordx4 {v(WF+4*t,4)}, v13, {s(sW,4)}, s{38+(t>>2)} offen offset:{64*(t&3)} sc1")
    A("s_mov_b32 s59, 1")
    A.label("L_s_gudone")
    stamp(A, 6, ST and not opt.get('p0st'))
    A("s_cmp_eq_u32 s59, 0")
    A("s_cbranch_scc1 L_s_nogf")
    A(f"s_lshl_b32 s38, s{sCS}, {FSH+2}")
    A(f"s_lshl_b32 s39, s{sKQ}, {FSH}")
    A("s_add_u32 s38, s38, s39")
    A(f"s_add_u32 s38, s38, {WS_GF}")
    A(f"v_mov_b32 v13, s{sTAG}")
    A("v_lshlrev_b32 v14, 2, v2")
    A("s_waitcnt vmcnt(0)")
    flag_store(A, 13, 14, sW, 38)
    A.label("L_s_nogf")
    A.label("L_s_h2done")
    stamp(A, 10, ST and not opt.get('p0st'))
    A("s_cmp_ge_u32 s2, 224")
    A("s_cbranch_scc1 L_s_cons")
    if opt.get("nodown"): A("s_branch L_s_end")
    A("v_add_u32 v13, s46, v3")
    A("s_waitcnt vmcnt(0)")
    for i in range(8):
        A(f"ds_write_b128 v13, {v(DW+4*i,4)} offset:{8192 + 1024*i}")
    A(f"s_lshl_b32 s56, s{sCS}, {FSH+2}")
    A(f"s_add_u32 s56, s56, {WS_GF}")
    A("v_and_b32 v13, 3, v2")
    A(f"v_lshlrev_b32 v13, {FSH}, v13")
    A("v_and_b32 v1, 255, v0")
    A("v_lshrrev_b32 v6, 5, v1")
    A("v_and_b32 v7, 31, v1")
    A("v_mul_u32_u24 v9, 14336, v6")
    A("v_lshl_add_u32 v9, v7, 3, v9")
    A.label("L_s_gpoll")
    A(f"buffer_load_dword v14, v13, {s(sW,4)}, s56 offen sc1")
    A("s_waitcnt vmcnt(0)")
    A(f"v_cmp_ne_u32 vcc, s{sTAG}, v14")
    A("s_nop 1")
    A("s_cmp_eq_u64 vcc, 0")
    A("s_cbranch_scc1 L_s_ggo")
    spin_guard(A, "L_s_ggo")
    A("s_sleep 16")
    A("s_branch L_s_gpoll")
    A.label("L_s_ggo")
    stamp(A, 7, ST and not opt.get('p0st'))
    A(f"s_lshl_b32 s38, s{sCS}, 8")
    A(f"s_add_u32 s38, s38, {WS_GU}")
    PL = 24
    for kq in range(4):
        for gu in range(2):
            A(f"buffer_load_dwordx2 {v(PL + 4*kq + 2*gu, 2)}, v9, {s(sW,4)}, s38 offen sc1")
            A(f"s_add_u32 s38, s38, {8*14336}")
    WF = 64
    for nt in range(4):
        for ks in range(2):
            for rd in range(2):
                A(f"ds_read_b64_tr_b16 {v(WF + (nt*2+ks)*4 + 2*rd, 2)}, {v(16+nt)} offset:{8192 + ks*4096 + rd*512}")
    A("s_waitcnt vmcnt(0)")
    for e in range(4):
        A(f"v_add_f32 {v(PL+e)}, {v(PL+e)}, {v(PL+4+e)}")
        A(f"v_add_f32 {v(PL+8+e)}, {v(PL+8+e)}, {v(PL+12+e)}")
        A(f"v_add_f32 {v(PL+e)}, {v(PL+e)}, {v(PL+8+e)}")
        rnd_bf16(A, PL + e, PL + e)
    for e in range(2):
        sigmoid(A, 40 + e, PL + e)
        A(f"v_mul_f32 {v(40+e)}, {v(40+e)}, {v(PL+e)}")
        rnd_bf16(A, 40 + e, 40 + e)
        A(f"v_mul_f32 {v(40+e)}, {v(40+e)}, {v(PL+2+e)}")
    A("v_cvt_pk_bf16_f32 v40, v40, v41")
    A("v_mul_u32_u24 v9, 144, v6")
    A("v_lshl_add_u32 v9, v7, 2, v9")
    A(f"v_add_u32 v9, {L_ACT}, v9")
    A("ds_write_b32 v9, v40")
    lds_add(A, vCN, vOne, C_ACT)
    A("v_and_b32 v9, 7, v2")
    A("v_mul_u32_u24 v9, 144, v9")
    A("v_lshl_add_u32 v9, v10, 4, v9")
    A(f"v_add_u32 v9, {L_ACT}, v9")
    lds_wait(A, vCN, 15, C_ACT, 4, "s_aw")
    A("ds_read_b128 v[40:43], v9")
    A("ds_read_b128 v[44:47], v9 offset:64")
    A(f"s_mov_b32 s38, {56*4096}")
    A("v_and_b32 v15, 7, v2")
    A("v_mul_lo_u32 v15, v15, s38")
    A("v_lshl_add_u32 v15, v10, 4, v15")
    A("v_and_b32 v14, 8, v2")
    A("v_lshl_add_u32 v15, v14, 3, v15")
    A(f"s_lshl_b32 s38, s{sCS}, 12")
    A(f"s_lshl_b32 s39, s{sKQ}, 10")
    A("s_add_u32 s38, s38, s39")
    A(f"s_lshl_b32 s39, s{sWV}, 8")
    A("s_add_u32 s38, s38, s39")
    A(f"s_add_u32 s38, s38, {WS_YP}")
    A("v_cmp_eq_u32 vcc, 8, v14")
    A("s_waitcnt lgkmcnt(0)")
    for ks in range(2):
        for nt in range(4):
            A(f"v_mfma_f32_16x16x32_bf16 {v(48+4*nt,4)}, {v(WF+(nt*2+ks)*4,4)}, {v(40+4*ks,4)}, {'0' if ks == 0 else v(48+4*nt,4)}")
    A("s_nop 7")
    for nt in (0, 2):
        for r in range(4):
            A(f"v_cndmask_b32 {v(48+4*nt+r)}, {v(48+4*nt+r)}, {v(52+4*nt+r)}, vcc")
        A(f"buffer_store_dwordx4 {v(48+4*nt,4)}, v15, {s(sW,4)}, s38 offen offset:{64*nt} sc1")
    A(f"s_lshl_b32 s58, s{sKQ}, {FSH+6}")
    A(f"s_lshl_b32 s39, s{sCS}, {FSH}")
    A("s_add_u32 s58, s58, s39")
    A(f"s_add_u32 s58, s58, {WS_YF}")
    A(f"v_mov_b32 v13, s{sTAG}")
    A("v_lshlrev_b32 v14, 2, v2")
    A("s_waitcnt vmcnt(0)")
    lds_arrive_last(A, vCN, 15, C_Y, "L_s_cons")
    flag_store(A, 13, 14, sW, 58)
    A.label("L_s_cons")
    stamp(A, 8, ST and not opt.get('p0st'))
    A(f"s_add_u32 s38, s{sWV}, 4")
    A(f"v_readlane_b32 s24, v8, s{sWV}")
    A(f"v_readlane_b32 s25, v8, s38")
    A(f"s_lshl_b32 s45, s{sRB}, 7")
    for t in range(2):
        A(f"s_and_b32 s{26+t}, s{24+t}, 0x7ff")
        A(f"s_sub_u32 s{26+t}, 2047, s{26+t}")
        A(f"s_sub_u32 s{56+t}, s{26+t}, s45")
    A("s_waitcnt lgkmcnt(0)")
    A("s_min_u32 s38, s56, s57")
    A("s_cmp_ge_u32 s38, 128")
    A("s_cbranch_scc1 L_s_end")
    if opt.get("nodown"): A("s_branch L_s_end")
    lds_wait(A, vCN, 15, C_ST, 4 * opt.get("s_cons", 10), "s_pw", 8)
    A(f"s_lshr_b32 s58, s{sDB}, 2")
    A(f"s_lshl_b32 s58, s58, {FSH+6}")
    A(f"s_add_u32 s58, s58, {WS_YF}")
    A("v_min_u32 v4, 55, v2")
    A(f"v_lshlrev_b32 v4, {FSH}, v4")
    A("v_lshlrev_b32 v6, 12, v10")
    A("v_lshl_add_u32 v6, v11, 4, v6")
    A("v_lshlrev_b32 v9, 3, v11")
    A("v_mov_b32 v7, 0")
    A.label("L_s_ypoll")
    A(f"buffer_load_dword v5, v4, {s(sW,4)}, s58 offen sc1")
    A("s_waitcnt vmcnt(0)")
    A(f"v_cmp_ne_u32 vcc, s{sTAG}, v5")
    A("s_nop 1")
    A("s_cmp_eq_u64 vcc, 0")
    A("s_cbranch_scc1 L_s_ygo")
    spin_guard(A, "L_s_ygo")
    A("s_sleep 12")
    A("s_branch L_s_ypoll")
    A.label("L_s_ygo")
    stamp(A, 9, ST and not opt.get('p0st'))
    for t in range(2):
        Y = 24 + 64 * t
        A(f"s_cmp_ge_u32 s{56+t}, 128")
        A(f"s_cbranch_scc1 L_s_sk{t}")
        A(f"s_add_u32 s39, s{sWV}, {4*t}")
        A(f"s_mul_i32 s39, s39, {56*4096}")
        A(f"s_lshl_b32 s3, s{sDB}, 8")
        A("s_add_u32 s39, s39, s3")
        A(f"s_add_u32 s39, s39, {WS_YP}")
        for it in range(14):
            A(f"buffer_load_dwordx4 {v(Y+4*it,4)}, v6, {s(sW,4)}, s39 offen sc1")
            A("s_add_u32 s39, s39, 16384")
        A(f"s_lshl_b32 s39, s{26+t}, 11")
        A(f"s_lshl_b32 s3, s{sDB}, 7")
        A("s_add_u32 s39, s39, s3")
        A(f"buffer_load_dwordx2 {v(Y+56,2)}, v9, {s(sX,4)}, s39 offen")
        A(f"s_lshl_b32 s39, s{26+t}, 3")
        A(f"s_add_u32 s39, s39, {WS_G}")
        A(f"buffer_load_dword {v(Y+58)}, v7, {s(sW,4)}, s39 offen sc1")
        A.label(f"L_s_sk{t}")
    A("s_waitcnt vmcnt(0)")
    for t in range(2):
        Y = 24 + 64 * t
        A(f"s_cmp_ge_u32 s{56+t}, 128")
        A(f"s_cbranch_scc1 L_s_sc{t}")
        A(f"s_ashr_i32 s39, s{24+t}, 31")
        A("s_not_b32 s39, s39")
        A("s_or_b32 s39, s39, 0x80000000")
        A(f"s_xor_b32 s39, s{24+t}, s39")
        A("s_and_b32 s39, s39, 0xffff0000")
        A(f"v_mov_b32 {v(Y+62)}, s39")
        sigmoid(A, Y + 59, Y + 62)
        rnd_bf16(A, Y + 59, Y + 59)
        for it in range(1, 14):
            A(pk_add(Y, Y, Y + 4 * it))
            A(pk_add(Y + 2, Y + 2, Y + 4 * it + 2))
        xsum_groups(A, [Y + e for e in range(4)], [Y + 4 + e for e in range(4)])
        A(f"v_sub_f32 {v(Y+58)}, 1.0, {v(Y+58)}")
        rnd_bf16(A, Y + 58, Y + 58)
        A(f"v_lshlrev_b32 {v(Y+8)}, 16, {v(Y+56)}")
        A(f"v_and_b32 {v(Y+9)}, s21, {v(Y+56)}")
        A(f"v_lshlrev_b32 {v(Y+10)}, 16, {v(Y+57)}")
        A(f"v_and_b32 {v(Y+11)}, s21, {v(Y+57)}")
        for e in range(4):
            rnd_bf16(A, Y + e, Y + e)
            A(f"v_mul_f32 {v(Y+e)}, {v(Y+e)}, {v(Y+59)}")
            rnd_bf16(A, Y + e, Y + e)
            A(f"v_add_f32 {v(Y+e)}, {v(Y+e)}, {v(Y+8+e)}")
            rnd_bf16(A, Y + e, Y + e)
            A(f"v_mul_f32 {v(Y+e)}, {v(Y+e)}, {v(Y+58)}")
            rnd_bf16(A, Y + e, Y + e)
            A(f"v_mul_f32 {v(Y+8+e)}, {v(Y+8+e)}, {v(Y+58)}")
            rnd_bf16(A, Y + 8 + e, Y + 8 + e)
            A(f"v_sub_f32 {v(Y+e)}, {v(Y+e)}, {v(Y+8+e)}")
        A(f"s_lshl_b32 s39, s{sWV}, 8")
        A(f"s_add_u32 s39, s39, {L_DEL + 1024*t}")
        A(f"v_lshl_add_u32 {v(Y+60)}, v11, 4, s39")
        A(f"ds_write_b128 {v(Y+60)}, {v(Y,4)}")
        A(f"v_lshl_add_u32 {v(Y+61)}, s{sWV}, 2, {v(vCN)}")
        lds_add(A, Y + 61, vOne, C_DF + 16 * t)
        A.label(f"L_s_sc{t}")
    A.label("L_s_end")
    stamp_out(A, ST, sW, sWV, 1)
    A("s_endpgm")
```

```python
from common import *

def gen_gemm(A, opt, part):
    ST = opt.get("stamps")
    AM = opt.get("amap")
    sX, sB, sW, sAG, sC, sO = 4, 8, 12, 24, 28, 32
    sRB, sCB, sWV, sWM, sWN, sK, sROT, sLW = 16, 17, 18, 19, 20, 21, 22, 23
    vDA, vDB = 8, 12
    vRA, vRB, vRA2, vRB2 = 16, 18, 20, 22
    vLane, vGq, vL15, vAgO = 24, 25, 26, 27
    Lr, Li, Cr, Ci, L8r, L8i, L16r, L16i, L512r, L512i, Fr, Fi, Wr, Wi = [28 + 2 * i for i in range(14)]
    vT = 56
    ACC = 64
    FX, FY = 128, 160
    UI = FX
    EP = 192
    ea, eb, la, wa, ra, ga = [EP + i for i in range(6)]
    XT, vDC, VS = EP + 6, EP + 10, EP + 14
    PT = 224
    def acc(m, part, c2): return ACC + 4 * (m * 4 + part * 2 + c2)

    RX, RW, RD = PT, PT + 16, 12
    if part == "early":
        A(f"v_and_b32 {v(vL15)}, 15, v0")
        A(f"v_bfe_u32 v4, v0, 7, 1")
        A(f"v_lshl_add_u32 v4, v4, 5, {v(vL15)}")
        A(f"s_lshl_b32 s39, s{sCB}, 6")
        A(f"v_add_lshl_u32 {v(PT+31)}, s39, v4, 1")
        A("s_waitcnt lgkmcnt(0)")
        for c2 in range(2):
            A(f"global_load_ushort {v(PT+c2)}, {v(PT+31)}, s[64:65] offset:{32*c2}")
            A(f"global_load_ushort {v(PT+2+c2)}, {v(PT+31)}, s[66:67] offset:{32*c2}")
            A(f"global_load_ushort {v(PT+4+c2)}, {v(PT+31)}, s[76:77] offset:{32*c2}")
        A("s_branch L_gemm")
        return
    A.label("L_gemm")
    load_tag(A, 42, 43)
    A(f"s_lshr_b32 s{sWN}, s{sWV}, 1")
    A("s_lshl_b32 s50, s3, 8")
    A("s_lshl_b32 s39, s38, 3")
    A("s_add_u32 s50, s50, s39")
    A("s_lshl_b32 s50, s50, 11")
    A(f"s_lshl_b32 s51, s{sWV}, 9")
    A("s_add_u32 s50, s50, s51")
    A(f"s_lshl_b32 s39, s{sWV}, 14")
    A(f"s_add_u32 m0, s39, {L_W}")
    A("v_and_b32 v4, 31, v0")
    A("v_lshlrev_b32 v4, 4, v4")
    A("v_bfe_u32 v5, v0, 5, 1")
    A("v_lshl_add_u32 v5, v5, 11, v4")
    A("v_add_u32 v4, s51, v4")
    A("v_mov_b32 v6, s44")
    A("v_mov_b32 v7, s45")
    A("s_mov_b32 exec_lo, 0")
    A("v_mov_b32 v6, s80")
    A("v_mov_b32 v7, s81")
    A("s_mov_b32 exec_lo, -1")
    A("v_add_co_u32 v6, vcc, v6, v4")
    srd(A, sX, 40, 41, 4194304)
    A("v_addc_co_u32 v7, vcc, 0, v7, vcc")
    for i in range(4):
        A(f"buffer_load_dwordx4 v5, {s(sX,4)}, s50 offen {opt.get('aflag', '')} lds")
        A("s_add_u32 m0, m0, 1024")
        A("s_add_u32 s50, s50, 4096")
    A("global_load_lds_dwordx4 v[6:7], off")
    if opt.get("bwarm", 1):
        if AM:
            A("s_lshl_b32 s50, s3, 7")
        else:
            A("s_and_b32 s39, s3, 1")
            A("s_lshl_b32 s50, s39, 9")
            A("s_lshr_b32 s39, s3, 1")
            A("s_lshl_b32 s39, s39, 7")
            A("s_add_u32 s50, s50, s39")
        A("s_lshl_b32 s39, s38, 2")
        A("s_add_u32 s50, s50, s39")
        A(f"s_add_u32 s50, s50, s{sWV}")
        A("s_lshl_b32 s50, s50, 11")
        A("v_and_b32 v4, 63, v0")
        A("v_lshl_add_u32 v3, v4, 5, s50")
        A("global_load_dword v10, v3, s[68:69]")
        A("global_load_dword v11, v3, s[70:71]")
        A("s_mov_b64 s[8:9], s[72:73]")
        A("s_mov_b64 s[10:11], s[74:75]")
    A("s_mov_b64 s[52:53], s[72:73]")
    A("s_mov_b64 s[54:55], s[74:75]")
    A("s_mov_b64 s[58:59], s[78:79]")
    A("s_mov_b64 s[36:37], s[82:83]")
    stamp(A, 5, opt.get("p0st"))
    A(f"v_and_b32 {v(vLane)}, 63, v0")
    A(f"s_and_b32 s{sWM}, s{sWV}, 1")
    A(f"s_lshl_b32 s{sLW}, s{sWV}, 12")
    A(f"v_lshrrev_b32 {v(vGq)}, 4, {v(vLane)}")
    rr, cc, t1, t2 = vT, vT + 1, vT + 2, vT + 3
    A(f"v_lshrrev_b32 {v(rr)}, 3, {v(vLane)}")
    A(f"v_and_b32 {v(cc)}, 7, {v(vLane)}")
    A(f"v_lshrrev_b32 {v(t1)}, 1, {v(rr)}")
    A(f"v_xor_b32 {v(cc)}, {v(cc)}, {v(t1)}")
    A(f"v_lshlrev_b32 {v(cc)}, 4, {v(cc)}")
    def emit(ls):
        for l in ls: A(l)
    srd(A, sW, 42, 43, WS_USED)
    A(f"s_lshl_b32 s38, s{sCB}, 14")
    A(f"s_add_u32 s38, s38, {WS_AGG}")
    A(f"s_add_u32 s{sAG}, s42, s38")
    A(f"s_addc_u32 s{sAG+1}, s43, 0")
    A(f"s_mov_b32 s{sAG+2}, 16384")
    A(f"s_mov_b32 s{sAG+3}, 0x20000")
    A(f"s_cmp_lt_u32 s{sWV}, 2")
    A(f"s_cselect_b32 s{sC}, s52, s54")
    A(f"s_cselect_b32 s{sC+1}, s53, s55")
    srd(A, sC, sC, sC + 1, 2097152, bias=3072)
    srd(A, sO, 36, 37, 8388608)
    A(f"v_bfe_u32 {v(t2)}, {v(vLane)}, 1, 3")
    A(f"v_xor_b32 {v(t2)}, {v(t2)}, {v(vGq)}")
    A(f"v_lshlrev_b32 {v(t2)}, 4, {v(t2)}")
    A(f"v_lshl_add_u32 {v(t2)}, {v(vL15)}, 7, {v(t2)}")
    A(f"s_lshl_b32 s38, s{sWM}, 13")
    A(f"s_lshl_b32 s39, s{sWN}, 13")
    for kk in range(2):
        A(f"v_xor_b32 {v(t1)}, {64*kk}, {v(t2)}")
        A(f"v_add_u32 {v(vRA+kk)}, s38, {v(t1)}")
        A(f"v_add_u32 {v(vRB+kk)}, s39, {v(t1)}")
        A(f"v_add_u32 {v(vRA2+kk)}, 0x10000, {v(vRA+kk)}")
        A(f"v_add_u32 {v(vRB2+kk)}, 0x10000, {v(vRB+kk)}")
    A(f"v_and_b32 {v(t1)}, 31, {v(vLane)}")
    A(f"v_lshlrev_b32 {v(vAgO)}, 4, {v(t1)}")
    A(f"s_sub_u32 s38, 15, s{sRB}")
    A("s_lshl_b32 s38, s38, 10")
    A(f"s_lshl_b32 s39, s{sWN}, 9")
    A("s_add_u32 s92, s38, s39")
    A(f"v_add_u32 {v(vAgO)}, s92, {v(vAgO)}")
    A(f"s_cmp_eq_u32 s{sWM}, 1")
    A("s_cselect_b64 s[98:99], -1, 0")

    def rd_frags(st, kk, F):
        out = []
        for op, (r1, r2) in enumerate(((vRA, vRA2), (vRB, vRB2))):
            off = ((2 * st + op) % NSLOT) * 16384
            base = r1
            if off >= 65536: off -= 65536; base = r2
            for t in range(4):
                out.append(f"ds_read_b128 {v(F + 16*op + 4*t, 4)}, {v(base+kk)} offset:{off + 2048*t}")
        return [out[0], out[4], out[5], out[6], out[7], out[1], out[2], out[3]]
    def mfmas(F, first):
        out = []
        for m in range(4):
            for n in range(4):
                d = ACC + 4 * (m * 4 + n)
                out.append(f"v_mfma_f32_16x16x32_bf16 {v(d,4)}, {v(F+4*m,4)}, {v(F+16+4*n,4)}, {'0' if first else v(d,4)}")
        return out

    B = Asm()
    lre, lim, ldt = PT, PT + 2, PT + 4
    t = PT + 6
    for r in range(6): B(f"v_lshlrev_b32 {v(PT+r)}, 16, {v(PT+r)}")
    for c in range(2):
        B(f"v_mul_f32 {v(t+c)}, {LOG2E}, {v(ldt+c)}")
    for c in range(2): B(f"v_exp_f32 {v(t+c)}, {v(t+c)}")
    B("s_nop 0")
    for c in range(2): rnd_bf16(B, t + c, t + c)
    B(pk_mul(t + 2, t, None, lre))
    B(pk_mul(t + 4, t, None, lim))
    for c in range(2):
        B(f"v_mul_f32 {v(t+2+c)}, {LOG2E}, {v(t+2+c)}")
        B(f"v_mul_f32 {v(t+4+c)}, {INV2PI}, {v(t+4+c)}")
    for c in range(2):
        B(f"v_exp_f32 {v(t+2+c)}, {v(t+2+c)}")
        B(f"v_rndne_f32 {v(t+6+c)}, {v(t+4+c)}")
    for c in range(2): B(f"v_sub_f32 {v(t+4+c)}, {v(t+4+c)}, {v(t+6+c)}")
    for c in range(2):
        B(f"v_cos_f32 {v(t+6+c)}, {v(t+4+c)}")
        B(f"v_sin_f32 {v(t+8+c)}, {v(t+4+c)}")
    B(pk_mul(t + 10, lre, None, lre))
    B(pk_fma(t + 10, lim, None, lim, t + 10))
    B(pk_mul(Lr, t + 2, None, t + 6))
    B(pk_mul(Li, t + 2, None, t + 8))
    for c in range(2): B(f"v_rcp_f32 {v(t+10+c)}, {v(t+10+c)}")
    for c in range(2): B(f"v_add_f32 {v(t+c)}, -1.0, {v(Lr+c)}")
    B(pk_add(t + 10, t + 10, t + 10))
    B(pk_mul(t + 2, t, None, lre))
    B(pk_fma(t + 2, Li, None, lim, t + 2))
    B(pk_mul(t + 4, Li, None, lre))
    B(pk_fma(t + 4, t, None, lim, t + 4, neg=True))
    B(pk_mul(Cr, t + 2, None, t + 10))
    B(pk_mul(Ci, t + 4, None, t + 10))
    a0, a1, b0, b1, c0, c1, d0, d1 = [PT + 2 * i for i in range(8)]
    pk_csq(B, a0, a1, Lr, Li)
    pk_csq(B, b0, b1, a0, a1)
    pk_csq(B, L8r, L8i, b0, b1)
    pk_csq(B, L16r, L16i, L8r, L8i)
    pk_csq(B, a0, a1, L16r, L16i)
    pk_csq(B, b0, b1, a0, a1)
    B(f"v_and_b32 {v(PT+16)}, 1, {v(vGq)}")
    B(f"v_cmp_eq_u32 s[84:85], 1, {v(PT+16)}")
    B(f"v_cmp_lt_u32 s[86:87], 1, {v(vGq)}")
    B("s_nop 0")
    def sel(dr, di, sr, si, mask):
        for c in range(2):
            B(f"v_cndmask_b32 {v(dr+c)}, 1.0, {v(sr+c)}, {mask}")
            B(f"v_cndmask_b32 {v(di+c)}, 0, {v(si+c)}, {mask}")
    e0, e1 = PT + 18, PT + 20
    sel(c0, c1, L16r, L16i, "s[84:85]")
    sel(d0, d1, a0, a1, "s[86:87]")
    pk_cmul(B, e0, e1, c0, c1, None, d0, d1)
    sel(c0, c1, b0, b1, "s[98:99]")
    pk_cmul(B, Wr, Wi, e0, e1, None, c0, c1)
    pk_csq(B, a0, a1, b0, b1)
    pk_csq(B, b0, b1, a0, a1)
    pk_csq(B, L512r, L512i, b0, b1)
    sel(c0, c1, a0, a1, "s[84:85]")
    sel(d0, d1, b0, b1, "s[86:87]")
    pk_cmul(B, Fr, Fi, c0, c1, None, d0, d1)
    for c2 in range(2):
        B(f"v_mov_b32 {v(a0)}, {v(Wr+c2)}")
        B(f"v_mov_b32 {v(a1)}, {v(Wi+c2)}")
        B(f"v_mul_f32 {v(a0+1)}, {v(L8r+c2)}, {v(Wr+c2)}")
        B(f"v_mul_f32 {v(a1+1)}, {v(L8r+c2)}, {v(Wi+c2)}")
        B(f"v_fma_f32 {v(a0+1)}, -{v(L8i+c2)}, {v(Wi+c2)}, {v(a0+1)}")
        B(f"v_fma_f32 {v(a1+1)}, {v(L8i+c2)}, {v(Wr+c2)}, {v(a1+1)}")
        pk_cmul(B, VS + 4 * c2, VS + 4 * c2 + 2, Cr, Ci, c2, a0, a1)
    par = B.lines
    B = Asm()
    B(f"s_lshl_b32 s38, s{sWN}, 8")
    B(f"s_add_u32 s38, s38, {L_EX}")
    B(f"v_lshl_add_u32 {v(eb)}, {v(vL15)}, 4, s38")
    B(f"s_lshl_b32 s39, s{sWM}, 11")
    B(f"v_lshl_add_u32 {v(ea)}, {v(vGq)}, 9, {v(eb)}")
    B(f"v_add_u32 {v(ea)}, s39, {v(ea)}")
    B(f"v_lshlrev_b32 {v(la)}, 10, {v(vGq)}")
    B(f"v_lshl_add_u32 {v(la)}, {v(vL15)}, 4, {v(la)}")
    B("s_add_u32 s38, s92, 1024")
    B(f"v_add_u32 {v(la)}, s38, {v(la)}")
    B(f"v_sub_u32 {v(t1)}, s{sRB}, {v(vGq)}")
    B(f"v_mov_b32 {v(t2)}, s{sTAG}")
    for i in range(4):
        B(f"v_cmp_lt_i32 vcc, {4*i}, {v(t1)}")
        B("s_nop 1")
        B(f"v_cndmask_b32 {v(XT+i)}, 0, {v(t2)}, vcc")
    B(f"s_mul_i32 s38, s{sWV}, 9216")
    B(f"s_add_u32 s38, s38, {L_TR}")
    B(f"v_mul_u32_u24 {v(wa)}, 144, {v(vL15)}")
    B(f"v_lshl_add_u32 {v(wa)}, {v(vGq)}, 5, {v(wa)}")
    B(f"v_add_u32 {v(wa)}, s38, {v(wa)}")
    B(f"v_bfe_u32 {v(ra)}, {v(vLane)}, 2, 2")
    B(f"v_lshl_add_u32 {v(ra)}, {v(vGq)}, 3, {v(ra)}")
    B(f"v_mul_u32_u24 {v(ra)}, 144, {v(ra)}")
    B(f"v_and_b32 {v(t1)}, 3, {v(vLane)}")
    B(f"v_lshl_add_u32 {v(ra)}, {v(t1)}, 3, {v(ra)}")
    B(f"v_add_u32 {v(ra)}, s38, {v(ra)}")
    B(f"v_lshlrev_b32 {v(ga)}, 4, {v(vLane)}")
    B(f"s_lshl_b32 s38, s{sCB}, 6")
    B(f"s_lshl_b32 s39, s{sWM}, 5")
    B("s_add_u32 s38, s38, s39")
    B(f"v_add_u32 {v(t1)}, s38, {v(rr)}")
    B(f"v_lshl_add_u32 {v(t1)}, {v(t1)}, 11, {v(cc)}")
    B(f"v_xor_b32 {v(t2)}, 64, {v(t1)}")
    for q in range(4):
        B(f"v_add_u32 {v(vDC+q)}, {8*2048*q - 1024*q + 3072}, {v(t2 if q & 1 else t1)}")
    sROT2 = 55
    B(f"s_and_b32 s{sROT2}, s{sCB}, 7")
    sE8 = 54
    B(f"s_and_b32 s{sE8}, s{sCB}, {0 if AM else 8}")
    B(f"s_lshl_b32 s48, s{sRB}, 19")
    B(f"s_lshl_b32 s39, s{sCB}, 15")
    B("s_add_u32 s53, s48, s39")
    B(f"s_lshl_b32 s39, s{sWN}, 11")
    B("s_add_u32 s53, s53, s39")
    B(f"s_lshl_b32 s39, s{sWM}, 14")
    B("s_add_u32 s53, s53, s39")
    sT0, sGB, sXB = 51, 57, 56
    vXo, vGo, vDo = EP + 28, EP + 29, EP + 30
    B(f"s_lshl_b32 s{sT0}, s{sRB}, 7")
    B(f"s_lshl_b32 s38, s{sWV}, 5")
    B(f"s_add_u32 s{sT0}, s{sT0}, s38")
    B(f"s_lshl_b32 s{sGB}, s{sT0}, 3")
    B(f"s_add_u32 s{sGB}, s{sGB}, {WS_G}")
    B(f"s_lshl_b32 s{sXB}, s{sT0}, 11")
    B(f"s_lshl_b32 s39, s{sCB}, 7")
    B(f"s_add_u32 s{sXB}, s{sXB}, s39")
    B(f"v_lshlrev_b32 {v(vXo)}, 11, {v(vGq)}")
    B(f"v_lshl_add_u32 {v(vXo)}, {v(vL15)}, 3, {v(vXo)}")
    B(f"v_and_b32 {v(vGo)}, 31, {v(vLane)}")
    B(f"v_lshlrev_b32 {v(vGo)}, 3, {v(vGo)}")
    B(f"v_lshl_add_u32 {v(vDo)}, {v(vL15)}, 3, s39")
    if opt.get("pretouch", 1):
        B(f"s_not_b32 s39, s{sTAG}")
        for r in range(4): B(f"v_mov_b32 {v(60+r)}, s39")
        B(f"v_lshlrev_b32 {v(t2)}, 2, {v(vLane)}")
        B(f"s_mul_hi_u32 s8, s2, {(1 << 32) // 56 + 1}")
        B("s_mul_i32 s9, s8, 56")
        B("s_sub_u32 s9, s2, s9")
        B(f"s_lshl_b32 s10, s9, {FSH+2}")
        B(f"s_lshl_b32 s11, s8, {FSH}")
        B("s_add_u32 s10, s10, s11")
        B(f"s_add_u32 s10, s10, {WS_GF}")
        B(f"s_lshl_b32 s11, s8, {FSH+6}")
        B(f"s_lshl_b32 s9, s9, {FSH}")
        B("s_add_u32 s11, s11, s9")
        B(f"s_add_u32 s11, s11, {WS_YF}")
        B(f"s_lshl_b32 s9, s{sRB}, {FSH + 4}")
        B(f"s_lshl_b32 s38, s{sCB}, {FSH}")
        B("s_add_u32 s9, s9, s38")
        B(f"s_add_u32 s9, s9, {WS_HF}")
        B("s_cmp_ge_u32 s2, 224")
        B("s_cselect_b32 s10, s9, s10")
        B("s_cselect_b32 s11, s9, s11")
        B(f"s_cmp_eq_u32 s{sWV}, 1")
        B("s_cselect_b32 s9, s10, s9")
        B(f"s_cmp_eq_u32 s{sWV}, 3")
        B("s_cselect_b32 s9, s11, s9")
        B("s_mov_b32 exec_hi, 0")
        B(f"buffer_store_dword v60, {v(t2)}, {s(sW,4)}, s9 offen sc1")
        B(f"buffer_store_dwordx4 v[60:63], {v(vAgO)}, {s(sAG,4)}, 0 offen sc1")
        B("s_mov_b32 exec_hi, -1")
    adr = B.lines

    A("s_waitcnt lgkmcnt(0)")
    stamp(A, 6, opt.get("p0st"))
    make_tag(A)
    emit(adr)
    stamp(A, 7, opt.get("p0st"))
    A(f"s_lshl_b32 s39, s{sWV}, 14")
    A(f"s_add_u32 s39, s39, {L_W}")
    A(f"v_and_b32 v4, 7, {v(vLane)}")
    A("v_lshlrev_b32 v4, 9, v4")
    A(f"v_bfe_u32 v5, {v(vLane)}, 3, 1")
    A("v_lshl_add_u32 v4, v5, 6, v4")
    A(f"v_lshl_add_u32 v4, {v(vGq)}, 4, v4")
    A("v_add_u32 v4, s39, v4")
    A(f"v_and_b32 v7, 1, {v(vLane)}")
    A("v_lshlrev_b32 v5, 9, v7")
    A(f"v_bfe_u32 v6, {v(vLane)}, 1, 1")
    A("v_lshl_add_u32 v5, v6, 6, v5")
    A(f"v_lshl_add_u32 v5, {v(vGq)}, 4, v5")
    A("v_add_u32 v5, s39, v5")
    A(f"v_lshrrev_b32 v6, 1, {v(vGq)}")
    A("v_lshlrev_b32 v6, 6, v6")
    A("v_lshl_add_u32 v6, v7, 5, v6")
    A(f"v_and_b32 v7, 1, {v(vGq)}")
    A("v_lshl_add_u32 v6, v7, 4, v6")
    A(f"s_lshl_b32 s39, s{sWV}, 7")
    A(f"s_add_u32 s39, s39, {L_SCR}")
    A("v_add_u32 v6, s39, v6")
    NPRE = opt.get("par_pre", 999)
    NPT = 2 if opt.get("pretouch", 1) else 0
    A(f"s_waitcnt vmcnt({NPT + (7 if opt.get('bwarm', 1) else 5)})")
    stamp(A, 8, opt.get("p0st"))
    emit(par); par = []
    RGS = opt.get("rg_st", -1)
    rg1 = []
    for ks in range(4):
        rg1.append(f"ds_read_b128 {v(RX+4*ks,4)}, v4 offset:{128*ks}")
        rg1.append(f"ds_read_b128 {v(RW+4*ks,4)}, v5 offset:{4096 + 128*ks}")
    rg2 = [f"v_mfma_f32_16x16x32_bf16 {v(RD,4)}, {v(RX+4*ks,4)}, {v(RW+4*ks,4)}, {'0' if ks == 0 else v(RD,4)}" for ks in range(4)]
    rg3 = ["s_mov_b32 exec_lo, 0x00030003", "s_mov_b32 exec_hi, 0x000c000c", f"ds_write_b128 v6, {v(RD,4)}", "s_mov_b64 exec, -1"]
    if RGS < 0:
        A(f"s_waitcnt vmcnt({NPT + (2 if opt.get('bwarm', 1) else 0)})")
        emit(rg1); A("s_waitcnt lgkmcnt(0)"); emit(rg2); A("s_nop 7"); emit(rg3)
    if opt.get("prio", 0): A(f"s_setprio {opt.get('prio', 0)}")
    stamp(A, 1, ST and not opt.get('p2st') and not opt.get('p1st'))
    def xr(i): return PT + 2 * i
    GT, DR, GR, DS = PT + 16, PT + 18, PT + 20, PT + 28
    def gload(): A(f"buffer_load_dwordx2 {v(GT,2)}, {v(vGo)}, {s(sW,4)}, s{sGB} offen sc1")
    RSL = opt.get("rd_slots", [0, 1, 3, 4, 6, 7, 9, 10])
    for st in range(16):
        A("s_waitcnt lgkmcnt(0)" + (" vmcnt(0)" if st == RGS else ""))
        A("s_barrier")
        if st == 0: stamp(A, 2, ST and not opt.get('p2st') and not opt.get('p1st'))
        if opt.get("p1st") and st in (0, 1, 2, 3, 4, 6, 8, 10, 12, 14):
            stamp(A, {0: 1, 1: 2, 2: 4, 3: 5, 4: 6, 6: 7, 8: 8, 10: 9, 12: 10, 14: 11}[st], ST)
        for half in range(2):
            rds = rd_frags(st, half, FX if half == 0 else FY)
            if half == 0:
                mf = mfmas(FY, False) if st > 0 else []
            else:
                A("s_waitcnt lgkmcnt(0)")
                if st == RGS: emit(rg2)
                mf = mfmas(FX, st == 0)
            if st == RGS and half == 0: par = list(rg1)
            if not mf: emit(rds); rds = []
            for k, m in enumerate(mf):
                A(m)
                if k in RSL: A(rds.pop(0))
                else:
                    for _ in range(opt.get("par_n", 1)):
                        if par: A(par.pop(0))
            assert not rds
            if st == RGS and half == 1: emit(rg3)
        if st == opt.get("cwarm", 99):
            A("global_load_dword v10, v3, s[8:9]")
            A("global_load_dword v11, v3, s[10:11]")
    assert not par, len(par)
    A("s_waitcnt lgkmcnt(0) vmcnt(0)")
    emit(mfmas(FY, False))
    stamp(A, 3, ST)

    def ure(c2, q): return acc(q >> 1, 0, c2) + 2 * (q & 1)
    def uim(c2, q): return acc(q >> 1, 1, c2) + 2 * (q & 1)
    def uI(c2, q): return UI + 16 * c2 + 2 * q
    HS = 8
    TT = 16
    EE = 56
    PUB = 60
    PIN = EP + 24
    t9 = EP + 22
    for i in range(4): A(f"s_mov_b32 s{44+i}, {4096*i}")
    A(f"v_mov_b32 {v(PUB+1)}, s{sTAG}")
    A(f"v_mov_b32 {v(PUB+3)}, s{sTAG}")
    A(f"v_and_b32 {v(PIN)}, 31, {v(vLane)}")
    A(f"v_lshlrev_b32 {v(PIN)}, 2, {v(PIN)}")
    A(f"v_add_u32 {v(PIN)}, {L_CNT}, {v(PIN)}")
    A(f"v_mov_b32 {v(PIN+2)}, 0")
    A(f"ds_write_b32 {v(PIN)}, {v(PIN+2)}")
    for q in range(1, 8):
        for c2 in range(2):
            hr, hi, tr_, ti = HS + 4 * c2, HS + 4 * c2 + 2, TT + 4 * c2, TT + 4 * c2 + 2
            pr = ure(c2, 0) if q == 1 else hr
            pi = uim(c2, 0) if q == 1 else hi
            A(pk_fma(tr_, Li, c2, pi, ure(c2, q), neg=True))
            A(pk_fma(ti, Li, c2, pr, uim(c2, q)))
            A(pk_fma(hr, Lr, c2, pr, tr_))
            A(pk_fma(hi, Lr, c2, pi, ti))
    for c2 in range(2):
        hr, hi = HS + 4 * c2, HS + 4 * c2 + 2
        A(f"v_fma_f32 {v(EE+c2)}, -{v(L8i+c2)}, {v(hi)}, {v(hr+1)}")
        A(f"v_fma_f32 {v(EE+2+c2)}, {v(L8i+c2)}, {v(hr)}, {v(hi+1)}")
    for c2 in range(2):
        hr, hi = HS + 4 * c2, HS + 4 * c2 + 2
        A(f"v_fma_f32 {v(EE+c2)}, {v(L8r+c2)}, {v(hr)}, {v(EE+c2)}")
        A(f"v_fma_f32 {v(EE+2+c2)}, {v(L8r+c2)}, {v(hi)}, {v(EE+2+c2)}")
    A(f"ds_write_b128 {v(ea)}, {v(EE,4)}")
    A("s_waitcnt lgkmcnt(0)")
    A("s_barrier")
    PE = FY
    for sp in range(8):
        A(f"ds_read_b128 {v(PE+4*sp,4)}, {v(eb)} offset:{sp*512}")
    for sp in range(1, 8):
        A(f"s_waitcnt lgkmcnt({7-sp})")
        pr, pi, er, ei = PE + 4 * (sp - 1), PE + 4 * (sp - 1) + 2, PE + 4 * sp, PE + 4 * sp + 2
        A(pk_fma(er, L16i, None, pi, er, neg=True))
        A(pk_fma(ei, L16i, None, pr, ei))
        A(pk_fma(er, L16r, None, pr, er))
        A(pk_fma(ei, L16r, None, pi, ei))
    A(f"v_cndmask_b32 {v(PUB)}, {v(PE+28)}, {v(PE+29)}, s[84:85]")
    A(f"v_cndmask_b32 {v(PUB+2)}, {v(PE+30)}, {v(PE+31)}, s[84:85]")
    A(f"s_cmp_lg_u32 s{sWM}, 0")
    A("s_cbranch_scc1 L_nopub")
    A("s_mov_b32 exec_hi, 0")
    A(f"buffer_store_dwordx4 {v(PUB,4)}, {v(vAgO)}, {s(sAG,4)}, 0 offen sc1")
    A("s_mov_b32 exec_hi, -1")
    A.label("L_nopub")
    stamp(A, 4, ST and not opt.get('p0st') and not opt.get('p2st') and not opt.get('p1st'))
    LQ = FY
    def lb_loads():
        for c2 in range(2):
            for i in range(4):
                A(f"buffer_load_dwordx4 {v(LQ+16*c2+4*i,4)}, {v(la)}, {s(sAG,4)}, s{44+i} offen offset:{256*c2} sc1")
    B = Asm()
    for r in range(4):
        for g in range(4):
            lo = "0" if g == 0 else v(PE + 4 * (g - 1) + r)
            B(f"v_cndmask_b32 {v(TT+g)}, {lo}, {v(PE+4*(3+g)+r)}, s[98:99]")
        B(f"v_cndmask_b32 {v(TT)}, {v(TT)}, {v(TT+1)}, s[84:85]")
        B(f"v_cndmask_b32 {v(TT+2)}, {v(TT+2)}, {v(TT+3)}, s[84:85]")
        B(f"v_cndmask_b32 {v(PIN+r)}, {v(TT)}, {v(TT+2)}, s[86:87]")
    QS = 56
    for c2 in range(2):
        hr, hi = HS + 4 * c2, HS + 4 * c2 + 2
        qr, qi = TT, TT + 2
        B(f"v_mov_b32 {v(qr)}, {v(PIN+c2)}")
        B(f"v_mov_b32 {v(qi)}, {v(PIN+2+c2)}")
        B(f"v_fma_f32 {v(qr+1)}, -{v(L8i+c2)}, {v(PIN+2+c2)}, {v(hr)}")
        B(f"v_fma_f32 {v(qi+1)}, {v(L8i+c2)}, {v(PIN+c2)}, {v(hi)}")
        B(f"v_fma_f32 {v(qr+1)}, {v(L8r+c2)}, {v(PIN+c2)}, {v(qr+1)}")
        B(f"v_fma_f32 {v(qi+1)}, {v(L8r+c2)}, {v(PIN+2+c2)}, {v(qi+1)}")
        pk_cmul(B, QS + 4 * c2, QS + 4 * c2 + 2, Cr, Ci, c2, qr, qi)
    for q in range(8):
        for c2 in range(2):
            B(pk_mul(uI(c2, q), Cr, c2, uim(c2, q)))
            B(pk_fma(uI(c2, q), Ci, c2, ure(c2, q), uI(c2, q)))
            B(pk_mul(ure(c2, q), Cr, c2, ure(c2, q)))
            B(pk_fma(ure(c2, q), Ci, c2, uim(c2, q), ure(c2, q), neg=True))
    nlb = max(48, min(opt.get("lb_at", 60), len(B.lines)))
    emit(B.lines[:nlb])
    if opt.get("lb_delay"): A(f"s_sleep {opt['lb_delay']}")
    lb_loads()
    emit(B.lines[nlb:])
    gload()
    A(f"global_load_dwordx2 {v(DR,2)}, {v(vDo)}, s[58:59]")
    for i in range(8):
        A(f"buffer_load_dwordx2 {v(xr(i),2)}, {v(vXo)}, {s(sX,4)}, s{sXB} offen")
        A(f"s_add_u32 s{sXB}, s{sXB}, 8192")
    vm = Vm()
    def slot2(st): return [5, 0, 1, 2, 3][st % 5]
    def stage_cb(dst, st):
        if st == 0: return [f"s_mov_b32 s{dst}, s{sCB}"]
        if st < 8:
            return [f"s_cmp_le_u32 s{sROT2}, {st - 1}", f"s_cselect_b32 s{dst}, {st}, {st - 1}", f"s_or_b32 s{dst}, s{dst}, s{sE8}"]
        return [f"s_xor_b32 s{dst}, s{sE8}, {st}"]
    def cdma(st, q):
        out = []
        if q == 0:
            out.append(f"s_add_u32 m0, s{sLW}, {slot2(st) * 16384}")
            out += stage_cb(sK, st)
            out.append(f"s_lshl_b32 s{sK}, s{sK}, 7")
        out.append(f"buffer_load_dwordx4 {v(vDC+q)}, {s(sC,4)}, s{sK} offen offset:{1024*q} {opt.get('cflag', '')} lds")
        vm.add(("c", st))
        return out
    A("s_waitcnt vmcnt(10)")
    A.label("L_poll")
    for c2 in range(2):
        for i in range(4):
            A(f"v_xor_b32 {v(LQ+16*c2+4*i+1)}, {v(LQ+16*c2+4*i+1)}, {v(XT+i)}")
            A(f"v_xor_b32 {v(LQ+16*c2+4*i+3)}, {v(LQ+16*c2+4*i+3)}, {v(XT+i)}")
    A(f"v_or3_b32 {v(t9)}, {v(LQ+1)}, {v(LQ+3)}, {v(LQ+5)}")
    for i in range(7, 31, 4):
        A(f"v_or3_b32 {v(t9)}, {v(t9)}, {v(LQ+i)}, {v(LQ+i+2)}")
    A(f"v_or_b32 {v(t9)}, {v(t9)}, {v(LQ+31)}")
    A(f"v_cmp_ne_u32 vcc, 0, {v(t9)}")
    A("s_nop 1")
    A("s_cmp_eq_u64 vcc, 0")
    A("s_cbranch_scc1 L_got")
    spin_guard(A, "L_got")
    A(f"s_sleep {opt.get('lb_sleep', 1)}")
    lb_loads()
    A("s_waitcnt vmcnt(0)")
    A("s_branch L_poll")
    A.label("L_got")
    stamp(A, 5, ST and not opt.get('p1st') and not opt.get('p0st'))
    HC = TT
    for i in range(2, -1, -1):
        for c2 in range(2):
            cr_, ci_ = LQ + 16 * c2 + 4 * (i + 1), LQ + 16 * c2 + 4 * (i + 1) + 2
            ar, ai = LQ + 16 * c2 + 4 * i, LQ + 16 * c2 + 4 * i + 2
            A(f"v_fma_f32 {v(ar)}, -{v(L512i+c2)}, {v(ci_)}, {v(ar)}")
            A(f"v_fma_f32 {v(ai)}, {v(L512i+c2)}, {v(cr_)}, {v(ai)}")
            A(f"v_fma_f32 {v(ar)}, {v(L512r+c2)}, {v(cr_)}, {v(ar)}")
            A(f"v_fma_f32 {v(ai)}, {v(L512r+c2)}, {v(ci_)}, {v(ai)}")
    for c2 in range(2):
        ar, ai = LQ + 16 * c2, LQ + 16 * c2 + 2
        A(f"v_mul_f32 {v(HC+2*c2)}, {v(Fr+c2)}, {v(ar)}")
        A(f"v_mul_f32 {v(HC+2*c2+1)}, {v(Fr+c2)}, {v(ai)}")
        A(f"v_fma_f32 {v(HC+2*c2)}, -{v(Fi+c2)}, {v(ai)}, {v(HC+2*c2)}")
        A(f"v_fma_f32 {v(HC+2*c2+1)}, {v(Fi+c2)}, {v(ar)}, {v(HC+2*c2+1)}")
    xsum_groups(A, [HC + i for i in range(4)], [HC + 4 + i for i in range(4)])
    for c2 in range(2):
        qr, qi, wr, wi = QS + 4 * c2, QS + 4 * c2 + 2, VS + 4 * c2, VS + 4 * c2 + 2
        A(pk_fma(qr, HC + 2 * c2, 0, wr, qr))
        A(pk_fma(qi, HC + 2 * c2, 0, wi, qi))
        A(pk_fma(qr, HC + 2 * c2, 1, wi, qr, neg=True))
        A(pk_fma(qi, HC + 2 * c2, 1, wr, qi))
    PK = FY
    def pko(c2, part, e, j): return PK + 16 * c2 + 8 * part + 4 * e + j
    for q in range(8):
        for c2 in range(2):
            pr = QS + 4 * c2 if q == 0 else ure(c2, q - 1)
            pi = QS + 4 * c2 + 2 if q == 0 else uI(c2, q - 1)
            A(pk_fma(ure(c2, q), Li, c2, pi, ure(c2, q), neg=True))
            A(pk_fma(uI(c2, q), Li, c2, pr, uI(c2, q)))
            A(pk_fma(ure(c2, q), Lr, c2, pr, ure(c2, q)))
            A(pk_fma(uI(c2, q), Lr, c2, pi, uI(c2, q)))
        if q & 1:
            for c2 in range(2):
                for e in range(2):
                    A(f"v_cvt_pk_bf16_f32 {v(pko(c2,0,e,q>>1))}, {v(ure(c2,q-1)+e)}, {v(ure(c2,q)+e)}")
                    A(f"v_cvt_pk_bf16_f32 {v(pko(c2,1,e,q>>1))}, -{v(uI(c2,q-1)+e)}, -{v(uI(c2,q)+e)}")
    for part in range(2):
        for c2 in range(2):
            for e in range(2):
                A(f"ds_write_b128 {v(wa)}, {v(pko(c2,part,e,0),4)} offset:{part*4608 + c2*2304 + e*16}")
    stamp(A, 6, ST and not opt.get('p0st') and not opt.get('p2st') and not opt.get('p1st'))
    OUT = FX
    for part in range(2):
        A(f"s_waitcnt lgkmcnt({4 if part == 0 else 8})")
        for mt in range(4):
            for rd in range(2):
                A(f"ds_read_b64_tr_b16 {v(OUT + 16*part + 4*mt + 2*rd, 2)}, {v(ra)} offset:{part*4608 + rd*576 + mt*32}")
    for k in range(8):
        part, mt = k >> 2, k & 3
        if mt % 2 == 0: A(f"s_add_u32 s39, s53, {part*4096 + (mt>>1)*8192}")
        A(f"s_waitcnt lgkmcnt({14 - 2*k})")
        A(f"buffer_store_dwordx4 {v(OUT + 4*k, 4)}, {v(ga)}, {s(sW,4)}, s39 offen offset:{(mt&1)*1024} sc1")
        vm.add("hs")
    stamp(A, 7, ST and not opt.get('p0st') and not opt.get('p2st') and not opt.get('p1st'))

    HD = 2
    vRC, vRC2 = 20, 22
    vH0, vH1 = 28, 29
    vFo, vFl = 30, 31
    ACC2, CF, HR = 128, 224, 160
    sH, sHB = 49, 50
    A("s_waitcnt vmcnt(8)")
    vG = 4
    def er(k): return ACC + 16 * (k >> 3) + 8 + (k & 7)
    A.label("L_gchk")
    A(f"v_cmp_ne_u32 vcc, s{sTAG}, {v(GT+1)}")
    A("s_nop 1")
    A("s_cmp_eq_u64 vcc, 0")
    A("s_cbranch_scc1 L_gok")
    spin_guard(A, "L_gok")
    gload()
    A("s_waitcnt vmcnt(0)")
    A("s_branch L_gchk")
    A.label("L_gok")
    A(f"v_lshlrev_b32 v6, 2, {v(vGq)}")
    A(f"v_lshlrev_b32 v7, 2, {v(vL15)}")
    for i in range(8): A(f"ds_bpermute_b32 {v(GR+i)}, v6, {v(GT)} offset:{16*i}")
    for tt in range(2): A(f"ds_bpermute_b32 {v(vG+tt)}, v7, {v(GT)} offset:{64*tt}")
    A("s_mov_b32 s10, 0xffff0000")
    B = Asm()
    B(f"v_lshlrev_b32 {v(DS)}, 16, {v(DR)}")
    B(f"v_and_b32 {v(DS+1)}, s10, {v(DR)}")
    B(f"v_lshlrev_b32 {v(DS+2)}, 16, {v(DR+1)}")
    B(f"v_and_b32 {v(DS+3)}, s10, {v(DR+1)}")
    B("s_waitcnt lgkmcnt(0)")
    a0, a2, om = HS, HS + 2, HS + 4
    for i in range(8):
        B(f"v_sub_f32 {v(om)}, 1.0, {v(GR+i)}")
        rnd_bf16(B, om, om)
        for p in range(2):
            x_ = xr(i) + p
            B(f"v_lshlrev_b32 {v(a0)}, 16, {v(x_)}")
            B(f"v_and_b32 {v(a0+1)}, s10, {v(x_)}")
            B(f"v_mul_f32 {v(a2)}, {v(a0)}, {v(DS+2*p)}")
            B(f"v_mul_f32 {v(a2+1)}, {v(a0+1)}, {v(DS+2*p+1)}")
            B(f"v_cvt_pk_bf16_f32 {v(a2)}, {v(a2)}, {v(a2+1)}")
            B(f"v_mul_f32 {v(a0)}, {v(a0)}, {v(om)}")
            B(f"v_mul_f32 {v(a0+1)}, {v(a0+1)}, {v(om)}")
            B(f"v_cvt_pk_bf16_f32 {v(a0)}, {v(a0)}, {v(a0+1)}")
            B(f"v_and_b32 {v(a2+1)}, s10, {v(a2)}")
            B(f"v_lshlrev_b32 {v(a2)}, 16, {v(a2)}")
            B(f"v_and_b32 {v(a0+1)}, s10, {v(a0)}")
            B(f"v_lshlrev_b32 {v(a0)}, 16, {v(a0)}")
            B(f"v_fma_f32 {v(er(4*i+2*p))}, {v(GR+i)}, {v(a2)}, {v(a0)}")
            B(f"v_fma_f32 {v(er(4*i+2*p+1))}, {v(GR+i)}, {v(a2+1)}, {v(a0+1)}")
    el = B.lines
    cq = [(st, q) for st in range(3) for q in range(4)]
    C0 = opt.get("c_at", 0)
    for n, l in enumerate(el):
        if n >= C0 and n % opt.get("c_gap", 6) == 0 and cq:
            emit(cdma(*cq.pop(0)))
        A(l)
    el = []
    for q in range(4): A(f"v_mov_b32 {v(16+q)}, {v(vDC+q)}")
    vDC = 16
    A(f"v_mov_b32 {v(vH0)}, {v(ga)}")
    A(f"v_add_u32 {v(vH1)}, 4096, {v(ga)}")
    A(f"s_lshl_b32 s38, s{sWV}, 13")
    A(f"s_add_u32 s{sHB}, s48, s38")
    vCN, vOne, vPo = 32, 33, 34
    A(f"v_mov_b32 {v(vCN)}, {L_CNT}")
    A(f"v_mov_b32 {v(vOne)}, 1")
    A(f"v_bfe_u32 {v(t2)}, {v(vLane)}, 1, 3")
    A(f"v_xor_b32 {v(t2)}, {v(t2)}, {v(vGq)}")
    A(f"v_lshlrev_b32 {v(t2)}, 4, {v(t2)}")
    A(f"v_lshl_add_u32 {v(t2)}, {v(vL15)}, 7, {v(t2)}")
    for kk in range(2):
        A(f"v_xor_b32 {v(vRC+kk)}, {64*kk}, {v(t2)}")
        A(f"v_add_u32 {v(vRC2+kk)}, 0x10000, {v(vRC+kk)}")
    A(f"v_xor_b32 {v(vFo)}, s{sE8}, {v(vL15)}")
    A(f"v_lshlrev_b32 {v(vFo)}, {FSH}, {v(vFo)}")
    A(f"v_mov_b32 {v(t1)}, s{sTAG}")
    A(f"v_lshlrev_b32 {v(t2)}, 2, {v(vLane)}")
    A(f"s_lshl_b32 s52, s{sRB}, {FSH + 4}")
    A(f"s_add_u32 s52, s52, {WS_HF}")
    A(f"s_lshl_b32 s46, s{sCB}, {FSH}")
    A("s_add_u32 s46, s46, s52")
    vTR = 35
    A(f"s_sub_u32 s38, s{sWN}, s{sWV}")
    A("s_mul_i32 s38, s38, 9216")
    A(f"s_lshl_b32 s39, s{sWM}, 6")
    A("s_add_u32 s38, s38, s39")
    A(f"v_add_u32 {v(vTR)}, s38, {v(ra)}")
    A(f"s_waitcnt vmcnt({vm.need('hs')})")
    lds_arrive_last(A, vCN, vT + 1, C_HF, "L_nohf")
    flag_store(A, t1, t2, sW, 46)
    assert not cq
    A("s_waitcnt vmcnt(1)")
    A("s_branch L_hfd")
    A.label("L_nohf")
    A("s_waitcnt vmcnt(0)")
    A.label("L_hfd")
    stamp(A, 8, ST and not opt.get('p0st') and not opt.get('p2st') and not opt.get('p1st'))
    while cq: emit(cdma(*cq.pop(0)))
    MW = 0xffff if AM else 0xff
    def fpoll(mask):
        A(f"s_mov_b64 exec, {mask}")
        A(f"buffer_load_dword {v(vFl)}, {v(vFo)}, {s(sW,4)}, s52 offen sc1")
        A("s_mov_b64 exec, -1")
    def creads(g):
        st, ks = g >> 2, g & 3
        off = slot2(st) * 16384 + (ks >> 1) * 8192
        base = vRC
        if off >= 65536: off -= 65536; base = vRC2
        F = CF + (g & 1) * 16
        return [f"ds_read_b128 {v(F+4*dt,4)}, {v(base + (ks & 1))} offset:{off + 2048*dt}" for dt in range(4)]
    def mm(g, tt):
        st, ks = g >> 2, g & 3
        F = CF + (g & 1) * 16
        hr = HR + (st % HD) * 32 + 4 * (2 * ks + tt)
        return [f"v_mfma_f32_16x16x32_bf16 {v(ACC2+4*(tt*4+dt),4)}, {v(F+4*dt,4)}, {v(hr,4)}, {'0' if g == 0 else v(ACC2+4*(tt*4+dt),4)}" for dt in range(4)]
    lds_add(A, vCN, vOne, C_HL)
    fpoll(MW)
    lds_wait(A, vCN, vPo, C_HL, 4, "sync0", 0)
    for j in range(8):
        part, wn, tt = j >> 2, (j >> 1) & 1, j & 1
        for rd in range(2):
            A(f"ds_read_b64_tr_b16 {v(HR + 4*j + 2*rd, 2)}, {v(vTR)} offset:{wn*18432 + part*4608 + rd*576 + tt*32}")
        if j == 3: A("s_waitcnt lgkmcnt(4)")
    lds_add(A, vCN, vOne, C_GO)
    A("s_waitcnt lgkmcnt(4)")
    emit(creads(0))
    for g in range(4):
        emit(creads(g + 1))
        A("s_waitcnt lgkmcnt(4)")
        emit(mm(g, 0)); emit(mm(g, 1))
    A.label("L_hpoll")
    A("s_waitcnt vmcnt(0)")
    A(f"v_cmp_ne_u32 vcc, s{sTAG}, {v(vFl)}")
    A("s_nop 1")
    A(f"s_and_b32 s38, vcc_lo, {MW}")
    A("s_cbranch_scc0 L_hgo")
    spin_guard(A, "L_hgo")
    A(f"s_sleep {opt.get('h_sleep', 1)}")
    fpoll(MW)
    A("s_branch L_hpoll")
    A.label("L_hgo")
    stamp(A, 9, ST and not opt.get('p1st'))
    def hload(st, j):
        out = []
        if j == 0:
            out += stage_cb(sH, st)
            out.append(f"s_lshl_b32 s{sH}, s{sH}, 15")
            out.append(f"s_add_u32 s{sH}, s{sH}, s{sHB}")
        r = HR + (st % HD) * 32 + 4 * j
        out.append(f"buffer_load_dwordx4 {v(r,4)}, {v(vH0 if j < 4 else vH1)}, {s(sW,4)}, s{sH} offen offset:{1024*(j&3)} {opt.get('hld', 'sc1')}")
        vm.add(("h", st, j))
        return out
    for j in range(8): emit(hload(1, j))
    lds_wait(A, vCN, vPo, C_GO, 4, "sync1", 0)
    stamp(A, 10, ST and not opt.get('p1st'))
    for j in range(8): emit(hload(2, j))
    LA = 4
    cq = [(st, q) for st in (3, 4) for q in range(4)]
    for g in range(4, 64):
        st, ks = g >> 2, g & 3
        if opt.get("p2st") and g in (8, 16, 24, 32, 48):
            stamp(A, {8: 1, 16: 2, 24: 4, 32: 7, 48: 8}[g], ST)
        gchk = 999 if AM else 4 * (8 - HD)
        if g == gchk - 3:
            fpoll("0xff00"); vm.add("f")
        if g == gchk:
            A(f"s_waitcnt vmcnt({vm.need('f')})")
            A.label("L_h2poll")
            A(f"v_cmp_ne_u32 vcc, s{sTAG}, {v(vFl)}")
            A("s_nop 1")
            A("s_and_b32 s38, vcc_lo, 0xff00")
            A("s_cbranch_scc0 L_h2go")
            spin_guard(A, "L_h2go")
            A("s_sleep 2")
            fpoll("0xff00")
            A("s_waitcnt vmcnt(0)")
            A("s_branch L_h2poll")
            A.label("L_h2go")
            if opt.get("p2st"): stamp(A, 6, ST)
        hn = vm.need(('h', st, 2*ks+1))
        if st < 15 and ks == 1:
            assert vm.ops.count(("c", st + 1)) == 4
            emit(creads(g + 1))
            A(f"s_waitcnt vmcnt({min(hn, vm.need(('c', st + 1)))}) lgkmcnt(4)")
            lds_add(A, vCN, vOne, C_ST)
        elif st < 15 and ks == 3:
            A("s_waitcnt lgkmcnt(0)")
            A(f"v_readfirstlane_b32 s38, {v(vPo)}")
            A("s_nop 1")
            A(f"s_cmp_ge_u32 s38, {4 * st}")
            A(f"s_cbranch_scc1 L_st{st}_ok")
            lds_wait(A, vCN, vPo, C_ST, 4 * st, f"st{st}", 0)
            if st + LA < 16: cq += [(st + LA, q) for q in range(4)]
            emit(creads(g + 1))
            A(f"s_waitcnt vmcnt({hn})")
        elif g + 1 < 64:
            emit(creads(g + 1))
            A(f"s_waitcnt vmcnt({hn}) lgkmcnt(4)")
        else:
            A(f"s_waitcnt vmcnt({hn}) lgkmcnt(0)")
        for tt in range(2):
            emit(mm(g, tt))
            if st < 15 and ks == 2 and tt == 0: A(f"ds_read_b32 {v(vPo)}, {v(vCN)} offset:{C_ST}")
            if st + HD < 16: emit(hload(st + HD, 2 * ks + tt))
            if cq and (tt == 0 or len(cq) > 4): emit(cdma(*cq.pop(0)))
    assert not el and not cq
    stamp(A, 11, ST and not opt.get('p1st'))
    assert slot2(15) == 5 and slot2(14) == 3
    TB = 0
    wa, ra, oa = vT, vT + 1, vT + 2
    A(f"s_mul_i32 s38, s{sWV}, 8704")
    A(f"s_add_u32 s56, s38, {TB}")
    A(f"v_mul_u32_u24 {v(wa)}, 272, {v(vL15)}")
    A(f"v_lshl_add_u32 {v(wa)}, {v(vGq)}, 4, {v(wa)}")
    A(f"v_add_u32 {v(wa)}, s56, {v(wa)}")
    A(f"v_mul_u32_u24 {v(ra)}, 272, {v(vGq)}")
    A(f"v_lshl_add_u32 {v(ra)}, {v(vL15)}, 4, {v(ra)}")
    A(f"v_add_u32 {v(ra)}, s56, {v(ra)}")
    A(f"v_lshlrev_b32 {v(oa)}, 12, {v(vGq)}")
    A(f"v_lshl_add_u32 {v(oa)}, {v(vL15)}, 4, {v(oa)}")
    A(f"v_lshlrev_b32 {v(vT+3)}, 2, {v(vLane)}")
    A(f"v_add_u32 {v(vT+3)}, {L_TOP}, {v(vT+3)}")
    lds_wait(A, vCN, vPo, C_TOP, 1, "topw")
    A(f"ds_read_b32 {v(vT+4)}, {v(vT+3)}")
    for tt in range(2):
        for dt in range(4):
            r = ACC2 + 4 * (tt * 4 + dt)
            A(pk_mul(r, vG, tt, r))
            A(pk_mul(r + 2, vG, tt, r + 2))
            A(f"ds_write_b128 {v(wa)}, {v(r,4)} offset:{tt*16*272 + dt*64}")
    A("s_waitcnt lgkmcnt(8)")
    A(f"v_and_b32 {v(vT+4)}, 0x7ff, {v(vT+4)}")
    A(f"s_sub_u32 s38, 2047, s{sT0}")
    A(f"v_sub_u32 {v(vT+4)}, s38, {v(vT+4)}")
    A(f"v_cmp_gt_u32 vcc, 32, {v(vT+4)}")
    A("s_nop 1")
    A("s_and_b32 s57, vcc_lo, 0xff")
    if opt.get("nodown"): A("s_mov_b32 s57, 0")
    Y = HR
    A.label("L_fix")
    A("s_cmp_eq_u32 s57, 0")
    A("s_cbranch_scc1 L_fixd")
    A("s_ff1_i32_b32 s38, s57")
    A("s_bitset0_b32 s57, s38")
    A(f"v_readlane_b32 s39, {v(vT+4)}, s38")
    A("s_mov_b32 s49, s38")
    A(f"v_lshl_add_u32 {v(Y+10)}, s49, 2, {v(vCN)}")
    lds_wait(A, Y + 10, vPo, C_DF, 1, "dfw", 2)
    A("s_lshl_b32 s38, s49, 8")
    A(f"s_add_u32 s38, s38, {L_DEL}")
    A(f"v_lshl_add_u32 {v(Y+9)}, {v(vL15)}, 4, s38")
    A("s_mul_i32 s39, s39, 272")
    A("s_add_u32 s39, s39, s56")
    A(f"v_lshl_add_u32 {v(Y+8)}, {v(vL15)}, 4, s39")
    A(f"ds_read_b128 {v(Y,4)}, {v(Y+8)}")
    A(f"ds_read_b128 {v(Y+4,4)}, {v(Y+9)}")
    A("s_waitcnt lgkmcnt(0)")
    A(pk_add(Y, Y, Y + 4))
    A(pk_add(Y + 2, Y + 2, Y + 6))
    A(f"ds_write_b128 {v(Y+8)}, {v(Y,4)}")
    A("s_waitcnt lgkmcnt(0)")
    A("s_branch L_fix")
    A.label("L_fixd")
    for i in range(8):
        A(f"ds_read_b128 {v(ACC2+4*i,4)}, {v(ra)} offset:{i*4*272}")
    A(f"s_lshl_b32 s38, s{sT0}, 12")
    A(f"s_lshl_b32 s39, s{sCB}, 8")
    A("s_add_u32 s38, s38, s39")
    stf = opt.get("ostore", "sc1")
    for i in range(8):
        A(f"s_waitcnt lgkmcnt({7-i})")
        A(pk_add(ACC2 + 4 * i, ACC2 + 4 * i, er(4 * i)))
        A(pk_add(ACC2 + 4 * i + 2, ACC2 + 4 * i + 2, er(4 * i + 2)))
        A(f"buffer_store_dwordx4 {v(ACC2+4*i,4)}, {v(oa)}, {s(sO,4)}, s38 offen {stf}")
        A("s_add_u32 s38, s38, 16384")
    stamp(A, 12, ST and not opt.get('p1st'))
    stamp_out(A, ST, sW, sWV, 0)
    A("s_endpgm")
```

```python
from common import *

class Sched:
    def __init__(self, A): self.A = A; self.nb = 0
    def bar(self, upto=None):
        tgt = self.nb + 1 if upto is None else upto
        assert tgt >= self.nb, (tgt, self.nb)
        while self.nb < tgt:
            self.A("s_barrier"); self.nb += 1

def dyn_bars(A, sreg, name):
    A.label(f"L_{name}_l")
    A(f"s_cmp_eq_u32 s{sreg}, 0")
    A(f"s_cbranch_scc1 L_{name}_d")
    A("s_barrier")
    A(f"s_sub_u32 s{sreg}, s{sreg}, 1")
    A(f"s_branch L_{name}_l")
    A.label(f"L_{name}_d")

def gen_side(A, opt):
    ST = opt.get("sstamps")
    sX, sW, sWG, sWU, sWD, sPC = 8, 12, 52, 28, 4, 32
    sWV, sRB, sDB, sCS, sKQ = 18, 16, 17, 22, 23
    S = Sched(A)
    A.label("L_side")
    A(f"s_sub_u32 s{sWV}, s{sWV}, 4")
    A("v_and_b32 v2, 63, v0")
    A("s_lshl_b32 s19, s3, 8")
    A("s_lshl_b32 s39, s38, 3")
    A("s_add_u32 s19, s19, s39")
    vDA, vDB = 100, 104
    sXb, sBb, sROT, sK, sLW = 8, 24, 56, 57, 58
    lincomb(A, sRB, sDB, sROT, [128 * c for c in opt.get("rot", [0, 0, 0, 0])])
    A(f"s_lshl_b32 s{sLW}, s{sWV}, 12")
    A("v_lshrrev_b32 v4, 3, v2")
    A("v_and_b32 v5, 7, v2")
    A("v_lshrrev_b32 v6, 4, v2")
    A("v_xor_b32 v5, v5, v6")
    A("v_lshlrev_b32 v5, 4, v5")
    A("v_lshrrev_b32 v7, 1, v2")
    A("v_and_b32 v7, 16, v7")
    A("v_and_or_b32 v7, v2, 8, v7")
    A("v_and_or_b32 v6, v6, 1, v7")
    A(f"s_lshr_b32 s20, s{sWV}, 1")
    A(f"s_and_b32 s21, s{sWV}, 1")
    A("s_lshl_b32 s38, s20, 6")
    A("s_lshl_b32 s39, s21, 2")
    A("s_add_u32 s38, s38, s39")
    A(f"s_lshl_b32 s39, s{sRB}, 7")
    A("s_add_u32 s38, s38, s39")
    A("v_add_u32 v6, s38, v6")
    A("v_lshl_add_u32 v6, v6, 11, v5")
    A("v_xor_b32 v7, 64, v6")
    for q in range(4):
        add = (32 * (q & 1) + 2 * (q >> 1)) * 2048 - 1024 * q + 3072
        A(f"v_add_u32 {v(vDA+q)}, {add}, {'v7' if q & 1 else 'v6'}")
    A(f"s_lshl_b32 s38, s{sDB}, 6")
    A("s_lshl_b32 s39, s20, 5")
    A("s_add_u32 s38, s38, s39")
    A("v_add_u32 v6, s38, v4")
    A("v_lshl_add_u32 v6, v6, 11, v5")
    A("v_xor_b32 v7, 64, v6")
    for q in range(4):
        A(f"v_add_u32 {v(vDB+q)}, {8*2048*q - 1024*q + 3072}, {'v7' if q & 1 else 'v6'}")
    A("s_waitcnt lgkmcnt(0)")
    srd(A, sXb, 40, 41, 4194304, bias=3072)
    vm = Vm()
    def item(i):
        st, op = i >> 1, i & 1
        A(f"s_add_u32 m0, s{sLW}, {(i % NSLOT) * 16384}")
        if op == 0:
            A(f"s_add_u32 s{sK}, s{sROT}, {st * 128}")
            A(f"s_and_b32 s{sK}, s{sK}, 2047")
        else:
            A("s_nop 0")
        for q in range(4):
            A(f"buffer_load_dwordx4 {v((vDB if op else vDA) + q)}, {s(sBb if op else sXb,4)}, s{sK} offen offset:{1024*q} {opt.get('bflag' if op else 'aflag', '')} lds")
            vm.add(("d", i))
    item(0)
    A("s_cmp_eq_u32 s21, 0")
    A(f"s_cselect_b32 s{sBb}, s68, s70")
    A(f"s_cselect_b32 s{sBb+1}, s69, s71")
    srd(A, sBb, sBb, sBb + 1, 2097152, bias=3072)
    item(1)
    stamp(A, 3, opt.get("p0st"))
    load_tag(A, 42, 43)
    srd(A, sW, 42, 43, WS_USED)
    A("s_mov_b32 s21, 0xffff0000")
    A("v_and_b32 v11, 15, v2")
    if opt.get("tlbw", 1):
        A("s_bfe_u32 s38, s2, 0x30003")
        A("s_min_u32 s39, s38, 6")
        A("s_and_b32 s36, s38, 1")
        A(f"s_cmp_eq_u32 s{sWV}, 0")
        A("s_cselect_b64 s[98:99], s[82:83], s[46:47]")
        A("s_cselect_b64 s[100:101], s[42:43], s[48:49]")
        A("s_cselect_b32 s39, s38, s39")
        A("s_mov_b32 s37, s39")
        A(f"s_cmp_eq_u32 s{sWV}, 2")
        A("s_cselect_b64 s[98:99], s[50:51], s[98:99]")
        A("s_cselect_b64 s[100:101], s[42:43], s[100:101]")
        A("s_cselect_b32 s38, 8, 0")
        A("s_add_u32 s37, s37, s38")
        A(f"s_cmp_eq_u32 s{sWV}, 3")
        A("s_cselect_b64 s[98:99], s[72:73], s[98:99]")
        A("s_cselect_b64 s[100:101], s[74:75], s[100:101]")
        A("s_cselect_b32 s39, s36, s39")
        A("s_cselect_b32 s37, s36, s37")
        A("s_lshl_b32 s39, s39, 20")
        A("s_lshl_b32 s37, s37, 20")
        A("s_load_dword s97, s[98:99], s39")
        A("s_load_dword s97, s[100:101], s37")
    NI = opt.get("n_init", 4)
    for i in range(2, NI): item(i)
    stamp(A, 6, opt.get("p0st"))
    XR = 24
    P = [Asm() for _ in range(4)]
    B = P[0]
    B("v_lshlrev_b32 v6, 2, v11")
    B(f"v_add_u32 v6, {L_SCR}, v6")
    for p in range(8):
        B(f"ds_read_b32 {v(XR+p)}, v6 offset:{64*p}")
    B = P[1]
    B("v_and_b32 v7, 7, v2")
    B("s_sub_u32 s38, 2047, s19")
    B("v_sub_u32 v21, s38, v7")
    B("v_lshlrev_b32 v7, 3, v7")
    B("v_bfe_u32 v20, v2, 3, 1")
    B("v_lshl_add_u32 v7, v20, 14, v7")
    B("s_waitcnt lgkmcnt(0)")
    B(pk_add(XR, XR, XR + 2)); B(pk_add(XR + 4, XR + 4, XR + 6)); B(pk_add(XR, XR, XR + 4))
    B(f"v_add_f32 {v(XR)}, {v(XR)}, {v(XR+1)}")
    B = P[2]
    rnd_bf16(B, XR, XR)
    sigmoid(B, XR + 2, XR)
    rnd_bf16(B, XR + 2, XR + 2)
    B("v_cmp_eq_u32 vcc, 1, v20")
    B = P[3]
    B(f"v_ashrrev_i32 {v(XR+1)}, 31, {v(XR)}")
    B(f"v_or_b32 {v(XR+1)}, 0x80000000, {v(XR+1)}")
    B(f"v_xor_b32 {v(XR)}, {v(XR)}, {v(XR+1)}")
    B(f"v_and_or_b32 {v(XR)}, {v(XR)}, s21, v21")
    B(f"v_cndmask_b32 {v(XR)}, {v(XR)}, {v(XR+2)}, vcc")
    B(f"v_mov_b32 {v(XR+1)}, s{sTAG}")
    B("s_lshl_b32 s38, s19, 3")
    B(f"s_add_u32 s38, s38, {WS_KEY}")
    B("s_mov_b64 exec, 0xffff")
    B(f"buffer_store_dwordx2 {v(XR,2)}, v7, {s(sW,4)}, s38 offen sc1")
    B("s_mov_b64 exec, -1")
    A("v_lshlrev_b32 v3, 4, v2")
    A(f"s_mul_hi_u32 s{sKQ}, s2, {(1 << 32) // 56 + 1}")
    A(f"s_mul_i32 s38, s{sKQ}, 56")
    A(f"s_sub_u32 s{sCS}, s2, s38")
    A("v_lshrrev_b32 v5, 3, v2")
    A("v_and_b32 v8, 7, v2")
    A("v_and_b32 v12, 3, v5")
    A("v_lshlrev_b32 v12, 1, v12")
    A("v_xor_b32 v8, v8, v12")
    A("v_mul_u32_u24 v4, 7168, v5")
    A("v_lshl_add_u32 v4, v8, 4, v4")
    A(f"s_lshl_b32 s38, s{sWV}, 6")
    A(f"s_lshl_b32 s39, s{sKQ}, 8")
    A("s_add_u32 s44, s38, s39")
    A("s_mul_i32 s45, s44, 7168")
    A(f"s_lshl_b32 s39, s{sCS}, 7")
    A("s_add_u32 s45, s45, s39")
    A(f"s_lshl_b32 s92, s{sWV}, 14")
    A(f"s_add_u32 s92, s92, {L_W}")
    srd(A, sWG, 46, 47, 7340032)
    srd(A, sWU, 48, 49, 7340032)
    A("s_mov_b32 s46, s92")
    def wdma(i):
        gu, q = i >> 3, i & 7
        A(f"s_add_u32 m0, s46, {1024*i}")
        A(f"s_add_u32 s39, s45, {q*8*7168}")
        A(f"buffer_load_dwordx4 v4, {s(sWU if gu else sWG,4)}, s39 offen {opt.get('wflag','nt')} lds")
    A("s_cmp_ge_u32 s2, 224")
    A(f"s_cselect_b32 s{sWG+2}, 0, s{sWG+2}")
    A(f"s_cselect_b32 s{sWU+2}, 0, s{sWU+2}")
    if opt.get("x_nogu"):
        A(f"s_mov_b32 s{sWG+2}, 0"); A(f"s_mov_b32 s{sWU+2}, 0")
    wi = 0
    SW = opt.get("swarm", 4)
    if SW:
        if opt.get("amap"):
            A("s_lshl_b32 s36, s3, 7")
        else:
            A("s_and_b32 s39, s3, 1")
            A("s_lshl_b32 s36, s39, 9")
            A("s_lshr_b32 s39, s3, 1")
            A("s_lshl_b32 s39, s39, 7")
            A("s_add_u32 s36, s36, s39")
        A("s_lshr_b32 s39, s2, 3")
        A("s_lshl_b32 s39, s39, 2")
        A("s_add_u32 s36, s36, s39")
        A(f"s_add_u32 s36, s36, s{sWV}")
        A("s_lshl_b32 s36, s36, 11")
        A("s_add_u32 s84, s72, s36")
        A("s_addc_u32 s85, s73, 0")
        A("s_add_u32 s86, s74, s36")
        A("s_addc_u32 s87, s75, 0")
    BA = opt.get("ba_st", [4, 7, 10])
    assert len(BA) == 1 or all(y - x == BA[1] - BA[0] for x, y in zip(BA, BA[1:]))
    A("s_lshr_b32 s37, s2, 3")
    A(f"s_mul_i32 s37, s37, {len(BA)}")
    A("s_lshr_b32 s37, s37, 5")
    A(f"s_mul_i32 s37, s37, {BA[1] - BA[0] if len(BA) > 1 else 0}")
    A(f"s_add_u32 s37, s37, {BA[0]}")
    A("v_lshlrev_b32 v5, 11, v5")
    A("v_lshl_add_u32 v5, v8, 4, v5")
    A(f"s_lshl_b32 s47, s{sCS}, 17")
    A(f"s_lshl_b32 s39, s{sKQ}, 9")
    A("s_add_u32 s47, s47, s39")
    A(f"s_lshl_b32 s39, s{sWV}, 7")
    A("s_add_u32 s47, s47, s39")
    srd(A, sWD, 50, 51, 7340032)
    A("s_cmp_ge_u32 s2, 224")
    A(f"s_cselect_b32 s{sWD+2}, 0, s{sWD+2}")
    DW = 200
    dq = list(range(8))
    def dload(n, thr=None):
        for _ in range(n):
            if dq:
                i = dq.pop(0)
                if thr is not None: A(f"s_waitcnt vmcnt({thr})")
                A(f"buffer_load_dwordx4 {v(DW+4*i,4)}, v5, {s(sWD,4)}, s47 offen {opt.get('wflag','nt')}"); vm.add("dw")
                A(f"s_add_u32 s47, s47, {8*2048}")
    A("v_lshrrev_b32 v10, 4, v2")
    vCN, vOne = 22, 23
    A(f"v_mov_b32 {v(vOne)}, 1")
    nsp = [0]
    SM = opt.get("sw_mats", 2)
    def spf(n):
        for _ in range(n // 4):
            if nsp[0] < 16:
                for m in range(SM):
                    for j in range(2): A(f"s_load_dword s36, s[{84+2*m}:{85+2*m}], {64*j}")
                for m in range(SM):
                    A(f"s_add_u32 s{84+2*m}, s{84+2*m}, 128")
                    A(f"s_addc_u32 s{85+2*m}, s{85+2*m}, 0")
                nsp[0] += 1
    for st in range(4):
        A(f"s_waitcnt vmcnt({vm.need(('d', 2*st+1))})" + (" lgkmcnt(0)" if st == 0 else ""))
        if st == 0: stamp(A, 9, opt.get("p0st"))
        S.bar()
        if st == 0: make_tag(A)
        for i in range(NI if st == 0 else 2 * st + 4, 2 * st + 6): item(i)
        A(f"s_cmp_lg_u32 s{sWV}, 0")
        A(f"s_cbranch_scc1 L_s_nk{st}")
        for l in P[st].lines: A(l)
        A.label(f"L_s_nk{st}")
        if st >= 1: spf(4)
    stamp(A, 1, ST)
    sST, sSL = 20, 19
    A(f"s_mov_b32 s{sST}, 4")
    A(f"s_mov_b32 s{sSL}, 0")
    A.label("L_s_loop")
    A("s_waitcnt vmcnt(8)")
    A("s_barrier")
    def next_items():
        A(f"s_add_u32 m0, s{sLW}, s{sSL}")
        A(f"s_add_u32 s{sK}, s{sK}, 128")
        A(f"s_and_b32 s{sK}, s{sK}, 2047")
        for q in range(4):
            A(f"buffer_load_dwordx4 {v(vDA+q)}, {s(sXb,4)}, s{sK} offen offset:{1024*q} lds")
        A("s_add_u32 m0, m0, 16384")
        A(f"s_add_u32 s{sSL}, s{sSL}, 32768")
        for q in range(4):
            A(f"buffer_load_dwordx4 {v(vDB+q)}, {s(sBb,4)}, s{sK} offen offset:{1024*q} lds")
        A(f"s_cmp_eq_u32 s{sSL}, 98304")
        A(f"s_cselect_b32 s{sSL}, 0, s{sSL}")
    KG, KY, D, XF = 80, 64, 72, 56
    A(f"s_lshl_b32 s94, s{sWV}, 12")
    A(f"s_add_u32 s94, s94, {WS_KEY}")
    def kloads():
        for i in range(4):
            A(f"buffer_load_dwordx4 {v(KG+4*i,4)}, v3, {s(sW,4)}, s94 offen offset:{1024*i} sc1")
    next_items()
    A(f"s_cmp_lg_u32 s{sST}, s37")
    A("s_cbranch_scc1 L_s_noburst")
    NB1 = opt.get("ba_first", 16)
    for i in range(NB1): wdma(i)
    A("v_lshlrev_b32 v9, 5, v2")
    for m in range(SM, 2): A(f"global_load_dword v98, v9, s[{84+2*m}:{85+2*m}]")
    A.label("L_s_noburst")
    spf(4); nsp[0] += 9
    A(f"s_add_u32 s{sST}, s{sST}, 1")
    A(f"s_cmp_lt_u32 s{sST}, 14")
    A("s_cbranch_scc1 L_s_loop")
    S.nb = 14
    vm = Vm()
    for i in (28, 29, 30, 31):
        for q in range(4): vm.add(("d", i))
    kloads()
    for i in range(4): vm.add("k")
    for i in range(NB1, 16): wdma(i); vm.add("w")
    dload(opt.get("d_b13", 0))
    spf(4)
    A(f"s_waitcnt vmcnt({vm.need(('d', 29))})")
    S.bar(15)
    stamp(A, 2, ST)
    dload(opt.get("d_b14", 8))
    spf(4)
    A("v_bfe_u32 v12, v2, 2, 2")
    A("v_lshl_add_u32 v13, v10, 3, v12")
    A("v_lshlrev_b32 v13, 7, v13")
    A("v_and_b32 v14, 3, v2")
    A("v_lshl_add_u32 v13, v14, 3, v13")
    A("v_add_u32 v13, s46, v13")
    for nt in range(4):
        A(f"v_xor_b32 v14, {nt}, v12")
        A(f"v_lshl_add_u32 {v(16+nt)}, v14, 5, v13")
    srd(A, sX, 40, 41, 4194304)
    A(f"v_mov_b32 {v(vCN)}, {L_CNT}")
    A(f"s_waitcnt vmcnt({vm.need(('d', 31))})")
    S.bar(16)
    dload(8)
    spf(12)
    S.bar(17)
    assert nsp[0] == 16
    A("v_mov_b32 v8, 0")
    A("s_mov_b32 s95, -1")
    A(f"s_waitcnt vmcnt({vm.need('k')})")
    A.label("L_s_poll")
    for i in range(8):
        A(f"v_xor_b32 {v(KG+2*i+1)}, s{sTAG}, {v(KG+2*i+1)}")
    A(f"v_or3_b32 v9, {v(KG+1)}, {v(KG+3)}, {v(KG+5)}")
    A(f"v_or3_b32 v9, v9, {v(KG+7)}, {v(KG+9)}")
    A(f"v_or3_b32 v9, v9, {v(KG+11)}, {v(KG+13)}")
    A(f"v_or_b32 v9, v9, {v(KG+15)}")
    A("v_cmp_ne_u32 vcc, 0, v9")
    A("s_nop 1")
    A("s_cmp_eq_u64 vcc, 0")
    A("s_cbranch_scc1 L_s_go")
    spin_guard(A, "L_s_go")
    kloads()
    A("s_waitcnt vmcnt(0)")
    A("s_branch L_s_poll")
    A.label("L_s_go")
    for rnd in range(8):
        for i in range(8):
            A(f"v_sub_u32 {v(D+i)}, s95, {v(KG+2*i)}")
        A(f"v_min3_u32 v9, {v(D)}, {v(D+1)}, {v(D+2)}")
        A(f"v_min3_u32 v15, {v(D+3)}, {v(D+4)}, {v(D+5)}")
        A(f"v_min3_u32 v9, v9, {v(D+6)}, {v(D+7)}")
        A(f"v_min_u32 v9, v9, v15")
        for r in (8, 4, 2, 1):
            A("s_nop 1")
            A(f"v_min_u32_dpp v9, v9, v9 row_ror:{r} row_mask:0xf bank_mask:0xf")
        A("s_nop 0")
        for i in range(4):
            A(f"v_readlane_b32 s{48+i}, v9, {16*i}")
        A("s_nop 0")
        A("s_min_u32 s48, s48, s49")
        A("s_min_u32 s50, s50, s51")
        A("s_min_u32 s48, s48, s50")
        A("s_sub_u32 s95, s95, s48")
        A(f"v_writelane_b32 v8, s95, {rnd}")
        A("s_sub_u32 s95, s95, 1")
    A(f"s_lshl_b32 s38, s{sWV}, 5")
    A(f"s_add_u32 s38, s38, {L_CND}")
    A("v_lshl_add_u32 v9, v2, 2, s38")
    A(f"v_mov_b32 v15, {L_CND}")
    A("s_mov_b64 exec, 0xff")
    A("ds_write_b32 v9, v8")
    lds_add(A, vCN, vOne, C_CND)
    lds_wait(A, vCN, 14, C_CND, 4, "s_cw", 0)
    stamp(A, 3, ST and not opt.get('p0st'))
    A("v_and_b32 v9, 31, v2")
    A("v_lshl_add_u32 v9, v9, 2, v15")
    A("ds_read_b32 v14, v9")
    for i in range(8):
        A(f"ds_read_b128 {v(KY+4*i,4)}, v15 offset:{16*i}")
    A("v_mov_b32 v12, 0")
    A("s_waitcnt lgkmcnt(0)")
    for i0 in range(0, 32, 2):
        for i in range(2):
            A(f"v_cmp_gt_u32 s[{48+2*i}:{49+2*i}], {v(KY+i0+i)}, v14")
        A("s_nop 0")
        for i in range(2):
            A(f"v_addc_co_u32 v12, vcc, 0, v12, s[{48+2*i}:{49+2*i}]")
    A("v_lshlrev_b32 v12, 2, v12")
    A("s_mov_b32 exec_hi, 0")
    A("ds_permute_b32 v13, v12, v14")
    A("s_mov_b64 exec, -1")
    A("v_and_b32 v12, 7, v2")
    A("v_lshlrev_b32 v12, 2, v12")
    A("s_waitcnt lgkmcnt(0)")
    A("ds_bpermute_b32 v8, v12, v13")
    A("s_lshl_b32 s38, s44, 1")
    A("s_and_b32 s38, s38, 2047")
    A("s_waitcnt lgkmcnt(0)")
    A("v_not_b32 v9, v8")
    A("v_and_b32 v9, 0x7ff, v9")
    A("v_lshlrev_b32 v9, 11, v9")
    A("v_lshl_add_u32 v9, v10, 4, v9")
    for ks in range(2):
        A(f"buffer_load_dwordx4 {v(XF+4*ks,4)}, v9, {s(sX,4)}, s38 offen offset:{64*ks}")
    A(f"v_lshlrev_b32 v9, 2, v2")
    A(f"v_add_u32 v9, {L_TOP}, v9")
    A("s_mov_b64 exec, 0xff")
    A("ds_write_b32 v9, v8")
    lds_add(A, vCN, vOne, C_TOP)
    A(f"s_or_b32 s38, s2, s{sWV}")
    A("s_cbranch_scc1 L_s_noep")
    A("s_mov_b64 exec, 1")
    A(f"s_mov_b32 s38, {WS_EPOCH}")
    A(f"v_mov_b32 v13, s{sTAG}")
    A("v_mov_b32 v9, 0")
    A(f"buffer_store_dword v13, v9, {s(sW,4)}, s38 offen")
    A("s_mov_b64 exec, -1")
    A.label("L_s_noep")
    A("s_cmp_ge_u32 s2, 224")
    A("s_cbranch_scc1 L_s_cons")
    A("s_waitcnt vmcnt(0)")
    stamp(A, 5, ST and not opt.get('p0st'))
    WF = 100
    for gu in range(2):
        for nt in range(4):
            for ks in range(2):
                for rd in range(2):
                    A(f"ds_read_b64_tr_b16 {v(WF + ((gu*4+nt)*2+ks)*4 + 2*rd, 2)}, {v(16+nt)} offset:{gu*8192 + ks*4096 + rd*512}")
        A("s_waitcnt lgkmcnt(0)")
    OC = 24
    for ks in range(2):
        for gu in range(2):
            for nt in range(4):
                o = OC + (gu * 4 + nt) * 4
                A(f"v_mfma_f32_16x16x32_bf16 {v(o,4)}, {v(WF+((gu*4+nt)*2+ks)*4,4)}, {v(XF+4*ks,4)}, {'0' if ks == 0 else v(o,4)}")
    A("v_add_u32 v13, s46, v3")
    A("s_nop 7")
    for t in range(8):
        A(f"ds_write_b128 v13, {v(OC+4*t,4)} offset:{1024*t}")
    lds_add(A, vCN, vOne, C_GU)
    A("v_and_b32 v14, 8, v2")
    A("v_lshl_add_u32 v13, v14, 7, v3")
    A(f"s_lshl_b32 s38, s{sWV}, 11")
    A(f"s_add_u32 s38, s38, {L_W}")
    A("v_add_u32 v13, s38, v13")
    A("v_and_b32 v12, 7, v2")
    A("v_mul_u32_u24 v12, 14336, v12")
    A("v_lshl_add_u32 v12, v10, 4, v12")
    A("v_lshl_add_u32 v12, v14, 3, v12")
    A(f"s_mul_i32 s56, s{sKQ}, {2*8*14336}")
    A(f"s_lshl_b32 s39, s{sCS}, 8")
    A("s_add_u32 s56, s56, s39")
    A(f"s_lshr_b32 s39, s{sWV}, 1")
    A(f"s_mul_i32 s39, s39, {8*14336}")
    A("s_add_u32 s56, s56, s39")
    A(f"s_and_b32 s39, s{sWV}, 1")
    A("s_lshl_b32 s39, s39, 7")
    A("s_add_u32 s56, s56, s39")
    A(f"s_add_u32 s56, s56, {WS_GU}")
    lds_wait(A, vCN, 15, C_GU, 4, "s_guw", 0)
    for w in range(4):
        A(f"ds_read_b128 {v(64+4*w,4)}, v13 offset:{w*16384}")
    A(f"s_lshl_b32 s58, s{sCS}, {FSH+2}")
    A(f"s_lshl_b32 s39, s{sKQ}, {FSH}")
    A("s_add_u32 s58, s58, s39")
    A(f"s_add_u32 s58, s58, {WS_GF}")
    A("s_waitcnt lgkmcnt(0)")
    for r in (0, 2):
        A(pk_add(64 + r, 64 + r, 68 + r)); A(pk_add(72 + r, 72 + r, 76 + r)); A(pk_add(64 + r, 64 + r, 72 + r))
    A(f"buffer_store_dwordx4 v[64:67], v12, {s(sW,4)}, s56 offen sc1")
    A(f"v_mov_b32 v13, s{sTAG}")
    A("v_lshlrev_b32 v14, 2, v2")
    A("s_waitcnt vmcnt(0)")
    lds_arrive_last(A, vCN, 15, C_H2, "L_s_nogf")
    flag_store(A, 13, 14, sW, 58)
    A.label("L_s_nogf")
    stamp(A, 6, ST and not opt.get('p0st'))
    if opt.get("nodown"): A("s_branch L_s_end")
    A("v_add_u32 v13, s46, v3")
    for i in range(8):
        A(f"ds_write_b128 v13, {v(DW+4*i,4)} offset:{8192 + 1024*i}")
    A(f"s_lshl_b32 s56, s{sCS}, {FSH+2}")
    A(f"s_add_u32 s56, s56, {WS_GF}")
    A("v_and_b32 v13, 3, v2")
    A(f"v_lshlrev_b32 v13, {FSH}, v13")
    A("v_and_b32 v1, 255, v0")
    A("v_lshrrev_b32 v6, 5, v1")
    A("v_and_b32 v7, 31, v1")
    A("v_mul_u32_u24 v9, 14336, v6")
    A("v_lshl_add_u32 v9, v7, 3, v9")
    A.label("L_s_gpoll")
    A(f"buffer_load_dword v14, v13, {s(sW,4)}, s56 offen sc1")
    A("s_waitcnt vmcnt(0)")
    A(f"v_cmp_ne_u32 vcc, s{sTAG}, v14")
    A("s_nop 1")
    A("s_cmp_eq_u64 vcc, 0")
    A("s_cbranch_scc1 L_s_ggo")
    spin_guard(A, "L_s_ggo")
    A("s_sleep 6")
    A("s_branch L_s_gpoll")
    A.label("L_s_ggo")
    stamp(A, 7, ST and not opt.get('p0st'))
    A(f"s_lshl_b32 s38, s{sCS}, 8")
    A(f"s_add_u32 s38, s38, {WS_GU}")
    PL = 24
    for kq in range(4):
        for gu in range(2):
            A(f"buffer_load_dwordx2 {v(PL + 4*kq + 2*gu, 2)}, v9, {s(sW,4)}, s38 offen sc1")
            A(f"s_add_u32 s38, s38, {8*14336}")
    WF = 64
    for nt in range(4):
        for ks in range(2):
            for rd in range(2):
                A(f"ds_read_b64_tr_b16 {v(WF + (nt*2+ks)*4 + 2*rd, 2)}, {v(16+nt)} offset:{8192 + ks*4096 + rd*512}")
    A("s_waitcnt vmcnt(0)")
    for e in range(4):
        A(f"v_add_f32 {v(PL+e)}, {v(PL+e)}, {v(PL+4+e)}")
        A(f"v_add_f32 {v(PL+8+e)}, {v(PL+8+e)}, {v(PL+12+e)}")
        A(f"v_add_f32 {v(PL+e)}, {v(PL+e)}, {v(PL+8+e)}")
        rnd_bf16(A, PL + e, PL + e)
    for e in range(2):
        sigmoid(A, 40 + e, PL + e)
        A(f"v_mul_f32 {v(40+e)}, {v(40+e)}, {v(PL+e)}")
        rnd_bf16(A, 40 + e, 40 + e)
        A(f"v_mul_f32 {v(40+e)}, {v(40+e)}, {v(PL+2+e)}")
    A("v_cvt_pk_bf16_f32 v40, v40, v41")
    A("v_mul_u32_u24 v9, 144, v6")
    A("v_lshl_add_u32 v9, v7, 2, v9")
    A(f"v_add_u32 v9, {L_ACT}, v9")
    A("ds_write_b32 v9, v40")
    lds_add(A, vCN, vOne, C_ACT)
    A("v_and_b32 v9, 7, v2")
    A("v_mul_u32_u24 v9, 144, v9")
    A("v_lshl_add_u32 v9, v10, 4, v9")
    A(f"v_add_u32 v9, {L_ACT}, v9")
    lds_wait(A, vCN, 15, C_ACT, 4, "s_aw")
    A("ds_read_b128 v[40:43], v9")
    A("ds_read_b128 v[44:47], v9 offset:64")
    A(f"s_mov_b32 s38, {56*4096}")
    A("v_and_b32 v15, 7, v2")
    A("v_mul_lo_u32 v15, v15, s38")
    A("v_lshl_add_u32 v15, v10, 4, v15")
    A("v_and_b32 v14, 8, v2")
    A("v_lshl_add_u32 v15, v14, 3, v15")
    A(f"s_lshl_b32 s38, s{sCS}, 12")
    A(f"s_lshl_b32 s39, s{sKQ}, 10")
    A("s_add_u32 s38, s38, s39")
    A(f"s_lshl_b32 s39, s{sWV}, 8")
    A("s_add_u32 s38, s38, s39")
    A(f"s_add_u32 s38, s38, {WS_YP}")
    A("v_cmp_eq_u32 vcc, 8, v14")
    A("s_waitcnt lgkmcnt(0)")
    for ks in range(2):
        for nt in range(4):
            A(f"v_mfma_f32_16x16x32_bf16 {v(48+4*nt,4)}, {v(WF+(nt*2+ks)*4,4)}, {v(40+4*ks,4)}, {'0' if ks == 0 else v(48+4*nt,4)}")
    A("s_nop 7")
    for nt in (0, 2):
        for r in range(4):
            A(f"v_cndmask_b32 {v(48+4*nt+r)}, {v(48+4*nt+r)}, {v(52+4*nt+r)}, vcc")
        A(f"buffer_store_dwordx4 {v(48+4*nt,4)}, v15, {s(sW,4)}, s38 offen offset:{64*nt} sc1")
    A(f"s_lshl_b32 s58, s{sKQ}, {FSH+6}")
    A(f"s_lshl_b32 s39, s{sCS}, {FSH}")
    A("s_add_u32 s58, s58, s39")
    A(f"s_add_u32 s58, s58, {WS_YF}")
    A(f"v_mov_b32 v13, s{sTAG}")
    A("v_lshlrev_b32 v14, 2, v2")
    A("s_waitcnt vmcnt(0)")
    lds_arrive_last(A, vCN, 15, C_Y, "L_s_cons")
    flag_store(A, 13, 14, sW, 58)
    A.label("L_s_cons")
    stamp(A, 8, ST and not opt.get('p0st'))
    A(f"s_add_u32 s38, s{sWV}, 4")
    A(f"v_readlane_b32 s24, v8, s{sWV}")
    A(f"v_readlane_b32 s25, v8, s38")
    A(f"s_lshl_b32 s45, s{sRB}, 7")
    for t in range(2):
        A(f"s_and_b32 s{26+t}, s{24+t}, 0x7ff")
        A(f"s_sub_u32 s{26+t}, 2047, s{26+t}")
        A(f"s_sub_u32 s{56+t}, s{26+t}, s45")
    A("s_waitcnt lgkmcnt(0)")
    A("s_min_u32 s38, s56, s57")
    A("s_cmp_ge_u32 s38, 128")
    A("s_cbranch_scc1 L_s_end")
    if opt.get("nodown"): A("s_branch L_s_end")
    lds_wait(A, vCN, 15, C_ST, 4 * opt.get("s_cons", 6), "s_pw", 8)
    A(f"s_lshr_b32 s58, s{sDB}, 2")
    A(f"s_lshl_b32 s58, s58, {FSH+6}")
    A(f"s_add_u32 s58, s58, {WS_YF}")
    A("v_min_u32 v4, 55, v2")
    A(f"v_lshlrev_b32 v4, {FSH}, v4")
    A("v_lshlrev_b32 v6, 12, v10")
    A("v_lshl_add_u32 v6, v11, 4, v6")
    A("v_lshlrev_b32 v9, 3, v11")
    A("v_mov_b32 v7, 0")
    A.label("L_s_ypoll")
    A(f"buffer_load_dword v5, v4, {s(sW,4)}, s58 offen sc1")
    A("s_waitcnt vmcnt(0)")
    A(f"v_cmp_ne_u32 vcc, s{sTAG}, v5")
    A("s_nop 1")
    A("s_cmp_eq_u64 vcc, 0")
    A("s_cbranch_scc1 L_s_ygo")
    spin_guard(A, "L_s_ygo")
    A("s_sleep 12")
    A("s_branch L_s_ypoll")
    A.label("L_s_ygo")
    stamp(A, 9, ST and not opt.get('p0st'))
    for t in range(2):
        Y = 24 + 64 * t
        A(f"s_cmp_ge_u32 s{56+t}, 128")
        A(f"s_cbranch_scc1 L_s_sk{t}")
        A(f"s_add_u32 s39, s{sWV}, {4*t}")
        A(f"s_mul_i32 s39, s39, {56*4096}")
        A(f"s_lshl_b32 s3, s{sDB}, 8")
        A("s_add_u32 s39, s39, s3")
        A(f"s_add_u32 s39, s39, {WS_YP}")
        for it in range(14):
            A(f"buffer_load_dwordx4 {v(Y+4*it,4)}, v6, {s(sW,4)}, s39 offen sc1")
            A("s_add_u32 s39, s39, 16384")
        A(f"s_lshl_b32 s39, s{26+t}, 11")
        A(f"s_lshl_b32 s3, s{sDB}, 7")
        A("s_add_u32 s39, s39, s3")
        A(f"buffer_load_dwordx2 {v(Y+56,2)}, v9, {s(sX,4)}, s39 offen")
        A(f"s_lshl_b32 s39, s{26+t}, 3")
        A(f"s_add_u32 s39, s39, {WS_G}")
        A(f"buffer_load_dword {v(Y+58)}, v7, {s(sW,4)}, s39 offen sc1")
        A.label(f"L_s_sk{t}")
    A("s_waitcnt vmcnt(0)")
    for t in range(2):
        Y = 24 + 64 * t
        A(f"s_cmp_ge_u32 s{56+t}, 128")
        A(f"s_cbranch_scc1 L_s_sc{t}")
        A(f"s_ashr_i32 s39, s{24+t}, 31")
        A("s_not_b32 s39, s39")
        A("s_or_b32 s39, s39, 0x80000000")
        A(f"s_xor_b32 s39, s{24+t}, s39")
        A("s_and_b32 s39, s39, 0xffff0000")
        A(f"v_mov_b32 {v(Y+62)}, s39")
        sigmoid(A, Y + 59, Y + 62)
        rnd_bf16(A, Y + 59, Y + 59)
        for it in range(1, 14):
            A(pk_add(Y, Y, Y + 4 * it))
            A(pk_add(Y + 2, Y + 2, Y + 4 * it + 2))
        xsum_groups(A, [Y + e for e in range(4)], [Y + 4 + e for e in range(4)])
        A(f"v_sub_f32 {v(Y+58)}, 1.0, {v(Y+58)}")
        rnd_bf16(A, Y + 58, Y + 58)
        A(f"v_lshlrev_b32 {v(Y+8)}, 16, {v(Y+56)}")
        A(f"v_and_b32 {v(Y+9)}, s21, {v(Y+56)}")
        A(f"v_lshlrev_b32 {v(Y+10)}, 16, {v(Y+57)}")
        A(f"v_and_b32 {v(Y+11)}, s21, {v(Y+57)}")
        for e in range(4):
            rnd_bf16(A, Y + e, Y + e)
            A(f"v_mul_f32 {v(Y+e)}, {v(Y+e)}, {v(Y+59)}")
            rnd_bf16(A, Y + e, Y + e)
            A(f"v_add_f32 {v(Y+e)}, {v(Y+e)}, {v(Y+8+e)}")
            rnd_bf16(A, Y + e, Y + e)
            A(f"v_mul_f32 {v(Y+e)}, {v(Y+e)}, {v(Y+58)}")
            rnd_bf16(A, Y + e, Y + e)
            A(f"v_mul_f32 {v(Y+8+e)}, {v(Y+8+e)}, {v(Y+58)}")
            rnd_bf16(A, Y + 8 + e, Y + 8 + e)
            A(f"v_sub_f32 {v(Y+e)}, {v(Y+e)}, {v(Y+8+e)}")
        A(f"s_lshl_b32 s39, s{sWV}, 8")
        A(f"s_add_u32 s39, s39, {L_DEL + 1024*t}")
        A(f"v_lshl_add_u32 {v(Y+60)}, v11, 4, s39")
        A(f"ds_write_b128 {v(Y+60)}, {v(Y,4)}")
        A(f"v_lshl_add_u32 {v(Y+61)}, s{sWV}, 2, {v(vCN)}")
        lds_add(A, Y + 61, vOne, C_DF + 16 * t)
        A.label(f"L_s_sc{t}")
    A.label("L_s_end")
    stamp_out(A, ST, sW, sWV, 1)
    A("s_endpgm")
```

```python
from common import *

def gen_gemm(A, opt, part):
    ST = opt.get("stamps")
    AM = opt.get("amap")
    sX, sB, sW, sAG, sC, sO = 4, 8, 12, 24, 28, 32
    sRB, sCB, sWV, sWM, sWN, sK, sROT, sLW = 16, 17, 18, 19, 20, 21, 22, 23
    vDA, vDB = 8, 12
    vRA, vRB, vRA2, vRB2 = 16, 18, 20, 22
    vLane, vGq, vL15, vAgO = 24, 25, 26, 27
    Lr, Li, Cr, Ci, L8r, L8i, L16r, L16i, L512r, L512i, Fr, Fi, Wr, Wi = [28 + 2 * i for i in range(14)]
    vT = 56
    ACC = 64
    FX, FY = 128, 160
    UI = FX
    EP = 192
    ea, eb, la, wa, ra, ga = [EP + i for i in range(6)]
    XT, vDC, VS = EP + 6, EP + 10, EP + 14
    PT = 224
    def acc(m, part, c2): return ACC + 4 * (m * 4 + part * 2 + c2)

    RX, RW, RD = PT, PT + 16, 12
    if part == "early":
        A(f"v_and_b32 {v(vL15)}, 15, v0")
        A(f"v_bfe_u32 v4, v0, 7, 1")
        A(f"v_lshl_add_u32 v4, v4, 5, {v(vL15)}")
        A(f"s_lshl_b32 s39, s{sCB}, 6")
        A(f"v_add_lshl_u32 {v(PT+31)}, s39, v4, 1")
        A("s_waitcnt lgkmcnt(0)")
        for c2 in range(2):
            A(f"global_load_ushort {v(PT+c2)}, {v(PT+31)}, s[64:65] offset:{32*c2}")
            A(f"global_load_ushort {v(PT+2+c2)}, {v(PT+31)}, s[66:67] offset:{32*c2}")
            A(f"global_load_ushort {v(PT+4+c2)}, {v(PT+31)}, s[76:77] offset:{32*c2}")
        A("s_branch L_gemm")
        return
    A.label("L_gemm")
    load_tag(A, 42, 43)
    A(f"s_lshr_b32 s{sWN}, s{sWV}, 1")
    A("s_lshl_b32 s50, s3, 8")
    A("s_lshl_b32 s39, s38, 3")
    A("s_add_u32 s50, s50, s39")
    A("s_lshl_b32 s50, s50, 11")
    A(f"s_lshl_b32 s51, s{sWV}, 9")
    A("s_add_u32 s50, s50, s51")
    A(f"s_lshl_b32 s39, s{sWV}, 14")
    A(f"s_add_u32 m0, s39, {L_W}")
    A("v_and_b32 v4, 31, v0")
    A("v_lshlrev_b32 v4, 4, v4")
    A("v_bfe_u32 v5, v0, 5, 1")
    A("v_lshl_add_u32 v5, v5, 11, v4")
    A("v_add_u32 v4, s51, v4")
    A("v_mov_b32 v6, s44")
    A("v_mov_b32 v7, s45")
    A("s_mov_b32 exec_lo, 0")
    A("v_mov_b32 v6, s80")
    A("v_mov_b32 v7, s81")
    A("s_mov_b32 exec_lo, -1")
    A("v_add_co_u32 v6, vcc, v6, v4")
    srd(A, sX, 40, 41, 4194304)
    A("v_addc_co_u32 v7, vcc, 0, v7, vcc")
    for i in range(4):
        A(f"buffer_load_dwordx4 v5, {s(sX,4)}, s50 offen {opt.get('aflag', '')} lds")
        A("s_add_u32 m0, m0, 1024")
        A("s_add_u32 s50, s50, 4096")
    A("global_load_lds_dwordx4 v[6:7], off")
    if opt.get("bwarm", 1):
        if AM:
            A("s_lshl_b32 s50, s3, 7")
        else:
            A("s_and_b32 s39, s3, 1")
            A("s_lshl_b32 s50, s39, 9")
            A("s_lshr_b32 s39, s3, 1")
            A("s_lshl_b32 s39, s39, 7")
            A("s_add_u32 s50, s50, s39")
        A("s_lshl_b32 s39, s38, 2")
        A("s_add_u32 s50, s50, s39")
        A(f"s_add_u32 s50, s50, s{sWV}")
        A("s_lshl_b32 s50, s50, 11")
        A("v_and_b32 v4, 63, v0")
        A("v_lshl_add_u32 v3, v4, 5, s50")
        A("global_load_dword v10, v3, s[68:69]")
        A("global_load_dword v11, v3, s[70:71]")
        A("s_mov_b64 s[8:9], s[72:73]")
        A("s_mov_b64 s[10:11], s[74:75]")
    A("s_mov_b64 s[52:53], s[72:73]")
    A("s_mov_b64 s[54:55], s[74:75]")
    A("s_mov_b64 s[58:59], s[78:79]")
    A("s_mov_b64 s[36:37], s[82:83]")
    A(f"v_and_b32 {v(vLane)}, 63, v0")
    A(f"s_and_b32 s{sWM}, s{sWV}, 1")
    A(f"s_lshl_b32 s{sLW}, s{sWV}, 12")
    A(f"v_lshrrev_b32 {v(vGq)}, 4, {v(vLane)}")
    rr, cc, t1, t2 = vT, vT + 1, vT + 2, vT + 3
    A(f"v_lshrrev_b32 {v(rr)}, 3, {v(vLane)}")
    A(f"v_and_b32 {v(cc)}, 7, {v(vLane)}")
    A(f"v_lshrrev_b32 {v(t1)}, 1, {v(rr)}")
    A(f"v_xor_b32 {v(cc)}, {v(cc)}, {v(t1)}")
    A(f"v_lshlrev_b32 {v(cc)}, 4, {v(cc)}")
    def emit(ls):
        for l in ls: A(l)
    srd(A, sW, 42, 43, WS_USED)
    A(f"s_lshl_b32 s38, s{sCB}, 14")
    A(f"s_add_u32 s38, s38, {WS_AGG}")
    A(f"s_add_u32 s{sAG}, s42, s38")
    A(f"s_addc_u32 s{sAG+1}, s43, 0")
    A(f"s_mov_b32 s{sAG+2}, 16384")
    A(f"s_mov_b32 s{sAG+3}, 0x20000")
    A(f"s_cmp_lt_u32 s{sWV}, 2")
    A(f"s_cselect_b32 s{sC}, s52, s54")
    A(f"s_cselect_b32 s{sC+1}, s53, s55")
    srd(A, sC, sC, sC + 1, 2097152, bias=3072)
    srd(A, sO, 36, 37, 8388608)
    A(f"v_bfe_u32 {v(t2)}, {v(vLane)}, 1, 3")
    A(f"v_xor_b32 {v(t2)}, {v(t2)}, {v(vGq)}")
    A(f"v_lshlrev_b32 {v(t2)}, 4, {v(t2)}")
    A(f"v_lshl_add_u32 {v(t2)}, {v(vL15)}, 7, {v(t2)}")
    A(f"s_lshl_b32 s38, s{sWM}, 13")
    A(f"s_lshl_b32 s39, s{sWN}, 13")
    for kk in range(2):
        A(f"v_xor_b32 {v(t1)}, {64*kk}, {v(t2)}")
        A(f"v_add_u32 {v(vRA+kk)}, s38, {v(t1)}")
        A(f"v_add_u32 {v(vRB+kk)}, s39, {v(t1)}")
        A(f"v_add_u32 {v(vRA2+kk)}, 0x10000, {v(vRA+kk)}")
        A(f"v_add_u32 {v(vRB2+kk)}, 0x10000, {v(vRB+kk)}")
    A(f"v_and_b32 {v(t1)}, 31, {v(vLane)}")
    A(f"v_lshlrev_b32 {v(vAgO)}, 4, {v(t1)}")
    A(f"s_sub_u32 s38, 15, s{sRB}")
    A("s_lshl_b32 s38, s38, 10")
    A(f"s_lshl_b32 s39, s{sWN}, 9")
    A("s_add_u32 s92, s38, s39")
    A(f"v_add_u32 {v(vAgO)}, s92, {v(vAgO)}")
    A(f"s_cmp_eq_u32 s{sWM}, 1")
    A("s_cselect_b64 s[98:99], -1, 0")

    def rd_frags(st, kk, F):
        out = []
        for op, (r1, r2) in enumerate(((vRA, vRA2), (vRB, vRB2))):
            off = ((2 * st + op) % NSLOT) * 16384
            base = r1
            if off >= 65536: off -= 65536; base = r2
            for t in range(4):
                out.append(f"ds_read_b128 {v(F + 16*op + 4*t, 4)}, {v(base+kk)} offset:{off + 2048*t}")
        return [out[0], out[4], out[5], out[6], out[7], out[1], out[2], out[3]]
    def mfmas(F, first):
        out = []
        for m in range(4):
            for n in range(4):
                d = ACC + 4 * (m * 4 + n)
                out.append(f"v_mfma_f32_16x16x32_bf16 {v(d,4)}, {v(F+4*m,4)}, {v(F+16+4*n,4)}, {'0' if first else v(d,4)}")
        return out

    B = Asm()
    lre, lim, ldt = PT, PT + 2, PT + 4
    t = PT + 6
    for r in range(6): B(f"v_lshlrev_b32 {v(PT+r)}, 16, {v(PT+r)}")
    for c in range(2):
        B(f"v_mul_f32 {v(t+c)}, {LOG2E}, {v(ldt+c)}")
    for c in range(2): B(f"v_exp_f32 {v(t+c)}, {v(t+c)}")
    B("s_nop 0")
    for c in range(2): rnd_bf16(B, t + c, t + c)
    B(pk_mul(t + 2, t, None, lre))
    B(pk_mul(t + 4, t, None, lim))
    for c in range(2):
        B(f"v_mul_f32 {v(t+2+c)}, {LOG2E}, {v(t+2+c)}")
        B(f"v_mul_f32 {v(t+4+c)}, {INV2PI}, {v(t+4+c)}")
    for c in range(2):
        B(f"v_exp_f32 {v(t+2+c)}, {v(t+2+c)}")
        B(f"v_rndne_f32 {v(t+6+c)}, {v(t+4+c)}")
    for c in range(2): B(f"v_sub_f32 {v(t+4+c)}, {v(t+4+c)}, {v(t+6+c)}")
    for c in range(2):
        B(f"v_cos_f32 {v(t+6+c)}, {v(t+4+c)}")
        B(f"v_sin_f32 {v(t+8+c)}, {v(t+4+c)}")
    B(pk_mul(t + 10, lre, None, lre))
    B(pk_fma(t + 10, lim, None, lim, t + 10))
    B(pk_mul(Lr, t + 2, None, t + 6))
    B(pk_mul(Li, t + 2, None, t + 8))
    for c in range(2): B(f"v_rcp_f32 {v(t+10+c)}, {v(t+10+c)}")
    for c in range(2): B(f"v_add_f32 {v(t+c)}, -1.0, {v(Lr+c)}")
    B(pk_add(t + 10, t + 10, t + 10))
    B(pk_mul(t + 2, t, None, lre))
    B(pk_fma(t + 2, Li, None, lim, t + 2))
    B(pk_mul(t + 4, Li, None, lre))
    B(pk_fma(t + 4, t, None, lim, t + 4, neg=True))
    B(pk_mul(Cr, t + 2, None, t + 10))
    B(pk_mul(Ci, t + 4, None, t + 10))
    a0, a1, b0, b1, c0, c1, d0, d1 = [PT + 2 * i for i in range(8)]
    pk_csq(B, a0, a1, Lr, Li)
    pk_csq(B, b0, b1, a0, a1)
    pk_csq(B, L8r, L8i, b0, b1)
    pk_csq(B, L16r, L16i, L8r, L8i)
    pk_csq(B, a0, a1, L16r, L16i)
    pk_csq(B, b0, b1, a0, a1)
    B(f"v_and_b32 {v(PT+16)}, 1, {v(vGq)}")
    B(f"v_cmp_eq_u32 s[84:85], 1, {v(PT+16)}")
    B(f"v_cmp_lt_u32 s[86:87], 1, {v(vGq)}")
    B("s_nop 0")
    def sel(dr, di, sr, si, mask):
        for c in range(2):
            B(f"v_cndmask_b32 {v(dr+c)}, 1.0, {v(sr+c)}, {mask}")
            B(f"v_cndmask_b32 {v(di+c)}, 0, {v(si+c)}, {mask}")
    e0, e1 = PT + 18, PT + 20
    sel(c0, c1, L16r, L16i, "s[84:85]")
    sel(d0, d1, a0, a1, "s[86:87]")
    pk_cmul(B, e0, e1, c0, c1, None, d0, d1)
    sel(c0, c1, b0, b1, "s[98:99]")
    pk_cmul(B, Wr, Wi, e0, e1, None, c0, c1)
    pk_csq(B, a0, a1, b0, b1)
    pk_csq(B, b0, b1, a0, a1)
    pk_csq(B, L512r, L512i, b0, b1)
    sel(c0, c1, a0, a1, "s[84:85]")
    sel(d0, d1, b0, b1, "s[86:87]")
    pk_cmul(B, Fr, Fi, c0, c1, None, d0, d1)
    for c2 in range(2):
        B(f"v_mov_b32 {v(a0)}, {v(Wr+c2)}")
        B(f"v_mov_b32 {v(a1)}, {v(Wi+c2)}")
        B(f"v_mul_f32 {v(a0+1)}, {v(L8r+c2)}, {v(Wr+c2)}")
        B(f"v_mul_f32 {v(a1+1)}, {v(L8r+c2)}, {v(Wi+c2)}")
        B(f"v_fma_f32 {v(a0+1)}, -{v(L8i+c2)}, {v(Wi+c2)}, {v(a0+1)}")
        B(f"v_fma_f32 {v(a1+1)}, {v(L8i+c2)}, {v(Wr+c2)}, {v(a1+1)}")
        pk_cmul(B, VS + 4 * c2, VS + 4 * c2 + 2, Cr, Ci, c2, a0, a1)
    par = B.lines
    B = Asm()
    B(f"s_lshl_b32 s38, s{sWN}, 8")
    B(f"s_add_u32 s38, s38, {L_EX}")
    B(f"v_lshl_add_u32 {v(eb)}, {v(vL15)}, 4, s38")
    B(f"s_lshl_b32 s39, s{sWM}, 11")
    B(f"v_lshl_add_u32 {v(ea)}, {v(vGq)}, 9, {v(eb)}")
    B(f"v_add_u32 {v(ea)}, s39, {v(ea)}")
    B(f"v_lshlrev_b32 {v(la)}, 10, {v(vGq)}")
    B(f"v_lshl_add_u32 {v(la)}, {v(vL15)}, 4, {v(la)}")
    B("s_add_u32 s38, s92, 1024")
    B(f"v_add_u32 {v(la)}, s38, {v(la)}")
    B(f"v_sub_u32 {v(t1)}, s{sRB}, {v(vGq)}")
    B(f"v_mov_b32 {v(t2)}, s{sTAG}")
    for i in range(4):
        B(f"v_cmp_lt_i32 vcc, {4*i}, {v(t1)}")
        B("s_nop 1")
        B(f"v_cndmask_b32 {v(XT+i)}, 0, {v(t2)}, vcc")
    B(f"s_mul_i32 s38, s{sWV}, 9216")
    B(f"s_add_u32 s38, s38, {L_TR}")
    B(f"v_mul_u32_u24 {v(wa)}, 144, {v(vL15)}")
    B(f"v_lshl_add_u32 {v(wa)}, {v(vGq)}, 5, {v(wa)}")
    B(f"v_add_u32 {v(wa)}, s38, {v(wa)}")
    B(f"v_bfe_u32 {v(ra)}, {v(vLane)}, 2, 2")
    B(f"v_lshl_add_u32 {v(ra)}, {v(vGq)}, 3, {v(ra)}")
    B(f"v_mul_u32_u24 {v(ra)}, 144, {v(ra)}")
    B(f"v_and_b32 {v(t1)}, 3, {v(vLane)}")
    B(f"v_lshl_add_u32 {v(ra)}, {v(t1)}, 3, {v(ra)}")
    B(f"v_add_u32 {v(ra)}, s38, {v(ra)}")
    B(f"v_lshlrev_b32 {v(ga)}, 4, {v(vLane)}")
    B(f"s_lshl_b32 s38, s{sCB}, 6")
    B(f"s_lshl_b32 s39, s{sWM}, 5")
    B("s_add_u32 s38, s38, s39")
    B(f"v_add_u32 {v(t1)}, s38, {v(rr)}")
    B(f"v_lshl_add_u32 {v(t1)}, {v(t1)}, 11, {v(cc)}")
    B(f"v_xor_b32 {v(t2)}, 64, {v(t1)}")
    for q in range(4):
        B(f"v_add_u32 {v(vDC+q)}, {8*2048*q - 1024*q + 3072}, {v(t2 if q & 1 else t1)}")
    sROT2 = 55
    B(f"s_and_b32 s{sROT2}, s{sCB}, 7")
    sE8 = 54
    B(f"s_and_b32 s{sE8}, s{sCB}, {0 if AM else 8}")
    B(f"s_lshl_b32 s48, s{sRB}, 19")
    B(f"s_lshl_b32 s39, s{sCB}, 15")
    B("s_add_u32 s53, s48, s39")
    B(f"s_lshl_b32 s39, s{sWN}, 11")
    B("s_add_u32 s53, s53, s39")
    B(f"s_lshl_b32 s39, s{sWM}, 14")
    B("s_add_u32 s53, s53, s39")
    sT0, sGB, sXB = 51, 57, 56
    vXo, vGo, vDo = EP + 28, EP + 29, EP + 30
    B(f"s_lshl_b32 s{sT0}, s{sRB}, 7")
    B(f"s_lshl_b32 s38, s{sWV}, 5")
    B(f"s_add_u32 s{sT0}, s{sT0}, s38")
    B(f"s_lshl_b32 s{sGB}, s{sT0}, 3")
    B(f"s_add_u32 s{sGB}, s{sGB}, {WS_G}")
    B(f"s_lshl_b32 s{sXB}, s{sT0}, 11")
    B(f"s_lshl_b32 s39, s{sCB}, 7")
    B(f"s_add_u32 s{sXB}, s{sXB}, s39")
    B(f"v_lshlrev_b32 {v(vXo)}, 11, {v(vGq)}")
    B(f"v_lshl_add_u32 {v(vXo)}, {v(vL15)}, 3, {v(vXo)}")
    B(f"v_and_b32 {v(vGo)}, 31, {v(vLane)}")
    B(f"v_lshlrev_b32 {v(vGo)}, 3, {v(vGo)}")
    B(f"v_lshl_add_u32 {v(vDo)}, {v(vL15)}, 3, s39")
    if opt.get("pretouch", 1):
        B(f"s_not_b32 s39, s{sTAG}")
        for r in range(4): B(f"v_mov_b32 {v(60+r)}, s39")
        B(f"v_lshlrev_b32 {v(t2)}, 2, {v(vLane)}")
        B(f"s_mul_hi_u32 s8, s2, {(1 << 32) // 56 + 1}")
        B("s_mul_i32 s9, s8, 56")
        B("s_sub_u32 s9, s2, s9")
        B(f"s_lshl_b32 s10, s9, {FSH+2}")
        B(f"s_lshl_b32 s11, s8, {FSH}")
        B("s_add_u32 s10, s10, s11")
        B(f"s_add_u32 s10, s10, {WS_GF}")
        B(f"s_lshl_b32 s11, s8, {FSH+6}")
        B(f"s_lshl_b32 s9, s9, {FSH}")
        B("s_add_u32 s11, s11, s9")
        B(f"s_add_u32 s11, s11, {WS_YF}")
        B(f"s_lshl_b32 s9, s{sRB}, {FSH + 4}")
        B(f"s_lshl_b32 s38, s{sCB}, {FSH}")
        B("s_add_u32 s9, s9, s38")
        B(f"s_add_u32 s9, s9, {WS_HF}")
        B("s_cmp_ge_u32 s2, 224")
        B("s_cselect_b32 s10, s9, s10")
        B("s_cselect_b32 s11, s9, s11")
        B(f"s_cmp_eq_u32 s{sWV}, 1")
        B("s_cselect_b32 s9, s10, s9")
        B(f"s_cmp_eq_u32 s{sWV}, 3")
        B("s_cselect_b32 s9, s11, s9")
        B("s_mov_b32 exec_hi, 0")
        B(f"buffer_store_dword v60, {v(t2)}, {s(sW,4)}, s9 offen sc1")
        B(f"buffer_store_dwordx4 v[60:63], {v(vAgO)}, {s(sAG,4)}, 0 offen sc1")
        B("s_mov_b32 exec_hi, -1")
    adr = B.lines

    A("s_waitcnt lgkmcnt(0)")
    make_tag(A)
    emit(adr)
    A(f"s_lshl_b32 s39, s{sWV}, 14")
    A(f"s_add_u32 s39, s39, {L_W}")
    A(f"v_and_b32 v4, 7, {v(vLane)}")
    A("v_lshlrev_b32 v4, 9, v4")
    A(f"v_bfe_u32 v5, {v(vLane)}, 3, 1")
    A("v_lshl_add_u32 v4, v5, 6, v4")
    A(f"v_lshl_add_u32 v4, {v(vGq)}, 4, v4")
    A("v_add_u32 v4, s39, v4")
    A(f"v_and_b32 v7, 1, {v(vLane)}")
    A("v_lshlrev_b32 v5, 9, v7")
    A(f"v_bfe_u32 v6, {v(vLane)}, 1, 1")
    A("v_lshl_add_u32 v5, v6, 6, v5")
    A(f"v_lshl_add_u32 v5, {v(vGq)}, 4, v5")
    A("v_add_u32 v5, s39, v5")
    A(f"v_lshrrev_b32 v6, 1, {v(vGq)}")
    A("v_lshlrev_b32 v6, 6, v6")
    A("v_lshl_add_u32 v6, v7, 5, v6")
    A(f"v_and_b32 v7, 1, {v(vGq)}")
    A("v_lshl_add_u32 v6, v7, 4, v6")
    A(f"s_lshl_b32 s39, s{sWV}, 7")
    A(f"s_add_u32 s39, s39, {L_SCR}")
    A("v_add_u32 v6, s39, v6")
    NPRE = opt.get("par_pre", 999)
    NPT = 2 if opt.get("pretouch", 1) else 0
    A(f"s_waitcnt vmcnt({NPT + (7 if opt.get('bwarm', 1) else 5)})")
    emit(par); par = []
    RGS = opt.get("rg_st", -1)
    rg1 = []
    for ks in range(4):
        rg1.append(f"ds_read_b128 {v(RX+4*ks,4)}, v4 offset:{128*ks}")
        rg1.append(f"ds_read_b128 {v(RW+4*ks,4)}, v5 offset:{4096 + 128*ks}")
    rg2 = [f"v_mfma_f32_16x16x32_bf16 {v(RD,4)}, {v(RX+4*ks,4)}, {v(RW+4*ks,4)}, {'0' if ks == 0 else v(RD,4)}" for ks in range(4)]
    rg3 = ["s_mov_b32 exec_lo, 0x00030003", "s_mov_b32 exec_hi, 0x000c000c", f"ds_write_b128 v6, {v(RD,4)}", "s_mov_b64 exec, -1"]
    if RGS < 0:
        A(f"s_waitcnt vmcnt({NPT + (2 if opt.get('bwarm', 1) else 0)})")
        emit(rg1); A("s_waitcnt lgkmcnt(0)"); emit(rg2); A("s_nop 7"); emit(rg3)
    if opt.get("prio", 0): A(f"s_setprio {opt.get('prio', 0)}")
    stamp(A, 1, ST and not opt.get('p2st') and not opt.get('p1st'))
    def xr(i): return PT + 2 * i
    GT, DR, GR, DS = PT + 16, PT + 18, PT + 20, PT + 28
    def gload(): A(f"buffer_load_dwordx2 {v(GT,2)}, {v(vGo)}, {s(sW,4)}, s{sGB} offen sc1")
    RSL = opt.get("rd_slots", [0, 1, 3, 4, 6, 7, 9, 10])
    for st in range(16):
        A("s_waitcnt lgkmcnt(0)" + (" vmcnt(0)" if st == RGS else ""))
        A("s_barrier")
        if st == 0: stamp(A, 2, ST and not opt.get('p2st') and not opt.get('p1st'))
        if opt.get("p1st") and st in (0, 1, 2, 3, 4, 6, 8, 10, 12, 14):
            stamp(A, {0: 1, 1: 2, 2: 4, 3: 5, 4: 6, 6: 7, 8: 8, 10: 9, 12: 10, 14: 11}[st], ST)
        for half in range(2):
            rds = rd_frags(st, half, FX if half == 0 else FY)
            if half == 0:
                mf = mfmas(FY, False) if st > 0 else []
            else:
                A("s_waitcnt lgkmcnt(0)")
                if st == RGS: emit(rg2)
                mf = mfmas(FX, st == 0)
            if st == RGS and half == 0: par = list(rg1)
            if not mf: emit(rds); rds = []
            for k, m in enumerate(mf):
                A(m)
                if k in RSL: A(rds.pop(0))
                else:
                    for _ in range(opt.get("par_n", 1)):
                        if par: A(par.pop(0))
            assert not rds
            if st == RGS and half == 1: emit(rg3)
        if st == opt.get("cwarm", 99):
            A("global_load_dword v10, v3, s[8:9]")
            A("global_load_dword v11, v3, s[10:11]")
    assert not par, len(par)
    A("s_waitcnt lgkmcnt(0) vmcnt(0)")
    emit(mfmas(FY, False))
    stamp(A, 3, ST)

    def ure(c2, q): return acc(q >> 1, 0, c2) + 2 * (q & 1)
    def uim(c2, q): return acc(q >> 1, 1, c2) + 2 * (q & 1)
    def uI(c2, q): return UI + 16 * c2 + 2 * q
    HS = 8
    TT = 16
    EE = 56
    PUB = 60
    PIN = EP + 24
    t9 = EP + 22
    for i in range(4): A(f"s_mov_b32 s{44+i}, {4096*i}")
    A(f"v_mov_b32 {v(PUB+1)}, s{sTAG}")
    A(f"v_mov_b32 {v(PUB+3)}, s{sTAG}")
    A(f"v_and_b32 {v(PIN)}, 31, {v(vLane)}")
    A(f"v_lshlrev_b32 {v(PIN)}, 2, {v(PIN)}")
    A(f"v_add_u32 {v(PIN)}, {L_CNT}, {v(PIN)}")
    A(f"v_mov_b32 {v(PIN+2)}, 0")
    A(f"ds_write_b32 {v(PIN)}, {v(PIN+2)}")
    for q in range(1, 8):
        for c2 in range(2):
            hr, hi, tr_, ti = HS + 4 * c2, HS + 4 * c2 + 2, TT + 4 * c2, TT + 4 * c2 + 2
            pr = ure(c2, 0) if q == 1 else hr
            pi = uim(c2, 0) if q == 1 else hi
            A(pk_fma(tr_, Li, c2, pi, ure(c2, q), neg=True))
            A(pk_fma(ti, Li, c2, pr, uim(c2, q)))
            A(pk_fma(hr, Lr, c2, pr, tr_))
            A(pk_fma(hi, Lr, c2, pi, ti))
    for c2 in range(2):
        hr, hi = HS + 4 * c2, HS + 4 * c2 + 2
        A(f"v_fma_f32 {v(EE+c2)}, -{v(L8i+c2)}, {v(hi)}, {v(hr+1)}")
        A(f"v_fma_f32 {v(EE+2+c2)}, {v(L8i+c2)}, {v(hr)}, {v(hi+1)}")
    for c2 in range(2):
        hr, hi = HS + 4 * c2, HS + 4 * c2 + 2
        A(f"v_fma_f32 {v(EE+c2)}, {v(L8r+c2)}, {v(hr)}, {v(EE+c2)}")
        A(f"v_fma_f32 {v(EE+2+c2)}, {v(L8r+c2)}, {v(hi)}, {v(EE+2+c2)}")
    A(f"ds_write_b128 {v(ea)}, {v(EE,4)}")
    A("s_waitcnt lgkmcnt(0)")
    A("s_barrier")
    PE = FY
    for sp in range(8):
        A(f"ds_read_b128 {v(PE+4*sp,4)}, {v(eb)} offset:{sp*512}")
    for sp in range(1, 8):
        A(f"s_waitcnt lgkmcnt({7-sp})")
        pr, pi, er, ei = PE + 4 * (sp - 1), PE + 4 * (sp - 1) + 2, PE + 4 * sp, PE + 4 * sp + 2
        A(pk_fma(er, L16i, None, pi, er, neg=True))
        A(pk_fma(ei, L16i, None, pr, ei))
        A(pk_fma(er, L16r, None, pr, er))
        A(pk_fma(ei, L16r, None, pi, ei))
    A(f"v_cndmask_b32 {v(PUB)}, {v(PE+28)}, {v(PE+29)}, s[84:85]")
    A(f"v_cndmask_b32 {v(PUB+2)}, {v(PE+30)}, {v(PE+31)}, s[84:85]")
    A(f"s_cmp_lg_u32 s{sWM}, 0")
    A("s_cbranch_scc1 L_nopub")
    A("s_mov_b32 exec_hi, 0")
    A(f"buffer_store_dwordx4 {v(PUB,4)}, {v(vAgO)}, {s(sAG,4)}, 0 offen sc1")
    A("s_mov_b32 exec_hi, -1")
    A.label("L_nopub")
    stamp(A, 4, ST and not opt.get('p0st') and not opt.get('p2st') and not opt.get('p1st'))
    LQ = FY
    def lb_loads():
        for c2 in range(2):
            for i in range(4):
                A(f"buffer_load_dwordx4 {v(LQ+16*c2+4*i,4)}, {v(la)}, {s(sAG,4)}, s{44+i} offen offset:{256*c2} sc1")
    B = Asm()
    for r in range(4):
        for g in range(4):
            lo = "0" if g == 0 else v(PE + 4 * (g - 1) + r)
            B(f"v_cndmask_b32 {v(TT+g)}, {lo}, {v(PE+4*(3+g)+r)}, s[98:99]")
        B(f"v_cndmask_b32 {v(TT)}, {v(TT)}, {v(TT+1)}, s[84:85]")
        B(f"v_cndmask_b32 {v(TT+2)}, {v(TT+2)}, {v(TT+3)}, s[84:85]")
        B(f"v_cndmask_b32 {v(PIN+r)}, {v(TT)}, {v(TT+2)}, s[86:87]")
    QS = 56
    for c2 in range(2):
        hr, hi = HS + 4 * c2, HS + 4 * c2 + 2
        qr, qi = TT, TT + 2
        B(f"v_mov_b32 {v(qr)}, {v(PIN+c2)}")
        B(f"v_mov_b32 {v(qi)}, {v(PIN+2+c2)}")
        B(f"v_fma_f32 {v(qr+1)}, -{v(L8i+c2)}, {v(PIN+2+c2)}, {v(hr)}")
        B(f"v_fma_f32 {v(qi+1)}, {v(L8i+c2)}, {v(PIN+c2)}, {v(hi)}")
        B(f"v_fma_f32 {v(qr+1)}, {v(L8r+c2)}, {v(PIN+c2)}, {v(qr+1)}")
        B(f"v_fma_f32 {v(qi+1)}, {v(L8r+c2)}, {v(PIN+2+c2)}, {v(qi+1)}")
        pk_cmul(B, QS + 4 * c2, QS + 4 * c2 + 2, Cr, Ci, c2, qr, qi)
    for q in range(8):
        for c2 in range(2):
            B(pk_mul(uI(c2, q), Cr, c2, uim(c2, q)))
            B(pk_fma(uI(c2, q), Ci, c2, ure(c2, q), uI(c2, q)))
            B(pk_mul(ure(c2, q), Cr, c2, ure(c2, q)))
            B(pk_fma(ure(c2, q), Ci, c2, uim(c2, q), ure(c2, q), neg=True))
    nlb = max(48, min(opt.get("lb_at", 60), len(B.lines)))
    emit(B.lines[:nlb])
    if opt.get("lb_delay"): A(f"s_sleep {opt['lb_delay']}")
    lb_loads()
    emit(B.lines[nlb:])
    gload()
    A(f"global_load_dwordx2 {v(DR,2)}, {v(vDo)}, s[58:59]")
    for i in range(8):
        A(f"buffer_load_dwordx2 {v(xr(i),2)}, {v(vXo)}, {s(sX,4)}, s{sXB} offen")
        A(f"s_add_u32 s{sXB}, s{sXB}, 8192")
    vm = Vm()
    def slot2(st): return [5, 0, 1, 2, 3][st % 5]
    def stage_cb(dst, st):
        if st == 0: return [f"s_mov_b32 s{dst}, s{sCB}"]
        if st < 8:
            return [f"s_cmp_le_u32 s{sROT2}, {st - 1}", f"s_cselect_b32 s{dst}, {st}, {st - 1}", f"s_or_b32 s{dst}, s{dst}, s{sE8}"]
        return [f"s_xor_b32 s{dst}, s{sE8}, {st}"]
    def cdma(st, q):
        out = []
        if q == 0:
            out.append(f"s_add_u32 m0, s{sLW}, {slot2(st) * 16384}")
            out += stage_cb(sK, st)
            out.append(f"s_lshl_b32 s{sK}, s{sK}, 7")
        out.append(f"buffer_load_dwordx4 {v(vDC+q)}, {s(sC,4)}, s{sK} offen offset:{1024*q} {opt.get('cflag', '')} lds")
        vm.add(("c", st))
        return out
    A("s_waitcnt vmcnt(10)")
    A.label("L_poll")
    for c2 in range(2):
        for i in range(4):
            A(f"v_xor_b32 {v(LQ+16*c2+4*i+1)}, {v(LQ+16*c2+4*i+1)}, {v(XT+i)}")
            A(f"v_xor_b32 {v(LQ+16*c2+4*i+3)}, {v(LQ+16*c2+4*i+3)}, {v(XT+i)}")
    A(f"v_or3_b32 {v(t9)}, {v(LQ+1)}, {v(LQ+3)}, {v(LQ+5)}")
    for i in range(7, 31, 4):
        A(f"v_or3_b32 {v(t9)}, {v(t9)}, {v(LQ+i)}, {v(LQ+i+2)}")
    A(f"v_or_b32 {v(t9)}, {v(t9)}, {v(LQ+31)}")
    A(f"v_cmp_ne_u32 vcc, 0, {v(t9)}")
    A("s_nop 1")
    A("s_cmp_eq_u64 vcc, 0")
    A("s_cbranch_scc1 L_got")
    spin_guard(A, "L_got")
    A(f"s_sleep {opt.get('lb_sleep', 1)}")
    lb_loads()
    A("s_waitcnt vmcnt(0)")
    A("s_branch L_poll")
    A.label("L_got")
    stamp(A, 5, ST and not opt.get('p1st') and not opt.get('p0st'))
    HC = TT
    for i in range(2, -1, -1):
        for c2 in range(2):
            cr_, ci_ = LQ + 16 * c2 + 4 * (i + 1), LQ + 16 * c2 + 4 * (i + 1) + 2
            ar, ai = LQ + 16 * c2 + 4 * i, LQ + 16 * c2 + 4 * i + 2
            A(f"v_fma_f32 {v(ar)}, -{v(L512i+c2)}, {v(ci_)}, {v(ar)}")
            A(f"v_fma_f32 {v(ai)}, {v(L512i+c2)}, {v(cr_)}, {v(ai)}")
            A(f"v_fma_f32 {v(ar)}, {v(L512r+c2)}, {v(cr_)}, {v(ar)}")
            A(f"v_fma_f32 {v(ai)}, {v(L512r+c2)}, {v(ci_)}, {v(ai)}")
    for c2 in range(2):
        ar, ai = LQ + 16 * c2, LQ + 16 * c2 + 2
        A(f"v_mul_f32 {v(HC+2*c2)}, {v(Fr+c2)}, {v(ar)}")
        A(f"v_mul_f32 {v(HC+2*c2+1)}, {v(Fr+c2)}, {v(ai)}")
        A(f"v_fma_f32 {v(HC+2*c2)}, -{v(Fi+c2)}, {v(ai)}, {v(HC+2*c2)}")
        A(f"v_fma_f32 {v(HC+2*c2+1)}, {v(Fi+c2)}, {v(ar)}, {v(HC+2*c2+1)}")
    xsum_groups(A, [HC + i for i in range(4)], [HC + 4 + i for i in range(4)])
    for c2 in range(2):
        qr, qi, wr, wi = QS + 4 * c2, QS + 4 * c2 + 2, VS + 4 * c2, VS + 4 * c2 + 2
        A(pk_fma(qr, HC + 2 * c2, 0, wr, qr))
        A(pk_fma(qi, HC + 2 * c2, 0, wi, qi))
        A(pk_fma(qr, HC + 2 * c2, 1, wi, qr, neg=True))
        A(pk_fma(qi, HC + 2 * c2, 1, wr, qi))
    PK = FY
    def pko(c2, part, e, j): return PK + 16 * c2 + 8 * part + 4 * e + j
    for q in range(8):
        for c2 in range(2):
            pr = QS + 4 * c2 if q == 0 else ure(c2, q - 1)
            pi = QS + 4 * c2 + 2 if q == 0 else uI(c2, q - 1)
            A(pk_fma(ure(c2, q), Li, c2, pi, ure(c2, q), neg=True))
            A(pk_fma(uI(c2, q), Li, c2, pr, uI(c2, q)))
            A(pk_fma(ure(c2, q), Lr, c2, pr, ure(c2, q)))
            A(pk_fma(uI(c2, q), Lr, c2, pi, uI(c2, q)))
        if q & 1:
            for c2 in range(2):
                for e in range(2):
                    A(f"v_cvt_pk_bf16_f32 {v(pko(c2,0,e,q>>1))}, {v(ure(c2,q-1)+e)}, {v(ure(c2,q)+e)}")
                    A(f"v_cvt_pk_bf16_f32 {v(pko(c2,1,e,q>>1))}, -{v(uI(c2,q-1)+e)}, -{v(uI(c2,q)+e)}")
    for part in range(2):
        for c2 in range(2):
            for e in range(2):
                A(f"ds_write_b128 {v(wa)}, {v(pko(c2,part,e,0),4)} offset:{part*4608 + c2*2304 + e*16}")
    stamp(A, 6, ST and not opt.get('p0st') and not opt.get('p2st') and not opt.get('p1st'))
    OUT = FX
    for part in range(2):
        A(f"s_waitcnt lgkmcnt({4 if part == 0 else 8})")
        for mt in range(4):
            for rd in range(2):
                A(f"ds_read_b64_tr_b16 {v(OUT + 16*part + 4*mt + 2*rd, 2)}, {v(ra)} offset:{part*4608 + rd*576 + mt*32}")
    for k in range(8):
        part, mt = k >> 2, k & 3
        if mt % 2 == 0: A(f"s_add_u32 s39, s53, {part*4096 + (mt>>1)*8192}")
        A(f"s_waitcnt lgkmcnt({14 - 2*k})")
        A(f"buffer_store_dwordx4 {v(OUT + 4*k, 4)}, {v(ga)}, {s(sW,4)}, s39 offen offset:{(mt&1)*1024} sc1")
        vm.add("hs")
    stamp(A, 7, ST and not opt.get('p0st') and not opt.get('p2st') and not opt.get('p1st'))

    HD = 2
    vRC, vRC2 = 20, 22
    vH0, vH1 = 28, 29
    vFo, vFl = 30, 31
    ACC2, CF, HR = 128, 224, 160
    sH, sHB = 49, 50
    A("s_waitcnt vmcnt(8)")
    vG = 4
    def er(k): return ACC + 16 * (k >> 3) + 8 + (k & 7)
    A.label("L_gchk")
    A(f"v_cmp_ne_u32 vcc, s{sTAG}, {v(GT+1)}")
    A("s_nop 1")
    A("s_cmp_eq_u64 vcc, 0")
    A("s_cbranch_scc1 L_gok")
    spin_guard(A, "L_gok")
    gload()
    A("s_waitcnt vmcnt(0)")
    A("s_branch L_gchk")
    A.label("L_gok")
    A(f"v_lshlrev_b32 v6, 2, {v(vGq)}")
    A(f"v_lshlrev_b32 v7, 2, {v(vL15)}")
    for i in range(8): A(f"ds_bpermute_b32 {v(GR+i)}, v6, {v(GT)} offset:{16*i}")
    for tt in range(2): A(f"ds_bpermute_b32 {v(vG+tt)}, v7, {v(GT)} offset:{64*tt}")
    A("s_mov_b32 s10, 0xffff0000")
    B = Asm()
    B(f"v_lshlrev_b32 {v(DS)}, 16, {v(DR)}")
    B(f"v_and_b32 {v(DS+1)}, s10, {v(DR)}")
    B(f"v_lshlrev_b32 {v(DS+2)}, 16, {v(DR+1)}")
    B(f"v_and_b32 {v(DS+3)}, s10, {v(DR+1)}")
    B("s_waitcnt lgkmcnt(0)")
    a0, a2, om = HS, HS + 2, HS + 4
    for i in range(8):
        B(f"v_sub_f32 {v(om)}, 1.0, {v(GR+i)}")
        rnd_bf16(B, om, om)
        for p in range(2):
            x_ = xr(i) + p
            B(f"v_lshlrev_b32 {v(a0)}, 16, {v(x_)}")
            B(f"v_and_b32 {v(a0+1)}, s10, {v(x_)}")
            B(f"v_mul_f32 {v(a2)}, {v(a0)}, {v(DS+2*p)}")
            B(f"v_mul_f32 {v(a2+1)}, {v(a0+1)}, {v(DS+2*p+1)}")
            B(f"v_cvt_pk_bf16_f32 {v(a2)}, {v(a2)}, {v(a2+1)}")
            B(f"v_mul_f32 {v(a0)}, {v(a0)}, {v(om)}")
            B(f"v_mul_f32 {v(a0+1)}, {v(a0+1)}, {v(om)}")
            B(f"v_cvt_pk_bf16_f32 {v(a0)}, {v(a0)}, {v(a0+1)}")
            B(f"v_and_b32 {v(a2+1)}, s10, {v(a2)}")
            B(f"v_lshlrev_b32 {v(a2)}, 16, {v(a2)}")
            B(f"v_and_b32 {v(a0+1)}, s10, {v(a0)}")
            B(f"v_lshlrev_b32 {v(a0)}, 16, {v(a0)}")
            B(f"v_fma_f32 {v(er(4*i+2*p))}, {v(GR+i)}, {v(a2)}, {v(a0)}")
            B(f"v_fma_f32 {v(er(4*i+2*p+1))}, {v(GR+i)}, {v(a2+1)}, {v(a0+1)}")
    el = B.lines
    cq = [(st, q) for st in range(3) for q in range(4)]
    C0 = opt.get("c_at", 0)
    for n, l in enumerate(el):
        if n >= C0 and n % opt.get("c_gap", 6) == 0 and cq:
            emit(cdma(*cq.pop(0)))
        A(l)
    el = []
    for q in range(4): A(f"v_mov_b32 {v(16+q)}, {v(vDC+q)}")
    vDC = 16
    A(f"v_mov_b32 {v(vH0)}, {v(ga)}")
    A(f"v_add_u32 {v(vH1)}, 4096, {v(ga)}")
    A(f"s_lshl_b32 s38, s{sWV}, 13")
    A(f"s_add_u32 s{sHB}, s48, s38")
    vCN, vOne, vPo = 32, 33, 34
    A(f"v_mov_b32 {v(vCN)}, {L_CNT}")
    A(f"v_mov_b32 {v(vOne)}, 1")
    A(f"v_bfe_u32 {v(t2)}, {v(vLane)}, 1, 3")
    A(f"v_xor_b32 {v(t2)}, {v(t2)}, {v(vGq)}")
    A(f"v_lshlrev_b32 {v(t2)}, 4, {v(t2)}")
    A(f"v_lshl_add_u32 {v(t2)}, {v(vL15)}, 7, {v(t2)}")
    for kk in range(2):
        A(f"v_xor_b32 {v(vRC+kk)}, {64*kk}, {v(t2)}")
        A(f"v_add_u32 {v(vRC2+kk)}, 0x10000, {v(vRC+kk)}")
    A(f"v_xor_b32 {v(vFo)}, s{sE8}, {v(vL15)}")
    A(f"v_lshlrev_b32 {v(vFo)}, {FSH}, {v(vFo)}")
    A(f"v_mov_b32 {v(t1)}, s{sTAG}")
    A(f"v_lshlrev_b32 {v(t2)}, 2, {v(vLane)}")
    A(f"s_lshl_b32 s52, s{sRB}, {FSH + 4}")
    A(f"s_add_u32 s52, s52, {WS_HF}")
    A(f"s_lshl_b32 s46, s{sCB}, {FSH}")
    A("s_add_u32 s46, s46, s52")
    vTR = 35
    A(f"s_sub_u32 s38, s{sWN}, s{sWV}")
    A("s_mul_i32 s38, s38, 9216")
    A(f"s_lshl_b32 s39, s{sWM}, 6")
    A("s_add_u32 s38, s38, s39")
    A(f"v_add_u32 {v(vTR)}, s38, {v(ra)}")
    A(f"s_waitcnt vmcnt({vm.need('hs')})")
    lds_arrive_last(A, vCN, vT + 1, C_HF, "L_nohf")
    flag_store(A, t1, t2, sW, 46)
    assert not cq
    A("s_waitcnt vmcnt(1)")
    A("s_branch L_hfd")
    A.label("L_nohf")
    A("s_waitcnt vmcnt(0)")
    A.label("L_hfd")
    stamp(A, 8, ST and not opt.get('p0st') and not opt.get('p2st') and not opt.get('p1st'))
    while cq: emit(cdma(*cq.pop(0)))
    MW = 0xffff if AM else 0xff
    def fpoll(mask):
        A(f"s_mov_b64 exec, {mask}")
        A(f"buffer_load_dword {v(vFl)}, {v(vFo)}, {s(sW,4)}, s52 offen sc1")
        A("s_mov_b64 exec, -1")
    def creads(g):
        st, ks = g >> 2, g & 3
        off = slot2(st) * 16384 + (ks >> 1) * 8192
        base = vRC
        if off >= 65536: off -= 65536; base = vRC2
        F = CF + (g & 1) * 16
        return [f"ds_read_b128 {v(F+4*dt,4)}, {v(base + (ks & 1))} offset:{off + 2048*dt}" for dt in range(4)]
    def mm(g, tt):
        st, ks = g >> 2, g & 3
        F = CF + (g & 1) * 16
        hr = HR + (st % HD) * 32 + 4 * (2 * ks + tt)
        return [f"v_mfma_f32_16x16x32_bf16 {v(ACC2+4*(tt*4+dt),4)}, {v(F+4*dt,4)}, {v(hr,4)}, {'0' if g == 0 else v(ACC2+4*(tt*4+dt),4)}" for dt in range(4)]
    lds_add(A, vCN, vOne, C_HL)
    fpoll(MW)
    lds_wait(A, vCN, vPo, C_HL, 4, "sync0", 0)
    for j in range(8):
        part, wn, tt = j >> 2, (j >> 1) & 1, j & 1
        for rd in range(2):
            A(f"ds_read_b64_tr_b16 {v(HR + 4*j + 2*rd, 2)}, {v(vTR)} offset:{wn*18432 + part*4608 + rd*576 + tt*32}")
        if j == 3: A("s_waitcnt lgkmcnt(4)")
    lds_add(A, vCN, vOne, C_GO)
    A("s_waitcnt lgkmcnt(4)")
    emit(creads(0))
    for g in range(4):
        emit(creads(g + 1))
        A("s_waitcnt lgkmcnt(4)")
        emit(mm(g, 0)); emit(mm(g, 1))
    A.label("L_hpoll")
    A("s_waitcnt vmcnt(0)")
    A(f"v_cmp_ne_u32 vcc, s{sTAG}, {v(vFl)}")
    A("s_nop 1")
    A(f"s_and_b32 s38, vcc_lo, {MW}")
    A("s_cbranch_scc0 L_hgo")
    spin_guard(A, "L_hgo")
    A(f"s_sleep {opt.get('h_sleep', 1)}")
    fpoll(MW)
    A("s_branch L_hpoll")
    A.label("L_hgo")
    stamp(A, 9, ST and not opt.get('p1st'))
    def hload(st, j):
        out = []
        if j == 0:
            out += stage_cb(sH, st)
            out.append(f"s_lshl_b32 s{sH}, s{sH}, 15")
            out.append(f"s_add_u32 s{sH}, s{sH}, s{sHB}")
        r = HR + (st % HD) * 32 + 4 * j
        out.append(f"buffer_load_dwordx4 {v(r,4)}, {v(vH0 if j < 4 else vH1)}, {s(sW,4)}, s{sH} offen offset:{1024*(j&3)} {opt.get('hld', 'sc1')}")
        vm.add(("h", st, j))
        return out
    for j in range(8): emit(hload(1, j))
    lds_wait(A, vCN, vPo, C_GO, 4, "sync1", 0)
    stamp(A, 10, ST and not opt.get('p1st'))
    for j in range(8): emit(hload(2, j))
    LA = 4
    cq = [(st, q) for st in (3, 4) for q in range(4)]
    for g in range(4, 64):
        st, ks = g >> 2, g & 3
        if opt.get("p2st") and g in (8, 16, 24, 32, 48):
            stamp(A, {8: 1, 16: 2, 24: 4, 32: 7, 48: 8}[g], ST)
        gchk = 999 if AM else 4 * (8 - HD)
        if g == gchk - 3:
            fpoll("0xff00"); vm.add("f")
        if g == gchk:
            A(f"s_waitcnt vmcnt({vm.need('f')})")
            A.label("L_h2poll")
            A(f"v_cmp_ne_u32 vcc, s{sTAG}, {v(vFl)}")
            A("s_nop 1")
            A("s_and_b32 s38, vcc_lo, 0xff00")
            A("s_cbranch_scc0 L_h2go")
            spin_guard(A, "L_h2go")
            A("s_sleep 2")
            fpoll("0xff00")
            A("s_waitcnt vmcnt(0)")
            A("s_branch L_h2poll")
            A.label("L_h2go")
            if opt.get("p2st"): stamp(A, 6, ST)
        hn = vm.need(('h', st, 2*ks+1))
        if st < 15 and ks == 1:
            assert vm.ops.count(("c", st + 1)) == 4
            emit(creads(g + 1))
            A(f"s_waitcnt vmcnt({min(hn, vm.need(('c', st + 1)))}) lgkmcnt(4)")
            lds_add(A, vCN, vOne, C_ST)
        elif st < 15 and ks == 3:
            A("s_waitcnt lgkmcnt(0)")
            A(f"v_readfirstlane_b32 s38, {v(vPo)}")
            A("s_nop 1")
            A(f"s_cmp_ge_u32 s38, {4 * st}")
            A(f"s_cbranch_scc1 L_st{st}_ok")
            lds_wait(A, vCN, vPo, C_ST, 4 * st, f"st{st}", 0)
            if st + LA < 16: cq += [(st + LA, q) for q in range(4)]
            emit(creads(g + 1))
            A(f"s_waitcnt vmcnt({hn})")
        elif g + 1 < 64:
            emit(creads(g + 1))
            A(f"s_waitcnt vmcnt({hn}) lgkmcnt(4)")
        else:
            A(f"s_waitcnt vmcnt({hn}) lgkmcnt(0)")
        for tt in range(2):
            emit(mm(g, tt))
            if st < 15 and ks == 2 and tt == 0: A(f"ds_read_b32 {v(vPo)}, {v(vCN)} offset:{C_ST}")
            if st + HD < 16: emit(hload(st + HD, 2 * ks + tt))
            if cq and (tt == 0 or len(cq) > 4): emit(cdma(*cq.pop(0)))
    assert not el and not cq
    stamp(A, 11, ST and not opt.get('p1st'))
    assert slot2(15) == 5 and slot2(14) == 3
    TB = 0
    wa, ra, oa = vT, vT + 1, vT + 2
    A(f"s_mul_i32 s38, s{sWV}, 8704")
    A(f"s_add_u32 s56, s38, {TB}")
    A(f"v_mul_u32_u24 {v(wa)}, 272, {v(vL15)}")
    A(f"v_lshl_add_u32 {v(wa)}, {v(vGq)}, 4, {v(wa)}")
    A(f"v_add_u32 {v(wa)}, s56, {v(wa)}")
    A(f"v_mul_u32_u24 {v(ra)}, 272, {v(vGq)}")
    A(f"v_lshl_add_u32 {v(ra)}, {v(vL15)}, 4, {v(ra)}")
    A(f"v_add_u32 {v(ra)}, s56, {v(ra)}")
    A(f"v_lshlrev_b32 {v(oa)}, 12, {v(vGq)}")
    A(f"v_lshl_add_u32 {v(oa)}, {v(vL15)}, 4, {v(oa)}")
    A(f"v_lshlrev_b32 {v(vT+3)}, 2, {v(vLane)}")
    A(f"v_add_u32 {v(vT+3)}, {L_TOP}, {v(vT+3)}")
    lds_wait(A, vCN, vPo, C_TOP, 1, "topw")
    A(f"ds_read_b32 {v(vT+4)}, {v(vT+3)}")
    for tt in range(2):
        for dt in range(4):
            r = ACC2 + 4 * (tt * 4 + dt)
            A(pk_mul(r, vG, tt, r))
            A(pk_mul(r + 2, vG, tt, r + 2))
            A(f"ds_write_b128 {v(wa)}, {v(r,4)} offset:{tt*16*272 + dt*64}")
    A("s_waitcnt lgkmcnt(8)")
    A(f"v_and_b32 {v(vT+4)}, 0x7ff, {v(vT+4)}")
    A(f"s_sub_u32 s38, 2047, s{sT0}")
    A(f"v_sub_u32 {v(vT+4)}, s38, {v(vT+4)}")
    A(f"v_cmp_gt_u32 vcc, 32, {v(vT+4)}")
    A("s_nop 1")
    A("s_and_b32 s57, vcc_lo, 0xff")
    if opt.get("nodown"): A("s_mov_b32 s57, 0")
    Y = HR
    A.label("L_fix")
    A("s_cmp_eq_u32 s57, 0")
    A("s_cbranch_scc1 L_fixd")
    A("s_ff1_i32_b32 s38, s57")
    A("s_bitset0_b32 s57, s38")
    A(f"v_readlane_b32 s39, {v(vT+4)}, s38")
    A("s_mov_b32 s49, s38")
    A(f"v_lshl_add_u32 {v(Y+10)}, s49, 2, {v(vCN)}")
    lds_wait(A, Y + 10, vPo, C_DF, 1, "dfw", 2)
    A("s_lshl_b32 s38, s49, 8")
    A(f"s_add_u32 s38, s38, {L_DEL}")
    A(f"v_lshl_add_u32 {v(Y+9)}, {v(vL15)}, 4, s38")
    A("s_mul_i32 s39, s39, 272")
    A("s_add_u32 s39, s39, s56")
    A(f"v_lshl_add_u32 {v(Y+8)}, {v(vL15)}, 4, s39")
    A(f"ds_read_b128 {v(Y,4)}, {v(Y+8)}")
    A(f"ds_read_b128 {v(Y+4,4)}, {v(Y+9)}")
    A("s_waitcnt lgkmcnt(0)")
    A(pk_add(Y, Y, Y + 4))
    A(pk_add(Y + 2, Y + 2, Y + 6))
    A(f"ds_write_b128 {v(Y+8)}, {v(Y,4)}")
    A("s_waitcnt lgkmcnt(0)")
    A("s_branch L_fix")
    A.label("L_fixd")
    for i in range(8):
        A(f"ds_read_b128 {v(ACC2+4*i,4)}, {v(ra)} offset:{i*4*272}")
    A(f"s_lshl_b32 s38, s{sT0}, 12")
    A(f"s_lshl_b32 s39, s{sCB}, 8")
    A("s_add_u32 s38, s38, s39")
    stf = opt.get("ostore", "sc1")
    for i in range(8):
        A(f"s_waitcnt lgkmcnt({7-i})")
        A(pk_add(ACC2 + 4 * i, ACC2 + 4 * i, er(4 * i)))
        A(pk_add(ACC2 + 4 * i + 2, ACC2 + 4 * i + 2, er(4 * i + 2)))
        A(f"buffer_store_dwordx4 {v(ACC2+4*i,4)}, {v(oa)}, {s(sO,4)}, s38 offen {stf}")
        A("s_add_u32 s38, s38, 16384")
    stamp(A, 12, ST and not opt.get('p1st'))
    stamp_out(A, ST, sW, sWV, 0)
    A("s_endpgm")
```

```python
from common import *

class Sched:
    def __init__(self, A): self.A = A; self.nb = 0
    def bar(self, upto=None):
        tgt = self.nb + 1 if upto is None else upto
        assert tgt >= self.nb, (tgt, self.nb)
        while self.nb < tgt:
            self.A("s_barrier"); self.nb += 1

def dyn_bars(A, sreg, name):
    A.label(f"L_{name}_l")
    A(f"s_cmp_eq_u32 s{sreg}, 0")
    A(f"s_cbranch_scc1 L_{name}_d")
    A("s_barrier")
    A(f"s_sub_u32 s{sreg}, s{sreg}, 1")
    A(f"s_branch L_{name}_l")
    A.label(f"L_{name}_d")

def gen_side(A, opt):
    ST = opt.get("sstamps")
    sX, sW, sWG, sWU, sWD, sPC = 8, 12, 52, 28, 4, 32
    sWV, sRB, sDB, sCS, sKQ = 18, 16, 17, 22, 23
    S = Sched(A)
    A.label("L_side")
    A(f"s_sub_u32 s{sWV}, s{sWV}, 4")
    A("v_and_b32 v2, 63, v0")
    A("s_lshl_b32 s19, s3, 8")
    A("s_lshl_b32 s39, s38, 3")
    A("s_add_u32 s19, s19, s39")
    vDA, vDB = 100, 104
    sXb, sBb, sROT, sK, sLW = 8, 24, 56, 57, 58
    lincomb(A, sRB, sDB, sROT, [128 * c for c in opt.get("rot", [0, 0, 0, 0])])
    A(f"s_lshl_b32 s{sLW}, s{sWV}, 12")
    A("v_lshrrev_b32 v4, 3, v2")
    A("v_and_b32 v5, 7, v2")
    A("v_lshrrev_b32 v6, 4, v2")
    A("v_xor_b32 v5, v5, v6")
    A("v_lshlrev_b32 v5, 4, v5")
    A("v_lshrrev_b32 v7, 1, v2")
    A("v_and_b32 v7, 16, v7")
    A("v_and_or_b32 v7, v2, 8, v7")
    A("v_and_or_b32 v6, v6, 1, v7")
    A(f"s_lshr_b32 s20, s{sWV}, 1")
    A(f"s_and_b32 s21, s{sWV}, 1")
    A("s_lshl_b32 s38, s20, 6")
    A("s_lshl_b32 s39, s21, 2")
    A("s_add_u32 s38, s38, s39")
    A(f"s_lshl_b32 s39, s{sRB}, 7")
    A("s_add_u32 s38, s38, s39")
    A("v_add_u32 v6, s38, v6")
    A("v_lshl_add_u32 v6, v6, 11, v5")
    A("v_xor_b32 v7, 64, v6")
    for q in range(4):
        add = (32 * (q & 1) + 2 * (q >> 1)) * 2048 - 1024 * q + 3072
        A(f"v_add_u32 {v(vDA+q)}, {add}, {'v7' if q & 1 else 'v6'}")
    A(f"s_lshl_b32 s38, s{sDB}, 6")
    A("s_lshl_b32 s39, s20, 5")
    A("s_add_u32 s38, s38, s39")
    A("v_add_u32 v6, s38, v4")
    A("v_lshl_add_u32 v6, v6, 11, v5")
    A("v_xor_b32 v7, 64, v6")
    for q in range(4):
        A(f"v_add_u32 {v(vDB+q)}, {8*2048*q - 1024*q + 3072}, {'v7' if q & 1 else 'v6'}")
    A("s_waitcnt lgkmcnt(0)")
    srd(A, sXb, 40, 41, 4194304, bias=3072)
    vm = Vm()
    def item(i):
        st, op = i >> 1, i & 1
        A(f"s_add_u32 m0, s{sLW}, {(i % NSLOT) * 16384}")
        if op == 0:
            A(f"s_add_u32 s{sK}, s{sROT}, {st * 128}")
            A(f"s_and_b32 s{sK}, s{sK}, 2047")
        else:
            A("s_nop 0")
        for q in range(4):
            A(f"buffer_load_dwordx4 {v((vDB if op else vDA) + q)}, {s(sBb if op else sXb,4)}, s{sK} offen offset:{1024*q} {opt.get('bflag' if op else 'aflag', '')} lds")
            vm.add(("d", i))
    item(0)
    A("s_cmp_eq_u32 s21, 0")
    A(f"s_cselect_b32 s{sBb}, s68, s70")
    A(f"s_cselect_b32 s{sBb+1}, s69, s71")
    srd(A, sBb, sBb, sBb + 1, 2097152, bias=3072)
    item(1)
    load_tag(A, 42, 43)
    srd(A, sW, 42, 43, WS_USED)
    A("s_mov_b32 s21, 0xffff0000")
    A("v_and_b32 v11, 15, v2")
    if opt.get("tlbw", 1):
        A("s_bfe_u32 s38, s2, 0x30003")
        A("s_min_u32 s39, s38, 6")
        A("s_and_b32 s36, s38, 1")
        A(f"s_cmp_eq_u32 s{sWV}, 0")
        A("s_cselect_b64 s[98:99], s[82:83], s[46:47]")
        A("s_cselect_b64 s[100:101], s[42:43], s[48:49]")
        A("s_cselect_b32 s39, s38, s39")
        A("s_mov_b32 s37, s39")
        A(f"s_cmp_eq_u32 s{sWV}, 2")
        A("s_cselect_b64 s[98:99], s[50:51], s[98:99]")
        A("s_cselect_b64 s[100:101], s[42:43], s[100:101]")
        A("s_cselect_b32 s38, 8, 0")
        A("s_add_u32 s37, s37, s38")
        A(f"s_cmp_eq_u32 s{sWV}, 3")
        A("s_cselect_b64 s[98:99], s[72:73], s[98:99]")
        A("s_cselect_b64 s[100:101], s[74:75], s[100:101]")
        A("s_cselect_b32 s39, s36, s39")
        A("s_cselect_b32 s37, s36, s37")
        A("s_lshl_b32 s39, s39, 20")
        A("s_lshl_b32 s37, s37, 20")
        if opt.get("tlbw") == 2:
            A("s_lshr_b32 s38, s2, 6")
            A("s_lshl_b32 s38, s38, 18")
            A("s_add_u32 s39, s39, s38")
            A("s_add_u32 s37, s37, s38")
        A("s_load_dword s97, s[98:99], s39")
        A("s_load_dword s97, s[100:101], s37")
    NI = opt.get("n_init", 4)
    for i in range(2, NI): item(i)
    XR = 24
    P = [Asm() for _ in range(4)]
    B = P[0]
    B("v_lshlrev_b32 v6, 2, v11")
    B(f"v_add_u32 v6, {L_SCR}, v6")
    for p in range(8):
        B(f"ds_read_b32 {v(XR+p)}, v6 offset:{64*p}")
    B = P[1]
    B("v_and_b32 v7, 7, v2")
    B("s_sub_u32 s38, 2047, s19")
    B("v_sub_u32 v21, s38, v7")
    B("v_lshlrev_b32 v7, 3, v7")
    B("v_bfe_u32 v20, v2, 3, 1")
    B("v_lshl_add_u32 v7, v20, 14, v7")
    B("s_waitcnt lgkmcnt(0)")
    B(pk_add(XR, XR, XR + 2)); B(pk_add(XR + 4, XR + 4, XR + 6)); B(pk_add(XR, XR, XR + 4))
    B(f"v_add_f32 {v(XR)}, {v(XR)}, {v(XR+1)}")
    B = P[2]
    rnd_bf16(B, XR, XR)
    sigmoid(B, XR + 2, XR)
    rnd_bf16(B, XR + 2, XR + 2)
    B("v_cmp_eq_u32 vcc, 1, v20")
    B = P[3]
    B(f"v_ashrrev_i32 {v(XR+1)}, 31, {v(XR)}")
    B(f"v_or_b32 {v(XR+1)}, 0x80000000, {v(XR+1)}")
    B(f"v_xor_b32 {v(XR)}, {v(XR)}, {v(XR+1)}")
    B(f"v_and_or_b32 {v(XR)}, {v(XR)}, s21, v21")
    B(f"v_cndmask_b32 {v(XR)}, {v(XR)}, {v(XR+2)}, vcc")
    B(f"v_mov_b32 {v(XR+1)}, s{sTAG}")
    B("s_lshl_b32 s38, s19, 3")
    B(f"s_add_u32 s38, s38, {WS_KEY}")
    B("s_mov_b64 exec, 0xffff")
    B(f"buffer_store_dwordx2 {v(XR,2)}, v7, {s(sW,4)}, s38 offen sc1")
    B("s_mov_b64 exec, -1")
    A("v_lshlrev_b32 v3, 4, v2")
    A(f"s_mul_hi_u32 s{sKQ}, s2, {(1 << 32) // 56 + 1}")
    A(f"s_mul_i32 s38, s{sKQ}, 56")
    A(f"s_sub_u32 s{sCS}, s2, s38")
    A("v_lshrrev_b32 v5, 3, v2")
    A("v_and_b32 v8, 7, v2")
    A("v_and_b32 v12, 3, v5")
    A("v_lshlrev_b32 v12, 1, v12")
    A("v_xor_b32 v8, v8, v12")
    A("v_mul_u32_u24 v4, 7168, v5")
    A("v_lshl_add_u32 v4, v8, 4, v4")
    A(f"s_lshl_b32 s38, s{sWV}, 6")
    A(f"s_lshl_b32 s39, s{sKQ}, 8")
    A("s_add_u32 s44, s38, s39")
    A("s_mul_i32 s45, s44, 7168")
    A(f"s_lshl_b32 s39, s{sCS}, 7")
    A("s_add_u32 s45, s45, s39")
    A(f"s_lshl_b32 s92, s{sWV}, 14")
    A(f"s_add_u32 s92, s92, {L_W}")
    srd(A, sWG, 46, 47, 7340032)
    srd(A, sWU, 48, 49, 7340032)
    A("s_mov_b32 s46, s92")
    def wdma(i):
        gu, q = i >> 3, i & 7
        A(f"s_add_u32 m0, s46, {1024*i}")
        A(f"s_add_u32 s39, s45, {q*8*7168}")
        A(f"buffer_load_dwordx4 v4, {s(sWU if gu else sWG,4)}, s39 offen {opt.get('wflag','nt')} lds")
    A("s_cmp_ge_u32 s2, 224")
    A(f"s_cselect_b32 s{sWG+2}, 0, s{sWG+2}")
    A(f"s_cselect_b32 s{sWU+2}, 0, s{sWU+2}")
    if opt.get("x_nogu"):
        A(f"s_mov_b32 s{sWG+2}, 0"); A(f"s_mov_b32 s{sWU+2}, 0")
    wi = 0
    SW = opt.get("swarm", 4)
    if SW:
        if opt.get("amap"):
            A("s_lshl_b32 s36, s3, 7")
        else:
            A("s_and_b32 s39, s3, 1")
            A("s_lshl_b32 s36, s39, 9")
            A("s_lshr_b32 s39, s3, 1")
            A("s_lshl_b32 s39, s39, 7")
            A("s_add_u32 s36, s36, s39")
        A("s_lshr_b32 s39, s2, 3")
        A("s_lshl_b32 s39, s39, 2")
        A("s_add_u32 s36, s36, s39")
        A(f"s_add_u32 s36, s36, s{sWV}")
        A("s_lshl_b32 s36, s36, 11")
        A("s_add_u32 s84, s72, s36")
        A("s_addc_u32 s85, s73, 0")
        A("s_add_u32 s86, s74, s36")
        A("s_addc_u32 s87, s75, 0")
    BA = opt.get("ba_st", [4, 7, 10])
    assert len(BA) == 1 or all(y - x == BA[1] - BA[0] for x, y in zip(BA, BA[1:]))
    A("s_lshr_b32 s37, s2, 3")
    A(f"s_mul_i32 s37, s37, {len(BA)}")
    A("s_lshr_b32 s37, s37, 5")
    A(f"s_mul_i32 s37, s37, {BA[1] - BA[0] if len(BA) > 1 else 0}")
    A(f"s_add_u32 s37, s37, {BA[0]}")
    A("v_lshlrev_b32 v5, 11, v5")
    A("v_lshl_add_u32 v5, v8, 4, v5")
    A(f"s_lshl_b32 s47, s{sCS}, 17")
    A(f"s_lshl_b32 s39, s{sKQ}, 9")
    A("s_add_u32 s47, s47, s39")
    A(f"s_lshl_b32 s39, s{sWV}, 7")
    A("s_add_u32 s47, s47, s39")
    srd(A, sWD, 50, 51, 7340032)
    A("s_cmp_ge_u32 s2, 224")
    A(f"s_cselect_b32 s{sWD+2}, 0, s{sWD+2}")
    DW = 200
    dq = list(range(8))
    def dload(n, thr=None):
        for _ in range(n):
            if dq:
                i = dq.pop(0)
                if thr is not None: A(f"s_waitcnt vmcnt({thr})")
                A(f"buffer_load_dwordx4 {v(DW+4*i,4)}, v5, {s(sWD,4)}, s47 offen {opt.get('wflag','nt')}"); vm.add("dw")
                A(f"s_add_u32 s47, s47, {8*2048}")
    A("v_lshrrev_b32 v10, 4, v2")
    vCN, vOne = 22, 23
    A(f"v_mov_b32 {v(vOne)}, 1")
    nsp = [0]
    SM = opt.get("sw_mats", 2)
    def spf(n):
        for _ in range(n // 4):
            if nsp[0] < 16:
                for m in range(SM):
                    for j in range(2): A(f"s_load_dword s36, s[{84+2*m}:{85+2*m}], {64*j}")
                for m in range(SM):
                    A(f"s_add_u32 s{84+2*m}, s{84+2*m}, 128")
                    A(f"s_addc_u32 s{85+2*m}, s{85+2*m}, 0")
                nsp[0] += 1
    for st in range(4):
        A(f"s_waitcnt vmcnt({vm.need(('d', 2*st+1))})" + (" lgkmcnt(0)" if st == 0 else ""))
        S.bar()
        if st == 0: make_tag(A)
        for i in range(NI if st == 0 else 2 * st + 4, 2 * st + 6): item(i)
        A(f"s_cmp_lg_u32 s{sWV}, 0")
        A(f"s_cbranch_scc1 L_s_nk{st}")
        for l in P[st].lines: A(l)
        A.label(f"L_s_nk{st}")
        if st >= 1: spf(4)
    stamp(A, 1, ST)
    sST, sSL = 20, 19
    A(f"s_mov_b32 s{sST}, 4")
    A(f"s_mov_b32 s{sSL}, 0")
    A.label("L_s_loop")
    A("s_waitcnt vmcnt(8)")
    A("s_barrier")
    def next_items():
        A(f"s_add_u32 m0, s{sLW}, s{sSL}")
        A(f"s_add_u32 s{sK}, s{sK}, 128")
        A(f"s_and_b32 s{sK}, s{sK}, 2047")
        for q in range(4):
            A(f"buffer_load_dwordx4 {v(vDA+q)}, {s(sXb,4)}, s{sK} offen offset:{1024*q} lds")
        A("s_add_u32 m0, m0, 16384")
        A(f"s_add_u32 s{sSL}, s{sSL}, 32768")
        for q in range(4):
            A(f"buffer_load_dwordx4 {v(vDB+q)}, {s(sBb,4)}, s{sK} offen offset:{1024*q} lds")
        A(f"s_cmp_eq_u32 s{sSL}, 98304")
        A(f"s_cselect_b32 s{sSL}, 0, s{sSL}")
    KG, KY, D, XF = 80, 64, 72, 56
    A(f"s_lshl_b32 s94, s{sWV}, 12")
    A(f"s_add_u32 s94, s94, {WS_KEY}")
    def kloads():
        for i in range(4):
            A(f"buffer_load_dwordx4 {v(KG+4*i,4)}, v3, {s(sW,4)}, s94 offen offset:{1024*i} sc1")
    next_items()
    A(f"s_cmp_lg_u32 s{sST}, s37")
    A("s_cbranch_scc1 L_s_noburst")
    NB1 = opt.get("ba_first", 16)
    for i in range(NB1): wdma(i)
    A("v_lshlrev_b32 v9, 5, v2")
    for m in range(SM, 2): A(f"global_load_dword v98, v9, s[{84+2*m}:{85+2*m}]")
    A.label("L_s_noburst")
    spf(4); nsp[0] += 9
    A(f"s_add_u32 s{sST}, s{sST}, 1")
    A(f"s_cmp_lt_u32 s{sST}, 14")
    A("s_cbranch_scc1 L_s_loop")
    S.nb = 14
    vm = Vm()
    for i in (28, 29, 30, 31):
        for q in range(4): vm.add(("d", i))
    kloads()
    for i in range(4): vm.add("k")
    for i in range(NB1, 16): wdma(i); vm.add("w")
    dload(opt.get("d_b13", 0))
    spf(4)
    A(f"s_waitcnt vmcnt({vm.need(('d', 29))})")
    S.bar(15)
    stamp(A, 2, ST)
    dload(opt.get("d_b14", 8))
    spf(4)
    A("v_bfe_u32 v12, v2, 2, 2")
    A("v_lshl_add_u32 v13, v10, 3, v12")
    A("v_lshlrev_b32 v13, 7, v13")
    A("v_and_b32 v14, 3, v2")
    A("v_lshl_add_u32 v13, v14, 3, v13")
    A("v_add_u32 v13, s46, v13")
    for nt in range(4):
        A(f"v_xor_b32 v14, {nt}, v12")
        A(f"v_lshl_add_u32 {v(16+nt)}, v14, 5, v13")
    srd(A, sX, 40, 41, 4194304)
    A(f"v_mov_b32 {v(vCN)}, {L_CNT}")
    A(f"s_waitcnt vmcnt({vm.need(('d', 31))})")
    S.bar(16)
    dload(8)
    spf(12)
    S.bar(17)
    assert nsp[0] == 16
    A("v_mov_b32 v8, 0")
    A("s_mov_b32 s95, -1")
    A(f"s_waitcnt vmcnt({vm.need('k')})")
    A.label("L_s_poll")
    for i in range(8):
        A(f"v_xor_b32 {v(KG+2*i+1)}, s{sTAG}, {v(KG+2*i+1)}")
    A(f"v_or3_b32 v9, {v(KG+1)}, {v(KG+3)}, {v(KG+5)}")
    A(f"v_or3_b32 v9, v9, {v(KG+7)}, {v(KG+9)}")
    A(f"v_or3_b32 v9, v9, {v(KG+11)}, {v(KG+13)}")
    A(f"v_or_b32 v9, v9, {v(KG+15)}")
    A("v_cmp_ne_u32 vcc, 0, v9")
    A("s_nop 1")
    A("s_cmp_eq_u64 vcc, 0")
    A("s_cbranch_scc1 L_s_go")
    spin_guard(A, "L_s_go")
    kloads()
    A("s_waitcnt vmcnt(0)")
    A("s_branch L_s_poll")
    A.label("L_s_go")
    for rnd in range(8):
        for i in range(8):
            A(f"v_sub_u32 {v(D+i)}, s95, {v(KG+2*i)}")
        A(f"v_min3_u32 v9, {v(D)}, {v(D+1)}, {v(D+2)}")
        A(f"v_min3_u32 v15, {v(D+3)}, {v(D+4)}, {v(D+5)}")
        A(f"v_min3_u32 v9, v9, {v(D+6)}, {v(D+7)}")
        A(f"v_min_u32 v9, v9, v15")
        for r in (8, 4, 2, 1):
            A("s_nop 1")
            A(f"v_min_u32_dpp v9, v9, v9 row_ror:{r} row_mask:0xf bank_mask:0xf")
        A("s_nop 0")
        for i in range(4):
            A(f"v_readlane_b32 s{48+i}, v9, {16*i}")
        A("s_nop 0")
        A("s_min_u32 s48, s48, s49")
        A("s_min_u32 s50, s50, s51")
        A("s_min_u32 s48, s48, s50")
        A("s_sub_u32 s95, s95, s48")
        A(f"v_writelane_b32 v8, s95, {rnd}")
        A("s_sub_u32 s95, s95, 1")
    A(f"s_lshl_b32 s38, s{sWV}, 5")
    A(f"s_add_u32 s38, s38, {L_CND}")
    A("v_lshl_add_u32 v9, v2, 2, s38")
    A(f"v_mov_b32 v15, {L_CND}")
    A("s_mov_b64 exec, 0xff")
    A("ds_write_b32 v9, v8")
    lds_add(A, vCN, vOne, C_CND)
    lds_wait(A, vCN, 14, C_CND, 4, "s_cw", 0)
    stamp(A, 3, ST and not opt.get('p0st'))
    A("v_and_b32 v9, 31, v2")
    A("v_lshl_add_u32 v9, v9, 2, v15")
    A("ds_read_b32 v14, v9")
    for i in range(8):
        A(f"ds_read_b128 {v(KY+4*i,4)}, v15 offset:{16*i}")
    A("v_mov_b32 v12, 0")
    A("s_waitcnt lgkmcnt(0)")
    for i0 in range(0, 32, 2):
        for i in range(2):
            A(f"v_cmp_gt_u32 s[{48+2*i}:{49+2*i}], {v(KY+i0+i)}, v14")
        A("s_nop 0")
        for i in range(2):
            A(f"v_addc_co_u32 v12, vcc, 0, v12, s[{48+2*i}:{49+2*i}]")
    A("v_lshlrev_b32 v12, 2, v12")
    A("s_mov_b32 exec_hi, 0")
    A("ds_permute_b32 v13, v12, v14")
    A("s_mov_b64 exec, -1")
    A("v_and_b32 v12, 7, v2")
    A("v_lshlrev_b32 v12, 2, v12")
    A("s_waitcnt lgkmcnt(0)")
    A("ds_bpermute_b32 v8, v12, v13")
    A("s_lshl_b32 s38, s44, 1")
    A("s_and_b32 s38, s38, 2047")
    A("s_waitcnt lgkmcnt(0)")
    A("v_not_b32 v9, v8")
    A("v_and_b32 v9, 0x7ff, v9")
    A("v_lshlrev_b32 v9, 11, v9")
    A("v_lshl_add_u32 v9, v10, 4, v9")
    for ks in range(2):
        A(f"buffer_load_dwordx4 {v(XF+4*ks,4)}, v9, {s(sX,4)}, s38 offen offset:{64*ks}")
    A(f"v_lshlrev_b32 v9, 2, v2")
    A(f"v_add_u32 v9, {L_TOP}, v9")
    A("s_mov_b64 exec, 0xff")
    A("ds_write_b32 v9, v8")
    lds_add(A, vCN, vOne, C_TOP)
    A(f"s_or_b32 s38, s2, s{sWV}")
    A("s_cbranch_scc1 L_s_noep")
    A("s_mov_b64 exec, 1")
    A(f"s_mov_b32 s38, {WS_EPOCH}")
    A(f"v_mov_b32 v13, s{sTAG}")
    A("v_mov_b32 v9, 0")
    A(f"buffer_store_dword v13, v9, {s(sW,4)}, s38 offen")
    A("s_mov_b64 exec, -1")
    A.label("L_s_noep")
    A("s_cmp_ge_u32 s2, 224")
    A("s_cbranch_scc1 L_s_cons")
    A("s_waitcnt vmcnt(0)")
    stamp(A, 5, ST and not opt.get('p0st'))
    WF = 100
    for gu in range(2):
        for nt in range(4):
            for ks in range(2):
                for rd in range(2):
                    A(f"ds_read_b64_tr_b16 {v(WF + ((gu*4+nt)*2+ks)*4 + 2*rd, 2)}, {v(16+nt)} offset:{gu*8192 + ks*4096 + rd*512}")
        A("s_waitcnt lgkmcnt(0)")
    OC = 24
    for ks in range(2):
        for gu in range(2):
            for nt in range(4):
                o = OC + (gu * 4 + nt) * 4
                A(f"v_mfma_f32_16x16x32_bf16 {v(o,4)}, {v(WF+((gu*4+nt)*2+ks)*4,4)}, {v(XF+4*ks,4)}, {'0' if ks == 0 else v(o,4)}")
    A("v_add_u32 v13, s46, v3")
    A("s_nop 7")
    for t in range(8):
        A(f"ds_write_b128 v13, {v(OC+4*t,4)} offset:{1024*t}")
    lds_add(A, vCN, vOne, C_GU)
    A("v_and_b32 v14, 8, v2")
    A("v_lshl_add_u32 v13, v14, 7, v3")
    A(f"s_lshl_b32 s38, s{sWV}, 11")
    A(f"s_add_u32 s38, s38, {L_W}")
    A("v_add_u32 v13, s38, v13")
    A("v_and_b32 v12, 7, v2")
    A("v_mul_u32_u24 v12, 14336, v12")
    A("v_lshl_add_u32 v12, v10, 4, v12")
    A("v_lshl_add_u32 v12, v14, 3, v12")
    A(f"s_mul_i32 s56, s{sKQ}, {2*8*14336}")
    A(f"s_lshl_b32 s39, s{sCS}, 8")
    A("s_add_u32 s56, s56, s39")
    A(f"s_lshr_b32 s39, s{sWV}, 1")
    A(f"s_mul_i32 s39, s39, {8*14336}")
    A("s_add_u32 s56, s56, s39")
    A(f"s_and_b32 s39, s{sWV}, 1")
    A("s_lshl_b32 s39, s39, 7")
    A("s_add_u32 s56, s56, s39")
    A(f"s_add_u32 s56, s56, {WS_GU}")
    lds_wait(A, vCN, 15, C_GU, 4, "s_guw", 0)
    for w in range(4):
        A(f"ds_read_b128 {v(64+4*w,4)}, v13 offset:{w*16384}")
    A(f"s_lshl_b32 s58, s{sCS}, {FSH+2}")
    A(f"s_lshl_b32 s39, s{sKQ}, {FSH}")
    A("s_add_u32 s58, s58, s39")
    A(f"s_add_u32 s58, s58, {WS_GF}")
    A("s_waitcnt lgkmcnt(0)")
    for r in (0, 2):
        A(pk_add(64 + r, 64 + r, 68 + r)); A(pk_add(72 + r, 72 + r, 76 + r)); A(pk_add(64 + r, 64 + r, 72 + r))
    A(f"buffer_store_dwordx4 v[64:67], v12, {s(sW,4)}, s56 offen sc1")
    A(f"v_mov_b32 v13, s{sTAG}")
    A("v_lshlrev_b32 v14, 2, v2")
    A("s_waitcnt vmcnt(0)")
    lds_arrive_last(A, vCN, 15, C_H2, "L_s_nogf")
    flag_store(A, 13, 14, sW, 58)
    A.label("L_s_nogf")
    stamp(A, 6, ST and not opt.get('p0st'))
    if opt.get("nodown"): A("s_branch L_s_end")
    A("v_add_u32 v13, s46, v3")
    for i in range(8):
        A(f"ds_write_b128 v13, {v(DW+4*i,4)} offset:{8192 + 1024*i}")
    A(f"s_lshl_b32 s56, s{sCS}, {FSH+2}")
    A(f"s_add_u32 s56, s56, {WS_GF}")
    A("v_and_b32 v13, 3, v2")
    A(f"v_lshlrev_b32 v13, {FSH}, v13")
    A("v_and_b32 v1, 255, v0")
    A("v_lshrrev_b32 v6, 5, v1")
    A("v_and_b32 v7, 31, v1")
    A("v_mul_u32_u24 v9, 14336, v6")
    A("v_lshl_add_u32 v9, v7, 3, v9")
    A.label("L_s_gpoll")
    A(f"buffer_load_dword v14, v13, {s(sW,4)}, s56 offen sc1")
    A("s_waitcnt vmcnt(0)")
    A(f"v_cmp_ne_u32 vcc, s{sTAG}, v14")
    A("s_nop 1")
    A("s_cmp_eq_u64 vcc, 0")
    A("s_cbranch_scc1 L_s_ggo")
    spin_guard(A, "L_s_ggo")
    A("s_sleep 6")
    A("s_branch L_s_gpoll")
    A.label("L_s_ggo")
    stamp(A, 7, ST and not opt.get('p0st'))
    A(f"s_lshl_b32 s38, s{sCS}, 8")
    A(f"s_add_u32 s38, s38, {WS_GU}")
    PL = 24
    for kq in range(4):
        for gu in range(2):
            A(f"buffer_load_dwordx2 {v(PL + 4*kq + 2*gu, 2)}, v9, {s(sW,4)}, s38 offen sc1")
            A(f"s_add_u32 s38, s38, {8*14336}")
    WF = 64
    for nt in range(4):
        for ks in range(2):
            for rd in range(2):
                A(f"ds_read_b64_tr_b16 {v(WF + (nt*2+ks)*4 + 2*rd, 2)}, {v(16+nt)} offset:{8192 + ks*4096 + rd*512}")
    A("s_waitcnt vmcnt(0)")
    for e in range(4):
        A(f"v_add_f32 {v(PL+e)}, {v(PL+e)}, {v(PL+4+e)}")
        A(f"v_add_f32 {v(PL+8+e)}, {v(PL+8+e)}, {v(PL+12+e)}")
        A(f"v_add_f32 {v(PL+e)}, {v(PL+e)}, {v(PL+8+e)}")
        rnd_bf16(A, PL + e, PL + e)
    for e in range(2):
        sigmoid(A, 40 + e, PL + e)
        A(f"v_mul_f32 {v(40+e)}, {v(40+e)}, {v(PL+e)}")
        rnd_bf16(A, 40 + e, 40 + e)
        A(f"v_mul_f32 {v(40+e)}, {v(40+e)}, {v(PL+2+e)}")
    A("v_cvt_pk_bf16_f32 v40, v40, v41")
    A("v_mul_u32_u24 v9, 144, v6")
    A("v_lshl_add_u32 v9, v7, 2, v9")
    A(f"v_add_u32 v9, {L_ACT}, v9")
    A("ds_write_b32 v9, v40")
    lds_add(A, vCN, vOne, C_ACT)
    A("v_and_b32 v9, 7, v2")
    A("v_mul_u32_u24 v9, 144, v9")
    A("v_lshl_add_u32 v9, v10, 4, v9")
    A(f"v_add_u32 v9, {L_ACT}, v9")
    lds_wait(A, vCN, 15, C_ACT, 4, "s_aw")
    A("ds_read_b128 v[40:43], v9")
    A("ds_read_b128 v[44:47], v9 offset:64")
    A(f"s_mov_b32 s38, {56*4096}")
    A("v_and_b32 v15, 7, v2")
    A("v_mul_lo_u32 v15, v15, s38")
    A("v_lshl_add_u32 v15, v10, 4, v15")
    A("v_and_b32 v14, 8, v2")
    A("v_lshl_add_u32 v15, v14, 3, v15")
    A(f"s_lshl_b32 s38, s{sCS}, 12")
    A(f"s_lshl_b32 s39, s{sKQ}, 10")
    A("s_add_u32 s38, s38, s39")
    A(f"s_lshl_b32 s39, s{sWV}, 8")
    A("s_add_u32 s38, s38, s39")
    A(f"s_add_u32 s38, s38, {WS_YP}")
    A("v_cmp_eq_u32 vcc, 8, v14")
    A("s_waitcnt lgkmcnt(0)")
    for ks in range(2):
        for nt in range(4):
            A(f"v_mfma_f32_16x16x32_bf16 {v(48+4*nt,4)}, {v(WF+(nt*2+ks)*4,4)}, {v(40+4*ks,4)}, {'0' if ks == 0 else v(48+4*nt,4)}")
    A("s_nop 7")
    for nt in (0, 2):
        for r in range(4):
            A(f"v_cndmask_b32 {v(48+4*nt+r)}, {v(48+4*nt+r)}, {v(52+4*nt+r)}, vcc")
        A(f"buffer_store_dwordx4 {v(48+4*nt,4)}, v15, {s(sW,4)}, s38 offen offset:{64*nt} sc1")
    A(f"s_lshl_b32 s58, s{sKQ}, {FSH+6}")
    A(f"s_lshl_b32 s39, s{sCS}, {FSH}")
    A("s_add_u32 s58, s58, s39")
    A(f"s_add_u32 s58, s58, {WS_YF}")
    A(f"v_mov_b32 v13, s{sTAG}")
    A("v_lshlrev_b32 v14, 2, v2")
    A("s_waitcnt vmcnt(0)")
    lds_arrive_last(A, vCN, 15, C_Y, "L_s_cons")
    flag_store(A, 13, 14, sW, 58)
    A.label("L_s_cons")
    stamp(A, 8, ST and not opt.get('p0st'))
    A(f"s_add_u32 s38, s{sWV}, 4")
    A(f"v_readlane_b32 s24, v8, s{sWV}")
    A(f"v_readlane_b32 s25, v8, s38")
    A(f"s_lshl_b32 s45, s{sRB}, 7")
    for t in range(2):
        A(f"s_and_b32 s{26+t}, s{24+t}, 0x7ff")
        A(f"s_sub_u32 s{26+t}, 2047, s{26+t}")
        A(f"s_sub_u32 s{56+t}, s{26+t}, s45")
    A("s_waitcnt lgkmcnt(0)")
    A("s_min_u32 s38, s56, s57")
    A("s_cmp_ge_u32 s38, 128")
    A("s_cbranch_scc1 L_s_end")
    if opt.get("nodown"): A("s_branch L_s_end")
    lds_wait(A, vCN, 15, C_ST, 4 * opt.get("s_cons", 6), "s_pw", 8)
    A(f"s_lshr_b32 s58, s{sDB}, 2")
    A(f"s_lshl_b32 s58, s58, {FSH+6}")
    A(f"s_add_u32 s58, s58, {WS_YF}")
    A("v_min_u32 v4, 55, v2")
    A(f"v_lshlrev_b32 v4, {FSH}, v4")
    A("v_lshlrev_b32 v6, 12, v10")
    A("v_lshl_add_u32 v6, v11, 4, v6")
    A("v_lshlrev_b32 v9, 3, v11")
    A("v_mov_b32 v7, 0")
    A.label("L_s_ypoll")
    A(f"buffer_load_dword v5, v4, {s(sW,4)}, s58 offen sc1")
    A("s_waitcnt vmcnt(0)")
    A(f"v_cmp_ne_u32 vcc, s{sTAG}, v5")
    A("s_nop 1")
    A("s_cmp_eq_u64 vcc, 0")
    A("s_cbranch_scc1 L_s_ygo")
    spin_guard(A, "L_s_ygo")
    A("s_sleep 12")
    A("s_branch L_s_ypoll")
    A.label("L_s_ygo")
    stamp(A, 9, ST and not opt.get('p0st'))
    for t in range(2):
        Y = 24 + 64 * t
        A(f"s_cmp_ge_u32 s{56+t}, 128")
        A(f"s_cbranch_scc1 L_s_sk{t}")
        A(f"s_add_u32 s39, s{sWV}, {4*t}")
        A(f"s_mul_i32 s39, s39, {56*4096}")
        A(f"s_lshl_b32 s3, s{sDB}, 8")
        A("s_add_u32 s39, s39, s3")
        A(f"s_add_u32 s39, s39, {WS_YP}")
        for it in range(14):
            A(f"buffer_load_dwordx4 {v(Y+4*it,4)}, v6, {s(sW,4)}, s39 offen sc1")
            A("s_add_u32 s39, s39, 16384")
        A(f"s_lshl_b32 s39, s{26+t}, 11")
        A(f"s_lshl_b32 s3, s{sDB}, 7")
        A("s_add_u32 s39, s39, s3")
        A(f"buffer_load_dwordx2 {v(Y+56,2)}, v9, {s(sX,4)}, s39 offen")
        A(f"s_lshl_b32 s39, s{26+t}, 3")
        A(f"s_add_u32 s39, s39, {WS_G}")
        A(f"buffer_load_dword {v(Y+58)}, v7, {s(sW,4)}, s39 offen sc1")
        A.label(f"L_s_sk{t}")
    A("s_waitcnt vmcnt(0)")
    for t in range(2):
        Y = 24 + 64 * t
        A(f"s_cmp_ge_u32 s{56+t}, 128")
        A(f"s_cbranch_scc1 L_s_sc{t}")
        A(f"s_ashr_i32 s39, s{24+t}, 31")
        A("s_not_b32 s39, s39")
        A("s_or_b32 s39, s39, 0x80000000")
        A(f"s_xor_b32 s39, s{24+t}, s39")
        A("s_and_b32 s39, s39, 0xffff0000")
        A(f"v_mov_b32 {v(Y+62)}, s39")
        sigmoid(A, Y + 59, Y + 62)
        rnd_bf16(A, Y + 59, Y + 59)
        for it in range(1, 14):
            A(pk_add(Y, Y, Y + 4 * it))
            A(pk_add(Y + 2, Y + 2, Y + 4 * it + 2))
        xsum_groups(A, [Y + e for e in range(4)], [Y + 4 + e for e in range(4)])
        A(f"v_sub_f32 {v(Y+58)}, 1.0, {v(Y+58)}")
        rnd_bf16(A, Y + 58, Y + 58)
        A(f"v_lshlrev_b32 {v(Y+8)}, 16, {v(Y+56)}")
        A(f"v_and_b32 {v(Y+9)}, s21, {v(Y+56)}")
        A(f"v_lshlrev_b32 {v(Y+10)}, 16, {v(Y+57)}")
        A(f"v_and_b32 {v(Y+11)}, s21, {v(Y+57)}")
        for e in range(4):
            rnd_bf16(A, Y + e, Y + e)
            A(f"v_mul_f32 {v(Y+e)}, {v(Y+e)}, {v(Y+59)}")
            rnd_bf16(A, Y + e, Y + e)
            A(f"v_add_f32 {v(Y+e)}, {v(Y+e)}, {v(Y+8+e)}")
            rnd_bf16(A, Y + e, Y + e)
            A(f"v_mul_f32 {v(Y+e)}, {v(Y+e)}, {v(Y+58)}")
            rnd_bf16(A, Y + e, Y + e)
            A(f"v_mul_f32 {v(Y+8+e)}, {v(Y+8+e)}, {v(Y+58)}")
            rnd_bf16(A, Y + 8 + e, Y + 8 + e)
            A(f"v_sub_f32 {v(Y+e)}, {v(Y+e)}, {v(Y+8+e)}")
        A(f"s_lshl_b32 s39, s{sWV}, 8")
        A(f"s_add_u32 s39, s39, {L_DEL + 1024*t}")
        A(f"v_lshl_add_u32 {v(Y+60)}, v11, 4, s39")
        A(f"ds_write_b128 {v(Y+60)}, {v(Y,4)}")
        A(f"v_lshl_add_u32 {v(Y+61)}, s{sWV}, 2, {v(vCN)}")
        lds_add(A, Y + 61, vOne, C_DF + 16 * t)
        A.label(f"L_s_sc{t}")
    A.label("L_s_end")
    stamp_out(A, ST, sW, sWV, 1)
    A("s_endpgm")
```

```python
from common import *

def gen_gemm(A, opt, part):
    ST = opt.get("stamps")
    AM = opt.get("amap")
    sX, sB, sW, sAG, sC, sO = 4, 8, 12, 24, 28, 32
    sRB, sCB, sWV, sWM, sWN, sK, sROT, sLW = 16, 17, 18, 19, 20, 21, 22, 23
    vDA, vDB = 8, 12
    vRA, vRB, vRA2, vRB2 = 16, 18, 20, 22
    vLane, vGq, vL15, vAgO = 24, 25, 26, 27
    Lr, Li, Cr, Ci, L8r, L8i, L16r, L16i, L512r, L512i, Fr, Fi, Wr, Wi = [28 + 2 * i for i in range(14)]
    vT = 56
    ACC = 64
    FX, FY = 128, 160
    UI = FX
    EP = 192
    ea, eb, la, wa, ra, ga = [EP + i for i in range(6)]
    XT, vDC, VS = EP + 6, EP + 10, EP + 14
    PT = 224
    def acc(m, part, c2): return ACC + 4 * (m * 4 + part * 2 + c2)

    RX, RW, RD = PT, PT + 16, 12
    if part == "early":
        A(f"v_and_b32 {v(vL15)}, 15, v0")
        A(f"v_bfe_u32 v4, v0, 7, 1")
        A(f"v_lshl_add_u32 v4, v4, 5, {v(vL15)}")
        A(f"s_lshl_b32 s39, s{sCB}, 6")
        A(f"v_add_lshl_u32 {v(PT+31)}, s39, v4, 1")
        A("s_waitcnt lgkmcnt(0)")
        for c2 in range(2):
            A(f"global_load_ushort {v(PT+c2)}, {v(PT+31)}, s[64:65] offset:{32*c2}")
            A(f"global_load_ushort {v(PT+2+c2)}, {v(PT+31)}, s[66:67] offset:{32*c2}")
            A(f"global_load_ushort {v(PT+4+c2)}, {v(PT+31)}, s[76:77] offset:{32*c2}")
        A("s_branch L_gemm")
        return
    A.label("L_gemm")
    load_tag(A, 42, 43)
    A(f"s_lshr_b32 s{sWN}, s{sWV}, 1")
    A("s_lshl_b32 s50, s3, 8")
    A("s_lshl_b32 s39, s38, 3")
    A("s_add_u32 s50, s50, s39")
    A("s_lshl_b32 s50, s50, 11")
    A(f"s_lshl_b32 s51, s{sWV}, 9")
    A("s_add_u32 s50, s50, s51")
    A(f"s_lshl_b32 s39, s{sWV}, 14")
    A(f"s_add_u32 m0, s39, {L_W}")
    A("v_and_b32 v4, 31, v0")
    A("v_lshlrev_b32 v4, 4, v4")
    A("v_bfe_u32 v5, v0, 5, 1")
    A("v_lshl_add_u32 v5, v5, 11, v4")
    A("v_add_u32 v4, s51, v4")
    A("v_mov_b32 v6, s44")
    A("v_mov_b32 v7, s45")
    A("s_mov_b32 exec_lo, 0")
    A("v_mov_b32 v6, s80")
    A("v_mov_b32 v7, s81")
    A("s_mov_b32 exec_lo, -1")
    A("v_add_co_u32 v6, vcc, v6, v4")
    srd(A, sX, 40, 41, 4194304)
    A("v_addc_co_u32 v7, vcc, 0, v7, vcc")
    for i in range(4):
        A(f"buffer_load_dwordx4 v5, {s(sX,4)}, s50 offen {opt.get('aflag', '')} lds")
        A("s_add_u32 m0, m0, 1024")
        A("s_add_u32 s50, s50, 4096")
    A("global_load_lds_dwordx4 v[6:7], off")
    if opt.get("bwarm", 1):
        if AM:
            A("s_lshl_b32 s50, s3, 7")
        else:
            A("s_and_b32 s39, s3, 1")
            A("s_lshl_b32 s50, s39, 9")
            A("s_lshr_b32 s39, s3, 1")
            A("s_lshl_b32 s39, s39, 7")
            A("s_add_u32 s50, s50, s39")
        A("s_lshl_b32 s39, s38, 2")
        A("s_add_u32 s50, s50, s39")
        A(f"s_add_u32 s50, s50, s{sWV}")
        A("s_lshl_b32 s50, s50, 11")
        A("v_and_b32 v4, 63, v0")
        A("v_lshl_add_u32 v3, v4, 5, s50")
        A("global_load_dword v10, v3, s[68:69]")
        A("global_load_dword v11, v3, s[70:71]")
        A("s_mov_b64 s[8:9], s[72:73]")
        A("s_mov_b64 s[10:11], s[74:75]")
    A("s_mov_b64 s[52:53], s[72:73]")
    A("s_mov_b64 s[54:55], s[74:75]")
    A("s_mov_b64 s[58:59], s[78:79]")
    A("s_mov_b64 s[36:37], s[82:83]")
    A(f"v_and_b32 {v(vLane)}, 63, v0")
    A(f"s_and_b32 s{sWM}, s{sWV}, 1")
    A(f"s_lshl_b32 s{sLW}, s{sWV}, 12")
    A(f"v_lshrrev_b32 {v(vGq)}, 4, {v(vLane)}")
    rr, cc, t1, t2 = vT, vT + 1, vT + 2, vT + 3
    A(f"v_lshrrev_b32 {v(rr)}, 3, {v(vLane)}")
    A(f"v_and_b32 {v(cc)}, 7, {v(vLane)}")
    A(f"v_lshrrev_b32 {v(t1)}, 1, {v(rr)}")
    A(f"v_xor_b32 {v(cc)}, {v(cc)}, {v(t1)}")
    A(f"v_lshlrev_b32 {v(cc)}, 4, {v(cc)}")
    def emit(ls):
        for l in ls: A(l)
    srd(A, sW, 42, 43, WS_USED)
    A(f"s_lshl_b32 s38, s{sCB}, 14")
    A(f"s_add_u32 s38, s38, {WS_AGG}")
    A(f"s_add_u32 s{sAG}, s42, s38")
    A(f"s_addc_u32 s{sAG+1}, s43, 0")
    A(f"s_mov_b32 s{sAG+2}, 16384")
    A(f"s_mov_b32 s{sAG+3}, 0x20000")
    A(f"s_cmp_lt_u32 s{sWV}, 2")
    A(f"s_cselect_b32 s{sC}, s52, s54")
    A(f"s_cselect_b32 s{sC+1}, s53, s55")
    srd(A, sC, sC, sC + 1, 2097152, bias=3072)
    srd(A, sO, 36, 37, 8388608)
    A(f"v_bfe_u32 {v(t2)}, {v(vLane)}, 1, 3")
    A(f"v_xor_b32 {v(t2)}, {v(t2)}, {v(vGq)}")
    A(f"v_lshlrev_b32 {v(t2)}, 4, {v(t2)}")
    A(f"v_lshl_add_u32 {v(t2)}, {v(vL15)}, 7, {v(t2)}")
    A(f"s_lshl_b32 s38, s{sWM}, 13")
    A(f"s_lshl_b32 s39, s{sWN}, 13")
    for kk in range(2):
        A(f"v_xor_b32 {v(t1)}, {64*kk}, {v(t2)}")
        A(f"v_add_u32 {v(vRA+kk)}, s38, {v(t1)}")
        A(f"v_add_u32 {v(vRB+kk)}, s39, {v(t1)}")
        A(f"v_add_u32 {v(vRA2+kk)}, 0x10000, {v(vRA+kk)}")
        A(f"v_add_u32 {v(vRB2+kk)}, 0x10000, {v(vRB+kk)}")
    A(f"v_and_b32 {v(t1)}, 31, {v(vLane)}")
    A(f"v_lshlrev_b32 {v(vAgO)}, 4, {v(t1)}")
    A(f"s_sub_u32 s38, 15, s{sRB}")
    A("s_lshl_b32 s38, s38, 10")
    A(f"s_lshl_b32 s39, s{sWN}, 9")
    A("s_add_u32 s92, s38, s39")
    A(f"v_add_u32 {v(vAgO)}, s92, {v(vAgO)}")
    A(f"s_cmp_eq_u32 s{sWM}, 1")
    A("s_cselect_b64 s[98:99], -1, 0")

    def rd_frags(st, kk, F):
        out = []
        for op, (r1, r2) in enumerate(((vRA, vRA2), (vRB, vRB2))):
            off = ((2 * st + op) % NSLOT) * 16384
            base = r1
            if off >= 65536: off -= 65536; base = r2
            for t in range(4):
                out.append(f"ds_read_b128 {v(F + 16*op + 4*t, 4)}, {v(base+kk)} offset:{off + 2048*t}")
        return [out[0], out[4], out[5], out[6], out[7], out[1], out[2], out[3]]
    def mfmas(F, first):
        out = []
        for m in range(4):
            for n in range(4):
                d = ACC + 4 * (m * 4 + n)
                out.append(f"v_mfma_f32_16x16x32_bf16 {v(d,4)}, {v(F+4*m,4)}, {v(F+16+4*n,4)}, {'0' if first else v(d,4)}")
        return out

    B = Asm()
    lre, lim, ldt = PT, PT + 2, PT + 4
    t = PT + 6
    for r in range(6): B(f"v_lshlrev_b32 {v(PT+r)}, 16, {v(PT+r)}")
    for c in range(2):
        B(f"v_mul_f32 {v(t+c)}, {LOG2E}, {v(ldt+c)}")
    for c in range(2): B(f"v_exp_f32 {v(t+c)}, {v(t+c)}")
    B("s_nop 0")
    for c in range(2): rnd_bf16(B, t + c, t + c)
    B(pk_mul(t + 2, t, None, lre))
    B(pk_mul(t + 4, t, None, lim))
    for c in range(2):
        B(f"v_mul_f32 {v(t+2+c)}, {LOG2E}, {v(t+2+c)}")
        B(f"v_mul_f32 {v(t+4+c)}, {INV2PI}, {v(t+4+c)}")
    for c in range(2):
        B(f"v_exp_f32 {v(t+2+c)}, {v(t+2+c)}")
        B(f"v_rndne_f32 {v(t+6+c)}, {v(t+4+c)}")
    for c in range(2): B(f"v_sub_f32 {v(t+4+c)}, {v(t+4+c)}, {v(t+6+c)}")
    for c in range(2):
        B(f"v_cos_f32 {v(t+6+c)}, {v(t+4+c)}")
        B(f"v_sin_f32 {v(t+8+c)}, {v(t+4+c)}")
    B(pk_mul(t + 10, lre, None, lre))
    B(pk_fma(t + 10, lim, None, lim, t + 10))
    B(pk_mul(Lr, t + 2, None, t + 6))
    B(pk_mul(Li, t + 2, None, t + 8))
    for c in range(2): B(f"v_rcp_f32 {v(t+10+c)}, {v(t+10+c)}")
    for c in range(2): B(f"v_add_f32 {v(t+c)}, -1.0, {v(Lr+c)}")
    B(pk_add(t + 10, t + 10, t + 10))
    B(pk_mul(t + 2, t, None, lre))
    B(pk_fma(t + 2, Li, None, lim, t + 2))
    B(pk_mul(t + 4, Li, None, lre))
    B(pk_fma(t + 4, t, None, lim, t + 4, neg=True))
    B(pk_mul(Cr, t + 2, None, t + 10))
    B(pk_mul(Ci, t + 4, None, t + 10))
    a0, a1, b0, b1, c0, c1, d0, d1 = [PT + 2 * i for i in range(8)]
    pk_csq(B, a0, a1, Lr, Li)
    pk_csq(B, b0, b1, a0, a1)
    pk_csq(B, L8r, L8i, b0, b1)
    pk_csq(B, L16r, L16i, L8r, L8i)
    pk_csq(B, a0, a1, L16r, L16i)
    pk_csq(B, b0, b1, a0, a1)
    B(f"v_and_b32 {v(PT+16)}, 1, {v(vGq)}")
    B(f"v_cmp_eq_u32 s[84:85], 1, {v(PT+16)}")
    B(f"v_cmp_lt_u32 s[86:87], 1, {v(vGq)}")
    B("s_nop 0")
    def sel(dr, di, sr, si, mask):
        for c in range(2):
            B(f"v_cndmask_b32 {v(dr+c)}, 1.0, {v(sr+c)}, {mask}")
            B(f"v_cndmask_b32 {v(di+c)}, 0, {v(si+c)}, {mask}")
    e0, e1 = PT + 18, PT + 20
    sel(c0, c1, L16r, L16i, "s[84:85]")
    sel(d0, d1, a0, a1, "s[86:87]")
    pk_cmul(B, e0, e1, c0, c1, None, d0, d1)
    sel(c0, c1, b0, b1, "s[98:99]")
    pk_cmul(B, Wr, Wi, e0, e1, None, c0, c1)
    pk_csq(B, a0, a1, b0, b1)
    pk_csq(B, b0, b1, a0, a1)
    pk_csq(B, L512r, L512i, b0, b1)
    sel(c0, c1, a0, a1, "s[84:85]")
    sel(d0, d1, b0, b1, "s[86:87]")
    pk_cmul(B, Fr, Fi, c0, c1, None, d0, d1)
    for c2 in range(2):
        B(f"v_mov_b32 {v(a0)}, {v(Wr+c2)}")
        B(f"v_mov_b32 {v(a1)}, {v(Wi+c2)}")
        B(f"v_mul_f32 {v(a0+1)}, {v(L8r+c2)}, {v(Wr+c2)}")
        B(f"v_mul_f32 {v(a1+1)}, {v(L8r+c2)}, {v(Wi+c2)}")
        B(f"v_fma_f32 {v(a0+1)}, -{v(L8i+c2)}, {v(Wi+c2)}, {v(a0+1)}")
        B(f"v_fma_f32 {v(a1+1)}, {v(L8i+c2)}, {v(Wr+c2)}, {v(a1+1)}")
        pk_cmul(B, VS + 4 * c2, VS + 4 * c2 + 2, Cr, Ci, c2, a0, a1)
    par = B.lines
    B = Asm()
    B(f"s_lshl_b32 s38, s{sWN}, 8")
    B(f"s_add_u32 s38, s38, {L_EX}")
    B(f"v_lshl_add_u32 {v(eb)}, {v(vL15)}, 4, s38")
    B(f"s_lshl_b32 s39, s{sWM}, 11")
    B(f"v_lshl_add_u32 {v(ea)}, {v(vGq)}, 9, {v(eb)}")
    B(f"v_add_u32 {v(ea)}, s39, {v(ea)}")
    B(f"v_lshlrev_b32 {v(la)}, 10, {v(vGq)}")
    B(f"v_lshl_add_u32 {v(la)}, {v(vL15)}, 4, {v(la)}")
    B("s_add_u32 s38, s92, 1024")
    B(f"v_add_u32 {v(la)}, s38, {v(la)}")
    B(f"v_sub_u32 {v(t1)}, s{sRB}, {v(vGq)}")
    B(f"v_mov_b32 {v(t2)}, s{sTAG}")
    for i in range(4):
        B(f"v_cmp_lt_i32 vcc, {4*i}, {v(t1)}")
        B("s_nop 1")
        B(f"v_cndmask_b32 {v(XT+i)}, 0, {v(t2)}, vcc")
    B(f"s_mul_i32 s38, s{sWV}, 9216")
    B(f"s_add_u32 s38, s38, {L_TR}")
    B(f"v_mul_u32_u24 {v(wa)}, 144, {v(vL15)}")
    B(f"v_lshl_add_u32 {v(wa)}, {v(vGq)}, 5, {v(wa)}")
    B(f"v_add_u32 {v(wa)}, s38, {v(wa)}")
    B(f"v_bfe_u32 {v(ra)}, {v(vLane)}, 2, 2")
    B(f"v_lshl_add_u32 {v(ra)}, {v(vGq)}, 3, {v(ra)}")
    B(f"v_mul_u32_u24 {v(ra)}, 144, {v(ra)}")
    B(f"v_and_b32 {v(t1)}, 3, {v(vLane)}")
    B(f"v_lshl_add_u32 {v(ra)}, {v(t1)}, 3, {v(ra)}")
    B(f"v_add_u32 {v(ra)}, s38, {v(ra)}")
    B(f"v_lshlrev_b32 {v(ga)}, 4, {v(vLane)}")
    B(f"s_lshl_b32 s38, s{sCB}, 6")
    B(f"s_lshl_b32 s39, s{sWM}, 5")
    B("s_add_u32 s38, s38, s39")
    B(f"v_add_u32 {v(t1)}, s38, {v(rr)}")
    B(f"v_lshl_add_u32 {v(t1)}, {v(t1)}, 11, {v(cc)}")
    B(f"v_xor_b32 {v(t2)}, 64, {v(t1)}")
    for q in range(4):
        B(f"v_add_u32 {v(vDC+q)}, {8*2048*q - 1024*q + 3072}, {v(t2 if q & 1 else t1)}")
    sROT2 = 55
    B(f"s_and_b32 s{sROT2}, s{sCB}, 7")
    sE8 = 54
    B(f"s_and_b32 s{sE8}, s{sCB}, {0 if AM else 8}")
    B(f"s_lshl_b32 s48, s{sRB}, 19")
    B(f"s_lshl_b32 s39, s{sCB}, 15")
    B("s_add_u32 s53, s48, s39")
    B(f"s_lshl_b32 s39, s{sWN}, 11")
    B("s_add_u32 s53, s53, s39")
    B(f"s_lshl_b32 s39, s{sWM}, 14")
    B("s_add_u32 s53, s53, s39")
    sT0, sGB, sXB = 51, 57, 56
    vXo, vGo, vDo = EP + 28, EP + 29, EP + 30
    B(f"s_lshl_b32 s{sT0}, s{sRB}, 7")
    B(f"s_lshl_b32 s38, s{sWV}, 5")
    B(f"s_add_u32 s{sT0}, s{sT0}, s38")
    B(f"s_lshl_b32 s{sGB}, s{sT0}, 3")
    B(f"s_add_u32 s{sGB}, s{sGB}, {WS_G}")
    B(f"s_lshl_b32 s{sXB}, s{sT0}, 11")
    B(f"s_lshl_b32 s39, s{sCB}, 7")
    B(f"s_add_u32 s{sXB}, s{sXB}, s39")
    B(f"v_lshlrev_b32 {v(vXo)}, 11, {v(vGq)}")
    B(f"v_lshl_add_u32 {v(vXo)}, {v(vL15)}, 3, {v(vXo)}")
    B(f"v_and_b32 {v(vGo)}, 31, {v(vLane)}")
    B(f"v_lshlrev_b32 {v(vGo)}, 3, {v(vGo)}")
    B(f"v_lshl_add_u32 {v(vDo)}, {v(vL15)}, 3, s39")
    if opt.get("pretouch", 1):
        B(f"s_not_b32 s39, s{sTAG}")
        for r in range(4): B(f"v_mov_b32 {v(60+r)}, s39")
        B(f"v_lshlrev_b32 {v(t2)}, 2, {v(vLane)}")
        B(f"s_mul_hi_u32 s8, s2, {(1 << 32) // 56 + 1}")
        B("s_mul_i32 s9, s8, 56")
        B("s_sub_u32 s9, s2, s9")
        B(f"s_lshl_b32 s10, s9, {FSH+2}")
        B(f"s_lshl_b32 s11, s8, {FSH}")
        B("s_add_u32 s10, s10, s11")
        B(f"s_add_u32 s10, s10, {WS_GF}")
        B(f"s_lshl_b32 s11, s8, {FSH+6}")
        B(f"s_lshl_b32 s9, s9, {FSH}")
        B("s_add_u32 s11, s11, s9")
        B(f"s_add_u32 s11, s11, {WS_YF}")
        B(f"s_lshl_b32 s9, s{sRB}, {FSH + 4}")
        B(f"s_lshl_b32 s38, s{sCB}, {FSH}")
        B("s_add_u32 s9, s9, s38")
        B(f"s_add_u32 s9, s9, {WS_HF}")
        B("s_cmp_ge_u32 s2, 224")
        B("s_cselect_b32 s10, s9, s10")
        B("s_cselect_b32 s11, s9, s11")
        B(f"s_cmp_eq_u32 s{sWV}, 1")
        B("s_cselect_b32 s9, s10, s9")
        B(f"s_cmp_eq_u32 s{sWV}, 3")
        B("s_cselect_b32 s9, s11, s9")
        B("s_mov_b32 exec_hi, 0")
        B(f"buffer_store_dword v60, {v(t2)}, {s(sW,4)}, s9 offen sc1")
        B(f"buffer_store_dwordx4 v[60:63], {v(vAgO)}, {s(sAG,4)}, 0 offen sc1")
        B("s_mov_b32 exec_hi, -1")
    adr = B.lines

    A("s_waitcnt lgkmcnt(0)")
    make_tag(A)
    emit(adr)
    A(f"s_lshl_b32 s39, s{sWV}, 14")
    A(f"s_add_u32 s39, s39, {L_W}")
    A(f"v_and_b32 v4, 7, {v(vLane)}")
    A("v_lshlrev_b32 v4, 9, v4")
    A(f"v_bfe_u32 v5, {v(vLane)}, 3, 1")
    A("v_lshl_add_u32 v4, v5, 6, v4")
    A(f"v_lshl_add_u32 v4, {v(vGq)}, 4, v4")
    A("v_add_u32 v4, s39, v4")
    A(f"v_and_b32 v7, 1, {v(vLane)}")
    A("v_lshlrev_b32 v5, 9, v7")
    A(f"v_bfe_u32 v6, {v(vLane)}, 1, 1")
    A("v_lshl_add_u32 v5, v6, 6, v5")
    A(f"v_lshl_add_u32 v5, {v(vGq)}, 4, v5")
    A("v_add_u32 v5, s39, v5")
    A(f"v_lshrrev_b32 v6, 1, {v(vGq)}")
    A("v_lshlrev_b32 v6, 6, v6")
    A("v_lshl_add_u32 v6, v7, 5, v6")
    A(f"v_and_b32 v7, 1, {v(vGq)}")
    A("v_lshl_add_u32 v6, v7, 4, v6")
    A(f"s_lshl_b32 s39, s{sWV}, 7")
    A(f"s_add_u32 s39, s39, {L_SCR}")
    A("v_add_u32 v6, s39, v6")
    NPRE = opt.get("par_pre", 999)
    NPT = 2 if opt.get("pretouch", 1) else 0
    A(f"s_waitcnt vmcnt({NPT + (7 if opt.get('bwarm', 1) else 5)})")
    emit(par); par = []
    RGS = opt.get("rg_st", -1)
    rg1 = []
    for ks in range(4):
        rg1.append(f"ds_read_b128 {v(RX+4*ks,4)}, v4 offset:{128*ks}")
        rg1.append(f"ds_read_b128 {v(RW+4*ks,4)}, v5 offset:{4096 + 128*ks}")
    rg2 = [f"v_mfma_f32_16x16x32_bf16 {v(RD,4)}, {v(RX+4*ks,4)}, {v(RW+4*ks,4)}, {'0' if ks == 0 else v(RD,4)}" for ks in range(4)]
    rg3 = ["s_mov_b32 exec_lo, 0x00030003", "s_mov_b32 exec_hi, 0x000c000c", f"ds_write_b128 v6, {v(RD,4)}", "s_mov_b64 exec, -1"]
    if RGS < 0:
        A(f"s_waitcnt vmcnt({NPT + (2 if opt.get('bwarm', 1) else 0)})")
        emit(rg1); A("s_waitcnt lgkmcnt(0)"); emit(rg2)
        A(f"s_lshl_b32 s39, s{sWV}, 2")
        A(f"s_add_u32 s39, s39, {L_SCR - 16}")
        A("v_mov_b32 v4, s39")
        A(f"v_mov_b32 v5, s{sTAG}")
        A(f"v_mov_b32 v7, {L_SCR - 16}")
        A("s_nop 3")
        emit(rg3)
        A("ds_write_b32 v4, v5")
        X = FX
        A(f"v_lshl_add_u32 v6, {v(vL15)}, 2, v7")
        A(f"v_and_b32 {v(X+10)}, 7, {v(vLane)}")
        A("s_lshl_b32 s38, s3, 8")
        A("s_lshr_b32 s39, s2, 3")
        A("s_lshl_b32 s39, s39, 3")
        A("s_add_u32 s8, s38, s39")
        A("s_sub_u32 s38, 2047, s8")
        A(f"v_sub_u32 {v(X+11)}, s38, {v(X+10)}")
        A(f"v_lshlrev_b32 {v(X+10)}, 3, {v(X+10)}")
        A(f"v_bfe_u32 {v(X+12)}, {v(vLane)}, 3, 1")
        A(f"v_lshl_add_u32 {v(X+10)}, {v(X+12)}, 14, {v(X+10)}")
        A("s_lshl_b32 s8, s8, 3")
        A(f"s_add_u32 s8, s8, {WS_KEY}")
        A("s_mov_b32 s9, 0xffff0000")
        A(f"s_cmp_lg_u32 s{sWV}, 0")
        A("s_cbranch_scc1 L_nokey")
        A.label("L_rgw")
        A(f"ds_read_b128 {v(X+16,4)}, v7")
        for p in range(8):
            A(f"ds_read_b32 {v(X+p)}, v6 offset:{16 + 64*p}")
        A("s_waitcnt lgkmcnt(0)")
        for r in range(4): A(f"v_xor_b32 {v(X+16+r)}, s{sTAG}, {v(X+16+r)}")
        A(f"v_or3_b32 {v(X+16)}, {v(X+16)}, {v(X+17)}, {v(X+18)}")
        A(f"v_or_b32 {v(X+16)}, {v(X+16)}, {v(X+19)}")
        A(f"v_cmp_ne_u32 vcc, 0, {v(X+16)}")
        A("s_nop 1")
        A("s_cmp_eq_u64 vcc, 0")
        A("s_cbranch_scc1 L_rgo")
        spin_guard(A, "L_rgo")
        A("s_branch L_rgw")
        A.label("L_rgo")
        for r in range(4): A(f"v_not_b32 {v(X+16+r)}, s{sTAG}")
        A(f"ds_write_b128 v7, {v(X+16,4)}")
        A(pk_add(X, X, X + 2)); A(pk_add(X + 4, X + 4, X + 6)); A(pk_add(X, X, X + 4))
        A(f"v_add_f32 {v(X)}, {v(X)}, {v(X+1)}")
        rnd_bf16(A, X, X)
        sigmoid(A, X + 2, X)
        rnd_bf16(A, X + 2, X + 2)
        A(f"v_cmp_eq_u32 vcc, 1, {v(X+12)}")
        A(f"v_ashrrev_i32 {v(X+1)}, 31, {v(X)}")
        A(f"v_or_b32 {v(X+1)}, 0x80000000, {v(X+1)}")
        A(f"v_xor_b32 {v(X)}, {v(X)}, {v(X+1)}")
        A(f"v_and_or_b32 {v(X)}, {v(X)}, s9, {v(X+11)}")
        A(f"v_cndmask_b32 v4, {v(X)}, {v(X+2)}, vcc")
        A.label("L_nokey")
    if opt.get("prio", 0): A(f"s_setprio {opt.get('prio', 0)}")
    stamp(A, 1, ST and not opt.get('p2st') and not opt.get('p1st'))
    def xr(i): return PT + 2 * i
    GT, DR, GR, DS = PT + 16, PT + 18, PT + 20, PT + 28
    def gload(): A(f"buffer_load_dwordx2 {v(GT,2)}, {v(vGo)}, {s(sW,4)}, s{sGB} offen sc1")
    RSL = opt.get("rd_slots", [0, 1, 3, 4, 6, 7, 9, 10])
    for st in range(16):
        A("s_waitcnt lgkmcnt(0)" + (" vmcnt(0)" if st == RGS else ""))
        A("s_barrier")
        if st == 0:
            A(f"s_cmp_lg_u32 s{sWV}, 0")
            A("s_cbranch_scc1 L_nokey2")
            A("s_mov_b64 exec, 0xffff")
            A(f"buffer_store_dwordx2 v[4:5], {v(FX+10)}, {s(sW,4)}, s8 offen sc1")
            A("s_mov_b64 exec, -1")
            A.label("L_nokey2")
        if st == 0: stamp(A, 2, ST and not opt.get('p2st') and not opt.get('p1st'))
        if opt.get("p1st") and st in (0, 1, 2, 3, 4, 6, 8, 10, 12, 14):
            stamp(A, {0: 1, 1: 2, 2: 4, 3: 5, 4: 6, 6: 7, 8: 8, 10: 9, 12: 10, 14: 11}[st], ST)
        for half in range(2):
            rds = rd_frags(st, half, FX if half == 0 else FY)
            if half == 0:
                mf = mfmas(FY, False) if st > 0 else []
            else:
                A("s_waitcnt lgkmcnt(0)")
                if st == RGS: emit(rg2)
                mf = mfmas(FX, st == 0)
            if st == RGS and half == 0: par = list(rg1)
            if not mf: emit(rds); rds = []
            for k, m in enumerate(mf):
                A(m)
                if k in RSL: A(rds.pop(0))
                else:
                    for _ in range(opt.get("par_n", 1)):
                        if par: A(par.pop(0))
            assert not rds
            if st == RGS and half == 1: emit(rg3)
        if st == opt.get("cwarm", 99):
            A("global_load_dword v10, v3, s[8:9]")
            A("global_load_dword v11, v3, s[10:11]")
    assert not par, len(par)
    A("s_waitcnt lgkmcnt(0) vmcnt(0)")
    emit(mfmas(FY, False))
    stamp(A, 3, ST)

    def ure(c2, q): return acc(q >> 1, 0, c2) + 2 * (q & 1)
    def uim(c2, q): return acc(q >> 1, 1, c2) + 2 * (q & 1)
    def uI(c2, q): return UI + 16 * c2 + 2 * q
    HS = 8
    TT = 16
    EE = 56
    PUB = 60
    PIN = EP + 24
    t9 = EP + 22
    for i in range(4): A(f"s_mov_b32 s{44+i}, {4096*i}")
    A(f"v_mov_b32 {v(PUB+1)}, s{sTAG}")
    A(f"v_mov_b32 {v(PUB+3)}, s{sTAG}")
    A(f"v_and_b32 {v(PIN)}, 31, {v(vLane)}")
    A(f"v_lshlrev_b32 {v(PIN)}, 2, {v(PIN)}")
    A(f"v_add_u32 {v(PIN)}, {L_CNT}, {v(PIN)}")
    A(f"v_mov_b32 {v(PIN+2)}, 0")
    A(f"ds_write_b32 {v(PIN)}, {v(PIN+2)}")
    for q in range(1, 8):
        for c2 in range(2):
            hr, hi, tr_, ti = HS + 4 * c2, HS + 4 * c2 + 2, TT + 4 * c2, TT + 4 * c2 + 2
            pr = ure(c2, 0) if q == 1 else hr
            pi = uim(c2, 0) if q == 1 else hi
            A(pk_fma(tr_, Li, c2, pi, ure(c2, q), neg=True))
            A(pk_fma(ti, Li, c2, pr, uim(c2, q)))
            A(pk_fma(hr, Lr, c2, pr, tr_))
            A(pk_fma(hi, Lr, c2, pi, ti))
    for c2 in range(2):
        hr, hi = HS + 4 * c2, HS + 4 * c2 + 2
        A(f"v_fma_f32 {v(EE+c2)}, -{v(L8i+c2)}, {v(hi)}, {v(hr+1)}")
        A(f"v_fma_f32 {v(EE+2+c2)}, {v(L8i+c2)}, {v(hr)}, {v(hi+1)}")
    for c2 in range(2):
        hr, hi = HS + 4 * c2, HS + 4 * c2 + 2
        A(f"v_fma_f32 {v(EE+c2)}, {v(L8r+c2)}, {v(hr)}, {v(EE+c2)}")
        A(f"v_fma_f32 {v(EE+2+c2)}, {v(L8r+c2)}, {v(hi)}, {v(EE+2+c2)}")
    A(f"ds_write_b128 {v(ea)}, {v(EE,4)}")
    A("s_waitcnt lgkmcnt(0)")
    A("s_barrier")
    PE = FY
    for sp in range(8):
        A(f"ds_read_b128 {v(PE+4*sp,4)}, {v(eb)} offset:{sp*512}")
    for sp in range(1, 8):
        A(f"s_waitcnt lgkmcnt({7-sp})")
        pr, pi, er, ei = PE + 4 * (sp - 1), PE + 4 * (sp - 1) + 2, PE + 4 * sp, PE + 4 * sp + 2
        A(pk_fma(er, L16i, None, pi, er, neg=True))
        A(pk_fma(ei, L16i, None, pr, ei))
        A(pk_fma(er, L16r, None, pr, er))
        A(pk_fma(ei, L16r, None, pi, ei))
    A(f"v_cndmask_b32 {v(PUB)}, {v(PE+28)}, {v(PE+29)}, s[84:85]")
    A(f"v_cndmask_b32 {v(PUB+2)}, {v(PE+30)}, {v(PE+31)}, s[84:85]")
    A(f"s_cmp_lg_u32 s{sWM}, 0")
    A("s_cbranch_scc1 L_nopub")
    A("s_mov_b32 exec_hi, 0")
    A(f"buffer_store_dwordx4 {v(PUB,4)}, {v(vAgO)}, {s(sAG,4)}, 0 offen sc1")
    A("s_mov_b32 exec_hi, -1")
    A.label("L_nopub")
    stamp(A, 4, ST and not opt.get('p0st') and not opt.get('p2st') and not opt.get('p1st'))
    LQ = FY
    def lb_loads():
        for c2 in range(2):
            for i in range(4):
                A(f"buffer_load_dwordx4 {v(LQ+16*c2+4*i,4)}, {v(la)}, {s(sAG,4)}, s{44+i} offen offset:{256*c2} sc1")
    B = Asm()
    for r in range(4):
        for g in range(4):
            lo = "0" if g == 0 else v(PE + 4 * (g - 1) + r)
            B(f"v_cndmask_b32 {v(TT+g)}, {lo}, {v(PE+4*(3+g)+r)}, s[98:99]")
        B(f"v_cndmask_b32 {v(TT)}, {v(TT)}, {v(TT+1)}, s[84:85]")
        B(f"v_cndmask_b32 {v(TT+2)}, {v(TT+2)}, {v(TT+3)}, s[84:85]")
        B(f"v_cndmask_b32 {v(PIN+r)}, {v(TT)}, {v(TT+2)}, s[86:87]")
    QS = 56
    for c2 in range(2):
        hr, hi = HS + 4 * c2, HS + 4 * c2 + 2
        qr, qi = TT, TT + 2
        B(f"v_mov_b32 {v(qr)}, {v(PIN+c2)}")
        B(f"v_mov_b32 {v(qi)}, {v(PIN+2+c2)}")
        B(f"v_fma_f32 {v(qr+1)}, -{v(L8i+c2)}, {v(PIN+2+c2)}, {v(hr)}")
        B(f"v_fma_f32 {v(qi+1)}, {v(L8i+c2)}, {v(PIN+c2)}, {v(hi)}")
        B(f"v_fma_f32 {v(qr+1)}, {v(L8r+c2)}, {v(PIN+c2)}, {v(qr+1)}")
        B(f"v_fma_f32 {v(qi+1)}, {v(L8r+c2)}, {v(PIN+2+c2)}, {v(qi+1)}")
        pk_cmul(B, QS + 4 * c2, QS + 4 * c2 + 2, Cr, Ci, c2, qr, qi)
    for q in range(8):
        for c2 in range(2):
            B(pk_mul(uI(c2, q), Cr, c2, uim(c2, q)))
            B(pk_fma(uI(c2, q), Ci, c2, ure(c2, q), uI(c2, q)))
            B(pk_mul(ure(c2, q), Cr, c2, ure(c2, q)))
            B(pk_fma(ure(c2, q), Ci, c2, uim(c2, q), ure(c2, q), neg=True))
    nlb = max(48, min(opt.get("lb_at", 60), len(B.lines)))
    emit(B.lines[:nlb])
    if opt.get("lb_delay"): A(f"s_sleep {opt['lb_delay']}")
    lb_loads()
    emit(B.lines[nlb:])
    gload()
    A(f"global_load_dwordx2 {v(DR,2)}, {v(vDo)}, s[58:59]")
    for i in range(8):
        A(f"buffer_load_dwordx2 {v(xr(i),2)}, {v(vXo)}, {s(sX,4)}, s{sXB} offen")
        A(f"s_add_u32 s{sXB}, s{sXB}, 8192")
    vm = Vm()
    def slot2(st): return [5, 0, 1, 2, 3][st % 5]
    def stage_cb(dst, st):
        if st == 0: return [f"s_mov_b32 s{dst}, s{sCB}"]
        if st < 8:
            return [f"s_cmp_le_u32 s{sROT2}, {st - 1}", f"s_cselect_b32 s{dst}, {st}, {st - 1}", f"s_or_b32 s{dst}, s{dst}, s{sE8}"]
        return [f"s_xor_b32 s{dst}, s{sE8}, {st}"]
    def cdma(st, q):
        out = []
        if q == 0:
            out.append(f"s_add_u32 m0, s{sLW}, {slot2(st) * 16384}")
            out += stage_cb(sK, st)
            out.append(f"s_lshl_b32 s{sK}, s{sK}, 7")
        out.append(f"buffer_load_dwordx4 {v(vDC+q)}, {s(sC,4)}, s{sK} offen offset:{1024*q} {opt.get('cflag', '')} lds")
        vm.add(("c", st))
        return out
    A("s_waitcnt vmcnt(10)")
    A.label("L_poll")
    for c2 in range(2):
        for i in range(4):
            A(f"v_xor_b32 {v(LQ+16*c2+4*i+1)}, {v(LQ+16*c2+4*i+1)}, {v(XT+i)}")
            A(f"v_xor_b32 {v(LQ+16*c2+4*i+3)}, {v(LQ+16*c2+4*i+3)}, {v(XT+i)}")
    A(f"v_or3_b32 {v(t9)}, {v(LQ+1)}, {v(LQ+3)}, {v(LQ+5)}")
    for i in range(7, 31, 4):
        A(f"v_or3_b32 {v(t9)}, {v(t9)}, {v(LQ+i)}, {v(LQ+i+2)}")
    A(f"v_or_b32 {v(t9)}, {v(t9)}, {v(LQ+31)}")
    A(f"v_cmp_ne_u32 vcc, 0, {v(t9)}")
    A("s_nop 1")
    A("s_cmp_eq_u64 vcc, 0")
    A("s_cbranch_scc1 L_got")
    spin_guard(A, "L_got")
    A(f"s_sleep {opt.get('lb_sleep', 1)}")
    lb_loads()
    A("s_waitcnt vmcnt(0)")
    A("s_branch L_poll")
    A.label("L_got")
    stamp(A, 5, ST and not opt.get('p1st') and not opt.get('p0st'))
    HC = TT
    for i in range(2, -1, -1):
        for c2 in range(2):
            cr_, ci_ = LQ + 16 * c2 + 4 * (i + 1), LQ + 16 * c2 + 4 * (i + 1) + 2
            ar, ai = LQ + 16 * c2 + 4 * i, LQ + 16 * c2 + 4 * i + 2
            A(f"v_fma_f32 {v(ar)}, -{v(L512i+c2)}, {v(ci_)}, {v(ar)}")
            A(f"v_fma_f32 {v(ai)}, {v(L512i+c2)}, {v(cr_)}, {v(ai)}")
            A(f"v_fma_f32 {v(ar)}, {v(L512r+c2)}, {v(cr_)}, {v(ar)}")
            A(f"v_fma_f32 {v(ai)}, {v(L512r+c2)}, {v(ci_)}, {v(ai)}")
    for c2 in range(2):
        ar, ai = LQ + 16 * c2, LQ + 16 * c2 + 2
        A(f"v_mul_f32 {v(HC+2*c2)}, {v(Fr+c2)}, {v(ar)}")
        A(f"v_mul_f32 {v(HC+2*c2+1)}, {v(Fr+c2)}, {v(ai)}")
        A(f"v_fma_f32 {v(HC+2*c2)}, -{v(Fi+c2)}, {v(ai)}, {v(HC+2*c2)}")
        A(f"v_fma_f32 {v(HC+2*c2+1)}, {v(Fi+c2)}, {v(ar)}, {v(HC+2*c2+1)}")
    xsum_groups(A, [HC + i for i in range(4)], [HC + 4 + i for i in range(4)])
    for c2 in range(2):
        qr, qi, wr, wi = QS + 4 * c2, QS + 4 * c2 + 2, VS + 4 * c2, VS + 4 * c2 + 2
        A(pk_fma(qr, HC + 2 * c2, 0, wr, qr))
        A(pk_fma(qi, HC + 2 * c2, 0, wi, qi))
        A(pk_fma(qr, HC + 2 * c2, 1, wi, qr, neg=True))
        A(pk_fma(qi, HC + 2 * c2, 1, wr, qi))
    PK = FY
    def pko(c2, part, e, j): return PK + 16 * c2 + 8 * part + 4 * e + j
    for q in range(8):
        for c2 in range(2):
            pr = QS + 4 * c2 if q == 0 else ure(c2, q - 1)
            pi = QS + 4 * c2 + 2 if q == 0 else uI(c2, q - 1)
            A(pk_fma(ure(c2, q), Li, c2, pi, ure(c2, q), neg=True))
            A(pk_fma(uI(c2, q), Li, c2, pr, uI(c2, q)))
            A(pk_fma(ure(c2, q), Lr, c2, pr, ure(c2, q)))
            A(pk_fma(uI(c2, q), Lr, c2, pi, uI(c2, q)))
        if q & 1:
            for c2 in range(2):
                for e in range(2):
                    A(f"v_cvt_pk_bf16_f32 {v(pko(c2,0,e,q>>1))}, {v(ure(c2,q-1)+e)}, {v(ure(c2,q)+e)}")
                    A(f"v_cvt_pk_bf16_f32 {v(pko(c2,1,e,q>>1))}, -{v(uI(c2,q-1)+e)}, -{v(uI(c2,q)+e)}")
    for part in range(2):
        for c2 in range(2):
            for e in range(2):
                A(f"ds_write_b128 {v(wa)}, {v(pko(c2,part,e,0),4)} offset:{part*4608 + c2*2304 + e*16}")
    stamp(A, 6, ST and not opt.get('p0st') and not opt.get('p2st') and not opt.get('p1st'))
    OUT = FX
    for part in range(2):
        A(f"s_waitcnt lgkmcnt({4 if part == 0 else 8})")
        for mt in range(4):
            for rd in range(2):
                A(f"ds_read_b64_tr_b16 {v(OUT + 16*part + 4*mt + 2*rd, 2)}, {v(ra)} offset:{part*4608 + rd*576 + mt*32}")
    for k in range(8):
        part, mt = k >> 2, k & 3
        if mt % 2 == 0: A(f"s_add_u32 s39, s53, {part*4096 + (mt>>1)*8192}")
        A(f"s_waitcnt lgkmcnt({14 - 2*k})")
        A(f"buffer_store_dwordx4 {v(OUT + 4*k, 4)}, {v(ga)}, {s(sW,4)}, s39 offen offset:{(mt&1)*1024} sc1")
        vm.add("hs")
    stamp(A, 7, ST and not opt.get('p0st') and not opt.get('p2st') and not opt.get('p1st'))

    HD = 2
    vRC, vRC2 = 20, 22
    vH0, vH1 = 28, 29
    vFo, vFl = 30, 31
    ACC2, CF, HR = 128, 224, 160
    sH, sHB = 49, 50
    A("s_waitcnt vmcnt(8)")
    vG = 4
    def er(k): return ACC + 16 * (k >> 3) + 8 + (k & 7)
    A.label("L_gchk")
    A(f"v_cmp_ne_u32 vcc, s{sTAG}, {v(GT+1)}")
    A("s_nop 1")
    A("s_cmp_eq_u64 vcc, 0")
    A("s_cbranch_scc1 L_gok")
    spin_guard(A, "L_gok")
    gload()
    A("s_waitcnt vmcnt(0)")
    A("s_branch L_gchk")
    A.label("L_gok")
    A(f"v_lshlrev_b32 v6, 2, {v(vGq)}")
    GR = 36
    for i in range(8): A(f"ds_bpermute_b32 {v(GR+i)}, v6, {v(GT)} offset:{16*i}")
    A("s_mov_b32 s10, 0xffff0000")
    B = Asm()
    B(f"v_lshlrev_b32 {v(DS)}, 16, {v(DR)}")
    B(f"v_and_b32 {v(DS+1)}, s10, {v(DR)}")
    B(f"v_lshlrev_b32 {v(DS+2)}, 16, {v(DR+1)}")
    B(f"v_and_b32 {v(DS+3)}, s10, {v(DR+1)}")
    B("s_waitcnt lgkmcnt(0)")
    a0, a2, om = HS, HS + 2, HS + 4
    for i in range(8):
        B(f"v_sub_f32 {v(om)}, 1.0, {v(GR+i)}")
        rnd_bf16(B, om, om)
        for p in range(2):
            x_ = xr(i) + p
            B(f"v_lshlrev_b32 {v(a0)}, 16, {v(x_)}")
            B(f"v_and_b32 {v(a0+1)}, s10, {v(x_)}")
            B(f"v_mul_f32 {v(a2)}, {v(a0)}, {v(DS+2*p)}")
            B(f"v_mul_f32 {v(a2+1)}, {v(a0+1)}, {v(DS+2*p+1)}")
            B(f"v_cvt_pk_bf16_f32 {v(a2)}, {v(a2)}, {v(a2+1)}")
            B(f"v_mul_f32 {v(a0)}, {v(a0)}, {v(om)}")
            B(f"v_mul_f32 {v(a0+1)}, {v(a0+1)}, {v(om)}")
            B(f"v_cvt_pk_bf16_f32 {v(a0)}, {v(a0)}, {v(a0+1)}")
            B(f"v_and_b32 {v(a2+1)}, s10, {v(a2)}")
            B(f"v_lshlrev_b32 {v(a2)}, 16, {v(a2)}")
            B(f"v_and_b32 {v(a0+1)}, s10, {v(a0)}")
            B(f"v_lshlrev_b32 {v(a0)}, 16, {v(a0)}")
            B(f"v_fma_f32 {v(er(4*i+2*p))}, {v(GR+i)}, {v(a2)}, {v(a0)}")
            B(f"v_fma_f32 {v(er(4*i+2*p+1))}, {v(GR+i)}, {v(a2+1)}, {v(a0+1)}")
    el = B.lines
    cq = [(st, q) for st in range(3) for q in range(4)]
    C0 = opt.get("c_at", 0)
    for n, l in enumerate(el):
        if n >= C0 and n % opt.get("c_gap", 6) == 0 and cq:
            emit(cdma(*cq.pop(0)))
        A(l)
    el = []
    for q in range(4): A(f"v_mov_b32 {v(16+q)}, {v(vDC+q)}")
    vDC = 16
    A(f"v_mov_b32 {v(vH0)}, {v(ga)}")
    A(f"v_add_u32 {v(vH1)}, 4096, {v(ga)}")
    A(f"s_lshl_b32 s38, s{sWV}, 13")
    A(f"s_add_u32 s{sHB}, s48, s38")
    vCN, vOne, vPo = 32, 33, 34
    A(f"v_mov_b32 {v(vCN)}, {L_CNT}")
    A(f"v_mov_b32 {v(vOne)}, 1")
    A(f"v_bfe_u32 {v(t2)}, {v(vLane)}, 1, 3")
    A(f"v_xor_b32 {v(t2)}, {v(t2)}, {v(vGq)}")
    A(f"v_lshlrev_b32 {v(t2)}, 4, {v(t2)}")
    A(f"v_lshl_add_u32 {v(t2)}, {v(vL15)}, 7, {v(t2)}")
    for kk in range(2):
        A(f"v_xor_b32 {v(vRC+kk)}, {64*kk}, {v(t2)}")
        A(f"v_add_u32 {v(vRC2+kk)}, 0x10000, {v(vRC+kk)}")
    A(f"v_xor_b32 {v(vFo)}, s{sE8}, {v(vL15)}")
    A(f"v_lshlrev_b32 {v(vFo)}, {FSH}, {v(vFo)}")
    A(f"v_mov_b32 {v(t1)}, s{sTAG}")
    A(f"v_lshlrev_b32 {v(t2)}, 2, {v(vLane)}")
    A(f"s_lshl_b32 s52, s{sRB}, {FSH + 4}")
    A(f"s_add_u32 s52, s52, {WS_HF}")
    A(f"s_lshl_b32 s46, s{sCB}, {FSH}")
    A("s_add_u32 s46, s46, s52")
    vTR = 35
    wa2, ra2, oa, vTp = 44, 45, 46, 47
    A(f"s_mul_i32 s38, s{sWV}, 8704")
    A(f"v_mul_u32_u24 {v(wa2)}, 272, {v(vL15)}")
    A(f"v_lshl_add_u32 {v(wa2)}, {v(vGq)}, 4, {v(wa2)}")
    A(f"v_add_u32 {v(wa2)}, s38, {v(wa2)}")
    A(f"v_mul_u32_u24 {v(ra2)}, 272, {v(vGq)}")
    A(f"v_lshl_add_u32 {v(ra2)}, {v(vL15)}, 4, {v(ra2)}")
    A(f"v_add_u32 {v(ra2)}, s38, {v(ra2)}")
    A(f"v_lshlrev_b32 {v(oa)}, 12, {v(vGq)}")
    A(f"v_lshl_add_u32 {v(oa)}, {v(vL15)}, 4, {v(oa)}")
    A(f"v_lshlrev_b32 {v(vTp)}, 2, {v(vLane)}")
    A(f"v_add_u32 {v(vTp)}, {L_TOP}, {v(vTp)}")
    A(f"s_lshl_b32 s56, s{sT0}, 12")
    A(f"s_lshl_b32 s39, s{sCB}, 8")
    A("s_add_u32 s56, s56, s39")
    A(f"s_sub_u32 s38, s{sWN}, s{sWV}")
    A("s_mul_i32 s38, s38, 9216")
    A(f"s_lshl_b32 s39, s{sWM}, 6")
    A("s_add_u32 s38, s38, s39")
    A(f"v_add_u32 {v(vTR)}, s38, {v(ra)}")
    A(f"s_waitcnt vmcnt({vm.need('hs')})")
    lds_arrive_last(A, vCN, vT + 1, C_HF, "L_nohf")
    flag_store(A, t1, t2, sW, 46)
    assert not cq
    A("s_waitcnt vmcnt(1)")
    A("s_branch L_hfd")
    A.label("L_nohf")
    A("s_waitcnt vmcnt(0)")
    A.label("L_hfd")
    stamp(A, 8, ST and not opt.get('p0st') and not opt.get('p2st') and not opt.get('p1st'))
    while cq: emit(cdma(*cq.pop(0)))
    MW = 0xffff if AM else 0xff
    def fpoll(mask):
        A(f"s_mov_b64 exec, {mask}")
        A(f"buffer_load_dword {v(vFl)}, {v(vFo)}, {s(sW,4)}, s52 offen sc1")
        A("s_mov_b64 exec, -1")
    def creads(g):
        st, ks = g >> 2, g & 3
        off = slot2(st) * 16384 + (ks >> 1) * 8192
        base = vRC
        if off >= 65536: off -= 65536; base = vRC2
        F = CF + (g & 1) * 16
        return [f"ds_read_b128 {v(F+4*dt,4)}, {v(base + (ks & 1))} offset:{off + 2048*dt}" for dt in range(4)]
    def mm(g, tt):
        st, ks = g >> 2, g & 3
        F = CF + (g & 1) * 16
        hr = HR + (st % HD) * 32 + 4 * (2 * ks + tt)
        return [f"v_mfma_f32_16x16x32_bf16 {v(ACC2+4*(tt*4+dt),4)}, {v(F+4*dt,4)}, {v(hr,4)}, {'0' if g == 0 else v(ACC2+4*(tt*4+dt),4)}" for dt in range(4)]
    lds_add(A, vCN, vOne, C_HL)
    fpoll(MW)
    lds_wait(A, vCN, vPo, C_HL, 4, "sync0", 0)
    for j in range(8):
        part, wn, tt = j >> 2, (j >> 1) & 1, j & 1
        for rd in range(2):
            A(f"ds_read_b64_tr_b16 {v(HR + 4*j + 2*rd, 2)}, {v(vTR)} offset:{wn*18432 + part*4608 + rd*576 + tt*32}")
        if j == 3: A("s_waitcnt lgkmcnt(4)")
    lds_add(A, vCN, vOne, C_GO)
    A("s_waitcnt lgkmcnt(4)")
    emit(creads(0))
    for g in range(4):
        emit(creads(g + 1))
        A("s_waitcnt lgkmcnt(4)")
        emit(mm(g, 0)); emit(mm(g, 1))
    A.label("L_hpoll")
    A("s_waitcnt vmcnt(0)")
    A(f"v_cmp_ne_u32 vcc, s{sTAG}, {v(vFl)}")
    A("s_nop 1")
    A(f"s_and_b32 s38, vcc_lo, {MW}")
    A("s_cbranch_scc0 L_hgo")
    spin_guard(A, "L_hgo")
    A(f"s_sleep {opt.get('h_sleep', 1)}")
    fpoll(MW)
    A("s_branch L_hpoll")
    A.label("L_hgo")
    stamp(A, 9, ST and not opt.get('p1st'))
    def hload(st, j):
        out = []
        if j == 0:
            out += stage_cb(sH, st)
            out.append(f"s_lshl_b32 s{sH}, s{sH}, 15")
            out.append(f"s_add_u32 s{sH}, s{sH}, s{sHB}")
        r = HR + (st % HD) * 32 + 4 * j
        out.append(f"buffer_load_dwordx4 {v(r,4)}, {v(vH0 if j < 4 else vH1)}, {s(sW,4)}, s{sH} offen offset:{1024*(j&3)} {opt.get('hld', 'sc1')}")
        vm.add(("h", st, j))
        return out
    for j in range(8): emit(hload(1, j))
    lds_wait(A, vCN, vPo, C_GO, 4, "sync1", 0)
    stamp(A, 10, ST and not opt.get('p1st'))
    for j in range(8): emit(hload(2, j))
    def fixup():
        Y = 48
        lds_wait(A, vCN, vPo, C_TOP, 1, "topw")
        A(f"ds_read_b32 {v(vT+4)}, {v(vTp)}")
        A(f"s_sub_u32 s38, 2047, s{sT0}")
        A("s_waitcnt lgkmcnt(0)")
        A(f"v_and_b32 {v(vT+4)}, 0x7ff, {v(vT+4)}")
        A(f"v_sub_u32 {v(vT+4)}, s38, {v(vT+4)}")
        A(f"v_cmp_gt_u32 vcc, 32, {v(vT+4)}")
        A("s_nop 1")
        A("s_and_b32 s57, vcc_lo, 0xff")
        if opt.get("x_nofix"): A("s_mov_b32 s57, 0")
        A.label("L_fix")
        A("s_cmp_eq_u32 s57, 0")
        A("s_cbranch_scc1 L_fixd")
        A("s_ff1_i32_b32 s8, s57")
        A("s_bitset0_b32 s57, s8")
        A(f"v_readlane_b32 s9, {v(vT+4)}, s8")
        A(f"v_lshl_add_u32 {v(Y+4)}, s8, 2, {v(vCN)}")
        lds_wait(A, Y + 4, Y + 5, C_DF, 1, "dfw", 2)
        A("s_lshl_b32 s38, s8, 8")
        A(f"s_add_u32 s38, s38, {L_DEL}")
        A(f"v_lshl_add_u32 {v(Y+4)}, {v(vL15)}, 4, s38")
        A(f"ds_read_b128 {v(Y,4)}, {v(Y+4)}")
        A("s_and_b32 s38, s9, 3")
        A("s_lshl_b32 s38, s38, 4")
        A("s_lshl_b64 s[10:11], 0xffff, s38")
        A("s_lshr_b32 s9, s9, 2")
        A("s_waitcnt lgkmcnt(0)")
        A("s_mov_b64 exec, s[10:11]")
        for i in range(8):
            A(f"s_cmp_lg_u32 s9, {i}")
            A(f"s_cbranch_scc1 L_fx{i}")
            A(pk_add(er(4 * i), er(4 * i), Y))
            A(pk_add(er(4 * i + 2), er(4 * i + 2), Y + 2))
            A.label(f"L_fx{i}")
        A("s_mov_b64 exec, -1")
        A("s_branch L_fix")
        A.label("L_fixd")
    LA = 4
    cq = [(st, q) for st in (3, 4) for q in range(4)]
    for g in range(4, 64):
        st, ks = g >> 2, g & 3
        if opt.get("p2st") and g in (8, 16, 24, 32, 48):
            stamp(A, {8: 1, 16: 2, 24: 4, 32: 7, 48: 8}[g], ST)
        gchk = 999 if AM else 4 * (8 - HD)
        if g == gchk - 3:
            fpoll("0xff00"); vm.add("f")
        if g == gchk:
            A(f"s_waitcnt vmcnt({vm.need('f')})")
            A.label("L_h2poll")
            A(f"v_cmp_ne_u32 vcc, s{sTAG}, {v(vFl)}")
            A("s_nop 1")
            A("s_and_b32 s38, vcc_lo, 0xff00")
            A("s_cbranch_scc0 L_h2go")
            spin_guard(A, "L_h2go")
            A("s_sleep 2")
            fpoll("0xff00")
            A("s_waitcnt vmcnt(0)")
            A("s_branch L_h2poll")
            A.label("L_h2go")
            if opt.get("p2st"): stamp(A, 6, ST)
        if g == opt.get("fix_at", 60): fixup()
        hn = vm.need(('h', st, 2*ks+1))
        if st < 15 and ks == 1:
            assert vm.ops.count(("c", st + 1)) == 4
            emit(creads(g + 1))
            A(f"s_waitcnt vmcnt({min(hn, vm.need(('c', st + 1)))}) lgkmcnt(4)")
            lds_add(A, vCN, vOne, C_ST)
        elif st < 15 and ks == 3:
            A("s_waitcnt lgkmcnt(0)")
            A(f"v_readfirstlane_b32 s38, {v(vPo)}")
            A("s_nop 1")
            A(f"s_cmp_ge_u32 s38, {4 * st}")
            A(f"s_cbranch_scc1 L_st{st}_ok")
            lds_wait(A, vCN, vPo, C_ST, 4 * st, f"st{st}", 0)
            if st + LA < 16: cq += [(st + LA, q) for q in range(4)]
            emit(creads(g + 1))
            A(f"s_waitcnt vmcnt({hn})")
        elif g + 1 < 64:
            emit(creads(g + 1))
            A(f"s_waitcnt vmcnt({hn}) lgkmcnt(4)")
        else:
            A(f"s_waitcnt vmcnt({hn}) lgkmcnt(0)")
        for tt in range(2):
            emit(mm(g, tt))
            if st < 15 and ks == 2 and tt == 0: A(f"ds_read_b32 {v(vPo)}, {v(vCN)} offset:{C_ST}")
            if st + HD < 16: emit(hload(st + HD, 2 * ks + tt))
            if cq and (tt == 0 or len(cq) > 4): emit(cdma(*cq.pop(0)))
    assert not el and not cq
    stamp(A, 11, ST and not opt.get('p1st'))
    assert slot2(15) == 5 and slot2(14) == 3
    A("s_nop 3")
    for tt in range(2):
        for dt in range(4):
            A(f"ds_write_b128 {v(wa2)}, {v(ACC2+4*(tt*4+dt),4)} offset:{tt*16*272 + dt*64}")
        for i in range(4 * tt, 4 * tt + 4):
            A(f"ds_read_b128 {v(HR+4*i,4)}, {v(ra2)} offset:{i*4*272}")
    stf = opt.get("ostore", "sc1")
    for i in range(8):
        A(f"s_waitcnt lgkmcnt({(11 - i) if i < 4 else (7 - i)})")
        A(pk_fma(HR + 4 * i, GR + (i & ~1), i & 1, HR + 4 * i, er(4 * i)))
        A(pk_fma(HR + 4 * i + 2, GR + (i & ~1), i & 1, HR + 4 * i + 2, er(4 * i + 2)))
        A(f"buffer_store_dwordx4 {v(HR+4*i,4)}, {v(oa)}, {s(sO,4)}, s56 offen {stf}")
        A("s_add_u32 s56, s56, 16384")
    stamp(A, 12, ST and not opt.get('p1st'))
    stamp_out(A, ST, sW, sWV, 0)
    A("s_endpgm")
```

```python
from common import *

class Sched:
    def __init__(self, A): self.A = A; self.nb = 0
    def bar(self, upto=None):
        tgt = self.nb + 1 if upto is None else upto
        assert tgt >= self.nb, (tgt, self.nb)
        while self.nb < tgt:
            self.A("s_barrier"); self.nb += 1

def dyn_bars(A, sreg, name):
    A.label(f"L_{name}_l")
    A(f"s_cmp_eq_u32 s{sreg}, 0")
    A(f"s_cbranch_scc1 L_{name}_d")
    A("s_barrier")
    A(f"s_sub_u32 s{sreg}, s{sreg}, 1")
    A(f"s_branch L_{name}_l")
    A.label(f"L_{name}_d")

def gen_side(A, opt):
    ST = opt.get("sstamps")
    sX, sW, sWG, sWU, sWD, sPC = 8, 12, 52, 28, 4, 32
    sWV, sRB, sDB, sCS, sKQ = 18, 16, 17, 22, 23
    S = Sched(A)
    A.label("L_side")
    A(f"s_sub_u32 s{sWV}, s{sWV}, 4")
    A("v_and_b32 v2, 63, v0")
    A("s_lshl_b32 s19, s3, 8")
    A("s_lshl_b32 s39, s38, 3")
    A("s_add_u32 s19, s19, s39")
    vDA, vDB = 100, 104
    sXb, sBb, sROT, sK, sLW = 8, 24, 56, 57, 58
    lincomb(A, sRB, sDB, sROT, [128 * c for c in opt.get("rot", [0, 0, 0, 0])])
    A(f"s_lshl_b32 s{sLW}, s{sWV}, 12")
    A("v_lshrrev_b32 v4, 3, v2")
    A("v_and_b32 v5, 7, v2")
    A("v_lshrrev_b32 v6, 4, v2")
    A("v_xor_b32 v5, v5, v6")
    A("v_lshlrev_b32 v5, 4, v5")
    A("v_lshrrev_b32 v7, 1, v2")
    A("v_and_b32 v7, 16, v7")
    A("v_and_or_b32 v7, v2, 8, v7")
    A("v_and_or_b32 v6, v6, 1, v7")
    A(f"s_lshr_b32 s20, s{sWV}, 1")
    A(f"s_and_b32 s21, s{sWV}, 1")
    A("s_lshl_b32 s38, s20, 6")
    A("s_lshl_b32 s39, s21, 2")
    A("s_add_u32 s38, s38, s39")
    A(f"s_lshl_b32 s39, s{sRB}, 7")
    A("s_add_u32 s38, s38, s39")
    A("v_add_u32 v6, s38, v6")
    A("v_lshl_add_u32 v6, v6, 11, v5")
    A("v_xor_b32 v7, 64, v6")
    for q in range(4):
        add = (32 * (q & 1) + 2 * (q >> 1)) * 2048 - 1024 * q + 3072
        A(f"v_add_u32 {v(vDA+q)}, {add}, {'v7' if q & 1 else 'v6'}")
    A(f"s_lshl_b32 s38, s{sDB}, 6")
    A("s_lshl_b32 s39, s20, 5")
    A("s_add_u32 s38, s38, s39")
    A("v_add_u32 v6, s38, v4")
    A("v_lshl_add_u32 v6, v6, 11, v5")
    A("v_xor_b32 v7, 64, v6")
    for q in range(4):
        A(f"v_add_u32 {v(vDB+q)}, {8*2048*q - 1024*q + 3072}, {'v7' if q & 1 else 'v6'}")
    A("s_waitcnt lgkmcnt(0)")
    srd(A, sXb, 40, 41, 4194304, bias=3072)
    vm = Vm()
    def item(i):
        st, op = i >> 1, i & 1
        A(f"s_add_u32 m0, s{sLW}, {(i % NSLOT) * 16384}")
        if op == 0:
            A(f"s_add_u32 s{sK}, s{sROT}, {st * 128}")
            A(f"s_and_b32 s{sK}, s{sK}, 2047")
        else:
            A("s_nop 0")
        for q in range(4):
            A(f"buffer_load_dwordx4 {v((vDB if op else vDA) + q)}, {s(sBb if op else sXb,4)}, s{sK} offen offset:{1024*q} {opt.get('bflag' if op else 'aflag', '')} lds")
            vm.add(("d", i))
    item(0)
    A("s_cmp_eq_u32 s21, 0")
    A(f"s_cselect_b32 s{sBb}, s68, s70")
    A(f"s_cselect_b32 s{sBb+1}, s69, s71")
    srd(A, sBb, sBb, sBb + 1, 2097152, bias=3072)
    item(1)
    load_tag(A, 42, 43)
    srd(A, sW, 42, 43, WS_USED)
    A("s_mov_b32 s21, 0xffff0000")
    A("v_and_b32 v11, 15, v2")
    if opt.get("tlbw", 1):
        A("s_bfe_u32 s38, s2, 0x30003")
        A("s_min_u32 s39, s38, 6")
        A("s_and_b32 s36, s38, 1")
        A(f"s_cmp_eq_u32 s{sWV}, 0")
        A("s_cselect_b64 s[98:99], s[82:83], s[46:47]")
        A("s_cselect_b64 s[100:101], s[42:43], s[48:49]")
        A("s_cselect_b32 s39, s38, s39")
        A("s_mov_b32 s37, s39")
        A(f"s_cmp_eq_u32 s{sWV}, 2")
        A("s_cselect_b64 s[98:99], s[50:51], s[98:99]")
        A("s_cselect_b64 s[100:101], s[42:43], s[100:101]")
        A("s_cselect_b32 s38, 8, 0")
        A("s_add_u32 s37, s37, s38")
        A(f"s_cmp_eq_u32 s{sWV}, 3")
        A("s_cselect_b64 s[98:99], s[72:73], s[98:99]")
        A("s_cselect_b64 s[100:101], s[74:75], s[100:101]")
        A("s_cselect_b32 s39, s36, s39")
        A("s_cselect_b32 s37, s36, s37")
        A("s_lshl_b32 s39, s39, 20")
        A("s_lshl_b32 s37, s37, 20")
        if opt.get("tlbw") == 2:
            A("s_lshr_b32 s38, s2, 6")
            A("s_lshl_b32 s38, s38, 18")
            A("s_add_u32 s39, s39, s38")
            A("s_add_u32 s37, s37, s38")
        A("s_load_dword s97, s[98:99], s39")
        A("s_load_dword s97, s[100:101], s37")
    NI = opt.get("n_init", 4)
    for i in range(2, NI): item(i)
    A("v_lshlrev_b32 v3, 4, v2")
    A(f"s_mul_hi_u32 s{sKQ}, s2, {(1 << 32) // 56 + 1}")
    A(f"s_mul_i32 s38, s{sKQ}, 56")
    A(f"s_sub_u32 s{sCS}, s2, s38")
    A("v_lshrrev_b32 v5, 3, v2")
    A("v_and_b32 v8, 7, v2")
    A("v_and_b32 v12, 3, v5")
    A("v_lshlrev_b32 v12, 1, v12")
    A("v_xor_b32 v8, v8, v12")
    A("v_mul_u32_u24 v4, 7168, v5")
    A("v_lshl_add_u32 v4, v8, 4, v4")
    A(f"s_lshl_b32 s38, s{sWV}, 6")
    A(f"s_lshl_b32 s39, s{sKQ}, 8")
    A("s_add_u32 s44, s38, s39")
    A("s_mul_i32 s45, s44, 7168")
    A(f"s_lshl_b32 s39, s{sCS}, 7")
    A("s_add_u32 s45, s45, s39")
    A(f"s_lshl_b32 s92, s{sWV}, 14")
    A(f"s_add_u32 s92, s92, {L_W}")
    srd(A, sWG, 46, 47, 7340032)
    srd(A, sWU, 48, 49, 7340032)
    A("s_mov_b32 s46, s92")
    def wdma(i):
        gu, q = i >> 3, i & 7
        A(f"s_add_u32 m0, s46, {1024*i}")
        A(f"s_add_u32 s39, s45, {q*8*7168}")
        A(f"buffer_load_dwordx4 v4, {s(sWU if gu else sWG,4)}, s39 offen {opt.get('wflag','nt')} lds")
    A("s_cmp_ge_u32 s2, 224")
    A(f"s_cselect_b32 s{sWG+2}, 0, s{sWG+2}")
    A(f"s_cselect_b32 s{sWU+2}, 0, s{sWU+2}")
    if opt.get("x_nogu"):
        A(f"s_mov_b32 s{sWG+2}, 0"); A(f"s_mov_b32 s{sWU+2}, 0")
    wi = 0
    SW = opt.get("swarm", 4)
    if SW:
        if opt.get("amap"):
            A("s_lshl_b32 s36, s3, 7")
        else:
            A("s_and_b32 s39, s3, 1")
            A("s_lshl_b32 s36, s39, 9")
            A("s_lshr_b32 s39, s3, 1")
            A("s_lshl_b32 s39, s39, 7")
            A("s_add_u32 s36, s36, s39")
        A("s_lshr_b32 s39, s2, 3")
        A("s_lshl_b32 s39, s39, 2")
        A("s_add_u32 s36, s36, s39")
        A(f"s_add_u32 s36, s36, s{sWV}")
        A("s_lshl_b32 s36, s36, 11")
        A("s_add_u32 s84, s72, s36")
        A("s_addc_u32 s85, s73, 0")
        A("s_add_u32 s86, s74, s36")
        A("s_addc_u32 s87, s75, 0")
    BA = opt.get("ba_st", [2, 5, 8, 11])
    assert len(BA) == 1 or all(y - x == BA[1] - BA[0] for x, y in zip(BA, BA[1:]))
    A("s_lshr_b32 s37, s2, 3")
    A(f"s_mul_i32 s37, s37, {len(BA)}")
    A("s_lshr_b32 s37, s37, 5")
    A(f"s_mul_i32 s37, s37, {BA[1] - BA[0] if len(BA) > 1 else 0}")
    A(f"s_add_u32 s37, s37, {BA[0]}")
    A("v_lshlrev_b32 v5, 11, v5")
    A("v_lshl_add_u32 v5, v8, 4, v5")
    A(f"s_lshl_b32 s47, s{sCS}, 17")
    A(f"s_lshl_b32 s39, s{sKQ}, 9")
    A("s_add_u32 s47, s47, s39")
    A(f"s_lshl_b32 s39, s{sWV}, 7")
    A("s_add_u32 s47, s47, s39")
    srd(A, sWD, 50, 51, 7340032)
    A("s_cmp_ge_u32 s2, 224")
    A(f"s_cselect_b32 s{sWD+2}, 0, s{sWD+2}")
    DW = 200
    dq = list(range(8))
    def dload(n, thr=None):
        for _ in range(n):
            if dq:
                i = dq.pop(0)
                if thr is not None: A(f"s_waitcnt vmcnt({thr})")
                A(f"buffer_load_dwordx4 {v(DW+4*i,4)}, v5, {s(sWD,4)}, s47 offen {opt.get('wflag','nt')}"); vm.add("dw")
                A(f"s_add_u32 s47, s47, {8*2048}")
    A("v_lshrrev_b32 v10, 4, v2")
    vCN, vOne = 22, 23
    A(f"v_mov_b32 {v(vOne)}, 1")
    nsp = [0]
    SM = opt.get("sw_mats", 2)
    def spf(n):
        for _ in range(n // 4):
            if nsp[0] < 16:
                for m in range(SM):
                    for j in range(2): A(f"s_load_dword s36, s[{84+2*m}:{85+2*m}], {64*j}")
                for m in range(SM):
                    A(f"s_add_u32 s{84+2*m}, s{84+2*m}, 128")
                    A(f"s_addc_u32 s{85+2*m}, s{85+2*m}, 0")
                nsp[0] += 1
    A(f"s_waitcnt vmcnt({vm.need(('d', 1))}) lgkmcnt(0)")
    S.bar()
    for i in range(NI, 6): item(i)
    make_tag(A)
    sST, sSL, sKN, sEV = 20, 19, 95, 97
    KG, KY, D, XF = 80, 64, 72, 56
    NB1 = opt.get("ba_first", 16)
    A(f"s_lshl_b32 s94, s{sWV}, 12")
    A(f"s_add_u32 s94, s94, {WS_KEY}")
    def kloads():
        for i in range(4):
            A(f"buffer_load_dwordx4 {v(KG+4*i,4)}, v3, {s(sW,4)}, s94 offen offset:{1024*i} sc1")
    A(f"s_mov_b32 s{sST}, 1")
    A(f"s_mov_b32 s{sSL}, s{sLW}")
    A(f"s_add_u32 s92, s{sLW}, 98304")
    A(f"s_add_u32 s{sKN}, s{sK}, 128")
    A(f"s_and_b32 s{sKN}, s{sKN}, 2047")
    A(f"s_add_u32 s{sEV}, s37, 1")
    A(f"s_min_u32 s{sEV}, s{sEV}, 14")
    A.label("L_s_loop")
    A(f"s_mov_b32 m0, s{sSL}")
    A(f"s_mov_b32 s{sK}, s{sKN}")
    A("s_waitcnt vmcnt(8)")
    A("s_barrier")
    B = Asm(); A0 = A; A = B
    spf(4); nsp[0] += 12
    A = A0
    fill = B.lines + [f"s_add_u32 s{sKN}, s{sK}, 128", f"s_and_b32 s{sKN}, s{sKN}, 2047", f"s_add_u32 s{sSL}, s{sSL}, 32768",
                      f"s_cmp_eq_u32 s{sSL}, s92\ns_cselect_b32 s{sSL}, s{sLW}, s{sSL}", f"s_add_u32 s{sST}, s{sST}, 1"]
    grp = []
    for l in fill:
        if l.startswith("s_addc"): grp[-1] += "\n" + l
        else: grp.append(l)
    per = -(-len(grp) // 6)
    for n in range(8):
        op, q = n >> 2, n & 3
        if n == 4:
            A("s_add_u32 m0, m0, 16384"); A("s_nop 0")
        if n == 7: A(f"s_cmp_lg_u32 s{sST}, s{sEV}")
        A(f"buffer_load_dwordx4 {v((vDB if op else vDA)+q)}, {s(sBb if op else sXb,4)}, s{sK} offen offset:{1024*q} lds")
        if n < 6:
            for _ in range(per):
                if grp: A(grp.pop(0))
    assert not grp
    A("s_cbranch_scc1 L_s_loop")
    A(f"s_cmp_eq_u32 s{sST}, 14")
    A("s_cbranch_scc1 L_s_loopend")
    for i in range(NB1): wdma(i)
    A("v_lshlrev_b32 v9, 5, v2")
    for m in range(SM, 2): A(f"global_load_dword v98, v9, s[{84+2*m}:{85+2*m}]")
    A(f"s_mov_b32 s{sEV}, 14")
    A("s_branch L_s_loop")
    A.label("L_s_loopend")
    assert max(BA) <= 12 or BA == [99]
    S.nb = 14
    vm = Vm()
    for i in (28, 29, 30, 31):
        for q in range(4): vm.add(("d", i))
    kloads()
    for i in range(4): vm.add("k")
    for i in range(NB1, 16): wdma(i); vm.add("w")
    dload(opt.get("d_b13", 0))
    spf(4)
    A(f"s_waitcnt vmcnt({vm.need(('d', 29))})")
    S.bar(15)
    stamp(A, 2, ST)
    dload(opt.get("d_b14", 8))
    A("v_bfe_u32 v12, v2, 2, 2")
    A("v_lshl_add_u32 v13, v10, 3, v12")
    A("v_lshlrev_b32 v13, 7, v13")
    A("v_and_b32 v14, 3, v2")
    A("v_lshl_add_u32 v13, v14, 3, v13")
    A("v_add_u32 v13, s46, v13")
    for nt in range(4):
        A(f"v_xor_b32 v14, {nt}, v12")
        A(f"v_lshl_add_u32 {v(16+nt)}, v14, 5, v13")
    srd(A, sX, 40, 41, 4194304)
    A(f"v_mov_b32 {v(vCN)}, {L_CNT}")
    def topround(rnd):
        for i in range(8):
            A(f"v_sub_u32 {v(D+i)}, s95, {v(KG+2*i)}")
        A(f"v_min3_u32 v9, {v(D)}, {v(D+1)}, {v(D+2)}")
        A(f"v_min3_u32 v15, {v(D+3)}, {v(D+4)}, {v(D+5)}")
        A(f"v_min3_u32 v9, v9, {v(D+6)}, {v(D+7)}")
        A(f"v_min_u32 v9, v9, v15")
        for r in (8, 4, 2, 1):
            A("s_nop 1")
            A(f"v_min_u32_dpp v9, v9, v9 row_ror:{r} row_mask:0xf bank_mask:0xf")
        A("s_nop 0")
        for i in range(4):
            A(f"v_readlane_b32 s{48+i}, v9, {16*i}")
        A("s_nop 0")
        A("s_min_u32 s48, s48, s49")
        A("s_min_u32 s50, s50, s51")
        A("s_min_u32 s48, s48, s50")
        A("s_sub_u32 s95, s95, s48")
        A(f"v_writelane_b32 v8, s95, {rnd}")
        A("s_sub_u32 s95, s95, 1")
    A(f"s_waitcnt vmcnt({vm.need(('d', 31))})")
    S.bar(16)
    dload(8)
    spf(12)
    S.bar(17)
    if opt.get("sprio"): A(f"s_setprio {opt['sprio']}")
    A("v_mov_b32 v8, 0")
    A("s_mov_b32 s95, -1")
    A(f"s_waitcnt vmcnt({vm.need('k')})")
    A.label("L_s_poll")
    for i in range(8):
        A(f"v_xor_b32 {v(KG+2*i+1)}, s{sTAG}, {v(KG+2*i+1)}")
    A(f"v_or3_b32 v9, {v(KG+1)}, {v(KG+3)}, {v(KG+5)}")
    A(f"v_or3_b32 v9, v9, {v(KG+7)}, {v(KG+9)}")
    A(f"v_or3_b32 v9, v9, {v(KG+11)}, {v(KG+13)}")
    A(f"v_or_b32 v9, v9, {v(KG+15)}")
    A("v_cmp_ne_u32 vcc, 0, v9")
    A("s_nop 1")
    A("s_cmp_eq_u64 vcc, 0")
    A("s_cbranch_scc1 L_s_go")
    spin_guard(A, "L_s_go")
    kloads()
    A("s_waitcnt vmcnt(0)")
    A("s_branch L_s_poll")
    A.label("L_s_go")
    for rnd in range(8): topround(rnd)
    A(f"s_lshl_b32 s38, s{sWV}, 5")
    A(f"s_add_u32 s38, s38, {L_CND}")
    A("v_lshl_add_u32 v9, v2, 2, s38")
    A(f"v_mov_b32 v15, {L_CND}")
    A("s_mov_b64 exec, 0xff")
    A("ds_write_b32 v9, v8")
    lds_add(A, vCN, vOne, C_CND)
    lds_wait(A, vCN, 14, C_CND, 4, "s_cw", 0)
    stamp(A, 3, ST and not opt.get('p0st'))
    A("v_and_b32 v9, 31, v2")
    A("v_lshl_add_u32 v9, v9, 2, v15")
    A("ds_read_b32 v14, v9")
    for i in range(8):
        A(f"ds_read_b128 {v(KY+4*i,4)}, v15 offset:{16*i}")
    A("v_mov_b32 v12, 0")
    A("s_waitcnt lgkmcnt(0)")
    for i0 in range(0, 32, 2):
        for i in range(2):
            A(f"v_cmp_gt_u32 s[{48+2*i}:{49+2*i}], {v(KY+i0+i)}, v14")
        A("s_nop 0")
        for i in range(2):
            A(f"v_addc_co_u32 v12, vcc, 0, v12, s[{48+2*i}:{49+2*i}]")
    A("v_lshlrev_b32 v12, 2, v12")
    A("s_mov_b32 exec_hi, 0")
    A("ds_permute_b32 v13, v12, v14")
    A("s_mov_b64 exec, -1")
    A("v_and_b32 v12, 7, v2")
    A("v_lshlrev_b32 v12, 2, v12")
    A("s_waitcnt lgkmcnt(0)")
    A("ds_bpermute_b32 v8, v12, v13")
    A("s_lshl_b32 s38, s44, 1")
    A("s_and_b32 s38, s38, 2047")
    A("s_waitcnt lgkmcnt(0)")
    A("v_not_b32 v9, v8")
    A("v_and_b32 v9, 0x7ff, v9")
    A("v_lshlrev_b32 v9, 11, v9")
    A("v_lshl_add_u32 v9, v10, 4, v9")
    for ks in range(2):
        A(f"buffer_load_dwordx4 {v(XF+4*ks,4)}, v9, {s(sX,4)}, s38 offen offset:{64*ks}")
    A(f"v_lshlrev_b32 v9, 2, v2")
    A(f"v_add_u32 v9, {L_TOP}, v9")
    A("s_mov_b64 exec, 0xff")
    A("ds_write_b32 v9, v8")
    lds_add(A, vCN, vOne, C_TOP)
    A(f"s_or_b32 s38, s2, s{sWV}")
    A("s_cbranch_scc1 L_s_noep")
    A("s_mov_b64 exec, 1")
    A(f"s_mov_b32 s38, {WS_EPOCH}")
    A(f"v_mov_b32 v13, s{sTAG}")
    A("v_mov_b32 v9, 0")
    A(f"buffer_store_dword v13, v9, {s(sW,4)}, s38 offen")
    A("s_mov_b64 exec, -1")
    A.label("L_s_noep")
    spf(12)
    assert nsp[0] == 16
    A("s_cmp_ge_u32 s2, 224")
    A("s_cbranch_scc1 L_s_cons")
    A("s_waitcnt vmcnt(0)")
    stamp(A, 5, ST and not opt.get('p0st'))
    if opt.get("sprio2", 2): A(f"s_setprio {opt.get('sprio2', 2)}")
    WF = 100
    for gu in range(2):
        for nt in range(4):
            for ks in range(2):
                for rd in range(2):
                    A(f"ds_read_b64_tr_b16 {v(WF + ((gu*4+nt)*2+ks)*4 + 2*rd, 2)}, {v(16+nt)} offset:{gu*8192 + ks*4096 + rd*512}")
        A("s_waitcnt lgkmcnt(0)")
    OC = 24
    for ks in range(2):
        for gu in range(2):
            for nt in range(4):
                o = OC + (gu * 4 + nt) * 4
                A(f"v_mfma_f32_16x16x32_bf16 {v(o,4)}, {v(WF+((gu*4+nt)*2+ks)*4,4)}, {v(XF+4*ks,4)}, {'0' if ks == 0 else v(o,4)}")
    A("v_add_u32 v13, s46, v3")
    A("s_nop 7")
    for t in range(8):
        A(f"ds_write_b128 v13, {v(OC+4*t,4)} offset:{1024*t}")
    lds_add(A, vCN, vOne, C_GU)
    A("v_and_b32 v14, 8, v2")
    A("v_lshl_add_u32 v13, v14, 7, v3")
    A(f"s_lshl_b32 s38, s{sWV}, 11")
    A(f"s_add_u32 s38, s38, {L_W}")
    A("v_add_u32 v13, s38, v13")
    A("v_and_b32 v12, 7, v2")
    A("v_mul_u32_u24 v12, 14336, v12")
    A("v_lshl_add_u32 v12, v10, 4, v12")
    A("v_lshl_add_u32 v12, v14, 3, v12")
    A(f"s_mul_i32 s56, s{sKQ}, {2*8*14336}")
    A(f"s_lshl_b32 s39, s{sCS}, 8")
    A("s_add_u32 s56, s56, s39")
    A(f"s_lshr_b32 s39, s{sWV}, 1")
    A(f"s_mul_i32 s39, s39, {8*14336}")
    A("s_add_u32 s56, s56, s39")
    A(f"s_and_b32 s39, s{sWV}, 1")
    A("s_lshl_b32 s39, s39, 7")
    A("s_add_u32 s56, s56, s39")
    A(f"s_add_u32 s56, s56, {WS_GU}")
    lds_wait(A, vCN, 15, C_GU, 4, "s_guw", 0)
    for w in range(4):
        A(f"ds_read_b128 {v(64+4*w,4)}, v13 offset:{w*16384}")
    A(f"s_lshl_b32 s58, s{sCS}, {FSH+2}")
    A(f"s_lshl_b32 s39, s{sKQ}, {FSH}")
    A("s_add_u32 s58, s58, s39")
    A(f"s_add_u32 s58, s58, {WS_GF}")
    A("s_waitcnt lgkmcnt(0)")
    for r in (0, 2):
        A(pk_add(64 + r, 64 + r, 68 + r)); A(pk_add(72 + r, 72 + r, 76 + r)); A(pk_add(64 + r, 64 + r, 72 + r))
    A(f"buffer_store_dwordx4 v[64:67], v12, {s(sW,4)}, s56 offen sc1")
    A(f"v_mov_b32 v13, s{sTAG}")
    A("v_lshlrev_b32 v14, 2, v2")
    A("s_waitcnt vmcnt(0)")
    lds_arrive_last(A, vCN, 15, C_H2, "L_s_nogf")
    flag_store(A, 13, 14, sW, 58)
    A.label("L_s_nogf")
    stamp(A, 6, ST and not opt.get('p0st'))
    if opt.get("nodown"): A("s_branch L_s_end")
    A("v_add_u32 v13, s46, v3")
    for i in range(8):
        A(f"ds_write_b128 v13, {v(DW+4*i,4)} offset:{8192 + 1024*i}")
    A(f"s_lshl_b32 s56, s{sCS}, {FSH+2}")
    A(f"s_add_u32 s56, s56, {WS_GF}")
    A("v_and_b32 v13, 3, v2")
    A(f"v_lshlrev_b32 v13, {FSH}, v13")
    A("v_lshrrev_b32 v6, 5, v2")
    A(f"v_lshl_add_u32 v6, s{sWV}, 1, v6")
    A("v_and_b32 v7, 1, v10")
    A("v_lshl_add_u32 v9, v7, 3, v6")
    A("v_mul_u32_u24 v9, 14336, v9")
    A("v_lshl_add_u32 v9, v11, 4, v9")
    A(f"s_cmp_lg_u32 s{sWV}, 0")
    A("s_cbranch_scc1 L_s_gw")
    A.label("L_s_gpoll")
    A("s_mov_b64 exec, 0xf")
    A(f"buffer_load_dword v14, v13, {s(sW,4)}, s56 offen sc1")
    A("s_waitcnt vmcnt(0)")
    A(f"v_cmp_ne_u32 vcc, s{sTAG}, v14")
    A("s_mov_b64 exec, -1")
    A("s_nop 0")
    A("s_cmp_eq_u64 vcc, 0")
    A("s_cbranch_scc1 L_s_ggo")
    spin_guard(A, "L_s_ggo")
    A("s_sleep 6")
    A("s_branch L_s_gpoll")
    A.label("L_s_ggo")
    lds_add(A, vCN, vOne, C_TR)
    lds_wait(A, vCN, 15, C_TR, 1, "s_gw", 2)
    stamp(A, 7, ST and not opt.get('p0st'))
    A(f"s_lshl_b32 s38, s{sCS}, 8")
    A(f"s_add_u32 s38, s38, {WS_GU}")
    PL = 24
    for kq in range(4):
        A(f"buffer_load_dwordx4 {v(PL + 4*kq, 4)}, v9, {s(sW,4)}, s38 offen sc1")
        A(f"s_add_u32 s38, s38, {16*14336}")
    WF = 64
    for nt in range(4):
        for ks in range(2):
            for rd in range(2):
                A(f"ds_read_b64_tr_b16 {v(WF + (nt*2+ks)*4 + 2*rd, 2)}, {v(16+nt)} offset:{8192 + ks*4096 + rd*512}")
    A("s_waitcnt vmcnt(0)")
    for r in (0, 2):
        A(pk_add(PL + r, PL + r, PL + 4 + r)); A(pk_add(PL + 8 + r, PL + 8 + r, PL + 12 + r)); A(pk_add(PL + r, PL + r, PL + 8 + r))
    for e in range(4):
        rnd_bf16(A, PL + e, PL + e)
        A(f"v_mov_b32 {v(PL+4+e)}, {v(PL+e)}")
    A("s_nop 1")
    for e in range(4):
        A(f"v_permlane16_swap_b32 {v(PL+e)}, {v(PL+4+e)}")
    A("s_nop 1")
    for e in range(4):
        sigmoid(A, 40 + e, PL + e)
        A(f"v_mul_f32 {v(40+e)}, {v(40+e)}, {v(PL+e)}")
        rnd_bf16(A, 40 + e, 40 + e)
        A(f"v_mul_f32 {v(40+e)}, {v(40+e)}, {v(PL+4+e)}")
    A("v_cvt_pk_bf16_f32 v40, v40, v41")
    A("v_cvt_pk_bf16_f32 v41, v42, v43")
    A("v_mul_u32_u24 v9, 144, v6")
    A("v_lshl_add_u32 v9, v11, 3, v9")
    A(f"v_add_u32 v9, {L_ACT}, v9")
    A("ds_write_b64 v9, v[40:41]")
    lds_add(A, vCN, vOne, C_ACT)
    A("v_and_b32 v9, 7, v2")
    A("v_mul_u32_u24 v9, 144, v9")
    A("v_lshl_add_u32 v9, v10, 4, v9")
    A(f"v_add_u32 v9, {L_ACT}, v9")
    lds_wait(A, vCN, 15, C_ACT, 4, "s_aw")
    A("ds_read_b128 v[40:43], v9")
    A("ds_read_b128 v[44:47], v9 offset:64")
    A(f"s_mov_b32 s38, {56*4096}")
    A("v_and_b32 v15, 7, v2")
    A("v_mul_lo_u32 v15, v15, s38")
    A("v_lshl_add_u32 v15, v10, 4, v15")
    A("v_and_b32 v14, 8, v2")
    A("v_lshl_add_u32 v15, v14, 3, v15")
    A(f"s_lshl_b32 s38, s{sCS}, 12")
    A(f"s_lshl_b32 s39, s{sKQ}, 10")
    A("s_add_u32 s38, s38, s39")
    A(f"s_lshl_b32 s39, s{sWV}, 8")
    A("s_add_u32 s38, s38, s39")
    A(f"s_add_u32 s38, s38, {WS_YP}")
    A("v_cmp_eq_u32 vcc, 8, v14")
    A("s_waitcnt lgkmcnt(0)")
    for ks in range(2):
        for nt in range(4):
            A(f"v_mfma_f32_16x16x32_bf16 {v(48+4*nt,4)}, {v(WF+(nt*2+ks)*4,4)}, {v(40+4*ks,4)}, {'0' if ks == 0 else v(48+4*nt,4)}")
    A("s_nop 7")
    for nt in (0, 2):
        for r in range(4):
            A(f"v_cndmask_b32 {v(48+4*nt+r)}, {v(48+4*nt+r)}, {v(52+4*nt+r)}, vcc")
        A(f"buffer_store_dwordx4 {v(48+4*nt,4)}, v15, {s(sW,4)}, s38 offen offset:{64*nt} sc1")
    A(f"s_lshl_b32 s58, s{sKQ}, {FSH+6}")
    A(f"s_lshl_b32 s39, s{sCS}, {FSH}")
    A("s_add_u32 s58, s58, s39")
    A(f"s_add_u32 s58, s58, {WS_YF}")
    A(f"v_mov_b32 v13, s{sTAG}")
    A("v_lshlrev_b32 v14, 2, v2")
    A("s_waitcnt vmcnt(0)")
    lds_arrive_last(A, vCN, 15, C_Y, "L_s_cons")
    flag_store(A, 13, 14, sW, 58)
    A.label("L_s_cons")
    stamp(A, 8, ST and not opt.get('p0st'))
    A(f"s_add_u32 s38, s{sWV}, 4")
    A(f"v_readlane_b32 s24, v8, s{sWV}")
    A(f"v_readlane_b32 s25, v8, s38")
    A(f"s_lshl_b32 s45, s{sRB}, 7")
    for t in range(2):
        A(f"s_and_b32 s{26+t}, s{24+t}, 0x7ff")
        A(f"s_sub_u32 s{26+t}, 2047, s{26+t}")
        A(f"s_sub_u32 s{56+t}, s{26+t}, s45")
    A("s_waitcnt lgkmcnt(0)")
    A("s_min_u32 s38, s56, s57")
    A("s_cmp_ge_u32 s38, 128")
    A("s_cbranch_scc1 L_s_end")
    if opt.get("nodown"): A("s_branch L_s_end")
    lds_wait(A, vCN, 15, C_ST, 4 * opt.get("s_cons", 6), "s_pw", 8)
    A(f"s_lshr_b32 s58, s{sDB}, 2")
    A(f"s_lshl_b32 s58, s58, {FSH+6}")
    A(f"s_add_u32 s58, s58, {WS_YF}")
    A("v_min_u32 v4, 55, v2")
    A(f"v_lshlrev_b32 v4, {FSH}, v4")
    A("v_lshlrev_b32 v6, 12, v10")
    A("v_lshl_add_u32 v6, v11, 4, v6")
    A("v_lshlrev_b32 v9, 3, v11")
    A("v_mov_b32 v7, 0")
    A.label("L_s_ypoll")
    A(f"buffer_load_dword v5, v4, {s(sW,4)}, s58 offen sc1")
    A("s_waitcnt vmcnt(0)")
    A(f"v_cmp_ne_u32 vcc, s{sTAG}, v5")
    A("s_nop 1")
    A("s_cmp_eq_u64 vcc, 0")
    A("s_cbranch_scc1 L_s_ygo")
    spin_guard(A, "L_s_ygo")
    A(f"s_sleep {opt.get('y_sleep', 6)}")
    A("s_branch L_s_ypoll")
    A.label("L_s_ygo")
    stamp(A, 9, ST and not opt.get('p0st'))
    for t in range(2):
        Y = 24 + 64 * t
        A(f"s_cmp_ge_u32 s{56+t}, 128")
        A(f"s_cbranch_scc1 L_s_sk{t}")
        A(f"s_add_u32 s39, s{sWV}, {4*t}")
        A(f"s_mul_i32 s39, s39, {56*4096}")
        A(f"s_lshl_b32 s3, s{sDB}, 8")
        A("s_add_u32 s39, s39, s3")
        A(f"s_add_u32 s39, s39, {WS_YP}")
        for it in range(14):
            A(f"buffer_load_dwordx4 {v(Y+4*it,4)}, v6, {s(sW,4)}, s39 offen sc1")
            A("s_add_u32 s39, s39, 16384")
        A(f"s_lshl_b32 s39, s{26+t}, 11")
        A(f"s_lshl_b32 s3, s{sDB}, 7")
        A("s_add_u32 s39, s39, s3")
        A(f"buffer_load_dwordx2 {v(Y+56,2)}, v9, {s(sX,4)}, s39 offen")
        A(f"s_lshl_b32 s39, s{26+t}, 3")
        A(f"s_add_u32 s39, s39, {WS_G}")
        A(f"buffer_load_dword {v(Y+58)}, v7, {s(sW,4)}, s39 offen sc1")
        A.label(f"L_s_sk{t}")
    A("s_waitcnt vmcnt(0)")
    for t in range(2):
        Y = 24 + 64 * t
        A(f"s_cmp_ge_u32 s{56+t}, 128")
        A(f"s_cbranch_scc1 L_s_sc{t}")
        A(f"s_ashr_i32 s39, s{24+t}, 31")
        A("s_not_b32 s39, s39")
        A("s_or_b32 s39, s39, 0x80000000")
        A(f"s_xor_b32 s39, s{24+t}, s39")
        A("s_and_b32 s39, s39, 0xffff0000")
        A(f"v_mov_b32 {v(Y+62)}, s39")
        sigmoid(A, Y + 59, Y + 62)
        rnd_bf16(A, Y + 59, Y + 59)
        for it in range(1, 14):
            A(pk_add(Y, Y, Y + 4 * it))
            A(pk_add(Y + 2, Y + 2, Y + 4 * it + 2))
        xsum_groups(A, [Y + e for e in range(4)], [Y + 4 + e for e in range(4)])
        A(f"v_sub_f32 {v(Y+58)}, 1.0, {v(Y+58)}")
        rnd_bf16(A, Y + 58, Y + 58)
        A(f"v_lshlrev_b32 {v(Y+8)}, 16, {v(Y+56)}")
        A(f"v_and_b32 {v(Y+9)}, s21, {v(Y+56)}")
        A(f"v_lshlrev_b32 {v(Y+10)}, 16, {v(Y+57)}")
        A(f"v_and_b32 {v(Y+11)}, s21, {v(Y+57)}")
        for e in range(4):
            rnd_bf16(A, Y + e, Y + e)
            A(f"v_mul_f32 {v(Y+e)}, {v(Y+e)}, {v(Y+59)}")
            rnd_bf16(A, Y + e, Y + e)
            A(f"v_add_f32 {v(Y+e)}, {v(Y+e)}, {v(Y+8+e)}")
            rnd_bf16(A, Y + e, Y + e)
            A(f"v_mul_f32 {v(Y+e)}, {v(Y+e)}, {v(Y+58)}")
            rnd_bf16(A, Y + e, Y + e)
            A(f"v_mul_f32 {v(Y+8+e)}, {v(Y+8+e)}, {v(Y+58)}")
            rnd_bf16(A, Y + 8 + e, Y + 8 + e)
            A(f"v_sub_f32 {v(Y+e)}, {v(Y+e)}, {v(Y+8+e)}")
        A(f"s_lshl_b32 s39, s{sWV}, 8")
        A(f"s_add_u32 s39, s39, {L_DEL + 1024*t}")
        A(f"v_lshl_add_u32 {v(Y+60)}, v11, 4, s39")
        A(f"ds_write_b128 {v(Y+60)}, {v(Y,4)}")
        A(f"v_lshl_add_u32 {v(Y+61)}, s{sWV}, 2, {v(vCN)}")
        lds_add(A, Y + 61, vOne, C_DF + 16 * t)
        A.label(f"L_s_sc{t}")
    A.label("L_s_end")
    stamp_out(A, ST, sW, sWV, 1)
    A("s_endpgm")
```

```python
from common import *

def gen_gemm(A, opt, part):
    ST = opt.get("stamps")
    AM = opt.get("amap")
    sX, sB, sW, sAG, sC, sO = 4, 8, 12, 24, 28, 32
    sRB, sCB, sWV, sWM, sWN, sK, sROT, sLW = 16, 17, 18, 19, 20, 21, 22, 23
    vDA, vDB = 8, 12
    vRA, vRB, vRA2, vRB2 = 16, 18, 20, 22
    vLane, vGq, vL15, vAgO = 24, 25, 26, 27
    Lr, Li, Cr, Ci, L8r, L8i, L16r, L16i, L512r, L512i, Fr, Fi, Wr, Wi = [28 + 2 * i for i in range(14)]
    vT = 56
    ACC = 64
    FX, FY = 128, 160
    UI = FX
    EP = 192
    ea, eb, la, wa, ra, ga = [EP + i for i in range(6)]
    XT, vDC, VS = EP + 6, EP + 10, EP + 14
    PT = 224
    def acc(m, part, c2): return ACC + 4 * (m * 4 + part * 2 + c2)

    RX, RW, RD = PT, PT + 16, 12
    if part == "early":
        A(f"v_and_b32 {v(vL15)}, 15, v0")
        A(f"v_bfe_u32 v4, v0, 7, 1")
        A(f"v_lshl_add_u32 v4, v4, 5, {v(vL15)}")
        A(f"s_lshl_b32 s39, s{sCB}, 6")
        A(f"v_add_lshl_u32 {v(PT+31)}, s39, v4, 1")
        A("s_waitcnt lgkmcnt(0)")
        for c2 in range(2):
            A(f"global_load_ushort {v(PT+c2)}, {v(PT+31)}, s[64:65] offset:{32*c2}")
            A(f"global_load_ushort {v(PT+2+c2)}, {v(PT+31)}, s[66:67] offset:{32*c2}")
            A(f"global_load_ushort {v(PT+4+c2)}, {v(PT+31)}, s[76:77] offset:{32*c2}")
        A("s_branch L_gemm")
        return
    A.label("L_gemm")
    load_tag(A, 42, 43)
    A(f"s_lshr_b32 s{sWN}, s{sWV}, 1")
    A("s_lshl_b32 s50, s3, 8")
    A("s_lshl_b32 s39, s38, 3")
    A("s_add_u32 s50, s50, s39")
    A("s_lshl_b32 s50, s50, 11")
    A(f"s_lshl_b32 s51, s{sWV}, 9")
    A("s_add_u32 s50, s50, s51")
    A(f"s_lshl_b32 s39, s{sWV}, 13")
    A(f"s_add_u32 m0, s39, {L_RT}")
    A("v_and_b32 v4, 31, v0")
    A("v_lshlrev_b32 v4, 4, v4")
    A("v_bfe_u32 v5, v0, 5, 1")
    A("v_lshl_add_u32 v5, v5, 11, v4")
    A("v_add_u32 v4, s51, v4")
    A("v_mov_b32 v6, s44")
    A("v_mov_b32 v7, s45")
    A("s_mov_b32 exec_lo, 0")
    A("v_mov_b32 v6, s80")
    A("v_mov_b32 v7, s81")
    A("s_mov_b32 exec_lo, -1")
    A("v_add_co_u32 v6, vcc, v6, v4")
    srd(A, sX, 40, 41, 4194304)
    A("v_addc_co_u32 v7, vcc, 0, v7, vcc")
    for i in range(4):
        A(f"buffer_load_dwordx4 v5, {s(sX,4)}, s50 offen {opt.get('aflag', '')} lds")
        A("s_add_u32 m0, m0, 1024")
        A("s_add_u32 s50, s50, 4096")
    A("global_load_lds_dwordx4 v[6:7], off")
    if opt.get("bwarm", 1):
        if AM:
            A("s_lshl_b32 s50, s3, 7")
        else:
            A("s_and_b32 s39, s3, 1")
            A("s_lshl_b32 s50, s39, 9")
            A("s_lshr_b32 s39, s3, 1")
            A("s_lshl_b32 s39, s39, 7")
            A("s_add_u32 s50, s50, s39")
        A("s_lshl_b32 s39, s38, 2")
        A("s_add_u32 s50, s50, s39")
        A(f"s_add_u32 s50, s50, s{sWV}")
        A("s_lshl_b32 s50, s50, 11")
        A("v_and_b32 v4, 63, v0")
        A("v_lshl_add_u32 v3, v4, 5, s50")
        A("global_load_dword v10, v3, s[68:69]")
        A("global_load_dword v11, v3, s[70:71]")
        A("s_mov_b64 s[8:9], s[72:73]")
        A("s_mov_b64 s[10:11], s[74:75]")
    A("s_mov_b64 s[52:53], s[72:73]")
    A("s_mov_b64 s[54:55], s[74:75]")
    A("s_mov_b64 s[58:59], s[78:79]")
    A("s_mov_b64 s[36:37], s[82:83]")
    A(f"v_and_b32 {v(vLane)}, 63, v0")
    A(f"s_and_b32 s{sWM}, s{sWV}, 1")
    A(f"s_lshl_b32 s{sLW}, s{sWV}, 12")
    A(f"v_lshrrev_b32 {v(vGq)}, 4, {v(vLane)}")
    rr, cc, t1, t2 = vT, vT + 1, vT + 2, vT + 3
    A(f"v_lshrrev_b32 {v(rr)}, 3, {v(vLane)}")
    A(f"v_and_b32 {v(cc)}, 7, {v(vLane)}")
    A(f"v_lshrrev_b32 {v(t1)}, 1, {v(rr)}")
    A(f"v_xor_b32 {v(cc)}, {v(cc)}, {v(t1)}")
    A(f"v_lshlrev_b32 {v(cc)}, 4, {v(cc)}")
    def emit(ls):
        for l in ls: A(l)
    srd(A, sW, 42, 43, WS_USED)
    A(f"s_lshl_b32 s38, s{sCB}, 14")
    A(f"s_add_u32 s38, s38, {WS_AGG}")
    A(f"s_add_u32 s{sAG}, s42, s38")
    A(f"s_addc_u32 s{sAG+1}, s43, 0")
    A(f"s_mov_b32 s{sAG+2}, 16384")
    A(f"s_mov_b32 s{sAG+3}, 0x20000")
    A(f"s_cmp_lt_u32 s{sWV}, 2")
    A(f"s_cselect_b32 s{sC}, s52, s54")
    A(f"s_cselect_b32 s{sC+1}, s53, s55")
    srd(A, sC, sC, sC + 1, 2097152, bias=3072)
    srd(A, sO, 36, 37, 8388608)
    A(f"v_bfe_u32 {v(t2)}, {v(vLane)}, 1, 3")
    A(f"v_xor_b32 {v(t2)}, {v(t2)}, {v(vGq)}")
    A(f"v_lshlrev_b32 {v(t2)}, 4, {v(t2)}")
    A(f"v_lshl_add_u32 {v(t2)}, {v(vL15)}, 7, {v(t2)}")
    A(f"s_lshl_b32 s38, s{sWM}, 13")
    A(f"s_lshl_b32 s39, s{sWN}, 13")
    for kk in range(2):
        A(f"v_xor_b32 {v(t1)}, {64*kk}, {v(t2)}")
        A(f"v_add_u32 {v(vRA+kk)}, s38, {v(t1)}")
        A(f"v_add_u32 {v(vRB+kk)}, s39, {v(t1)}")
        A(f"v_add_u32 {v(vRA2+kk)}, 0x10000, {v(vRA+kk)}")
        A(f"v_add_u32 {v(vRB2+kk)}, 0x10000, {v(vRB+kk)}")
    A(f"v_and_b32 {v(t1)}, 31, {v(vLane)}")
    A(f"v_lshlrev_b32 {v(vAgO)}, 4, {v(t1)}")
    A(f"s_sub_u32 s38, 15, s{sRB}")
    A("s_lshl_b32 s38, s38, 10")
    A(f"s_lshl_b32 s39, s{sWN}, 9")
    A("s_add_u32 s92, s38, s39")
    A(f"v_add_u32 {v(vAgO)}, s92, {v(vAgO)}")
    A(f"s_cmp_eq_u32 s{sWM}, 1")
    A("s_cselect_b64 s[98:99], -1, 0")

    def rd_frags(st, kk, F):
        out = []
        for op, (r1, r2) in enumerate(((vRA, vRA2), (vRB, vRB2))):
            off = ((2 * st + op) % NSLOT) * 16384
            base = r1
            if off >= 65536: off -= 65536; base = r2
            for t in range(4):
                out.append(f"ds_read_b128 {v(F + 16*op + 4*t, 4)}, {v(base+kk)} offset:{off + 2048*t}")
        return [out[0], out[4], out[5], out[6], out[7], out[1], out[2], out[3]]
    def mfmas(F, first):
        out = []
        for m in range(4):
            for n in range(4):
                d = ACC + 4 * (m * 4 + n)
                out.append(f"v_mfma_f32_16x16x32_bf16 {v(d,4)}, {v(F+4*m,4)}, {v(F+16+4*n,4)}, {'0' if first else v(d,4)}")
        return out

    B = Asm()
    lre, lim, ldt = PT, PT + 2, PT + 4
    t = PT + 6
    for r in range(6): B(f"v_lshlrev_b32 {v(PT+r)}, 16, {v(PT+r)}")
    for c in range(2):
        B(f"v_mul_f32 {v(t+c)}, {LOG2E}, {v(ldt+c)}")
    for c in range(2): B(f"v_exp_f32 {v(t+c)}, {v(t+c)}")
    B("s_nop 0")
    for c in range(2): rnd_bf16(B, t + c, t + c)
    B(pk_mul(t + 2, t, None, lre))
    B(pk_mul(t + 4, t, None, lim))
    for c in range(2):
        B(f"v_mul_f32 {v(t+2+c)}, {LOG2E}, {v(t+2+c)}")
        B(f"v_mul_f32 {v(t+4+c)}, {INV2PI}, {v(t+4+c)}")
    for c in range(2):
        B(f"v_exp_f32 {v(t+2+c)}, {v(t+2+c)}")
        B(f"v_rndne_f32 {v(t+6+c)}, {v(t+4+c)}")
    for c in range(2): B(f"v_sub_f32 {v(t+4+c)}, {v(t+4+c)}, {v(t+6+c)}")
    for c in range(2):
        B(f"v_cos_f32 {v(t+6+c)}, {v(t+4+c)}")
        B(f"v_sin_f32 {v(t+8+c)}, {v(t+4+c)}")
    B(pk_mul(t + 10, lre, None, lre))
    B(pk_fma(t + 10, lim, None, lim, t + 10))
    B(pk_mul(Lr, t + 2, None, t + 6))
    B(pk_mul(Li, t + 2, None, t + 8))
    for c in range(2): B(f"v_rcp_f32 {v(t+10+c)}, {v(t+10+c)}")
    for c in range(2): B(f"v_add_f32 {v(t+c)}, -1.0, {v(Lr+c)}")
    B(pk_add(t + 10, t + 10, t + 10))
    B(pk_mul(t + 2, t, None, lre))
    B(pk_fma(t + 2, Li, None, lim, t + 2))
    B(pk_mul(t + 4, Li, None, lre))
    B(pk_fma(t + 4, t, None, lim, t + 4, neg=True))
    B(pk_mul(Cr, t + 2, None, t + 10))
    B(pk_mul(Ci, t + 4, None, t + 10))
    a0, a1, b0, b1, c0, c1, d0, d1 = [PT + 2 * i for i in range(8)]
    pk_csq(B, a0, a1, Lr, Li)
    pk_csq(B, b0, b1, a0, a1)
    pk_csq(B, L8r, L8i, b0, b1)
    pk_csq(B, L16r, L16i, L8r, L8i)
    pk_csq(B, a0, a1, L16r, L16i)
    pk_csq(B, b0, b1, a0, a1)
    B(f"v_and_b32 {v(PT+16)}, 1, {v(vGq)}")
    B(f"v_cmp_eq_u32 s[84:85], 1, {v(PT+16)}")
    B(f"v_cmp_lt_u32 s[86:87], 1, {v(vGq)}")
    B("s_nop 0")
    def sel(dr, di, sr, si, mask):
        for c in range(2):
            B(f"v_cndmask_b32 {v(dr+c)}, 1.0, {v(sr+c)}, {mask}")
            B(f"v_cndmask_b32 {v(di+c)}, 0, {v(si+c)}, {mask}")
    e0, e1 = PT + 18, PT + 20
    sel(c0, c1, L16r, L16i, "s[84:85]")
    sel(d0, d1, a0, a1, "s[86:87]")
    pk_cmul(B, e0, e1, c0, c1, None, d0, d1)
    sel(c0, c1, b0, b1, "s[98:99]")
    pk_cmul(B, Wr, Wi, e0, e1, None, c0, c1)
    pk_csq(B, a0, a1, b0, b1)
    pk_csq(B, b0, b1, a0, a1)
    pk_csq(B, L512r, L512i, b0, b1)
    sel(c0, c1, a0, a1, "s[84:85]")
    sel(d0, d1, b0, b1, "s[86:87]")
    pk_cmul(B, Fr, Fi, c0, c1, None, d0, d1)
    for c2 in range(2):
        B(f"v_mov_b32 {v(a0)}, {v(Wr+c2)}")
        B(f"v_mov_b32 {v(a1)}, {v(Wi+c2)}")
        B(f"v_mul_f32 {v(a0+1)}, {v(L8r+c2)}, {v(Wr+c2)}")
        B(f"v_mul_f32 {v(a1+1)}, {v(L8r+c2)}, {v(Wi+c2)}")
        B(f"v_fma_f32 {v(a0+1)}, -{v(L8i+c2)}, {v(Wi+c2)}, {v(a0+1)}")
        B(f"v_fma_f32 {v(a1+1)}, {v(L8i+c2)}, {v(Wr+c2)}, {v(a1+1)}")
        pk_cmul(B, VS + 4 * c2, VS + 4 * c2 + 2, Cr, Ci, c2, a0, a1)
    par = B.lines
    B = Asm()
    B(f"s_lshl_b32 s38, s{sWN}, 8")
    B(f"s_add_u32 s38, s38, {L_EX}")
    B(f"v_lshl_add_u32 {v(eb)}, {v(vL15)}, 4, s38")
    B(f"s_lshl_b32 s39, s{sWM}, 11")
    B(f"v_lshl_add_u32 {v(ea)}, {v(vGq)}, 9, {v(eb)}")
    B(f"v_add_u32 {v(ea)}, s39, {v(ea)}")
    B(f"v_lshlrev_b32 {v(la)}, 10, {v(vGq)}")
    B(f"v_lshl_add_u32 {v(la)}, {v(vL15)}, 4, {v(la)}")
    B("s_add_u32 s38, s92, 1024")
    B(f"v_add_u32 {v(la)}, s38, {v(la)}")
    B(f"v_sub_u32 {v(t1)}, s{sRB}, {v(vGq)}")
    B(f"v_mov_b32 {v(t2)}, s{sTAG}")
    for i in range(4):
        B(f"v_cmp_lt_i32 vcc, {4*i}, {v(t1)}")
        B("s_nop 1")
        B(f"v_cndmask_b32 {v(XT+i)}, 0, {v(t2)}, vcc")
    B(f"s_mul_i32 s38, s{sWV}, 9216")
    B(f"s_add_u32 s38, s38, {L_TR}")
    B(f"v_mul_u32_u24 {v(wa)}, 144, {v(vL15)}")
    B(f"v_lshl_add_u32 {v(wa)}, {v(vGq)}, 5, {v(wa)}")
    B(f"v_add_u32 {v(wa)}, s38, {v(wa)}")
    B(f"v_bfe_u32 {v(ra)}, {v(vLane)}, 2, 2")
    B(f"v_lshl_add_u32 {v(ra)}, {v(vGq)}, 3, {v(ra)}")
    B(f"v_mul_u32_u24 {v(ra)}, 144, {v(ra)}")
    B(f"v_and_b32 {v(t1)}, 3, {v(vLane)}")
    B(f"v_lshl_add_u32 {v(ra)}, {v(t1)}, 3, {v(ra)}")
    B(f"v_add_u32 {v(ra)}, s38, {v(ra)}")
    B(f"v_lshlrev_b32 {v(ga)}, 4, {v(vLane)}")
    B(f"s_lshl_b32 s38, s{sCB}, 6")
    B(f"s_lshl_b32 s39, s{sWM}, 5")
    B("s_add_u32 s38, s38, s39")
    B(f"v_add_u32 {v(t1)}, s38, {v(rr)}")
    B(f"v_lshl_add_u32 {v(t1)}, {v(t1)}, 11, {v(cc)}")
    B(f"v_xor_b32 {v(t2)}, 64, {v(t1)}")
    for q in range(4):
        B(f"v_add_u32 {v(vDC+q)}, {8*2048*q - 1024*q + 3072}, {v(t2 if q & 1 else t1)}")
    sROT2 = 55
    B(f"s_and_b32 s{sROT2}, s{sCB}, 7")
    sE8 = 54
    B(f"s_and_b32 s{sE8}, s{sCB}, {0 if AM else 8}")
    LEAD = opt.get("lead", 0)
    if LEAD:
        def perm(lo, hi, ph):
            q = list(range(16))
            for p_ in range(lo, hi + 1):
                d = min(LEAD, hi - p_)
                if p_ % 4 == ph and d > 0: q[p_:p_ + d + 1] = [p_ + d] + list(range(p_, p_ + d))
            return q
        def pack(q): return sum(x << (4 * i) for i, x in enumerate(q))
        B(f"s_add_u32 s38, s{sRB}, s{sCB}")
        B("s_and_b32 s38, s38, 3")
        for ph in range(4):
            a = perm(opt.get("lead_lo", 1), 7, ph)[:8]; a[0] = 1
            b = perm(8, 15, ph)[8:]
            if ph == 0:
                B(f"s_mov_b32 s94, {pack(a):#x}"); B(f"s_mov_b32 s95, {pack(b):#x}")
            else:
                B(f"s_cmp_eq_u32 s38, {ph}\ns_cselect_b32 s94, {pack(a):#x}, s94\ns_cselect_b32 s95, {pack(b):#x}, s95")
        B(f"s_mul_i32 s38, s{sROT2}, 0x11111111")
        B("s_or_b32 s38, s38, 0x88888888")
        B("s_sub_u32 s38, s38, s94")
        B("s_lshr_b32 s38, s38, 3")
        B("s_and_b32 s38, s38, 0x11111111")
        B("s_sub_u32 s94, s94, s38")
        B(f"s_mul_i32 s38, s{sE8}, 0x11111111")
        B("s_or_b32 s94, s94, s38")
        B("s_xor_b32 s95, s95, s38")
    B(f"s_lshl_b32 s48, s{sRB}, 19")
    B(f"s_lshl_b32 s39, s{sCB}, 15")
    B("s_add_u32 s53, s48, s39")
    B(f"s_lshl_b32 s39, s{sWN}, 11")
    B("s_add_u32 s53, s53, s39")
    B(f"s_lshl_b32 s39, s{sWM}, 14")
    B("s_add_u32 s53, s53, s39")
    sT0, sGB, sXB = 51, 57, 56
    vXo, vGo, vDo = EP + 28, EP + 29, EP + 30
    B(f"s_lshl_b32 s{sT0}, s{sRB}, 7")
    B(f"s_lshl_b32 s38, s{sWV}, 5")
    B(f"s_add_u32 s{sT0}, s{sT0}, s38")
    B(f"s_lshl_b32 s{sGB}, s{sT0}, 3")
    B(f"s_add_u32 s{sGB}, s{sGB}, {WS_G}")
    B(f"s_lshl_b32 s{sXB}, s{sT0}, 11")
    B(f"s_lshl_b32 s39, s{sCB}, 7")
    B(f"s_add_u32 s{sXB}, s{sXB}, s39")
    B(f"v_lshlrev_b32 {v(vXo)}, 11, {v(vGq)}")
    B(f"v_lshl_add_u32 {v(vXo)}, {v(vL15)}, 3, {v(vXo)}")
    B(f"v_and_b32 {v(vGo)}, 31, {v(vLane)}")
    B(f"v_lshlrev_b32 {v(vGo)}, 3, {v(vGo)}")
    B(f"v_lshl_add_u32 {v(vDo)}, {v(vL15)}, 3, s39")
    if opt.get("pretouch", 1):
        B(f"s_not_b32 s39, s{sTAG}")
        for r in range(4): B(f"v_mov_b32 {v(60+r)}, s39")
        B(f"v_lshlrev_b32 {v(t2)}, 2, {v(vLane)}")
        B(f"s_mul_hi_u32 s8, s2, {(1 << 32) // 56 + 1}")
        B("s_mul_i32 s9, s8, 56")
        B("s_sub_u32 s9, s2, s9")
        B(f"s_lshl_b32 s10, s9, {FSH+2}")
        B(f"s_lshl_b32 s11, s8, {FSH}")
        B("s_add_u32 s10, s10, s11")
        B(f"s_add_u32 s10, s10, {WS_GF}")
        B(f"s_lshl_b32 s11, s8, {FSH+6}")
        B(f"s_lshl_b32 s9, s9, {FSH}")
        B("s_add_u32 s11, s11, s9")
        B(f"s_add_u32 s11, s11, {WS_YF}")
        B(f"s_lshl_b32 s9, s{sRB}, {FSH + 4}")
        B(f"s_lshl_b32 s38, s{sCB}, {FSH}")
        B("s_add_u32 s9, s9, s38")
        B(f"s_add_u32 s9, s9, {WS_HF}")
        B("s_cmp_ge_u32 s2, 224")
        B("s_cselect_b32 s10, s9, s10")
        B("s_cselect_b32 s11, s9, s11")
        B(f"s_cmp_eq_u32 s{sWV}, 1")
        B("s_cselect_b32 s9, s10, s9")
        B(f"s_cmp_eq_u32 s{sWV}, 3")
        B("s_cselect_b32 s9, s11, s9")
        B("s_mov_b32 exec_hi, 0")
        B(f"buffer_store_dword v60, {v(t2)}, {s(sW,4)}, s9 offen sc1")
        B(f"buffer_store_dwordx4 v[60:63], {v(vAgO)}, {s(sAG,4)}, 0 offen sc1")
        B("s_mov_b32 exec_hi, -1")
    adr = B.lines

    A("s_waitcnt lgkmcnt(0)")
    make_tag(A)
    emit(adr)
    A(f"s_lshl_b32 s39, s{sWV}, 13")
    A(f"s_add_u32 s39, s39, {L_RT}")
    A(f"v_and_b32 v4, 7, {v(vLane)}")
    A("v_lshlrev_b32 v4, 9, v4")
    A(f"v_bfe_u32 v5, {v(vLane)}, 3, 1")
    A("v_lshl_add_u32 v4, v5, 6, v4")
    A(f"v_lshl_add_u32 v4, {v(vGq)}, 4, v4")
    A("v_add_u32 v4, s39, v4")
    A(f"v_and_b32 v7, 1, {v(vLane)}")
    A("v_lshlrev_b32 v5, 9, v7")
    A(f"v_bfe_u32 v6, {v(vLane)}, 1, 1")
    A("v_lshl_add_u32 v5, v6, 6, v5")
    A(f"v_lshl_add_u32 v5, {v(vGq)}, 4, v5")
    A("v_add_u32 v5, s39, v5")
    A(f"v_lshrrev_b32 v6, 1, {v(vGq)}")
    A("v_lshlrev_b32 v6, 6, v6")
    A("v_lshl_add_u32 v6, v7, 5, v6")
    A(f"v_and_b32 v7, 1, {v(vGq)}")
    A("v_lshl_add_u32 v6, v7, 4, v6")
    A(f"s_lshl_b32 s39, s{sWV}, 7")
    A(f"s_add_u32 s39, s39, {L_SCR}")
    A("v_add_u32 v6, s39, v6")
    NPRE = opt.get("par_pre", 999)
    NPT = 2 if opt.get("pretouch", 1) else 0
    A(f"s_waitcnt vmcnt({NPT + (7 if opt.get('bwarm', 1) else 5)})")
    emit(par); par = []
    RGS = opt.get("rg_st", -1)
    rg1 = []
    for ks in range(4):
        rg1.append(f"ds_read_b128 {v(RX+4*ks,4)}, v4 offset:{128*ks}")
        rg1.append(f"ds_read_b128 {v(RW+4*ks,4)}, v5 offset:{4096 + 128*ks}")
    rg2 = [f"v_mfma_f32_16x16x32_bf16 {v(RD,4)}, {v(RX+4*ks,4)}, {v(RW+4*ks,4)}, {'0' if ks == 0 else v(RD,4)}" for ks in range(4)]
    rg3 = ["s_mov_b32 exec_lo, 0x00030003", "s_mov_b32 exec_hi, 0x000c000c", f"ds_write_b128 v6, {v(RD,4)}", "s_mov_b64 exec, -1"]
    if RGS < 0:
        A(f"s_waitcnt vmcnt({NPT + (2 if opt.get('bwarm', 1) else 0)})")
        emit(rg1); A("s_waitcnt lgkmcnt(0)"); emit(rg2)
        A(f"s_lshl_b32 s39, s{sWV}, 2")
        A(f"s_add_u32 s39, s39, {L_SCR - 16}")
        A("v_mov_b32 v4, s39")
        A(f"v_mov_b32 v5, s{sTAG}")
        A(f"v_mov_b32 v7, {L_SCR - 16}")
        A("s_nop 3")
        emit(rg3)
        A("ds_write_b32 v4, v5")
        X = FX
        A(f"v_lshl_add_u32 v6, {v(vL15)}, 2, v7")
        A(f"v_and_b32 {v(X+10)}, 7, {v(vLane)}")
        A("s_lshl_b32 s38, s3, 8")
        A("s_lshr_b32 s39, s2, 3")
        A("s_lshl_b32 s39, s39, 3")
        A("s_add_u32 s8, s38, s39")
        A("s_sub_u32 s38, 2047, s8")
        A(f"v_sub_u32 {v(X+11)}, s38, {v(X+10)}")
        A(f"v_lshlrev_b32 {v(X+10)}, 3, {v(X+10)}")
        A(f"v_bfe_u32 {v(X+12)}, {v(vLane)}, 3, 1")
        A(f"v_lshl_add_u32 {v(X+10)}, {v(X+12)}, 14, {v(X+10)}")
        A("s_lshl_b32 s8, s8, 3")
        A(f"s_add_u32 s8, s8, {WS_KEY}")
        A("s_mov_b32 s9, 0xffff0000")
        A(f"s_cmp_lg_u32 s{sWV}, 0")
        A("s_cbranch_scc1 L_nokey")
        A.label("L_rgw")
        A(f"ds_read_b128 {v(X+16,4)}, v7")
        for p in range(8):
            A(f"ds_read_b32 {v(X+p)}, v6 offset:{16 + 64*p}")
        A("s_waitcnt lgkmcnt(0)")
        for r in range(4): A(f"v_xor_b32 {v(X+16+r)}, s{sTAG}, {v(X+16+r)}")
        A(f"v_or3_b32 {v(X+16)}, {v(X+16)}, {v(X+17)}, {v(X+18)}")
        A(f"v_or_b32 {v(X+16)}, {v(X+16)}, {v(X+19)}")
        A(f"v_cmp_ne_u32 vcc, 0, {v(X+16)}")
        A("s_nop 1")
        A("s_cmp_eq_u64 vcc, 0")
        A("s_cbranch_scc1 L_rgo")
        spin_guard(A, "L_rgo")
        A("s_branch L_rgw")
        A.label("L_rgo")
        for r in range(4): A(f"v_not_b32 {v(X+16+r)}, s{sTAG}")
        A(f"ds_write_b128 v7, {v(X+16,4)}")
        A(pk_add(X, X, X + 2)); A(pk_add(X + 4, X + 4, X + 6)); A(pk_add(X, X, X + 4))
        A(f"v_add_f32 {v(X)}, {v(X)}, {v(X+1)}")
        rnd_bf16(A, X, X)
        sigmoid(A, X + 2, X)
        rnd_bf16(A, X + 2, X + 2)
        A(f"v_cmp_eq_u32 vcc, 1, {v(X+12)}")
        A(f"v_ashrrev_i32 {v(X+1)}, 31, {v(X)}")
        A(f"v_or_b32 {v(X+1)}, 0x80000000, {v(X+1)}")
        A(f"v_xor_b32 {v(X)}, {v(X)}, {v(X+1)}")
        A(f"v_and_or_b32 {v(X)}, {v(X)}, s9, {v(X+11)}")
        A(f"v_cndmask_b32 v4, {v(X)}, {v(X+2)}, vcc")
        A.label("L_nokey")
    if opt.get("prio", 0): A(f"s_setprio {opt.get('prio', 0)}")
    stamp(A, 1, ST and not opt.get('p2st') and not opt.get('p1st'))
    def xr(i): return PT + 2 * i
    GT, DR, GR, DS = PT + 16, PT + 18, PT + 20, PT + 28
    def gload(): A(f"buffer_load_dwordx2 {v(GT,2)}, {v(vGo)}, {s(sW,4)}, s{sGB} offen sc1")
    RSL = opt.get("rd_slots", [0, 1, 3, 4, 6, 7, 9, 10])
    for st in range(16):
        A("s_waitcnt lgkmcnt(0)" + (" vmcnt(0)" if st == RGS else ""))
        A("s_barrier")
        if st == 0:
            A(f"s_cmp_lg_u32 s{sWV}, 0")
            A("s_cbranch_scc1 L_nokey2")
            A("s_mov_b64 exec, 0xffff")
            A(f"buffer_store_dwordx2 v[4:5], {v(FX+10)}, {s(sW,4)}, s8 offen sc1")
            A("s_mov_b64 exec, -1")
            A.label("L_nokey2")
        if st == 0: stamp(A, 2, ST and not opt.get('p2st') and not opt.get('p1st'))
        if opt.get("p1st") and st in (0, 1, 2, 3, 4, 6, 8, 10, 12, 14):
            stamp(A, {0: 1, 1: 2, 2: 4, 3: 5, 4: 6, 6: 7, 8: 8, 10: 9, 12: 10, 14: 11}[st], ST)
        for half in range(2):
            rds = rd_frags(st, half, FX if half == 0 else FY)
            if half == 0:
                mf = mfmas(FY, False) if st > 0 else []
            else:
                A("s_waitcnt lgkmcnt(0)")
                if st == RGS: emit(rg2)
                mf = mfmas(FX, st == 0)
            if st == RGS and half == 0: par = list(rg1)
            if not mf: emit(rds); rds = []
            for k, m in enumerate(mf):
                A(m)
                if k in RSL: A(rds.pop(0))
                else:
                    for _ in range(opt.get("par_n", 1)):
                        if par: A(par.pop(0))
            assert not rds
            if st == RGS and half == 1: emit(rg3)
        if st == opt.get("cwarm", 99):
            A("global_load_dword v10, v3, s[8:9]")
            A("global_load_dword v11, v3, s[10:11]")
    assert not par, len(par)
    A("s_waitcnt lgkmcnt(0) vmcnt(0)")
    emit(mfmas(FY, False))
    stamp(A, 3, ST)

    def ure(c2, q): return acc(q >> 1, 0, c2) + 2 * (q & 1)
    def uim(c2, q): return acc(q >> 1, 1, c2) + 2 * (q & 1)
    def uI(c2, q): return UI + 16 * c2 + 2 * q
    HS = 8
    TT = 16
    EE = 56
    PUB = 60
    PIN = EP + 24
    t9 = EP + 22
    for i in range(4): A(f"s_mov_b32 s{44+i}, {4096*i}")
    A(f"v_mov_b32 {v(PUB+1)}, s{sTAG}")
    A(f"v_mov_b32 {v(PUB+3)}, s{sTAG}")
    A(f"v_and_b32 {v(PIN)}, 31, {v(vLane)}")
    A(f"v_lshlrev_b32 {v(PIN)}, 2, {v(PIN)}")
    A(f"v_add_u32 {v(PIN)}, {L_CNT}, {v(PIN)}")
    A(f"v_mov_b32 {v(PIN+2)}, 0")
    A(f"ds_write_b32 {v(PIN)}, {v(PIN+2)}")
    for q in range(1, 8):
        for c2 in range(2):
            hr, hi, tr_, ti = HS + 4 * c2, HS + 4 * c2 + 2, TT + 4 * c2, TT + 4 * c2 + 2
            pr = ure(c2, 0) if q == 1 else hr
            pi = uim(c2, 0) if q == 1 else hi
            A(pk_fma(tr_, Li, c2, pi, ure(c2, q), neg=True))
            A(pk_fma(ti, Li, c2, pr, uim(c2, q)))
            A(pk_fma(hr, Lr, c2, pr, tr_))
            A(pk_fma(hi, Lr, c2, pi, ti))
    for c2 in range(2):
        hr, hi = HS + 4 * c2, HS + 4 * c2 + 2
        A(f"v_fma_f32 {v(EE+c2)}, -{v(L8i+c2)}, {v(hi)}, {v(hr+1)}")
        A(f"v_fma_f32 {v(EE+2+c2)}, {v(L8i+c2)}, {v(hr)}, {v(hi+1)}")
    for c2 in range(2):
        hr, hi = HS + 4 * c2, HS + 4 * c2 + 2
        A(f"v_fma_f32 {v(EE+c2)}, {v(L8r+c2)}, {v(hr)}, {v(EE+c2)}")
        A(f"v_fma_f32 {v(EE+2+c2)}, {v(L8r+c2)}, {v(hi)}, {v(EE+2+c2)}")
    A(f"ds_write_b128 {v(ea)}, {v(EE,4)}")
    A("s_waitcnt lgkmcnt(0)")
    A("s_barrier")
    PE = FY
    for sp in range(8):
        A(f"ds_read_b128 {v(PE+4*sp,4)}, {v(eb)} offset:{sp*512}")
    for sp in range(1, 8):
        A(f"s_waitcnt lgkmcnt({7-sp})")
        pr, pi, er, ei = PE + 4 * (sp - 1), PE + 4 * (sp - 1) + 2, PE + 4 * sp, PE + 4 * sp + 2
        A(pk_fma(er, L16i, None, pi, er, neg=True))
        A(pk_fma(ei, L16i, None, pr, ei))
        A(pk_fma(er, L16r, None, pr, er))
        A(pk_fma(ei, L16r, None, pi, ei))
    A(f"v_cndmask_b32 {v(PUB)}, {v(PE+28)}, {v(PE+29)}, s[84:85]")
    A(f"v_cndmask_b32 {v(PUB+2)}, {v(PE+30)}, {v(PE+31)}, s[84:85]")
    A(f"s_cmp_lg_u32 s{sWM}, 0")
    A("s_cbranch_scc1 L_nopub")
    A("s_mov_b32 exec_hi, 0")
    A(f"buffer_store_dwordx4 {v(PUB,4)}, {v(vAgO)}, {s(sAG,4)}, 0 offen sc1")
    A("s_mov_b32 exec_hi, -1")
    A.label("L_nopub")
    stamp(A, 4, ST and not opt.get('p0st') and not opt.get('p2st') and not opt.get('p1st'))
    LQ = FY
    def lb_loads():
        for c2 in range(2):
            for i in range(4):
                A(f"buffer_load_dwordx4 {v(LQ+16*c2+4*i,4)}, {v(la)}, {s(sAG,4)}, s{44+i} offen offset:{256*c2} sc1")
    B = Asm()
    for r in range(4):
        for g in range(4):
            lo = "0" if g == 0 else v(PE + 4 * (g - 1) + r)
            B(f"v_cndmask_b32 {v(TT+g)}, {lo}, {v(PE+4*(3+g)+r)}, s[98:99]")
        B(f"v_cndmask_b32 {v(TT)}, {v(TT)}, {v(TT+1)}, s[84:85]")
        B(f"v_cndmask_b32 {v(TT+2)}, {v(TT+2)}, {v(TT+3)}, s[84:85]")
        B(f"v_cndmask_b32 {v(PIN+r)}, {v(TT)}, {v(TT+2)}, s[86:87]")
    QS = 56
    for c2 in range(2):
        hr, hi = HS + 4 * c2, HS + 4 * c2 + 2
        qr, qi = TT, TT + 2
        B(f"v_mov_b32 {v(qr)}, {v(PIN+c2)}")
        B(f"v_mov_b32 {v(qi)}, {v(PIN+2+c2)}")
        B(f"v_fma_f32 {v(qr+1)}, -{v(L8i+c2)}, {v(PIN+2+c2)}, {v(hr)}")
        B(f"v_fma_f32 {v(qi+1)}, {v(L8i+c2)}, {v(PIN+c2)}, {v(hi)}")
        B(f"v_fma_f32 {v(qr+1)}, {v(L8r+c2)}, {v(PIN+c2)}, {v(qr+1)}")
        B(f"v_fma_f32 {v(qi+1)}, {v(L8r+c2)}, {v(PIN+2+c2)}, {v(qi+1)}")
        pk_cmul(B, QS + 4 * c2, QS + 4 * c2 + 2, Cr, Ci, c2, qr, qi)
    for q in range(8):
        for c2 in range(2):
            B(pk_mul(uI(c2, q), Cr, c2, uim(c2, q)))
            B(pk_fma(uI(c2, q), Ci, c2, ure(c2, q), uI(c2, q)))
            B(pk_mul(ure(c2, q), Cr, c2, ure(c2, q)))
            B(pk_fma(ure(c2, q), Ci, c2, uim(c2, q), ure(c2, q), neg=True))
    nlb = max(48, min(opt.get("lb_at", 100), len(B.lines)))
    emit(B.lines[:nlb])
    if opt.get("lb_delay"): A(f"s_sleep {opt['lb_delay']}")
    lb_loads()
    emit(B.lines[nlb:])
    gload()
    A(f"global_load_dwordx2 {v(DR,2)}, {v(vDo)}, s[58:59]")
    for i in range(8):
        A(f"buffer_load_dwordx2 {v(xr(i),2)}, {v(vXo)}, {s(sX,4)}, s{sXB} offen")
        A(f"s_add_u32 s{sXB}, s{sXB}, 8192")
    vm = Vm()
    def slot2(st): return [5, 0, 1, 2, 3][st % 5]
    def stage_cb(dst, st):
        if st == 0: return [f"s_mov_b32 s{dst}, s{sCB}"]
        if LEAD: return [f"s_bfe_u32 s{dst}, s{94 + (st >> 3)}, {(4 << 16) | (4 * (st & 7)):#x}"]
        if st < 8:
            return [f"s_cmp_le_u32 s{sROT2}, {st - 1}", f"s_cselect_b32 s{dst}, {st}, {st - 1}", f"s_or_b32 s{dst}, s{dst}, s{sE8}"]
        return [f"s_xor_b32 s{dst}, s{sE8}, {st}"]
    def cdma(st, q):
        out = []
        if q == 0:
            out.append(f"s_add_u32 m0, s{sLW}, {slot2(st) * 16384}")
            out += stage_cb(sK, st)
            out.append(f"s_lshl_b32 s{sK}, s{sK}, 7")
        out.append(f"buffer_load_dwordx4 {v(vDC+q)}, {s(sC,4)}, s{sK} offen offset:{1024*q} {opt.get('cflag', '')} lds")
        vm.add(("c", st))
        return out
    A("s_waitcnt vmcnt(10)")
    A.label("L_poll")
    for c2 in range(2):
        for i in range(4):
            A(f"v_xor_b32 {v(LQ+16*c2+4*i+1)}, {v(LQ+16*c2+4*i+1)}, {v(XT+i)}")
            A(f"v_xor_b32 {v(LQ+16*c2+4*i+3)}, {v(LQ+16*c2+4*i+3)}, {v(XT+i)}")
    A(f"v_or3_b32 {v(t9)}, {v(LQ+1)}, {v(LQ+3)}, {v(LQ+5)}")
    for i in range(7, 31, 4):
        A(f"v_or3_b32 {v(t9)}, {v(t9)}, {v(LQ+i)}, {v(LQ+i+2)}")
    A(f"v_or_b32 {v(t9)}, {v(t9)}, {v(LQ+31)}")
    A(f"v_cmp_ne_u32 vcc, 0, {v(t9)}")
    A("s_nop 1")
    A("s_cmp_eq_u64 vcc, 0")
    A("s_cbranch_scc1 L_got")
    spin_guard(A, "L_got")
    A(f"s_sleep {opt.get('lb_sleep', 1)}")
    lb_loads()
    A("s_waitcnt vmcnt(0)")
    A("s_branch L_poll")
    A.label("L_got")
    if opt.get("wprio"): A(f"s_setprio {opt['wprio']}")
    stamp(A, 5, ST and not opt.get('p1st') and not opt.get('p0st'))
    HC = TT
    for i in range(2, -1, -1):
        for c2 in range(2):
            cr_, ci_ = LQ + 16 * c2 + 4 * (i + 1), LQ + 16 * c2 + 4 * (i + 1) + 2
            ar, ai = LQ + 16 * c2 + 4 * i, LQ + 16 * c2 + 4 * i + 2
            A(f"v_fma_f32 {v(ar)}, -{v(L512i+c2)}, {v(ci_)}, {v(ar)}")
            A(f"v_fma_f32 {v(ai)}, {v(L512i+c2)}, {v(cr_)}, {v(ai)}")
            A(f"v_fma_f32 {v(ar)}, {v(L512r+c2)}, {v(cr_)}, {v(ar)}")
            A(f"v_fma_f32 {v(ai)}, {v(L512r+c2)}, {v(ci_)}, {v(ai)}")
    for c2 in range(2):
        ar, ai = LQ + 16 * c2, LQ + 16 * c2 + 2
        A(f"v_mul_f32 {v(HC+2*c2)}, {v(Fr+c2)}, {v(ar)}")
        A(f"v_mul_f32 {v(HC+2*c2+1)}, {v(Fr+c2)}, {v(ai)}")
        A(f"v_fma_f32 {v(HC+2*c2)}, -{v(Fi+c2)}, {v(ai)}, {v(HC+2*c2)}")
        A(f"v_fma_f32 {v(HC+2*c2+1)}, {v(Fi+c2)}, {v(ar)}, {v(HC+2*c2+1)}")
    xsum_groups(A, [HC + i for i in range(4)], [HC + 4 + i for i in range(4)])
    for c2 in range(2):
        qr, qi, wr, wi = QS + 4 * c2, QS + 4 * c2 + 2, VS + 4 * c2, VS + 4 * c2 + 2
        A(pk_fma(qr, HC + 2 * c2, 0, wr, qr))
        A(pk_fma(qi, HC + 2 * c2, 0, wi, qi))
        A(pk_fma(qr, HC + 2 * c2, 1, wi, qr, neg=True))
        A(pk_fma(qi, HC + 2 * c2, 1, wr, qi))
    PK = FY
    def pko(c2, part, e, j): return PK + 16 * c2 + 8 * part + 4 * e + j
    for q in range(8):
        for c2 in range(2):
            pr = QS + 4 * c2 if q == 0 else ure(c2, q - 1)
            pi = QS + 4 * c2 + 2 if q == 0 else uI(c2, q - 1)
            A(pk_fma(ure(c2, q), Li, c2, pi, ure(c2, q), neg=True))
            A(pk_fma(uI(c2, q), Li, c2, pr, uI(c2, q)))
            A(pk_fma(ure(c2, q), Lr, c2, pr, ure(c2, q)))
            A(pk_fma(uI(c2, q), Lr, c2, pi, uI(c2, q)))
        if q & 1:
            for c2 in range(2):
                for e in range(2):
                    A(f"v_cvt_pk_bf16_f32 {v(pko(c2,0,e,q>>1))}, {v(ure(c2,q-1)+e)}, {v(ure(c2,q)+e)}")
                    A(f"v_cvt_pk_bf16_f32 {v(pko(c2,1,e,q>>1))}, -{v(uI(c2,q-1)+e)}, -{v(uI(c2,q)+e)}")
    for part in range(2):
        for c2 in range(2):
            for e in range(2):
                A(f"ds_write_b128 {v(wa)}, {v(pko(c2,part,e,0),4)} offset:{part*4608 + c2*2304 + e*16}")
    stamp(A, 6, ST and not opt.get('p0st') and not opt.get('p2st') and not opt.get('p1st'))
    OUT = FX
    for part in range(2):
        A(f"s_waitcnt lgkmcnt({4 if part == 0 else 8})")
        for mt in range(4):
            for rd in range(2):
                A(f"ds_read_b64_tr_b16 {v(OUT + 16*part + 4*mt + 2*rd, 2)}, {v(ra)} offset:{part*4608 + rd*576 + mt*32}")
    for k in range(8):
        part, mt = k >> 2, k & 3
        if mt % 2 == 0: A(f"s_add_u32 s39, s53, {part*4096 + (mt>>1)*8192}")
        A(f"s_waitcnt lgkmcnt({14 - 2*k})")
        A(f"buffer_store_dwordx4 {v(OUT + 4*k, 4)}, {v(ga)}, {s(sW,4)}, s39 offen offset:{(mt&1)*1024} {opt.get('hst', 'sc1')}")
        vm.add("hs")
    stamp(A, 7, ST and not opt.get('p0st') and not opt.get('p2st') and not opt.get('p1st'))

    if opt.get("wprio"): A("s_setprio 0")
    HD = 2
    vRC, vRC2 = 20, 22
    vH0, vH1 = 28, 29
    vFo, vFl = 30, 31
    ACC2, CF, HR = 128, 224, 160
    sH, sHB = 49, 50
    A("s_waitcnt vmcnt(8)")
    vG = 4
    def er(k): return ACC + 16 * (k >> 3) + 8 + (k & 7)
    A.label("L_gchk")
    A(f"v_cmp_ne_u32 vcc, s{sTAG}, {v(GT+1)}")
    A("s_nop 1")
    A("s_cmp_eq_u64 vcc, 0")
    A("s_cbranch_scc1 L_gok")
    spin_guard(A, "L_gok")
    gload()
    A("s_waitcnt vmcnt(0)")
    A("s_branch L_gchk")
    A.label("L_gok")
    A(f"v_lshlrev_b32 v6, 2, {v(vGq)}")
    GR = 36
    for i in range(8): A(f"ds_bpermute_b32 {v(GR+i)}, v6, {v(GT)} offset:{16*i}")
    A("s_mov_b32 s10, 0xffff0000")
    B = Asm()
    B(f"v_lshlrev_b32 {v(DS)}, 16, {v(DR)}")
    B(f"v_and_b32 {v(DS+1)}, s10, {v(DR)}")
    B(f"v_lshlrev_b32 {v(DS+2)}, 16, {v(DR+1)}")
    B(f"v_and_b32 {v(DS+3)}, s10, {v(DR+1)}")
    B("s_waitcnt lgkmcnt(0)")
    a0, a2, om = HS, HS + 2, HS + 4
    for i in range(8):
        B(f"v_sub_f32 {v(om)}, 1.0, {v(GR+i)}")
        rnd_bf16(B, om, om)
        for p in range(2):
            x_ = xr(i) + p
            B(f"v_lshlrev_b32 {v(a0)}, 16, {v(x_)}")
            B(f"v_and_b32 {v(a0+1)}, s10, {v(x_)}")
            B(f"v_mul_f32 {v(a2)}, {v(a0)}, {v(DS+2*p)}")
            B(f"v_mul_f32 {v(a2+1)}, {v(a0+1)}, {v(DS+2*p+1)}")
            B(f"v_cvt_pk_bf16_f32 {v(a2)}, {v(a2)}, {v(a2+1)}")
            B(f"v_mul_f32 {v(a0)}, {v(a0)}, {v(om)}")
            B(f"v_mul_f32 {v(a0+1)}, {v(a0+1)}, {v(om)}")
            B(f"v_cvt_pk_bf16_f32 {v(a0)}, {v(a0)}, {v(a0+1)}")
            B(f"v_and_b32 {v(a2+1)}, s10, {v(a2)}")
            B(f"v_lshlrev_b32 {v(a2)}, 16, {v(a2)}")
            B(f"v_and_b32 {v(a0+1)}, s10, {v(a0)}")
            B(f"v_lshlrev_b32 {v(a0)}, 16, {v(a0)}")
            B(f"v_fma_f32 {v(er(4*i+2*p))}, {v(GR+i)}, {v(a2)}, {v(a0)}")
            B(f"v_fma_f32 {v(er(4*i+2*p+1))}, {v(GR+i)}, {v(a2+1)}, {v(a0+1)}")
    el = B.lines
    cq = [(st, q) for st in range(3) for q in range(4)]
    C0 = opt.get("c_at", 0)
    for n, l in enumerate(el):
        if n >= C0 and n % opt.get("c_gap", 6) == 0 and cq:
            emit(cdma(*cq.pop(0)))
        A(l)
    el = []
    for q in range(4): A(f"v_mov_b32 {v(16+q)}, {v(vDC+q)}")
    vDC = 16
    A(f"v_mov_b32 {v(vH0)}, {v(ga)}")
    A(f"v_add_u32 {v(vH1)}, 4096, {v(ga)}")
    A(f"s_lshl_b32 s38, s{sWV}, 13")
    A(f"s_add_u32 s{sHB}, s48, s38")
    vCN, vOne, vPo = 32, 33, 34
    A(f"v_mov_b32 {v(vCN)}, {L_CNT}")
    A(f"v_mov_b32 {v(vOne)}, 1")
    A(f"v_bfe_u32 {v(t2)}, {v(vLane)}, 1, 3")
    A(f"v_xor_b32 {v(t2)}, {v(t2)}, {v(vGq)}")
    A(f"v_lshlrev_b32 {v(t2)}, 4, {v(t2)}")
    A(f"v_lshl_add_u32 {v(t2)}, {v(vL15)}, 7, {v(t2)}")
    for kk in range(2):
        A(f"v_xor_b32 {v(vRC+kk)}, {64*kk}, {v(t2)}")
        A(f"v_add_u32 {v(vRC2+kk)}, 0x10000, {v(vRC+kk)}")
    A(f"v_xor_b32 {v(vFo)}, s{sE8}, {v(vL15)}")
    A(f"v_lshlrev_b32 {v(vFo)}, {FSH}, {v(vFo)}")
    A(f"v_mov_b32 {v(t1)}, s{sTAG}")
    A(f"v_lshlrev_b32 {v(t2)}, 2, {v(vLane)}")
    A(f"s_lshl_b32 s52, s{sRB}, {FSH + 4}")
    A(f"s_add_u32 s52, s52, {WS_HF}")
    A(f"s_lshl_b32 s46, s{sCB}, {FSH}")
    A("s_add_u32 s46, s46, s52")
    vTR = 35
    wa2, ra2, oa, vTp = 44, 45, 46, 47
    A(f"s_mul_i32 s38, s{sWV}, 8704")
    A(f"v_mul_u32_u24 {v(wa2)}, 272, {v(vL15)}")
    A(f"v_lshl_add_u32 {v(wa2)}, {v(vGq)}, 4, {v(wa2)}")
    A(f"v_add_u32 {v(wa2)}, s38, {v(wa2)}")
    A(f"v_mul_u32_u24 {v(ra2)}, 272, {v(vGq)}")
    A(f"v_lshl_add_u32 {v(ra2)}, {v(vL15)}, 4, {v(ra2)}")
    A(f"v_add_u32 {v(ra2)}, s38, {v(ra2)}")
    A(f"v_lshlrev_b32 {v(oa)}, 12, {v(vGq)}")
    A(f"v_lshl_add_u32 {v(oa)}, {v(vL15)}, 4, {v(oa)}")
    A(f"v_lshlrev_b32 {v(vTp)}, 2, {v(vLane)}")
    A(f"v_add_u32 {v(vTp)}, {L_TOP}, {v(vTp)}")
    A(f"s_lshl_b32 s56, s{sT0}, 12")
    A(f"s_lshl_b32 s39, s{sCB}, 8")
    A("s_add_u32 s56, s56, s39")
    A(f"s_sub_u32 s38, s{sWN}, s{sWV}")
    A("s_mul_i32 s38, s38, 9216")
    A(f"s_lshl_b32 s39, s{sWM}, 6")
    A("s_add_u32 s38, s38, s39")
    A(f"v_add_u32 {v(vTR)}, s38, {v(ra)}")
    A(f"s_waitcnt vmcnt({vm.need('hs')})")
    lds_arrive_last(A, vCN, vT + 1, C_HF, "L_nohf")
    flag_store(A, t1, t2, sW, 46)
    assert not cq
    A("s_waitcnt vmcnt(1)")
    A("s_branch L_hfd")
    A.label("L_nohf")
    A("s_waitcnt vmcnt(0)")
    A.label("L_hfd")
    stamp(A, 8, ST and not opt.get('p0st') and not opt.get('p2st') and not opt.get('p1st'))
    while cq: emit(cdma(*cq.pop(0)))
    MW = 0xffff if AM else 0xff
    if opt.get("noown"):
        A(f"s_mov_b64 s[8:9], {MW}")
        A(f"s_bitset0_b32 s8, s{sROT2}")
        MW = "s[8:9]"
    def fpoll(mask):
        A(f"s_mov_b64 exec, {mask}")
        A(f"buffer_load_dword {v(vFl)}, {v(vFo)}, {s(sW,4)}, s52 offen sc1")
        A("s_mov_b64 exec, -1")
    def creads(g):
        st, ks = g >> 2, g & 3
        off = slot2(st) * 16384 + (ks >> 1) * 8192
        base = vRC
        if off >= 65536: off -= 65536; base = vRC2
        F = CF + (g & 1) * 16
        return [f"ds_read_b128 {v(F+4*dt,4)}, {v(base + (ks & 1))} offset:{off + 2048*dt}" for dt in range(4)]
    def mm(g, tt):
        st, ks = g >> 2, g & 3
        F = CF + (g & 1) * 16
        hr = HR + (st % HD) * 32 + 4 * (2 * ks + tt)
        return [f"v_mfma_f32_16x16x32_bf16 {v(ACC2+4*(tt*4+dt),4)}, {v(F+4*dt,4)}, {v(hr,4)}, {'0' if g == 0 else v(ACC2+4*(tt*4+dt),4)}" for dt in range(4)]
    lds_add(A, vCN, vOne, C_HL)
    fpoll(MW)
    lds_wait(A, vCN, vPo, C_HL, 4, "sync0", 0)
    for j in range(8):
        part, wn, tt = j >> 2, (j >> 1) & 1, j & 1
        for rd in range(2):
            A(f"ds_read_b64_tr_b16 {v(HR + 4*j + 2*rd, 2)}, {v(vTR)} offset:{wn*18432 + part*4608 + rd*576 + tt*32}")
        if j == 3: A("s_waitcnt lgkmcnt(4)")
    lds_add(A, vCN, vOne, C_GO)
    A("s_waitcnt lgkmcnt(4)")
    emit(creads(0))
    for g in range(4):
        emit(creads(g + 1))
        A("s_waitcnt lgkmcnt(4)")
        emit(mm(g, 0)); emit(mm(g, 1))
    A.label("L_hpoll")
    A("s_waitcnt vmcnt(0)")
    A(f"v_cmp_ne_u32 vcc, s{sTAG}, {v(vFl)}")
    A("s_nop 1")
    A(f"s_and_b32 s38, vcc_lo, {'s8' if opt.get('noown') else MW}")
    A("s_cbranch_scc0 L_hgo")
    spin_guard(A, "L_hgo")
    A(f"s_sleep {opt.get('h_sleep', 1)}")
    fpoll(MW)
    A("s_branch L_hpoll")
    A.label("L_hgo")
    stamp(A, 9, ST and not opt.get('p1st'))
    def hload(st, j):
        out = []
        if j == 0:
            out += stage_cb(sH, st)
            out.append(f"s_lshl_b32 s{sH}, s{sH}, 15")
            out.append(f"s_add_u32 s{sH}, s{sH}, s{sHB}")
        r = HR + (st % HD) * 32 + 4 * j
        out.append(f"buffer_load_dwordx4 {v(r,4)}, {v(vH0 if j < 4 else vH1)}, {s(sW,4)}, s{sH} offen offset:{1024*(j&3)} {opt.get('hld', 'sc1')}")
        vm.add(("h", st, j))
        return out
    for j in range(8): emit(hload(1, j))
    lds_wait(A, vCN, vPo, C_GO, 4, "sync1", 0)
    stamp(A, 10, ST and not opt.get('p1st'))
    for j in range(8): emit(hload(2, j))
    def fixup():
        Y = 48
        lds_wait(A, vCN, vPo, C_TOP, 1, "topw")
        A(f"ds_read_b32 {v(vT+4)}, {v(vTp)}")
        A(f"s_sub_u32 s38, 2047, s{sT0}")
        A("s_waitcnt lgkmcnt(0)")
        A(f"v_and_b32 {v(vT+4)}, 0x7ff, {v(vT+4)}")
        A(f"v_sub_u32 {v(vT+4)}, s38, {v(vT+4)}")
        A(f"v_cmp_gt_u32 vcc, 32, {v(vT+4)}")
        A("s_nop 1")
        A("s_and_b32 s57, vcc_lo, 0xff")
        if opt.get("x_nofix"): A("s_mov_b32 s57, 0")
        A.label("L_fix")
        A("s_cmp_eq_u32 s57, 0")
        A("s_cbranch_scc1 L_fixd")
        A("s_ff1_i32_b32 s8, s57")
        A("s_bitset0_b32 s57, s8")
        A(f"v_readlane_b32 s9, {v(vT+4)}, s8")
        A(f"v_lshl_add_u32 {v(Y+4)}, s8, 2, {v(vCN)}")
        lds_wait(A, Y + 4, Y + 5, C_DF, 1, "dfw", 2)
        A("s_lshl_b32 s38, s8, 8")
        A(f"s_add_u32 s38, s38, {L_DEL}")
        A(f"v_lshl_add_u32 {v(Y+4)}, {v(vL15)}, 4, s38")
        A(f"ds_read_b128 {v(Y,4)}, {v(Y+4)}")
        A("s_and_b32 s38, s9, 3")
        A("s_lshl_b32 s38, s38, 4")
        A("s_lshl_b64 s[10:11], 0xffff, s38")
        A("s_lshr_b32 s9, s9, 2")
        A("s_waitcnt lgkmcnt(0)")
        A("s_mov_b64 exec, s[10:11]")
        for i in range(8):
            A(f"s_cmp_lg_u32 s9, {i}")
            A(f"s_cbranch_scc1 L_fx{i}")
            A(pk_add(er(4 * i), er(4 * i), Y))
            A(pk_add(er(4 * i + 2), er(4 * i + 2), Y + 2))
            A.label(f"L_fx{i}")
        A("s_mov_b64 exec, -1")
        A("s_branch L_fix")
        A.label("L_fixd")
    LA = 4
    cq = [(st, q) for st in (3, 4) for q in range(4)]
    for g in range(4, 64):
        st, ks = g >> 2, g & 3
        if opt.get("p2st") and g in (8, 16, 24, 32, 48):
            stamp(A, {8: 1, 16: 2, 24: 4, 32: 7, 48: 8}[g], ST)
        gchk = 999 if AM else 4 * (8 - HD)
        if g == gchk - 3:
            fpoll("0xff00"); vm.add("f")
        if g == gchk:
            A(f"s_waitcnt vmcnt({vm.need('f')})")
            A.label("L_h2poll")
            A(f"v_cmp_ne_u32 vcc, s{sTAG}, {v(vFl)}")
            A("s_nop 1")
            A("s_and_b32 s38, vcc_lo, 0xff00")
            A("s_cbranch_scc0 L_h2go")
            spin_guard(A, "L_h2go")
            A("s_sleep 2")
            fpoll("0xff00")
            A("s_waitcnt vmcnt(0)")
            A("s_branch L_h2poll")
            A.label("L_h2go")
            if opt.get("p2st"): stamp(A, 6, ST)
        if g == opt.get("fix_at", 63): fixup()
        hn = vm.need(('h', st, 2*ks+1))
        if st < 15 and ks == 1:
            assert vm.ops.count(("c", st + 1)) == 4
            emit(creads(g + 1))
            A(f"s_waitcnt vmcnt({min(hn, vm.need(('c', st + 1)))}) lgkmcnt(4)")
            lds_add(A, vCN, vOne, C_ST)
        elif st < 15 and ks == 3:
            A("s_waitcnt lgkmcnt(0)")
            A(f"v_readfirstlane_b32 s38, {v(vPo)}")
            A("s_nop 1")
            A(f"s_cmp_ge_u32 s38, {4 * st}")
            A(f"s_cbranch_scc1 L_st{st}_ok")
            lds_wait(A, vCN, vPo, C_ST, 4 * st, f"st{st}", 0)
            if st + LA < 16: cq += [(st + LA, q) for q in range(4)]
            emit(creads(g + 1))
            A(f"s_waitcnt vmcnt({hn})")
        elif g + 1 < 64:
            emit(creads(g + 1))
            A(f"s_waitcnt vmcnt({hn}) lgkmcnt(4)")
        else:
            A(f"s_waitcnt vmcnt({hn}) lgkmcnt(0)")
        for tt in range(2):
            emit(mm(g, tt))
            if st < 15 and ks == 2 and tt == 0: A(f"ds_read_b32 {v(vPo)}, {v(vCN)} offset:{C_ST}")
            if st + HD < 16: emit(hload(st + HD, 2 * ks + tt))
            if cq and (tt == 0 or len(cq) > 4): emit(cdma(*cq.pop(0)))
    assert not el and not cq
    stamp(A, 11, ST and not opt.get('p1st'))
    assert slot2(15) == 5 and slot2(14) == 3
    A("s_nop 3")
    for tt in range(2):
        for dt in range(4):
            A(f"ds_write_b128 {v(wa2)}, {v(ACC2+4*(tt*4+dt),4)} offset:{tt*16*272 + dt*64}")
        for i in range(4 * tt, 4 * tt + 4):
            A(f"ds_read_b128 {v(HR+4*i,4)}, {v(ra2)} offset:{i*4*272}")
    stf = opt.get("ostore", "sc1 nt")
    for i in range(8):
        A(f"s_waitcnt lgkmcnt({(11 - i) if i < 4 else (7 - i)})")
        A(pk_fma(HR + 4 * i, GR + (i & ~1), i & 1, HR + 4 * i, er(4 * i)))
        A(pk_fma(HR + 4 * i + 2, GR + (i & ~1), i & 1, HR + 4 * i + 2, er(4 * i + 2)))
        if i < opt.get("x_nst", 8): A(f"buffer_store_dwordx4 {v(HR+4*i,4)}, {v(oa)}, {s(sO,4)}, s56 offen {stf}")
        A("s_add_u32 s56, s56, 16384")
    stamp(A, 12, ST and not opt.get('p1st'))
    stamp_out(A, ST, sW, sWV, 0)
    A("s_endpgm")
```

```python
from common import *

class Sched:
    def __init__(self, A): self.A = A; self.nb = 0
    def bar(self, upto=None):
        tgt = self.nb + 1 if upto is None else upto
        assert tgt >= self.nb, (tgt, self.nb)
        while self.nb < tgt:
            self.A("s_barrier"); self.nb += 1

def dyn_bars(A, sreg, name):
    A.label(f"L_{name}_l")
    A(f"s_cmp_eq_u32 s{sreg}, 0")
    A(f"s_cbranch_scc1 L_{name}_d")
    A("s_barrier")
    A(f"s_sub_u32 s{sreg}, s{sreg}, 1")
    A(f"s_branch L_{name}_l")
    A.label(f"L_{name}_d")

def gen_side(A, opt):
    ST = opt.get("sstamps")
    sX, sW, sWG, sWU, sWD, sPC = 8, 12, 52, 28, 4, 32
    sWV, sRB, sDB, sCS, sKQ = 18, 16, 17, 22, 23
    S = Sched(A)
    A.label("L_side")
    A(f"s_sub_u32 s{sWV}, s{sWV}, 4")
    A("v_and_b32 v2, 63, v0")
    A("s_lshl_b32 s19, s3, 8")
    A("s_lshl_b32 s39, s38, 3")
    A("s_add_u32 s19, s19, s39")
    vDA, vDB = 100, 104
    sXb, sBb, sROT, sK, sLW = 8, 24, 56, 57, 58
    lincomb(A, sRB, sDB, sROT, [128 * c for c in opt.get("rot", [0, 0, 0, 0])])
    A(f"s_lshl_b32 s{sLW}, s{sWV}, 12")
    A("v_lshrrev_b32 v4, 3, v2")
    A("v_and_b32 v5, 7, v2")
    A("v_lshrrev_b32 v6, 4, v2")
    A("v_xor_b32 v5, v5, v6")
    A("v_lshlrev_b32 v5, 4, v5")
    A("v_lshrrev_b32 v7, 1, v2")
    A("v_and_b32 v7, 16, v7")
    A("v_and_or_b32 v7, v2, 8, v7")
    A("v_and_or_b32 v6, v6, 1, v7")
    A(f"s_lshr_b32 s20, s{sWV}, 1")
    A(f"s_and_b32 s21, s{sWV}, 1")
    A("s_lshl_b32 s38, s20, 6")
    A("s_lshl_b32 s39, s21, 2")
    A("s_add_u32 s38, s38, s39")
    A(f"s_lshl_b32 s39, s{sRB}, 7")
    A("s_add_u32 s38, s38, s39")
    A("v_add_u32 v6, s38, v6")
    A("v_lshl_add_u32 v6, v6, 11, v5")
    A("v_xor_b32 v7, 64, v6")
    for q in range(4):
        add = (32 * (q & 1) + 2 * (q >> 1)) * 2048 - 1024 * q + 3072
        A(f"v_add_u32 {v(vDA+q)}, {add}, {'v7' if q & 1 else 'v6'}")
    A(f"s_lshl_b32 s38, s{sDB}, 6")
    A("s_lshl_b32 s39, s20, 5")
    A("s_add_u32 s38, s38, s39")
    A("v_add_u32 v6, s38, v4")
    A("v_lshl_add_u32 v6, v6, 11, v5")
    A("v_xor_b32 v7, 64, v6")
    for q in range(4):
        A(f"v_add_u32 {v(vDB+q)}, {8*2048*q - 1024*q + 3072}, {'v7' if q & 1 else 'v6'}")
    A("s_waitcnt lgkmcnt(0)")
    srd(A, sXb, 40, 41, 4194304, bias=3072)
    vm = Vm()
    def item(i):
        st, op = i >> 1, i & 1
        A(f"s_add_u32 m0, s{sLW}, {(i % NSLOT) * 16384}")
        if op == 0:
            A(f"s_add_u32 s{sK}, s{sROT}, {st * 128}")
            A(f"s_and_b32 s{sK}, s{sK}, 2047")
        else:
            A("s_nop 0")
        for q in range(4):
            A(f"buffer_load_dwordx4 {v((vDB if op else vDA) + q)}, {s(sBb if op else sXb,4)}, s{sK} offen offset:{1024*q} {opt.get('bflag' if op else 'aflag', '')} lds")
            vm.add(("d", i))
    item(0)
    A("s_cmp_eq_u32 s21, 0")
    A(f"s_cselect_b32 s{sBb}, s68, s70")
    A(f"s_cselect_b32 s{sBb+1}, s69, s71")
    srd(A, sBb, sBb, sBb + 1, 2097152, bias=3072)
    item(1)
    load_tag(A, 42, 43)
    srd(A, sW, 42, 43, WS_USED)
    A("s_mov_b32 s21, 0xffff0000")
    A("v_and_b32 v11, 15, v2")
    if opt.get("tlbw", 1):
        A("s_bfe_u32 s38, s2, 0x30003")
        A("s_min_u32 s39, s38, 6")
        A("s_and_b32 s36, s38, 1")
        A(f"s_cmp_eq_u32 s{sWV}, 0")
        A("s_cselect_b64 s[98:99], s[82:83], s[46:47]")
        A("s_cselect_b64 s[100:101], s[42:43], s[48:49]")
        A("s_cselect_b32 s39, s38, s39")
        A("s_mov_b32 s37, s39")
        A(f"s_cmp_eq_u32 s{sWV}, 2")
        A("s_cselect_b64 s[98:99], s[50:51], s[98:99]")
        A("s_cselect_b64 s[100:101], s[42:43], s[100:101]")
        A("s_cselect_b32 s38, 8, 0")
        A("s_add_u32 s37, s37, s38")
        A(f"s_cmp_eq_u32 s{sWV}, 3")
        A("s_cselect_b64 s[98:99], s[72:73], s[98:99]")
        A("s_cselect_b64 s[100:101], s[74:75], s[100:101]")
        A("s_cselect_b32 s39, s36, s39")
        A("s_cselect_b32 s37, s36, s37")
        A("s_lshl_b32 s39, s39, 20")
        A("s_lshl_b32 s37, s37, 20")
        if opt.get("tlbw") == 2:
            A("s_lshr_b32 s38, s2, 6")
            A("s_lshl_b32 s38, s38, 18")
            A("s_add_u32 s39, s39, s38")
            A("s_add_u32 s37, s37, s38")
        A("s_load_dword s97, s[98:99], s39")
        A("s_load_dword s97, s[100:101], s37")
    NI = opt.get("n_init", 4)
    for i in range(2, NI): item(i)
    A("v_lshlrev_b32 v3, 4, v2")
    A(f"s_mul_hi_u32 s{sKQ}, s2, {(1 << 32) // 56 + 1}")
    A(f"s_mul_i32 s38, s{sKQ}, 56")
    A(f"s_sub_u32 s{sCS}, s2, s38")
    A("v_lshrrev_b32 v5, 3, v2")
    A("v_and_b32 v8, 7, v2")
    A("v_and_b32 v12, 3, v5")
    A("v_lshlrev_b32 v12, 1, v12")
    A("v_xor_b32 v8, v8, v12")
    A("v_mul_u32_u24 v4, 7168, v5")
    A("v_lshl_add_u32 v4, v8, 4, v4")
    A(f"s_lshl_b32 s38, s{sWV}, 6")
    A(f"s_lshl_b32 s39, s{sKQ}, 8")
    A("s_add_u32 s44, s38, s39")
    A("s_mul_i32 s45, s44, 7168")
    A(f"s_lshl_b32 s39, s{sCS}, 7")
    A("s_add_u32 s45, s45, s39")
    A(f"s_lshl_b32 s92, s{sWV}, 14")
    A(f"s_add_u32 s92, s92, {L_W}")
    srd(A, sWG, 46, 47, 7340032)
    srd(A, sWU, 48, 49, 7340032)
    A("s_mov_b32 s46, s92")
    def wdma(i):
        gu, q = i >> 3, i & 7
        A(f"s_add_u32 m0, s46, {1024*i}")
        A(f"s_add_u32 s39, s45, {q*8*7168}")
        A(f"buffer_load_dwordx4 v4, {s(sWU if gu else sWG,4)}, s39 offen {opt.get('wflag','nt')} lds")
    A("s_cmp_ge_u32 s2, 224")
    A(f"s_cselect_b32 s{sWG+2}, 0, s{sWG+2}")
    A(f"s_cselect_b32 s{sWU+2}, 0, s{sWU+2}")
    if opt.get("x_nogu"):
        A(f"s_mov_b32 s{sWG+2}, 0"); A(f"s_mov_b32 s{sWU+2}, 0")
    wi = 0
    SW = opt.get("swarm", 4)
    if SW:
        if opt.get("amap"):
            A("s_lshl_b32 s36, s3, 7")
        else:
            A("s_and_b32 s39, s3, 1")
            A("s_lshl_b32 s36, s39, 9")
            A("s_lshr_b32 s39, s3, 1")
            A("s_lshl_b32 s39, s39, 7")
            A("s_add_u32 s36, s36, s39")
        A("s_lshr_b32 s39, s2, 3")
        A("s_lshl_b32 s39, s39, 2")
        A("s_add_u32 s36, s36, s39")
        A(f"s_add_u32 s36, s36, s{sWV}")
        A("s_lshl_b32 s36, s36, 11")
        A("s_add_u32 s84, s72, s36")
        A("s_addc_u32 s85, s73, 0")
        A("s_add_u32 s86, s74, s36")
        A("s_addc_u32 s87, s75, 0")
    BA = opt.get("ba_st", list(range(12)))
    assert len(BA) == 1 or all(y - x == BA[1] - BA[0] for x, y in zip(BA, BA[1:]))
    A("s_lshr_b32 s37, s2, 3")
    A(f"s_mul_i32 s37, s37, {len(BA)}")
    A("s_lshr_b32 s37, s37, 5")
    A(f"s_mul_i32 s37, s37, {BA[1] - BA[0] if len(BA) > 1 else 0}")
    A(f"s_add_u32 s37, s37, {BA[0]}")
    A("v_lshlrev_b32 v5, 11, v5")
    A("v_lshl_add_u32 v5, v8, 4, v5")
    A(f"s_lshl_b32 s47, s{sCS}, 17")
    A(f"s_lshl_b32 s39, s{sKQ}, 9")
    A("s_add_u32 s47, s47, s39")
    A(f"s_lshl_b32 s39, s{sWV}, 7")
    A("s_add_u32 s47, s47, s39")
    srd(A, sWD, 50, 51, 7340032)
    A("s_cmp_ge_u32 s2, 224")
    A(f"s_cselect_b32 s{sWD+2}, 0, s{sWD+2}")
    DW = 200
    dq = list(range(8))
    def dload(n, thr=None):
        for _ in range(n):
            if dq:
                i = dq.pop(0)
                if thr is not None: A(f"s_waitcnt vmcnt({thr})")
                A(f"buffer_load_dwordx4 {v(DW+4*i,4)}, v5, {s(sWD,4)}, s47 offen {opt.get('wflag','nt')}"); vm.add("dw")
                A(f"s_add_u32 s47, s47, {8*2048}")
    A("v_lshrrev_b32 v10, 4, v2")
    vCN, vOne = 22, 23
    A(f"v_mov_b32 {v(vOne)}, 1")
    nsp = [0]
    SM = opt.get("sw_mats", 2)
    def spf(n):
        for _ in range(n // 4):
            if nsp[0] < 16:
                for m in range(SM):
                    for j in range(2): A(f"s_load_dword s36, s[{84+2*m}:{85+2*m}], {64*j}")
                for m in range(SM):
                    A(f"s_add_u32 s{84+2*m}, s{84+2*m}, 128")
                    A(f"s_addc_u32 s{85+2*m}, s{85+2*m}, 0")
                nsp[0] += 1
    sPB = 98
    XW = opt.get("xwait", 1)
    A(f"s_mov_b32 s{sPB}, 0")
    GAP = opt.get("ba_gap", 0)
    NH = 8 if GAP else 16
    assert max(BA) + GAP <= 12
    A("s_mov_b32 s99, 0")
    if BA[0] == 0:
        assert NI == 4
        A("s_cmp_lg_u32 s37, 0")
        A("s_cbranch_scc1 L_s_nb0")
        for i in range(NH): wdma(i)
        A(f"s_mov_b32 s37, {GAP if GAP else 13}")
        A("s_mov_b32 s99, 1")
        A(f"s_mov_b32 s{sPB}, 1")
        A(f"s_waitcnt vmcnt({vm.need(('d', 1)) + NH}) lgkmcnt(0)")
        A("s_branch L_s_b0")
        A.label("L_s_nb0")
    A(f"s_waitcnt vmcnt({vm.need(('d', 1))}) lgkmcnt(0)")
    A.label("L_s_b0")
    S.bar()
    for i in range(NI, 6): item(i)
    make_tag(A)
    sST, sSL, sKN, sEV = 20, 19, 95, 97
    KG, KY, D, XF = 80, 64, 72, 56
    NB1 = opt.get("ba_first", 16)
    A(f"s_lshl_b32 s94, s{sWV}, 12")
    A(f"s_add_u32 s94, s94, {WS_KEY}")
    def kloads():
        for i in range(4):
            A(f"buffer_load_dwordx4 {v(KG+4*i,4)}, v3, {s(sW,4)}, s94 offen offset:{1024*i} sc1")
    A(f"s_mov_b32 s{sST}, 1")
    A(f"s_mov_b32 s{sSL}, s{sLW}")
    A(f"s_add_u32 s92, s{sLW}, 98304")
    A(f"s_add_u32 s{sKN}, s{sK}, 128")
    A(f"s_and_b32 s{sKN}, s{sKN}, 2047")
    A(f"s_add_u32 s{sEV}, s37, 1")
    A(f"s_min_u32 s{sEV}, s{sEV}, 14")
    A.label("L_s_loop")
    A(f"s_mov_b32 m0, s{sSL}")
    A(f"s_mov_b32 s{sK}, s{sKN}")
    if XW:
        A(f"s_waitcnt vmcnt({8 + NH})")
        A(f"s_sub_u32 s{sPB}, s{sPB}, 1")
        A("s_cbranch_scc0 L_s_lw")
        A(f"s_mov_b32 s{sPB}, 0")
    A("s_waitcnt vmcnt(8)")
    A.label("L_s_lw")
    A("s_barrier")
    B = Asm(); A0 = A; A = B
    spf(4); nsp[0] += 12
    A = A0
    fill = B.lines + [f"s_add_u32 s{sKN}, s{sK}, 128", f"s_and_b32 s{sKN}, s{sKN}, 2047", f"s_add_u32 s{sSL}, s{sSL}, 32768",
                      f"s_cmp_eq_u32 s{sSL}, s92\ns_cselect_b32 s{sSL}, s{sLW}, s{sSL}", f"s_add_u32 s{sST}, s{sST}, 1"]
    grp = []
    for l in fill:
        if l.startswith("s_addc"): grp[-1] += "\n" + l
        else: grp.append(l)
    per = -(-len(grp) // 6)
    for n in range(8):
        op, q = n >> 2, n & 3
        if n == 4:
            A("s_add_u32 m0, m0, 16384"); A("s_nop 0")
        if n == 7: A(f"s_cmp_lg_u32 s{sST}, s{sEV}")
        A(f"buffer_load_dwordx4 {v((vDB if op else vDA)+q)}, {s(sBb if op else sXb,4)}, s{sK} offen offset:{1024*q} lds")
        if n < 6:
            for _ in range(per):
                if grp: A(grp.pop(0))
    assert not grp
    A("s_cbranch_scc1 L_s_loop")
    A(f"s_cmp_eq_u32 s{sST}, 14")
    A("s_cbranch_scc1 L_s_loopend")
    if GAP:
        A(f"s_mov_b32 s{sPB}, 2")
        A("s_cmp_eq_u32 s99, 1")
        A("s_cbranch_scc1 L_s_h2")
        for i in range(8): wdma(i)
        A("s_mov_b32 s99, 1")
        A(f"s_add_u32 s{sEV}, s{sEV}, {GAP}")
        A("s_branch L_s_loop")
        A.label("L_s_h2")
    for i in range(16 - NH, NB1): wdma(i)
    A("v_lshlrev_b32 v9, 5, v2")
    for m in range(SM, 2): A(f"global_load_dword v98, v9, s[{84+2*m}:{85+2*m}]")
    assert NB1 == 16 and SM == 2
    A(f"s_mov_b32 s{sPB}, 2")
    A(f"s_mov_b32 s{sEV}, 14")
    A("s_branch L_s_loop")
    A.label("L_s_loopend")
    assert max(BA) <= 12 or BA == [99]
    S.nb = 14
    vm = Vm()
    for i in (28, 29, 30, 31):
        for q in range(4): vm.add(("d", i))
    kloads()
    for i in range(4): vm.add("k")
    for i in range(NB1, 16): wdma(i); vm.add("w")
    dload(opt.get("d_b13", 0))
    spf(4)
    A(f"s_waitcnt vmcnt({vm.need(('d', 29))})")
    S.bar(15)
    stamp(A, 2, ST)
    dload(opt.get("d_b14", 8))
    A("v_bfe_u32 v12, v2, 2, 2")
    A("v_lshl_add_u32 v13, v10, 3, v12")
    A("v_lshlrev_b32 v13, 7, v13")
    A("v_and_b32 v14, 3, v2")
    A("v_lshl_add_u32 v13, v14, 3, v13")
    A("v_add_u32 v13, s46, v13")
    for nt in range(4):
        A(f"v_xor_b32 v14, {nt}, v12")
        A(f"v_lshl_add_u32 {v(16+nt)}, v14, 5, v13")
    srd(A, sX, 40, 41, 4194304)
    A(f"v_mov_b32 {v(vCN)}, {L_CNT}")
    def topround(rnd):
        for i in range(8):
            A(f"v_sub_u32 {v(D+i)}, s95, {v(KG+2*i)}")
        A(f"v_min3_u32 v9, {v(D)}, {v(D+1)}, {v(D+2)}")
        A(f"v_min3_u32 v15, {v(D+3)}, {v(D+4)}, {v(D+5)}")
        A(f"v_min3_u32 v9, v9, {v(D+6)}, {v(D+7)}")
        A(f"v_min_u32 v9, v9, v15")
        for r in (8, 4, 2, 1):
            A("s_nop 1")
            A(f"v_min_u32_dpp v9, v9, v9 row_ror:{r} row_mask:0xf bank_mask:0xf")
        A("s_nop 0")
        for i in range(4):
            A(f"v_readlane_b32 s{48+i}, v9, {16*i}")
        A("s_nop 0")
        A("s_min_u32 s48, s48, s49")
        A("s_min_u32 s50, s50, s51")
        A("s_min_u32 s48, s48, s50")
        A("s_sub_u32 s95, s95, s48")
        A(f"v_writelane_b32 v8, s95, {rnd}")
        A("s_sub_u32 s95, s95, 1")
    A(f"s_waitcnt vmcnt({vm.need(('d', 31))})")
    S.bar(16)
    dload(8)
    spf(12)
    S.bar(17)
    if opt.get("sprio"): A(f"s_setprio {opt['sprio']}")
    A("v_mov_b32 v8, 0")
    A("s_mov_b32 s95, -1")
    A(f"s_waitcnt vmcnt({vm.need('k')})")
    A.label("L_s_poll")
    for i in range(8):
        A(f"v_xor_b32 {v(KG+2*i+1)}, s{sTAG}, {v(KG+2*i+1)}")
    A(f"v_or3_b32 v9, {v(KG+1)}, {v(KG+3)}, {v(KG+5)}")
    A(f"v_or3_b32 v9, v9, {v(KG+7)}, {v(KG+9)}")
    A(f"v_or3_b32 v9, v9, {v(KG+11)}, {v(KG+13)}")
    A(f"v_or_b32 v9, v9, {v(KG+15)}")
    A("v_cmp_ne_u32 vcc, 0, v9")
    A("s_nop 1")
    A("s_cmp_eq_u64 vcc, 0")
    A("s_cbranch_scc1 L_s_go")
    spin_guard(A, "L_s_go")
    kloads()
    A("s_waitcnt vmcnt(0)")
    A("s_branch L_s_poll")
    A.label("L_s_go")
    for rnd in range(8): topround(rnd)
    A(f"s_lshl_b32 s38, s{sWV}, 5")
    A(f"s_add_u32 s38, s38, {L_CND}")
    A("v_lshl_add_u32 v9, v2, 2, s38")
    A(f"v_mov_b32 v15, {L_CND}")
    A("s_mov_b64 exec, 0xff")
    A("ds_write_b32 v9, v8")
    lds_add(A, vCN, vOne, C_CND)
    lds_wait(A, vCN, 14, C_CND, 4, "s_cw", 0)
    stamp(A, 3, ST and not opt.get('p0st'))
    A("v_and_b32 v9, 31, v2")
    A("v_lshl_add_u32 v9, v9, 2, v15")
    A("ds_read_b32 v14, v9")
    for i in range(8):
        A(f"ds_read_b128 {v(KY+4*i,4)}, v15 offset:{16*i}")
    A("v_mov_b32 v12, 0")
    A("s_waitcnt lgkmcnt(0)")
    for i0 in range(0, 32, 2):
        for i in range(2):
            A(f"v_cmp_gt_u32 s[{48+2*i}:{49+2*i}], {v(KY+i0+i)}, v14")
        A("s_nop 0")
        for i in range(2):
            A(f"v_addc_co_u32 v12, vcc, 0, v12, s[{48+2*i}:{49+2*i}]")
    A("v_lshlrev_b32 v12, 2, v12")
    A("s_mov_b32 exec_hi, 0")
    A("ds_permute_b32 v13, v12, v14")
    A("s_mov_b64 exec, -1")
    A("v_and_b32 v12, 7, v2")
    A("v_lshlrev_b32 v12, 2, v12")
    A("s_waitcnt lgkmcnt(0)")
    A("ds_bpermute_b32 v8, v12, v13")
    A("s_lshl_b32 s38, s44, 1")
    A("s_and_b32 s38, s38, 2047")
    A("s_waitcnt lgkmcnt(0)")
    A("v_not_b32 v9, v8")
    A("v_and_b32 v9, 0x7ff, v9")
    A("v_lshlrev_b32 v9, 11, v9")
    A("v_lshl_add_u32 v9, v10, 4, v9")
    for ks in range(2):
        A(f"buffer_load_dwordx4 {v(XF+4*ks,4)}, v9, {s(sX,4)}, s38 offen offset:{64*ks}")
    A(f"v_lshlrev_b32 v9, 2, v2")
    A(f"v_add_u32 v9, {L_TOP}, v9")
    A("s_mov_b64 exec, 0xff")
    A("ds_write_b32 v9, v8")
    lds_add(A, vCN, vOne, C_TOP)
    A(f"s_or_b32 s38, s2, s{sWV}")
    A("s_cbranch_scc1 L_s_noep")
    A("s_mov_b64 exec, 1")
    A(f"s_mov_b32 s38, {WS_EPOCH}")
    A(f"v_mov_b32 v13, s{sTAG}")
    A("v_mov_b32 v9, 0")
    A(f"buffer_store_dword v13, v9, {s(sW,4)}, s38 offen")
    A("s_mov_b64 exec, -1")
    A.label("L_s_noep")
    spf(12)
    assert nsp[0] == 16
    A("s_cmp_ge_u32 s2, 224")
    A("s_cbranch_scc1 L_s_cons")
    A("s_waitcnt vmcnt(0)")
    stamp(A, 5, ST and not opt.get('p0st'))
    if opt.get("sprio2", 2): A(f"s_setprio {opt.get('sprio2', 2)}")
    WF = 100
    for gu in range(2):
        for nt in range(4):
            for ks in range(2):
                for rd in range(2):
                    A(f"ds_read_b64_tr_b16 {v(WF + ((gu*4+nt)*2+ks)*4 + 2*rd, 2)}, {v(16+nt)} offset:{gu*8192 + ks*4096 + rd*512}")
        A("s_waitcnt lgkmcnt(0)")
    OC = 24
    for ks in range(2):
        for gu in range(2):
            for nt in range(4):
                o = OC + (gu * 4 + nt) * 4
                A(f"v_mfma_f32_16x16x32_bf16 {v(o,4)}, {v(WF+((gu*4+nt)*2+ks)*4,4)}, {v(XF+4*ks,4)}, {'0' if ks == 0 else v(o,4)}")
    A("v_add_u32 v13, s46, v3")
    A("s_nop 7")
    for t in range(8):
        A(f"ds_write_b128 v13, {v(OC+4*t,4)} offset:{1024*t}")
    lds_add(A, vCN, vOne, C_GU)
    A("v_and_b32 v14, 8, v2")
    A("v_lshl_add_u32 v13, v14, 7, v3")
    A(f"s_lshl_b32 s38, s{sWV}, 11")
    A(f"s_add_u32 s38, s38, {L_W}")
    A("v_add_u32 v13, s38, v13")
    A("v_and_b32 v12, 7, v2")
    A("v_mul_u32_u24 v12, 14336, v12")
    A("v_lshl_add_u32 v12, v10, 4, v12")
    A("v_lshl_add_u32 v12, v14, 3, v12")
    A(f"s_mul_i32 s56, s{sKQ}, {2*8*14336}")
    A(f"s_lshl_b32 s39, s{sCS}, 8")
    A("s_add_u32 s56, s56, s39")
    A(f"s_lshr_b32 s39, s{sWV}, 1")
    A(f"s_mul_i32 s39, s39, {8*14336}")
    A("s_add_u32 s56, s56, s39")
    A(f"s_and_b32 s39, s{sWV}, 1")
    A("s_lshl_b32 s39, s39, 7")
    A("s_add_u32 s56, s56, s39")
    A(f"s_add_u32 s56, s56, {WS_GU}")
    lds_wait(A, vCN, 15, C_GU, 4, "s_guw", 0)
    for w in range(4):
        A(f"ds_read_b128 {v(64+4*w,4)}, v13 offset:{w*16384}")
    A(f"s_lshl_b32 s58, s{sCS}, {FSH+2}")
    A(f"s_lshl_b32 s39, s{sKQ}, {FSH}")
    A("s_add_u32 s58, s58, s39")
    A(f"s_add_u32 s58, s58, {WS_GF}")
    A("s_waitcnt lgkmcnt(0)")
    for r in (0, 2):
        A(pk_add(64 + r, 64 + r, 68 + r)); A(pk_add(72 + r, 72 + r, 76 + r)); A(pk_add(64 + r, 64 + r, 72 + r))
    A(f"buffer_store_dwordx4 v[64:67], v12, {s(sW,4)}, s56 offen sc1")
    A(f"v_mov_b32 v13, s{sTAG}")
    A("v_lshlrev_b32 v14, 2, v2")
    A("s_waitcnt vmcnt(0)")
    lds_arrive_last(A, vCN, 15, C_H2, "L_s_nogf")
    flag_store(A, 13, 14, sW, 58)
    A.label("L_s_nogf")
    stamp(A, 6, ST and not opt.get('p0st'))
    if opt.get("nodown"): A("s_branch L_s_end")
    A("v_add_u32 v13, s46, v3")
    for i in range(8):
        A(f"ds_write_b128 v13, {v(DW+4*i,4)} offset:{8192 + 1024*i}")
    A(f"s_lshl_b32 s56, s{sCS}, {FSH+2}")
    A(f"s_add_u32 s56, s56, {WS_GF}")
    A("v_and_b32 v13, 3, v2")
    A(f"v_lshlrev_b32 v13, {FSH}, v13")
    A("v_lshrrev_b32 v6, 5, v2")
    A(f"v_lshl_add_u32 v6, s{sWV}, 1, v6")
    A("v_and_b32 v7, 1, v10")
    A("v_lshl_add_u32 v9, v7, 3, v6")
    A("v_mul_u32_u24 v9, 14336, v9")
    A("v_lshl_add_u32 v9, v11, 4, v9")
    A(f"s_cmp_lg_u32 s{sWV}, 0")
    A("s_cbranch_scc1 L_s_gw")
    A.label("L_s_gpoll")
    A("s_mov_b64 exec, 0xf")
    A(f"buffer_load_dword v14, v13, {s(sW,4)}, s56 offen sc1")
    A("s_waitcnt vmcnt(0)")
    A(f"v_cmp_ne_u32 vcc, s{sTAG}, v14")
    A("s_mov_b64 exec, -1")
    A("s_nop 0")
    A("s_cmp_eq_u64 vcc, 0")
    A("s_cbranch_scc1 L_s_ggo")
    spin_guard(A, "L_s_ggo")
    A("s_sleep 6")
    A("s_branch L_s_gpoll")
    A.label("L_s_ggo")
    lds_add(A, vCN, vOne, C_TR)
    lds_wait(A, vCN, 15, C_TR, 1, "s_gw", 2)
    stamp(A, 7, ST and not opt.get('p0st'))
    A(f"s_lshl_b32 s38, s{sCS}, 8")
    A(f"s_add_u32 s38, s38, {WS_GU}")
    PL = 24
    for kq in range(4):
        A(f"buffer_load_dwordx4 {v(PL + 4*kq, 4)}, v9, {s(sW,4)}, s38 offen sc1")
        A(f"s_add_u32 s38, s38, {16*14336}")
    WF = 64
    for nt in range(4):
        for ks in range(2):
            for rd in range(2):
                A(f"ds_read_b64_tr_b16 {v(WF + (nt*2+ks)*4 + 2*rd, 2)}, {v(16+nt)} offset:{8192 + ks*4096 + rd*512}")
    A("s_waitcnt vmcnt(0)")
    for r in (0, 2):
        A(pk_add(PL + r, PL + r, PL + 4 + r)); A(pk_add(PL + 8 + r, PL + 8 + r, PL + 12 + r)); A(pk_add(PL + r, PL + r, PL + 8 + r))
    for e in range(4):
        rnd_bf16(A, PL + e, PL + e)
        A(f"v_mov_b32 {v(PL+4+e)}, {v(PL+e)}")
    A("s_nop 1")
    for e in range(4):
        A(f"v_permlane16_swap_b32 {v(PL+e)}, {v(PL+4+e)}")
    A("s_nop 1")
    for e in range(4):
        sigmoid(A, 40 + e, PL + e)
        A(f"v_mul_f32 {v(40+e)}, {v(40+e)}, {v(PL+e)}")
        rnd_bf16(A, 40 + e, 40 + e)
        A(f"v_mul_f32 {v(40+e)}, {v(40+e)}, {v(PL+4+e)}")
    A("v_cvt_pk_bf16_f32 v40, v40, v41")
    A("v_cvt_pk_bf16_f32 v41, v42, v43")
    A("v_mul_u32_u24 v9, 144, v6")
    A("v_lshl_add_u32 v9, v11, 3, v9")
    A(f"v_add_u32 v9, {L_ACT}, v9")
    A("ds_write_b64 v9, v[40:41]")
    lds_add(A, vCN, vOne, C_ACT)
    A("v_and_b32 v9, 7, v2")
    A("v_mul_u32_u24 v9, 144, v9")
    A("v_lshl_add_u32 v9, v10, 4, v9")
    A(f"v_add_u32 v9, {L_ACT}, v9")
    lds_wait(A, vCN, 15, C_ACT, 4, "s_aw")
    A("ds_read_b128 v[40:43], v9")
    A("ds_read_b128 v[44:47], v9 offset:64")
    A(f"s_mov_b32 s38, {56*4096}")
    A("v_and_b32 v15, 7, v2")
    A("v_mul_lo_u32 v15, v15, s38")
    A("v_lshl_add_u32 v15, v10, 4, v15")
    A("v_and_b32 v14, 8, v2")
    A("v_lshl_add_u32 v15, v14, 3, v15")
    A(f"s_lshl_b32 s38, s{sCS}, 12")
    A(f"s_lshl_b32 s39, s{sKQ}, 10")
    A("s_add_u32 s38, s38, s39")
    A(f"s_lshl_b32 s39, s{sWV}, 8")
    A("s_add_u32 s38, s38, s39")
    A(f"s_add_u32 s38, s38, {WS_YP}")
    A("v_cmp_eq_u32 vcc, 8, v14")
    A("s_waitcnt lgkmcnt(0)")
    for ks in range(2):
        for nt in range(4):
            A(f"v_mfma_f32_16x16x32_bf16 {v(48+4*nt,4)}, {v(WF+(nt*2+ks)*4,4)}, {v(40+4*ks,4)}, {'0' if ks == 0 else v(48+4*nt,4)}")
    A("s_nop 7")
    for nt in (0, 2):
        for r in range(4):
            A(f"v_cndmask_b32 {v(48+4*nt+r)}, {v(48+4*nt+r)}, {v(52+4*nt+r)}, vcc")
        A(f"buffer_store_dwordx4 {v(48+4*nt,4)}, v15, {s(sW,4)}, s38 offen offset:{64*nt} sc1")
    A(f"s_lshl_b32 s58, s{sKQ}, {FSH+6}")
    A(f"s_lshl_b32 s39, s{sCS}, {FSH}")
    A("s_add_u32 s58, s58, s39")
    A(f"s_add_u32 s58, s58, {WS_YF}")
    A(f"v_mov_b32 v13, s{sTAG}")
    A("v_lshlrev_b32 v14, 2, v2")
    A("s_waitcnt vmcnt(0)")
    lds_arrive_last(A, vCN, 15, C_Y, "L_s_cons")
    flag_store(A, 13, 14, sW, 58)
    A.label("L_s_cons")
    stamp(A, 8, ST and not opt.get('p0st'))
    A(f"s_add_u32 s38, s{sWV}, 4")
    A(f"v_readlane_b32 s24, v8, s{sWV}")
    A(f"v_readlane_b32 s25, v8, s38")
    A(f"s_lshl_b32 s45, s{sRB}, 7")
    for t in range(2):
        A(f"s_and_b32 s{26+t}, s{24+t}, 0x7ff")
        A(f"s_sub_u32 s{26+t}, 2047, s{26+t}")
        A(f"s_sub_u32 s{56+t}, s{26+t}, s45")
    A("s_waitcnt lgkmcnt(0)")
    A("s_min_u32 s38, s56, s57")
    A("s_cmp_ge_u32 s38, 128")
    A("s_cbranch_scc1 L_s_end")
    if opt.get("nodown") or opt.get("nocons"): A("s_branch L_s_end")
    lds_wait(A, vCN, 15, C_ST, 4 * opt.get("s_cons", 7), "s_pw", 8)
    A(f"s_lshr_b32 s58, s{sDB}, 2")
    A(f"s_lshl_b32 s58, s58, {FSH+6}")
    A(f"s_add_u32 s58, s58, {WS_YF}")
    A("v_min_u32 v4, 55, v2")
    A(f"v_lshlrev_b32 v4, {FSH}, v4")
    A("v_lshlrev_b32 v6, 12, v10")
    A("v_lshl_add_u32 v6, v11, 4, v6")
    A("v_lshlrev_b32 v9, 3, v11")
    A("v_mov_b32 v7, 0")
    A.label("L_s_ypoll")
    A(f"buffer_load_dword v5, v4, {s(sW,4)}, s58 offen sc1")
    A("s_waitcnt vmcnt(0)")
    A(f"v_cmp_ne_u32 vcc, s{sTAG}, v5")
    A("s_nop 1")
    A("s_cmp_eq_u64 vcc, 0")
    A("s_cbranch_scc1 L_s_ygo")
    spin_guard(A, "L_s_ygo")
    A(f"s_sleep {opt.get('y_sleep', 6)}")
    A("s_branch L_s_ypoll")
    A.label("L_s_ygo")
    stamp(A, 9, ST and not opt.get('p0st'))
    for t in range(2):
        Y = 24 + 64 * t
        A(f"s_cmp_ge_u32 s{56+t}, 128")
        A(f"s_cbranch_scc1 L_s_sk{t}")
        A(f"s_add_u32 s39, s{sWV}, {4*t}")
        A(f"s_mul_i32 s39, s39, {56*4096}")
        A(f"s_lshl_b32 s3, s{sDB}, 8")
        A("s_add_u32 s39, s39, s3")
        A(f"s_add_u32 s39, s39, {WS_YP}")
        for it in range(14):
            A(f"buffer_load_dwordx4 {v(Y+4*it,4)}, v6, {s(sW,4)}, s39 offen sc1")
            A("s_add_u32 s39, s39, 16384")
        A(f"s_lshl_b32 s39, s{26+t}, 11")
        A(f"s_lshl_b32 s3, s{sDB}, 7")
        A("s_add_u32 s39, s39, s3")
        A(f"buffer_load_dwordx2 {v(Y+56,2)}, v9, {s(sX,4)}, s39 offen")
        A(f"s_lshl_b32 s39, s{26+t}, 3")
        A(f"s_add_u32 s39, s39, {WS_G}")
        A(f"buffer_load_dword {v(Y+58)}, v7, {s(sW,4)}, s39 offen sc1")
        A.label(f"L_s_sk{t}")
    A("s_waitcnt vmcnt(0)")
    for t in range(2):
        Y = 24 + 64 * t
        A(f"s_cmp_ge_u32 s{56+t}, 128")
        A(f"s_cbranch_scc1 L_s_sc{t}")
        A(f"s_ashr_i32 s39, s{24+t}, 31")
        A("s_not_b32 s39, s39")
        A("s_or_b32 s39, s39, 0x80000000")
        A(f"s_xor_b32 s39, s{24+t}, s39")
        A("s_and_b32 s39, s39, 0xffff0000")
        A(f"v_mov_b32 {v(Y+62)}, s39")
        sigmoid(A, Y + 59, Y + 62)
        rnd_bf16(A, Y + 59, Y + 59)
        for it in range(1, 14):
            A(pk_add(Y, Y, Y + 4 * it))
            A(pk_add(Y + 2, Y + 2, Y + 4 * it + 2))
        xsum_groups(A, [Y + e for e in range(4)], [Y + 4 + e for e in range(4)])
        A(f"v_sub_f32 {v(Y+58)}, 1.0, {v(Y+58)}")
        rnd_bf16(A, Y + 58, Y + 58)
        A(f"v_lshlrev_b32 {v(Y+8)}, 16, {v(Y+56)}")
        A(f"v_and_b32 {v(Y+9)}, s21, {v(Y+56)}")
        A(f"v_lshlrev_b32 {v(Y+10)}, 16, {v(Y+57)}")
        A(f"v_and_b32 {v(Y+11)}, s21, {v(Y+57)}")
        for e in range(4):
            rnd_bf16(A, Y + e, Y + e)
            A(f"v_mul_f32 {v(Y+e)}, {v(Y+e)}, {v(Y+59)}")
            rnd_bf16(A, Y + e, Y + e)
            A(f"v_add_f32 {v(Y+e)}, {v(Y+e)}, {v(Y+8+e)}")
            rnd_bf16(A, Y + e, Y + e)
            A(f"v_mul_f32 {v(Y+e)}, {v(Y+e)}, {v(Y+58)}")
            rnd_bf16(A, Y + e, Y + e)
            A(f"v_mul_f32 {v(Y+8+e)}, {v(Y+8+e)}, {v(Y+58)}")
            rnd_bf16(A, Y + 8 + e, Y + 8 + e)
            A(f"v_sub_f32 {v(Y+e)}, {v(Y+e)}, {v(Y+8+e)}")
        A(f"s_lshl_b32 s39, s{sWV}, 8")
        A(f"s_add_u32 s39, s39, {L_DEL + 1024*t}")
        A(f"v_lshl_add_u32 {v(Y+60)}, v11, 4, s39")
        A(f"ds_write_b128 {v(Y+60)}, {v(Y,4)}")
        A(f"v_lshl_add_u32 {v(Y+61)}, s{sWV}, 2, {v(vCN)}")
        lds_add(A, Y + 61, vOne, C_DF + 16 * t)
        A.label(f"L_s_sc{t}")
    A.label("L_s_end")
    stamp_out(A, ST, sW, sWV, 1)
    A("s_endpgm")
```

```python
from common import *

def gen_gemm(A, opt, part):
    ST = opt.get("stamps")
    AM = opt.get("amap")
    sX, sB, sW, sAG, sC, sO = 4, 8, 12, 24, 28, 32
    sRB, sCB, sWV, sWM, sWN, sK, sROT, sLW = 16, 17, 18, 19, 20, 21, 22, 23
    vDA, vDB = 8, 12
    vRA, vRB, vRA2, vRB2 = 16, 18, 20, 22
    vLane, vGq, vL15, vAgO = 24, 25, 26, 27
    Lr, Li, Cr, Ci, L8r, L8i, L16r, L16i, L512r, L512i, Fr, Fi, Wr, Wi = [28 + 2 * i for i in range(14)]
    vT = 56
    ACC = 64
    FX, FY = 128, 160
    UI = FX
    EP = 192
    ea, eb, la, wa, ra, ga = [EP + i for i in range(6)]
    XT, vDC, VS = EP + 6, EP + 10, EP + 14
    PT = 224
    def acc(m, part, c2): return ACC + 4 * (m * 4 + part * 2 + c2)

    RX, RW, RD = PT, PT + 16, 12
    if part == "early":
        A(f"v_and_b32 {v(vL15)}, 15, v0")
        A(f"v_bfe_u32 v4, v0, 7, 1")
        A(f"v_lshl_add_u32 v4, v4, 5, {v(vL15)}")
        A(f"s_lshl_b32 s39, s{sCB}, 6")
        A(f"v_add_lshl_u32 {v(PT+31)}, s39, v4, 1")
        A("s_waitcnt lgkmcnt(0)")
        for c2 in range(2):
            A(f"global_load_ushort {v(PT+c2)}, {v(PT+31)}, s[64:65] offset:{32*c2}")
            A(f"global_load_ushort {v(PT+2+c2)}, {v(PT+31)}, s[66:67] offset:{32*c2}")
            A(f"global_load_ushort {v(PT+4+c2)}, {v(PT+31)}, s[76:77] offset:{32*c2}")
        A("s_branch L_gemm")
        return
    A.label("L_gemm")
    load_tag(A, 42, 43)
    A(f"s_lshr_b32 s{sWN}, s{sWV}, 1")
    A("s_lshl_b32 s50, s3, 8")
    A("s_lshl_b32 s39, s38, 3")
    A("s_add_u32 s50, s50, s39")
    A("s_lshl_b32 s50, s50, 11")
    A(f"s_lshl_b32 s51, s{sWV}, 9")
    A("s_add_u32 s50, s50, s51")
    A(f"s_lshl_b32 s39, s{sWV}, 13")
    A(f"s_add_u32 m0, s39, {L_RT}")
    A("v_and_b32 v4, 31, v0")
    A("v_lshlrev_b32 v4, 4, v4")
    A("v_bfe_u32 v5, v0, 5, 1")
    A("v_lshl_add_u32 v5, v5, 11, v4")
    A("v_add_u32 v4, s51, v4")
    A("v_mov_b32 v6, s44")
    A("v_mov_b32 v7, s45")
    A("s_mov_b32 exec_lo, 0")
    A("v_mov_b32 v6, s80")
    A("v_mov_b32 v7, s81")
    A("s_mov_b32 exec_lo, -1")
    A("v_add_co_u32 v6, vcc, v6, v4")
    srd(A, sX, 40, 41, 4194304)
    A("v_addc_co_u32 v7, vcc, 0, v7, vcc")
    for i in range(4):
        A(f"buffer_load_dwordx4 v5, {s(sX,4)}, s50 offen {opt.get('aflag', '')} lds")
        A("s_add_u32 m0, m0, 1024")
        A("s_add_u32 s50, s50, 4096")
    A("global_load_lds_dwordx4 v[6:7], off")
    if opt.get("bwarm", 1):
        if AM:
            A("s_lshl_b32 s50, s3, 7")
        else:
            A("s_and_b32 s39, s3, 1")
            A("s_lshl_b32 s50, s39, 9")
            A("s_lshr_b32 s39, s3, 1")
            A("s_lshl_b32 s39, s39, 7")
            A("s_add_u32 s50, s50, s39")
        A("s_lshl_b32 s39, s38, 2")
        A("s_add_u32 s50, s50, s39")
        A(f"s_add_u32 s50, s50, s{sWV}")
        A("s_lshl_b32 s50, s50, 11")
        A("v_and_b32 v4, 63, v0")
        A("v_lshl_add_u32 v3, v4, 5, s50")
        A("global_load_dword v10, v3, s[68:69]")
        A("global_load_dword v11, v3, s[70:71]")
        A("s_mov_b64 s[8:9], s[72:73]")
        A("s_mov_b64 s[10:11], s[74:75]")
    A("s_mov_b64 s[52:53], s[72:73]")
    A("s_mov_b64 s[54:55], s[74:75]")
    A("s_mov_b64 s[58:59], s[78:79]")
    A("s_mov_b64 s[36:37], s[82:83]")
    A(f"v_and_b32 {v(vLane)}, 63, v0")
    A(f"s_and_b32 s{sWM}, s{sWV}, 1")
    A(f"s_lshl_b32 s{sLW}, s{sWV}, 12")
    A(f"v_lshrrev_b32 {v(vGq)}, 4, {v(vLane)}")
    rr, cc, t1, t2 = vT, vT + 1, vT + 2, vT + 3
    A(f"v_lshrrev_b32 {v(rr)}, 3, {v(vLane)}")
    A(f"v_and_b32 {v(cc)}, 7, {v(vLane)}")
    A(f"v_lshrrev_b32 {v(t1)}, 1, {v(rr)}")
    A(f"v_xor_b32 {v(cc)}, {v(cc)}, {v(t1)}")
    A(f"v_lshlrev_b32 {v(cc)}, 4, {v(cc)}")
    def emit(ls):
        for l in ls: A(l)
    srd(A, sW, 42, 43, WS_USED)
    A(f"s_lshl_b32 s38, s{sCB}, 14")
    A(f"s_add_u32 s38, s38, {WS_AGG}")
    A(f"s_add_u32 s{sAG}, s42, s38")
    A(f"s_addc_u32 s{sAG+1}, s43, 0")
    A(f"s_mov_b32 s{sAG+2}, 16384")
    A(f"s_mov_b32 s{sAG+3}, 0x20000")
    A(f"s_cmp_lt_u32 s{sWV}, 2")
    A(f"s_cselect_b32 s{sC}, s52, s54")
    A(f"s_cselect_b32 s{sC+1}, s53, s55")
    srd(A, sC, sC, sC + 1, 2097152, bias=3072)
    srd(A, sO, 36, 37, 8388608)
    A(f"v_bfe_u32 {v(t2)}, {v(vLane)}, 1, 3")
    A(f"v_xor_b32 {v(t2)}, {v(t2)}, {v(vGq)}")
    A(f"v_lshlrev_b32 {v(t2)}, 4, {v(t2)}")
    A(f"v_lshl_add_u32 {v(t2)}, {v(vL15)}, 7, {v(t2)}")
    A(f"s_lshl_b32 s38, s{sWM}, 13")
    A(f"s_lshl_b32 s39, s{sWN}, 13")
    for kk in range(2):
        A(f"v_xor_b32 {v(t1)}, {64*kk}, {v(t2)}")
        A(f"v_add_u32 {v(vRA+kk)}, s38, {v(t1)}")
        A(f"v_add_u32 {v(vRB+kk)}, s39, {v(t1)}")
        A(f"v_add_u32 {v(vRA2+kk)}, 0x10000, {v(vRA+kk)}")
        A(f"v_add_u32 {v(vRB2+kk)}, 0x10000, {v(vRB+kk)}")
    A(f"v_and_b32 {v(t1)}, 31, {v(vLane)}")
    A(f"v_lshlrev_b32 {v(vAgO)}, 4, {v(t1)}")
    A(f"s_sub_u32 s38, 15, s{sRB}")
    A("s_lshl_b32 s38, s38, 10")
    A(f"s_lshl_b32 s39, s{sWN}, 9")
    A("s_add_u32 s92, s38, s39")
    A(f"v_add_u32 {v(vAgO)}, s92, {v(vAgO)}")
    A(f"s_cmp_eq_u32 s{sWM}, 1")
    A("s_cselect_b64 s[98:99], -1, 0")

    def rd_frags(st, kk, F):
        out = []
        for op, (r1, r2) in enumerate(((vRA, vRA2), (vRB, vRB2))):
            off = ((2 * st + op) % NSLOT) * 16384
            base = r1
            if off >= 65536: off -= 65536; base = r2
            for t in range(4):
                out.append(f"ds_read_b128 {v(F + 16*op + 4*t, 4)}, {v(base+kk)} offset:{off + 2048*t}")
        return [out[0], out[4], out[5], out[6], out[7], out[1], out[2], out[3]]
    def mfmas(F, first):
        out = []
        for m in range(4):
            for n in range(4):
                d = ACC + 4 * (m * 4 + n)
                out.append(f"v_mfma_f32_16x16x32_bf16 {v(d,4)}, {v(F+4*m,4)}, {v(F+16+4*n,4)}, {'0' if first else v(d,4)}")
        return out

    B = Asm()
    lre, lim, ldt = PT, PT + 2, PT + 4
    t = PT + 6
    for r in range(6): B(f"v_lshlrev_b32 {v(PT+r)}, 16, {v(PT+r)}")
    for c in range(2):
        B(f"v_mul_f32 {v(t+c)}, {LOG2E}, {v(ldt+c)}")
    for c in range(2): B(f"v_exp_f32 {v(t+c)}, {v(t+c)}")
    B("s_nop 0")
    for c in range(2): rnd_bf16(B, t + c, t + c)
    B(pk_mul(t + 2, t, None, lre))
    B(pk_mul(t + 4, t, None, lim))
    for c in range(2):
        B(f"v_mul_f32 {v(t+2+c)}, {LOG2E}, {v(t+2+c)}")
        B(f"v_mul_f32 {v(t+4+c)}, {INV2PI}, {v(t+4+c)}")
    for c in range(2):
        B(f"v_exp_f32 {v(t+2+c)}, {v(t+2+c)}")
        B(f"v_rndne_f32 {v(t+6+c)}, {v(t+4+c)}")
    for c in range(2): B(f"v_sub_f32 {v(t+4+c)}, {v(t+4+c)}, {v(t+6+c)}")
    for c in range(2):
        B(f"v_cos_f32 {v(t+6+c)}, {v(t+4+c)}")
        B(f"v_sin_f32 {v(t+8+c)}, {v(t+4+c)}")
    B(pk_mul(t + 10, lre, None, lre))
    B(pk_fma(t + 10, lim, None, lim, t + 10))
    B(pk_mul(Lr, t + 2, None, t + 6))
    B(pk_mul(Li, t + 2, None, t + 8))
    for c in range(2): B(f"v_rcp_f32 {v(t+10+c)}, {v(t+10+c)}")
    for c in range(2): B(f"v_add_f32 {v(t+c)}, -1.0, {v(Lr+c)}")
    B(pk_add(t + 10, t + 10, t + 10))
    B(pk_mul(t + 2, t, None, lre))
    B(pk_fma(t + 2, Li, None, lim, t + 2))
    B(pk_mul(t + 4, Li, None, lre))
    B(pk_fma(t + 4, t, None, lim, t + 4, neg=True))
    B(pk_mul(Cr, t + 2, None, t + 10))
    B(pk_mul(Ci, t + 4, None, t + 10))
    a0, a1, b0, b1, c0, c1, d0, d1 = [PT + 2 * i for i in range(8)]
    pk_csq(B, a0, a1, Lr, Li)
    pk_csq(B, b0, b1, a0, a1)
    pk_csq(B, L8r, L8i, b0, b1)
    pk_csq(B, L16r, L16i, L8r, L8i)
    pk_csq(B, a0, a1, L16r, L16i)
    pk_csq(B, b0, b1, a0, a1)
    B(f"v_and_b32 {v(PT+16)}, 1, {v(vGq)}")
    B(f"v_cmp_eq_u32 s[84:85], 1, {v(PT+16)}")
    B(f"v_cmp_lt_u32 s[86:87], 1, {v(vGq)}")
    B("s_nop 0")
    def sel(dr, di, sr, si, mask):
        for c in range(2):
            B(f"v_cndmask_b32 {v(dr+c)}, 1.0, {v(sr+c)}, {mask}")
            B(f"v_cndmask_b32 {v(di+c)}, 0, {v(si+c)}, {mask}")
    e0, e1 = PT + 18, PT + 20
    sel(c0, c1, L16r, L16i, "s[84:85]")
    sel(d0, d1, a0, a1, "s[86:87]")
    pk_cmul(B, e0, e1, c0, c1, None, d0, d1)
    sel(c0, c1, b0, b1, "s[98:99]")
    pk_cmul(B, Wr, Wi, e0, e1, None, c0, c1)
    pk_csq(B, a0, a1, b0, b1)
    pk_csq(B, b0, b1, a0, a1)
    pk_csq(B, L512r, L512i, b0, b1)
    sel(c0, c1, a0, a1, "s[84:85]")
    sel(d0, d1, b0, b1, "s[86:87]")
    pk_cmul(B, Fr, Fi, c0, c1, None, d0, d1)
    for c2 in range(2):
        B(f"v_mov_b32 {v(a0)}, {v(Wr+c2)}")
        B(f"v_mov_b32 {v(a1)}, {v(Wi+c2)}")
        B(f"v_mul_f32 {v(a0+1)}, {v(L8r+c2)}, {v(Wr+c2)}")
        B(f"v_mul_f32 {v(a1+1)}, {v(L8r+c2)}, {v(Wi+c2)}")
        B(f"v_fma_f32 {v(a0+1)}, -{v(L8i+c2)}, {v(Wi+c2)}, {v(a0+1)}")
        B(f"v_fma_f32 {v(a1+1)}, {v(L8i+c2)}, {v(Wr+c2)}, {v(a1+1)}")
        pk_cmul(B, VS + 4 * c2, VS + 4 * c2 + 2, Cr, Ci, c2, a0, a1)
    par = B.lines
    B = Asm()
    B(f"s_lshl_b32 s38, s{sWN}, 8")
    B(f"s_add_u32 s38, s38, {L_EX}")
    B(f"v_lshl_add_u32 {v(eb)}, {v(vL15)}, 4, s38")
    B(f"s_lshl_b32 s39, s{sWM}, 11")
    B(f"v_lshl_add_u32 {v(ea)}, {v(vGq)}, 9, {v(eb)}")
    B(f"v_add_u32 {v(ea)}, s39, {v(ea)}")
    B(f"v_lshlrev_b32 {v(la)}, 10, {v(vGq)}")
    B(f"v_lshl_add_u32 {v(la)}, {v(vL15)}, 4, {v(la)}")
    B("s_add_u32 s38, s92, 1024")
    B(f"v_add_u32 {v(la)}, s38, {v(la)}")
    B(f"v_sub_u32 {v(t1)}, s{sRB}, {v(vGq)}")
    B(f"v_mov_b32 {v(t2)}, s{sTAG}")
    for i in range(4):
        B(f"v_cmp_lt_i32 vcc, {4*i}, {v(t1)}")
        B("s_nop 1")
        B(f"v_cndmask_b32 {v(XT+i)}, 0, {v(t2)}, vcc")
    B(f"s_mul_i32 s38, s{sWV}, 9216")
    B(f"s_add_u32 s38, s38, {L_TR}")
    B(f"v_mul_u32_u24 {v(wa)}, 144, {v(vL15)}")
    B(f"v_lshl_add_u32 {v(wa)}, {v(vGq)}, 5, {v(wa)}")
    B(f"v_add_u32 {v(wa)}, s38, {v(wa)}")
    B(f"v_bfe_u32 {v(ra)}, {v(vLane)}, 2, 2")
    B(f"v_lshl_add_u32 {v(ra)}, {v(vGq)}, 3, {v(ra)}")
    B(f"v_mul_u32_u24 {v(ra)}, 144, {v(ra)}")
    B(f"v_and_b32 {v(t1)}, 3, {v(vLane)}")
    B(f"v_lshl_add_u32 {v(ra)}, {v(t1)}, 3, {v(ra)}")
    B(f"v_add_u32 {v(ra)}, s38, {v(ra)}")
    B(f"v_lshlrev_b32 {v(ga)}, 4, {v(vLane)}")
    B(f"s_lshl_b32 s38, s{sCB}, 6")
    B(f"s_lshl_b32 s39, s{sWM}, 5")
    B("s_add_u32 s38, s38, s39")
    B(f"v_add_u32 {v(t1)}, s38, {v(rr)}")
    B(f"v_lshl_add_u32 {v(t1)}, {v(t1)}, 11, {v(cc)}")
    B(f"v_xor_b32 {v(t2)}, 64, {v(t1)}")
    for q in range(4):
        B(f"v_add_u32 {v(vDC+q)}, {8*2048*q - 1024*q + 3072}, {v(t2 if q & 1 else t1)}")
    sROT2 = 55
    B(f"s_and_b32 s{sROT2}, s{sCB}, 7")
    sE8 = 54
    B(f"s_and_b32 s{sE8}, s{sCB}, {0 if AM else 8}")
    LEAD = opt.get("lead", 0)
    if LEAD:
        def perm(lo, hi, ph):
            q = list(range(16))
            for p_ in range(lo, hi + 1):
                d = min(LEAD, hi - p_)
                if p_ % 4 == ph and d > 0: q[p_:p_ + d + 1] = [p_ + d] + list(range(p_, p_ + d))
            return q
        def pack(q): return sum(x << (4 * i) for i, x in enumerate(q))
        B(f"s_add_u32 s38, s{sRB}, s{sCB}")
        B("s_and_b32 s38, s38, 3")
        for ph in range(4):
            a = perm(opt.get("lead_lo", 1), 7, ph)[:8]; a[0] = 1
            b = perm(8, 15, ph)[8:]
            if ph == 0:
                B(f"s_mov_b32 s94, {pack(a):#x}"); B(f"s_mov_b32 s95, {pack(b):#x}")
            else:
                B(f"s_cmp_eq_u32 s38, {ph}\ns_cselect_b32 s94, {pack(a):#x}, s94\ns_cselect_b32 s95, {pack(b):#x}, s95")
        B(f"s_mul_i32 s38, s{sROT2}, 0x11111111")
        B("s_or_b32 s38, s38, 0x88888888")
        B("s_sub_u32 s38, s38, s94")
        B("s_lshr_b32 s38, s38, 3")
        B("s_and_b32 s38, s38, 0x11111111")
        B("s_sub_u32 s94, s94, s38")
        B(f"s_mul_i32 s38, s{sE8}, 0x11111111")
        B("s_or_b32 s94, s94, s38")
        B("s_xor_b32 s95, s95, s38")
    B(f"s_lshl_b32 s48, s{sRB}, 19")
    B(f"s_lshl_b32 s39, s{sCB}, 15")
    B("s_add_u32 s53, s48, s39")
    B(f"s_lshl_b32 s39, s{sWN}, 11")
    B("s_add_u32 s53, s53, s39")
    B(f"s_lshl_b32 s39, s{sWM}, 14")
    B("s_add_u32 s53, s53, s39")
    sT0, sGB, sXB = 51, 57, 56
    vXo, vGo, vDo = EP + 28, EP + 29, EP + 30
    B(f"s_lshl_b32 s{sT0}, s{sRB}, 7")
    B(f"s_lshl_b32 s38, s{sWV}, 5")
    B(f"s_add_u32 s{sT0}, s{sT0}, s38")
    B(f"s_lshl_b32 s{sGB}, s{sT0}, 3")
    B(f"s_add_u32 s{sGB}, s{sGB}, {WS_G}")
    B(f"s_lshl_b32 s{sXB}, s{sT0}, 11")
    B(f"s_lshl_b32 s39, s{sCB}, 7")
    B(f"s_add_u32 s{sXB}, s{sXB}, s39")
    B(f"v_lshlrev_b32 {v(vXo)}, 11, {v(vGq)}")
    B(f"v_lshl_add_u32 {v(vXo)}, {v(vL15)}, 3, {v(vXo)}")
    B(f"v_and_b32 {v(vGo)}, 31, {v(vLane)}")
    B(f"v_lshlrev_b32 {v(vGo)}, 3, {v(vGo)}")
    B(f"v_lshl_add_u32 {v(vDo)}, {v(vL15)}, 3, s39")
    if opt.get("pretouch", 1):
        B(f"s_not_b32 s39, s{sTAG}")
        for r in range(4): B(f"v_mov_b32 {v(60+r)}, s39")
        B(f"v_lshlrev_b32 {v(t2)}, 2, {v(vLane)}")
        B(f"s_mul_hi_u32 s8, s2, {(1 << 32) // 56 + 1}")
        B("s_mul_i32 s9, s8, 56")
        B("s_sub_u32 s9, s2, s9")
        B(f"s_lshl_b32 s10, s9, {FSH+2}")
        B(f"s_lshl_b32 s11, s8, {FSH}")
        B("s_add_u32 s10, s10, s11")
        B(f"s_add_u32 s10, s10, {WS_GF}")
        B(f"s_lshl_b32 s11, s8, {FSH+6}")
        B(f"s_lshl_b32 s9, s9, {FSH}")
        B("s_add_u32 s11, s11, s9")
        B(f"s_add_u32 s11, s11, {WS_YF}")
        B(f"s_lshl_b32 s9, s{sRB}, {FSH + 4}")
        B(f"s_lshl_b32 s38, s{sCB}, {FSH}")
        B("s_add_u32 s9, s9, s38")
        B(f"s_add_u32 s9, s9, {WS_HF}")
        B("s_cmp_ge_u32 s2, 224")
        B("s_cselect_b32 s10, s9, s10")
        B("s_cselect_b32 s11, s9, s11")
        B(f"s_cmp_eq_u32 s{sWV}, 1")
        B("s_cselect_b32 s9, s10, s9")
        B(f"s_cmp_eq_u32 s{sWV}, 3")
        B("s_cselect_b32 s9, s11, s9")
        B("s_mov_b32 exec_hi, 0")
        B(f"buffer_store_dword v60, {v(t2)}, {s(sW,4)}, s9 offen sc1")
        B(f"buffer_store_dwordx4 v[60:63], {v(vAgO)}, {s(sAG,4)}, 0 offen sc1")
        B("s_mov_b32 exec_hi, -1")
    def hpre(E):
        for k in range(8):
            part, mt = k >> 2, k & 3
            if mt % 2 == 0: E(f"s_add_u32 s39, s53, {part*4096 + (mt>>1)*8192}")
            E(f"buffer_store_dwordx4 v[60:63], {v(ga)}, {s(sW,4)}, s39 offen offset:{(mt&1)*1024} sc1")
    if opt.get("hpre") == 0: hpre(B)
    adr = B.lines

    A("s_waitcnt lgkmcnt(0)")
    make_tag(A)
    emit(adr)
    A(f"s_lshl_b32 s39, s{sWV}, 13")
    A(f"s_add_u32 s39, s39, {L_RT}")
    A(f"v_and_b32 v4, 7, {v(vLane)}")
    A("v_lshlrev_b32 v4, 9, v4")
    A(f"v_bfe_u32 v5, {v(vLane)}, 3, 1")
    A("v_lshl_add_u32 v4, v5, 6, v4")
    A(f"v_lshl_add_u32 v4, {v(vGq)}, 4, v4")
    A("v_add_u32 v4, s39, v4")
    A(f"v_and_b32 v7, 1, {v(vLane)}")
    A("v_lshlrev_b32 v5, 9, v7")
    A(f"v_bfe_u32 v6, {v(vLane)}, 1, 1")
    A("v_lshl_add_u32 v5, v6, 6, v5")
    A(f"v_lshl_add_u32 v5, {v(vGq)}, 4, v5")
    A("v_add_u32 v5, s39, v5")
    A(f"v_lshrrev_b32 v6, 1, {v(vGq)}")
    A("v_lshlrev_b32 v6, 6, v6")
    A("v_lshl_add_u32 v6, v7, 5, v6")
    A(f"v_and_b32 v7, 1, {v(vGq)}")
    A("v_lshl_add_u32 v6, v7, 4, v6")
    A(f"s_lshl_b32 s39, s{sWV}, 7")
    A(f"s_add_u32 s39, s39, {L_SCR}")
    A("v_add_u32 v6, s39, v6")
    NPRE = opt.get("par_pre", 999)
    NPT = (2 if opt.get("pretouch", 1) else 0) + (8 if opt.get("hpre") == 0 else 0)
    A(f"s_waitcnt vmcnt({NPT + (7 if opt.get('bwarm', 1) else 5)})")
    emit(par); par = []
    RGS = opt.get("rg_st", -1)
    rg1 = []
    for ks in range(4):
        rg1.append(f"ds_read_b128 {v(RX+4*ks,4)}, v4 offset:{128*ks}")
        rg1.append(f"ds_read_b128 {v(RW+4*ks,4)}, v5 offset:{4096 + 128*ks}")
    rg2 = [f"v_mfma_f32_16x16x32_bf16 {v(RD,4)}, {v(RX+4*ks,4)}, {v(RW+4*ks,4)}, {'0' if ks == 0 else v(RD,4)}" for ks in range(4)]
    rg3 = ["s_mov_b32 exec_lo, 0x00030003", "s_mov_b32 exec_hi, 0x000c000c", f"ds_write_b128 v6, {v(RD,4)}", "s_mov_b64 exec, -1"]
    if RGS < 0:
        A(f"s_waitcnt vmcnt({NPT + (2 if opt.get('bwarm', 1) else 0)})")
        emit(rg1); A("s_waitcnt lgkmcnt(0)"); emit(rg2)
        A(f"s_lshl_b32 s39, s{sWV}, 2")
        A(f"s_add_u32 s39, s39, {L_SCR - 16}")
        A("v_mov_b32 v4, s39")
        A(f"v_mov_b32 v5, s{sTAG}")
        A(f"v_mov_b32 v7, {L_SCR - 16}")
        A("s_nop 3")
        emit(rg3)
        A("ds_write_b32 v4, v5")
        X = FX
        A(f"v_lshl_add_u32 v6, {v(vL15)}, 2, v7")
        A(f"v_and_b32 {v(X+10)}, 7, {v(vLane)}")
        A("s_lshl_b32 s38, s3, 8")
        A("s_lshr_b32 s39, s2, 3")
        A("s_lshl_b32 s39, s39, 3")
        A("s_add_u32 s8, s38, s39")
        A("s_sub_u32 s38, 2047, s8")
        A(f"v_sub_u32 {v(X+11)}, s38, {v(X+10)}")
        A(f"v_lshlrev_b32 {v(X+10)}, 3, {v(X+10)}")
        A(f"v_bfe_u32 {v(X+12)}, {v(vLane)}, 3, 1")
        A(f"v_lshl_add_u32 {v(X+10)}, {v(X+12)}, 14, {v(X+10)}")
        A("s_lshl_b32 s8, s8, 3")
        A(f"s_add_u32 s8, s8, {WS_KEY}")
        A("s_mov_b32 s9, 0xffff0000")
        A(f"s_cmp_lg_u32 s{sWV}, 0")
        A("s_cbranch_scc1 L_nokey")
        A.label("L_rgw")
        A(f"ds_read_b128 {v(X+16,4)}, v7")
        for p in range(8):
            A(f"ds_read_b32 {v(X+p)}, v6 offset:{16 + 64*p}")
        A("s_waitcnt lgkmcnt(0)")
        for r in range(4): A(f"v_xor_b32 {v(X+16+r)}, s{sTAG}, {v(X+16+r)}")
        A(f"v_or3_b32 {v(X+16)}, {v(X+16)}, {v(X+17)}, {v(X+18)}")
        A(f"v_or_b32 {v(X+16)}, {v(X+16)}, {v(X+19)}")
        A(f"v_cmp_ne_u32 vcc, 0, {v(X+16)}")
        A("s_nop 1")
        A("s_cmp_eq_u64 vcc, 0")
        A("s_cbranch_scc1 L_rgo")
        spin_guard(A, "L_rgo")
        A("s_branch L_rgw")
        A.label("L_rgo")
        for r in range(4): A(f"v_not_b32 {v(X+16+r)}, s{sTAG}")
        A(f"ds_write_b128 v7, {v(X+16,4)}")
        A(pk_add(X, X, X + 2)); A(pk_add(X + 4, X + 4, X + 6)); A(pk_add(X, X, X + 4))
        A(f"v_add_f32 {v(X)}, {v(X)}, {v(X+1)}")
        rnd_bf16(A, X, X)
        sigmoid(A, X + 2, X)
        rnd_bf16(A, X + 2, X + 2)
        A(f"v_cmp_eq_u32 vcc, 1, {v(X+12)}")
        A(f"v_ashrrev_i32 {v(X+1)}, 31, {v(X)}")
        A(f"v_or_b32 {v(X+1)}, 0x80000000, {v(X+1)}")
        A(f"v_xor_b32 {v(X)}, {v(X)}, {v(X+1)}")
        A(f"v_and_or_b32 {v(X)}, {v(X)}, s9, {v(X+11)}")
        A(f"v_cndmask_b32 v4, {v(X)}, {v(X+2)}, vcc")
        A.label("L_nokey")
    if opt.get("prio", 0): A(f"s_setprio {opt.get('prio', 0)}")
    stamp(A, 1, ST and not opt.get('p2st') and not opt.get('p1st'))
    def xr(i): return PT + 2 * i
    GT, DR, GR, DS = PT + 16, PT + 18, PT + 20, PT + 28
    def gload(): A(f"buffer_load_dwordx2 {v(GT,2)}, {v(vGo)}, {s(sW,4)}, s{sGB} offen sc1")
    RSL = opt.get("rd_slots", [0, 1, 3, 4, 6, 7, 9, 10])
    for st in range(16):
        A("s_waitcnt lgkmcnt(0)" + (" vmcnt(0)" if st == RGS else ""))
        A("s_barrier")
        if st == 0:
            A(f"s_cmp_lg_u32 s{sWV}, 0")
            A("s_cbranch_scc1 L_nokey2")
            A("s_mov_b64 exec, 0xffff")
            A(f"buffer_store_dwordx2 v[4:5], {v(FX+10)}, {s(sW,4)}, s8 offen sc1")
            A("s_mov_b64 exec, -1")
            A.label("L_nokey2")
        if st > 0 and opt.get("hpre") == st: hpre(A)
        if st == 0: stamp(A, 2, ST and not opt.get('p2st') and not opt.get('p1st'))
        if opt.get("p1st") and st in (0, 1, 2, 3, 4, 6, 8, 10, 12, 14):
            stamp(A, {0: 1, 1: 2, 2: 4, 3: 5, 4: 6, 6: 7, 8: 8, 10: 9, 12: 10, 14: 11}[st], ST)
        for half in range(2):
            rds = rd_frags(st, half, FX if half == 0 else FY)
            if half == 0:
                mf = mfmas(FY, False) if st > 0 else []
            else:
                A("s_waitcnt lgkmcnt(0)")
                if st == RGS: emit(rg2)
                mf = mfmas(FX, st == 0)
            if st == RGS and half == 0: par = list(rg1)
            if not mf: emit(rds); rds = []
            for k, m in enumerate(mf):
                A(m)
                if k in RSL: A(rds.pop(0))
                else:
                    for _ in range(opt.get("par_n", 1)):
                        if par: A(par.pop(0))
            assert not rds
            if st == RGS and half == 1: emit(rg3)
        if st == opt.get("cwarm", 99):
            A("global_load_dword v10, v3, s[8:9]")
            A("global_load_dword v11, v3, s[10:11]")
    assert not par, len(par)
    A("s_waitcnt lgkmcnt(0) vmcnt(0)")
    emit(mfmas(FY, False))
    stamp(A, 3, ST)

    def ure(c2, q): return acc(q >> 1, 0, c2) + 2 * (q & 1)
    def uim(c2, q): return acc(q >> 1, 1, c2) + 2 * (q & 1)
    def uI(c2, q): return UI + 16 * c2 + 2 * q
    HS = 8
    TT = 16
    EE = 56
    PUB = 60
    PIN = EP + 24
    t9 = EP + 22
    for i in range(4): A(f"s_mov_b32 s{44+i}, {4096*i}")
    A(f"v_mov_b32 {v(PUB+1)}, s{sTAG}")
    A(f"v_mov_b32 {v(PUB+3)}, s{sTAG}")
    A(f"v_and_b32 {v(PIN)}, 31, {v(vLane)}")
    A(f"v_lshlrev_b32 {v(PIN)}, 2, {v(PIN)}")
    A(f"v_add_u32 {v(PIN)}, {L_CNT}, {v(PIN)}")
    A(f"v_mov_b32 {v(PIN+2)}, 0")
    A(f"ds_write_b32 {v(PIN)}, {v(PIN+2)}")
    for q in range(1, 8):
        for c2 in range(2):
            hr, hi, tr_, ti = HS + 4 * c2, HS + 4 * c2 + 2, TT + 4 * c2, TT + 4 * c2 + 2
            pr = ure(c2, 0) if q == 1 else hr
            pi = uim(c2, 0) if q == 1 else hi
            A(pk_fma(tr_, Li, c2, pi, ure(c2, q), neg=True))
            A(pk_fma(ti, Li, c2, pr, uim(c2, q)))
            A(pk_fma(hr, Lr, c2, pr, tr_))
            A(pk_fma(hi, Lr, c2, pi, ti))
    for c2 in range(2):
        hr, hi = HS + 4 * c2, HS + 4 * c2 + 2
        A(f"v_fma_f32 {v(EE+c2)}, -{v(L8i+c2)}, {v(hi)}, {v(hr+1)}")
        A(f"v_fma_f32 {v(EE+2+c2)}, {v(L8i+c2)}, {v(hr)}, {v(hi+1)}")
    for c2 in range(2):
        hr, hi = HS + 4 * c2, HS + 4 * c2 + 2
        A(f"v_fma_f32 {v(EE+c2)}, {v(L8r+c2)}, {v(hr)}, {v(EE+c2)}")
        A(f"v_fma_f32 {v(EE+2+c2)}, {v(L8r+c2)}, {v(hi)}, {v(EE+2+c2)}")
    A(f"ds_write_b128 {v(ea)}, {v(EE,4)}")
    A("s_waitcnt lgkmcnt(0)")
    A("s_barrier")
    PE = FY
    for sp in range(8):
        A(f"ds_read_b128 {v(PE+4*sp,4)}, {v(eb)} offset:{sp*512}")
    for sp in range(1, 8):
        A(f"s_waitcnt lgkmcnt({7-sp})")
        pr, pi, er, ei = PE + 4 * (sp - 1), PE + 4 * (sp - 1) + 2, PE + 4 * sp, PE + 4 * sp + 2
        A(pk_fma(er, L16i, None, pi, er, neg=True))
        A(pk_fma(ei, L16i, None, pr, ei))
        A(pk_fma(er, L16r, None, pr, er))
        A(pk_fma(ei, L16r, None, pi, ei))
    A(f"v_cndmask_b32 {v(PUB)}, {v(PE+28)}, {v(PE+29)}, s[84:85]")
    A(f"v_cndmask_b32 {v(PUB+2)}, {v(PE+30)}, {v(PE+31)}, s[84:85]")
    A(f"s_cmp_lg_u32 s{sWM}, 0")
    A("s_cbranch_scc1 L_nopub")
    A("s_mov_b32 exec_hi, 0")
    A(f"buffer_store_dwordx4 {v(PUB,4)}, {v(vAgO)}, {s(sAG,4)}, 0 offen sc1")
    A("s_mov_b32 exec_hi, -1")
    A.label("L_nopub")
    stamp(A, 4, ST and not opt.get('p0st') and not opt.get('p2st') and not opt.get('p1st'))
    LQ = FY
    def lb_loads():
        for c2 in range(2):
            for i in range(4):
                A(f"buffer_load_dwordx4 {v(LQ+16*c2+4*i,4)}, {v(la)}, {s(sAG,4)}, s{44+i} offen offset:{256*c2} sc1")
    B = Asm()
    for r in range(4):
        for g in range(4):
            lo = "0" if g == 0 else v(PE + 4 * (g - 1) + r)
            B(f"v_cndmask_b32 {v(TT+g)}, {lo}, {v(PE+4*(3+g)+r)}, s[98:99]")
        B(f"v_cndmask_b32 {v(TT)}, {v(TT)}, {v(TT+1)}, s[84:85]")
        B(f"v_cndmask_b32 {v(TT+2)}, {v(TT+2)}, {v(TT+3)}, s[84:85]")
        B(f"v_cndmask_b32 {v(PIN+r)}, {v(TT)}, {v(TT+2)}, s[86:87]")
    QS = 56
    for c2 in range(2):
        hr, hi = HS + 4 * c2, HS + 4 * c2 + 2
        qr, qi = TT, TT + 2
        B(f"v_mov_b32 {v(qr)}, {v(PIN+c2)}")
        B(f"v_mov_b32 {v(qi)}, {v(PIN+2+c2)}")
        B(f"v_fma_f32 {v(qr+1)}, -{v(L8i+c2)}, {v(PIN+2+c2)}, {v(hr)}")
        B(f"v_fma_f32 {v(qi+1)}, {v(L8i+c2)}, {v(PIN+c2)}, {v(hi)}")
        B(f"v_fma_f32 {v(qr+1)}, {v(L8r+c2)}, {v(PIN+c2)}, {v(qr+1)}")
        B(f"v_fma_f32 {v(qi+1)}, {v(L8r+c2)}, {v(PIN+2+c2)}, {v(qi+1)}")
        pk_cmul(B, QS + 4 * c2, QS + 4 * c2 + 2, Cr, Ci, c2, qr, qi)
    for q in range(8):
        for c2 in range(2):
            B(pk_mul(uI(c2, q), Cr, c2, uim(c2, q)))
            B(pk_fma(uI(c2, q), Ci, c2, ure(c2, q), uI(c2, q)))
            B(pk_mul(ure(c2, q), Cr, c2, ure(c2, q)))
            B(pk_fma(ure(c2, q), Ci, c2, uim(c2, q), ure(c2, q), neg=True))
    nlb = max(48, min(opt.get("lb_at", 100), len(B.lines)))
    emit(B.lines[:nlb])
    if opt.get("lb_delay"): A(f"s_sleep {opt['lb_delay']}")
    lb_loads()
    emit(B.lines[nlb:])
    gload()
    A(f"global_load_dwordx2 {v(DR,2)}, {v(vDo)}, s[58:59]")
    for i in range(8):
        A(f"buffer_load_dwordx2 {v(xr(i),2)}, {v(vXo)}, {s(sX,4)}, s{sXB} offen")
        A(f"s_add_u32 s{sXB}, s{sXB}, 8192")
    vm = Vm()
    def slot2(st): return [5, 0, 1, 2, 3][st % 5]
    def stage_cb(dst, st):
        if st == 0: return [f"s_mov_b32 s{dst}, s{sCB}"]
        if LEAD: return [f"s_bfe_u32 s{dst}, s{94 + (st >> 3)}, {(4 << 16) | (4 * (st & 7)):#x}"]
        if st < 8:
            return [f"s_cmp_le_u32 s{sROT2}, {st - 1}", f"s_cselect_b32 s{dst}, {st}, {st - 1}", f"s_or_b32 s{dst}, s{dst}, s{sE8}"]
        return [f"s_xor_b32 s{dst}, s{sE8}, {st}"]
    def cdma(st, q):
        out = []
        if q == 0:
            out.append(f"s_add_u32 m0, s{sLW}, {slot2(st) * 16384}")
            out += stage_cb(sK, st)
            out.append(f"s_lshl_b32 s{sK}, s{sK}, 7")
        out.append(f"buffer_load_dwordx4 {v(vDC+q)}, {s(sC,4)}, s{sK} offen offset:{1024*q} {opt.get('cflag', '')} lds")
        vm.add(("c", st))
        return out
    A("s_waitcnt vmcnt(10)")
    A.label("L_poll")
    for c2 in range(2):
        for i in range(4):
            A(f"v_xor_b32 {v(LQ+16*c2+4*i+1)}, {v(LQ+16*c2+4*i+1)}, {v(XT+i)}")
            A(f"v_xor_b32 {v(LQ+16*c2+4*i+3)}, {v(LQ+16*c2+4*i+3)}, {v(XT+i)}")
    A(f"v_or3_b32 {v(t9)}, {v(LQ+1)}, {v(LQ+3)}, {v(LQ+5)}")
    for i in range(7, 31, 4):
        A(f"v_or3_b32 {v(t9)}, {v(t9)}, {v(LQ+i)}, {v(LQ+i+2)}")
    A(f"v_or_b32 {v(t9)}, {v(t9)}, {v(LQ+31)}")
    A(f"v_cmp_ne_u32 vcc, 0, {v(t9)}")
    A("s_nop 1")
    A("s_cmp_eq_u64 vcc, 0")
    A("s_cbranch_scc1 L_got")
    spin_guard(A, "L_got")
    A(f"s_sleep {opt.get('lb_sleep', 1)}")
    lb_loads()
    A("s_waitcnt vmcnt(0)")
    A("s_branch L_poll")
    A.label("L_got")
    if opt.get("wprio"): A(f"s_setprio {opt['wprio']}")
    stamp(A, 5, ST and not opt.get('p1st') and not opt.get('p0st'))
    HC = TT
    for i in range(2, -1, -1):
        for c2 in range(2):
            cr_, ci_ = LQ + 16 * c2 + 4 * (i + 1), LQ + 16 * c2 + 4 * (i + 1) + 2
            ar, ai = LQ + 16 * c2 + 4 * i, LQ + 16 * c2 + 4 * i + 2
            A(f"v_fma_f32 {v(ar)}, -{v(L512i+c2)}, {v(ci_)}, {v(ar)}")
            A(f"v_fma_f32 {v(ai)}, {v(L512i+c2)}, {v(cr_)}, {v(ai)}")
            A(f"v_fma_f32 {v(ar)}, {v(L512r+c2)}, {v(cr_)}, {v(ar)}")
            A(f"v_fma_f32 {v(ai)}, {v(L512r+c2)}, {v(ci_)}, {v(ai)}")
    for c2 in range(2):
        ar, ai = LQ + 16 * c2, LQ + 16 * c2 + 2
        A(f"v_mul_f32 {v(HC+2*c2)}, {v(Fr+c2)}, {v(ar)}")
        A(f"v_mul_f32 {v(HC+2*c2+1)}, {v(Fr+c2)}, {v(ai)}")
        A(f"v_fma_f32 {v(HC+2*c2)}, -{v(Fi+c2)}, {v(ai)}, {v(HC+2*c2)}")
        A(f"v_fma_f32 {v(HC+2*c2+1)}, {v(Fi+c2)}, {v(ar)}, {v(HC+2*c2+1)}")
    xsum_groups(A, [HC + i for i in range(4)], [HC + 4 + i for i in range(4)])
    for c2 in range(2):
        qr, qi, wr, wi = QS + 4 * c2, QS + 4 * c2 + 2, VS + 4 * c2, VS + 4 * c2 + 2
        A(pk_fma(qr, HC + 2 * c2, 0, wr, qr))
        A(pk_fma(qi, HC + 2 * c2, 0, wi, qi))
        A(pk_fma(qr, HC + 2 * c2, 1, wi, qr, neg=True))
        A(pk_fma(qi, HC + 2 * c2, 1, wr, qi))
    PK = FY
    def pko(c2, part, e, j): return PK + 16 * c2 + 8 * part + 4 * e + j
    for q in range(8):
        for c2 in range(2):
            pr = QS + 4 * c2 if q == 0 else ure(c2, q - 1)
            pi = QS + 4 * c2 + 2 if q == 0 else uI(c2, q - 1)
            A(pk_fma(ure(c2, q), Li, c2, pi, ure(c2, q), neg=True))
            A(pk_fma(uI(c2, q), Li, c2, pr, uI(c2, q)))
            A(pk_fma(ure(c2, q), Lr, c2, pr, ure(c2, q)))
            A(pk_fma(uI(c2, q), Lr, c2, pi, uI(c2, q)))
        if q & 1:
            for c2 in range(2):
                for e in range(2):
                    A(f"v_cvt_pk_bf16_f32 {v(pko(c2,0,e,q>>1))}, {v(ure(c2,q-1)+e)}, {v(ure(c2,q)+e)}")
                    A(f"v_cvt_pk_bf16_f32 {v(pko(c2,1,e,q>>1))}, -{v(uI(c2,q-1)+e)}, -{v(uI(c2,q)+e)}")
    for part in range(2):
        for c2 in range(2):
            for e in range(2):
                A(f"ds_write_b128 {v(wa)}, {v(pko(c2,part,e,0),4)} offset:{part*4608 + c2*2304 + e*16}")
    stamp(A, 6, ST and not opt.get('p0st') and not opt.get('p2st') and not opt.get('p1st'))
    OUT = FX
    for part in range(2):
        A(f"s_waitcnt lgkmcnt({4 if part == 0 else 8})")
        for mt in range(4):
            for rd in range(2):
                A(f"ds_read_b64_tr_b16 {v(OUT + 16*part + 4*mt + 2*rd, 2)}, {v(ra)} offset:{part*4608 + rd*576 + mt*32}")
    for k in range(8):
        part, mt = k >> 2, k & 3
        if mt % 2 == 0: A(f"s_add_u32 s39, s53, {part*4096 + (mt>>1)*8192}")
        A(f"s_waitcnt lgkmcnt({14 - 2*k})")
        A(f"buffer_store_dwordx4 {v(OUT + 4*k, 4)}, {v(ga)}, {s(sW,4)}, s39 offen offset:{(mt&1)*1024} {opt.get('hst', 'sc1')}")
        vm.add("hs")
    stamp(A, 7, ST and not opt.get('p0st') and not opt.get('p2st') and not opt.get('p1st'))

    if opt.get("wprio"): A("s_setprio 0")
    HD = 2
    vRC, vRC2 = 20, 22
    vH0, vH1 = 28, 29
    vFo, vFl = 30, 31
    ACC2, CF, HR = 128, 224, 160
    sH, sHB = 49, 50
    A("s_waitcnt vmcnt(8)")
    vG = 4
    def er(k): return ACC + 16 * (k >> 3) + 8 + (k & 7)
    A.label("L_gchk")
    A(f"v_cmp_ne_u32 vcc, s{sTAG}, {v(GT+1)}")
    A("s_nop 1")
    A("s_cmp_eq_u64 vcc, 0")
    A("s_cbranch_scc1 L_gok")
    spin_guard(A, "L_gok")
    gload()
    A("s_waitcnt vmcnt(0)")
    A("s_branch L_gchk")
    A.label("L_gok")
    A(f"v_lshlrev_b32 v6, 2, {v(vGq)}")
    GR = 36
    for i in range(8): A(f"ds_bpermute_b32 {v(GR+i)}, v6, {v(GT)} offset:{16*i}")
    A("s_mov_b32 s10, 0xffff0000")
    B = Asm()
    B(f"v_lshlrev_b32 {v(DS)}, 16, {v(DR)}")
    B(f"v_and_b32 {v(DS+1)}, s10, {v(DR)}")
    B(f"v_lshlrev_b32 {v(DS+2)}, 16, {v(DR+1)}")
    B(f"v_and_b32 {v(DS+3)}, s10, {v(DR+1)}")
    B("s_waitcnt lgkmcnt(0)")
    a0, a2, om = HS, HS + 2, HS + 4
    for i in range(8):
        B(f"v_sub_f32 {v(om)}, 1.0, {v(GR+i)}")
        rnd_bf16(B, om, om)
        for p in range(2):
            x_ = xr(i) + p
            B(f"v_lshlrev_b32 {v(a0)}, 16, {v(x_)}")
            B(f"v_and_b32 {v(a0+1)}, s10, {v(x_)}")
            B(f"v_mul_f32 {v(a2)}, {v(a0)}, {v(DS+2*p)}")
            B(f"v_mul_f32 {v(a2+1)}, {v(a0+1)}, {v(DS+2*p+1)}")
            B(f"v_cvt_pk_bf16_f32 {v(a2)}, {v(a2)}, {v(a2+1)}")
            B(f"v_mul_f32 {v(a0)}, {v(a0)}, {v(om)}")
            B(f"v_mul_f32 {v(a0+1)}, {v(a0+1)}, {v(om)}")
            B(f"v_cvt_pk_bf16_f32 {v(a0)}, {v(a0)}, {v(a0+1)}")
            B(f"v_and_b32 {v(a2+1)}, s10, {v(a2)}")
            B(f"v_lshlrev_b32 {v(a2)}, 16, {v(a2)}")
            B(f"v_and_b32 {v(a0+1)}, s10, {v(a0)}")
            B(f"v_lshlrev_b32 {v(a0)}, 16, {v(a0)}")
            B(f"v_fma_f32 {v(er(4*i+2*p))}, {v(GR+i)}, {v(a2)}, {v(a0)}")
            B(f"v_fma_f32 {v(er(4*i+2*p+1))}, {v(GR+i)}, {v(a2+1)}, {v(a0+1)}")
    el = B.lines
    cq = [(st, q) for st in range(3) for q in range(4)]
    C0 = opt.get("c_at", 0)
    for n, l in enumerate(el):
        if n >= C0 and n % opt.get("c_gap", 6) == 0 and cq:
            emit(cdma(*cq.pop(0)))
        A(l)
    el = []
    for q in range(4): A(f"v_mov_b32 {v(16+q)}, {v(vDC+q)}")
    vDC = 16
    A(f"v_mov_b32 {v(vH0)}, {v(ga)}")
    A(f"v_add_u32 {v(vH1)}, 4096, {v(ga)}")
    A(f"s_lshl_b32 s38, s{sWV}, 13")
    A(f"s_add_u32 s{sHB}, s48, s38")
    vCN, vOne, vPo = 32, 33, 34
    A(f"v_mov_b32 {v(vCN)}, {L_CNT}")
    A(f"v_mov_b32 {v(vOne)}, 1")
    A(f"v_bfe_u32 {v(t2)}, {v(vLane)}, 1, 3")
    A(f"v_xor_b32 {v(t2)}, {v(t2)}, {v(vGq)}")
    A(f"v_lshlrev_b32 {v(t2)}, 4, {v(t2)}")
    A(f"v_lshl_add_u32 {v(t2)}, {v(vL15)}, 7, {v(t2)}")
    for kk in range(2):
        A(f"v_xor_b32 {v(vRC+kk)}, {64*kk}, {v(t2)}")
        A(f"v_add_u32 {v(vRC2+kk)}, 0x10000, {v(vRC+kk)}")
    A(f"v_xor_b32 {v(vFo)}, s{sE8}, {v(vL15)}")
    A(f"v_lshlrev_b32 {v(vFo)}, {FSH}, {v(vFo)}")
    A(f"v_mov_b32 {v(t1)}, s{sTAG}")
    A(f"v_lshlrev_b32 {v(t2)}, 2, {v(vLane)}")
    A(f"s_lshl_b32 s52, s{sRB}, {FSH + 4}")
    A(f"s_add_u32 s52, s52, {WS_HF}")
    A(f"s_lshl_b32 s46, s{sCB}, {FSH}")
    A("s_add_u32 s46, s46, s52")
    vTR = 35
    wa2, ra2, oa, vTp = 44, 45, 46, 47
    A(f"s_mul_i32 s38, s{sWV}, 8704")
    A(f"v_mul_u32_u24 {v(wa2)}, 272, {v(vL15)}")
    A(f"v_lshl_add_u32 {v(wa2)}, {v(vGq)}, 4, {v(wa2)}")
    A(f"v_add_u32 {v(wa2)}, s38, {v(wa2)}")
    A(f"v_mul_u32_u24 {v(ra2)}, 272, {v(vGq)}")
    A(f"v_lshl_add_u32 {v(ra2)}, {v(vL15)}, 4, {v(ra2)}")
    A(f"v_add_u32 {v(ra2)}, s38, {v(ra2)}")
    A(f"v_lshlrev_b32 {v(oa)}, 12, {v(vGq)}")
    A(f"v_lshl_add_u32 {v(oa)}, {v(vL15)}, 4, {v(oa)}")
    A(f"v_lshlrev_b32 {v(vTp)}, 2, {v(vLane)}")
    A(f"v_add_u32 {v(vTp)}, {L_TOP}, {v(vTp)}")
    A(f"s_lshl_b32 s56, s{sT0}, 12")
    A(f"s_lshl_b32 s39, s{sCB}, 8")
    A("s_add_u32 s56, s56, s39")
    A(f"s_sub_u32 s38, s{sWN}, s{sWV}")
    A("s_mul_i32 s38, s38, 9216")
    A(f"s_lshl_b32 s39, s{sWM}, 6")
    A("s_add_u32 s38, s38, s39")
    A(f"v_add_u32 {v(vTR)}, s38, {v(ra)}")
    A(f"s_waitcnt vmcnt({vm.need('hs')})")
    lds_arrive_last(A, vCN, vT + 1, C_HF, "L_nohf")
    flag_store(A, t1, t2, sW, 46)
    assert not cq
    A("s_waitcnt vmcnt(1)")
    A("s_branch L_hfd")
    A.label("L_nohf")
    A("s_waitcnt vmcnt(0)")
    A.label("L_hfd")
    stamp(A, 8, ST and not opt.get('p0st') and not opt.get('p2st') and not opt.get('p1st'))
    while cq: emit(cdma(*cq.pop(0)))
    MW = 0xffff if AM else 0xff
    if opt.get("noown"):
        A(f"s_mov_b64 s[8:9], {MW}")
        A(f"s_bitset0_b32 s8, s{sROT2}")
        MW = "s[8:9]"
    def fpoll(mask):
        A(f"s_mov_b64 exec, {mask}")
        A(f"buffer_load_dword {v(vFl)}, {v(vFo)}, {s(sW,4)}, s52 offen sc1")
        A("s_mov_b64 exec, -1")
    SPL = opt.get("split", 1)
    def creads(g):
        st, ks = g >> 2, g & 3
        off = slot2(st) * 16384 + (ks >> 1) * 8192
        base = vRC
        if off >= 65536: off -= 65536; base = vRC2
        F = CF + (g & 1) * 16
        return [f"ds_read_b128 {v(F+4*dt,4)}, {v(base + (ks & 1))} offset:{off + 2048*dt}" for dt in range(4)]
    def mm(g, tt):
        st, ks = g >> 2, g & 3
        F = CF + (g & 1) * 16
        hr = HR + (st % HD) * 32 + 4 * ((4 * tt + ks) if SPL and st == 15 else (2 * ks + tt))
        return [f"v_mfma_f32_16x16x32_bf16 {v(ACC2+4*(tt*4+dt),4)}, {v(F+4*dt,4)}, {v(hr,4)}, {'0' if g == 0 else v(ACC2+4*(tt*4+dt),4)}" for dt in range(4)]
    lds_add(A, vCN, vOne, C_HL)
    fpoll(MW)
    lds_wait(A, vCN, vPo, C_HL, 4, "sync0", 0)
    for j in range(8):
        part, wn, tt = j >> 2, (j >> 1) & 1, j & 1
        for rd in range(2):
            A(f"ds_read_b64_tr_b16 {v(HR + 4*j + 2*rd, 2)}, {v(vTR)} offset:{wn*18432 + part*4608 + rd*576 + tt*32}")
        if j == 3: A("s_waitcnt lgkmcnt(4)")
    lds_add(A, vCN, vOne, C_GO)
    A("s_waitcnt lgkmcnt(4)")
    emit(creads(0))
    for g in range(4):
        emit(creads(g + 1))
        A("s_waitcnt lgkmcnt(4)")
        emit(mm(g, 0)); emit(mm(g, 1))
    A.label("L_hpoll")
    A("s_waitcnt vmcnt(0)")
    A(f"v_cmp_ne_u32 vcc, s{sTAG}, {v(vFl)}")
    A("s_nop 1")
    A(f"s_and_b32 s38, vcc_lo, {'s8' if opt.get('noown') else MW}")
    A("s_cbranch_scc0 L_hgo")
    spin_guard(A, "L_hgo")
    A(f"s_sleep {opt.get('h_sleep', 1)}")
    fpoll(MW)
    A("s_branch L_hpoll")
    A.label("L_hgo")
    stamp(A, 9, ST and not opt.get('p1st'))
    def hload(st, j):
        out = []
        if j == 0:
            out += stage_cb(sH, st)
            out.append(f"s_lshl_b32 s{sH}, s{sH}, 15")
            out.append(f"s_add_u32 s{sH}, s{sH}, s{sHB}")
        r = HR + (st % HD) * 32 + 4 * j
        f = (2 * (j & 3) + (j >> 2)) if SPL and st == 15 else j
        out.append(f"buffer_load_dwordx4 {v(r,4)}, {v(vH0 if f < 4 else vH1)}, {s(sW,4)}, s{sH} offen offset:{1024*(f&3)} {opt.get('hld', 'sc1')}")
        vm.add(("h", st, j))
        return out
    for j in range(8): emit(hload(1, j))
    lds_wait(A, vCN, vPo, C_GO, 4, "sync1", 0)
    stamp(A, 10, ST and not opt.get('p1st'))
    for j in range(8): emit(hload(2, j))
    def fixup():
        Y = 48
        lds_wait(A, vCN, vPo, C_TOP, 1, "topw")
        A(f"ds_read_b32 {v(vT+4)}, {v(vTp)}")
        A(f"s_sub_u32 s38, 2047, s{sT0}")
        A("s_waitcnt lgkmcnt(0)")
        A(f"v_and_b32 {v(vT+4)}, 0x7ff, {v(vT+4)}")
        A(f"v_sub_u32 {v(vT+4)}, s38, {v(vT+4)}")
        A(f"v_cmp_gt_u32 vcc, 32, {v(vT+4)}")
        A("s_nop 1")
        A("s_and_b32 s57, vcc_lo, 0xff")
        if opt.get("x_nofix"): A("s_mov_b32 s57, 0")
        A.label("L_fix")
        A("s_cmp_eq_u32 s57, 0")
        A("s_cbranch_scc1 L_fixd")
        A("s_ff1_i32_b32 s8, s57")
        A("s_bitset0_b32 s57, s8")
        A(f"v_readlane_b32 s9, {v(vT+4)}, s8")
        A(f"v_lshl_add_u32 {v(Y+4)}, s8, 2, {v(vCN)}")
        lds_wait(A, Y + 4, Y + 5, C_DF, 1, "dfw", 2)
        A("s_lshl_b32 s38, s8, 8")
        A(f"s_add_u32 s38, s38, {L_DEL}")
        A(f"v_lshl_add_u32 {v(Y+4)}, {v(vL15)}, 4, s38")
        A(f"ds_read_b128 {v(Y,4)}, {v(Y+4)}")
        A("s_and_b32 s38, s9, 3")
        A("s_lshl_b32 s38, s38, 4")
        A("s_lshl_b64 s[10:11], 0xffff, s38")
        A("s_lshr_b32 s9, s9, 2")
        A("s_waitcnt lgkmcnt(0)")
        A("s_mov_b64 exec, s[10:11]")
        for i in range(8):
            A(f"s_cmp_lg_u32 s9, {i}")
            A(f"s_cbranch_scc1 L_fx{i}")
            A(pk_add(er(4 * i), er(4 * i), Y))
            A(pk_add(er(4 * i + 2), er(4 * i + 2), Y + 2))
            A.label(f"L_fx{i}")
        A("s_mov_b64 exec, -1")
        A("s_branch L_fix")
        A.label("L_fixd")
    LA = 4
    cq = [(st, q) for st in (3, 4) for q in range(4)]
    for g in range(4, 60 if SPL else 64):
        st, ks = g >> 2, g & 3
        if opt.get("p2st") and g in (8, 16, 24, 32, 48):
            stamp(A, {8: 1, 16: 2, 24: 4, 32: 7, 48: 8}[g], ST)
        gchk = 999 if AM else 4 * (8 - HD)
        if g == gchk - 3:
            fpoll("0xff00"); vm.add("f")
        if g == gchk:
            A(f"s_waitcnt vmcnt({vm.need('f')})")
            A.label("L_h2poll")
            A(f"v_cmp_ne_u32 vcc, s{sTAG}, {v(vFl)}")
            A("s_nop 1")
            A("s_and_b32 s38, vcc_lo, 0xff00")
            A("s_cbranch_scc0 L_h2go")
            spin_guard(A, "L_h2go")
            A("s_sleep 2")
            fpoll("0xff00")
            A("s_waitcnt vmcnt(0)")
            A("s_branch L_h2poll")
            A.label("L_h2go")
            if opt.get("p2st"): stamp(A, 6, ST)
        if g == opt.get("fix_at", 63): fixup()
        hn = vm.need(('h', st, 2*ks+1))
        if st < 15 and ks == 1:
            assert vm.ops.count(("c", st + 1)) == 4
            emit(creads(g + 1))
            A(f"s_waitcnt vmcnt({min(hn, vm.need(('c', st + 1)))}) lgkmcnt(4)")
            lds_add(A, vCN, vOne, C_ST)
        elif st < 15 and ks == 3:
            A("s_waitcnt lgkmcnt(0)")
            A(f"v_readfirstlane_b32 s38, {v(vPo)}")
            A("s_nop 1")
            A(f"s_cmp_ge_u32 s38, {4 * st}")
            A(f"s_cbranch_scc1 L_st{st}_ok")
            lds_wait(A, vCN, vPo, C_ST, 4 * st, f"st{st}", 0)
            if st + LA < 16: cq += [(st + LA, q) for q in range(4)]
            emit(creads(g + 1))
            A(f"s_waitcnt vmcnt({hn})")
        elif g + 1 < 64:
            emit(creads(g + 1))
            A(f"s_waitcnt vmcnt({hn}) lgkmcnt(4)")
        else:
            A(f"s_waitcnt vmcnt({hn}) lgkmcnt(0)")
        for tt in range(2):
            emit(mm(g, tt))
            if st < 15 and ks == 2 and tt == 0: A(f"ds_read_b32 {v(vPo)}, {v(vCN)} offset:{C_ST}")
            if st + HD < 16: emit(hload(st + HD, 2 * ks + tt))
            if cq and (tt == 0 or len(cq) > 4): emit(cdma(*cq.pop(0)))
    assert not el and not cq
    stamp(A, 11, ST and not opt.get('p1st'))
    assert slot2(15) == 5 and slot2(14) == 3
    stf = opt.get("ostore", "sc1 nt")
    if SPL:
        for tt in range(2):
            for ks in range(4):
                nx = 60 + ks + 1 if ks < 3 else (60 if tt == 0 else None)
                if nx: emit(creads(nx))
                A(f"s_waitcnt vmcnt({vm.need(('h', 15, 4 * tt + ks))}) lgkmcnt({4 if nx else 0})")
                emit(mm(60 + ks, tt))
            if tt == 0: fixup()
            A("s_nop 7")
            for dt in range(4):
                A(f"ds_write_b128 {v(wa2)}, {v(ACC2+4*(tt*4+dt),4)} offset:{tt*16*272 + dt*64}")
            for i in range(4 * tt, 4 * tt + 4):
                A(f"ds_read_b128 {v(HR+4*i,4)}, {v(ra2)} offset:{i*4*272}")
            for i in range(4 * tt, 4 * tt + 4):
                A(f"s_waitcnt lgkmcnt({4 * tt + 3 - i})")
                A(pk_fma(HR + 4 * i, GR + (i & ~1), i & 1, HR + 4 * i, er(4 * i)))
                A(pk_fma(HR + 4 * i + 2, GR + (i & ~1), i & 1, HR + 4 * i + 2, er(4 * i + 2)))
                A(f"buffer_store_dwordx4 {v(HR+4*i,4)}, {v(oa)}, {s(sO,4)}, s56 offen {stf}"); vm.add("o")
                A("s_add_u32 s56, s56, 16384")
    else:
        A("s_nop 3")
        for tt in range(2):
            for dt in range(4):
                A(f"ds_write_b128 {v(wa2)}, {v(ACC2+4*(tt*4+dt),4)} offset:{tt*16*272 + dt*64}")
            for i in range(4 * tt, 4 * tt + 4):
                A(f"ds_read_b128 {v(HR+4*i,4)}, {v(ra2)} offset:{i*4*272}")
        stf = opt.get("ostore", "sc1 nt")
        for i in range(8):
            A(f"s_waitcnt lgkmcnt({(11 - i) if i < 4 else (7 - i)})")
            A(pk_fma(HR + 4 * i, GR + (i & ~1), i & 1, HR + 4 * i, er(4 * i)))
            A(pk_fma(HR + 4 * i + 2, GR + (i & ~1), i & 1, HR + 4 * i + 2, er(4 * i + 2)))
            if i < opt.get("x_nst", 8): A(f"buffer_store_dwordx4 {v(HR+4*i,4)}, {v(oa)}, {s(sO,4)}, s56 offen {stf}")
            A("s_add_u32 s56, s56, 16384")
    stamp(A, 12, ST and not opt.get('p1st'))
    stamp_out(A, ST, sW, sWV, 0)
    A("s_endpgm")
```

```python
from common import *

def gen_gemm(A, opt, part):
    ST = opt.get("stamps")
    AM = opt.get("amap")
    sX, sB, sW, sAG, sC, sO = 4, 8, 12, 24, 28, 32
    sRB, sCB, sWV, sWM, sWN, sK, sROT, sLW = 16, 17, 18, 19, 20, 21, 22, 23
    vDA, vDB = 8, 12
    vRA, vRB, vRA2, vRB2 = 16, 18, 20, 22
    vLane, vGq, vL15, vAgO = 24, 25, 26, 27
    Lr, Li, Cr, Ci, L8r, L8i, L16r, L16i, L512r, L512i, Fr, Fi, Wr, Wi = [28 + 2 * i for i in range(14)]
    vT = 56
    ACC = 64
    FX, FY = 128, 160
    UI = FX
    EP = 192
    ea, eb, la, wa, ra, ga = [EP + i for i in range(6)]
    XT, vDC, VS = EP + 6, EP + 10, EP + 14
    PT = 224
    def acc(m, part, c2): return ACC + 4 * (m * 4 + part * 2 + c2)

    RX, RW, RD = PT, PT + 16, 12
    if part == "early":
        A(f"v_and_b32 {v(vL15)}, 15, v0")
        A(f"v_bfe_u32 v4, v0, 7, 1")
        A(f"v_lshl_add_u32 v4, v4, 5, {v(vL15)}")
        A(f"s_lshl_b32 s39, s{sCB}, 6")
        A(f"v_add_lshl_u32 {v(PT+31)}, s39, v4, 1")
        A("s_waitcnt lgkmcnt(0)")
        for c2 in range(2):
            A(f"global_load_ushort {v(PT+c2)}, {v(PT+31)}, s[64:65] offset:{32*c2}")
            A(f"global_load_ushort {v(PT+2+c2)}, {v(PT+31)}, s[66:67] offset:{32*c2}")
            A(f"global_load_ushort {v(PT+4+c2)}, {v(PT+31)}, s[76:77] offset:{32*c2}")
        A("s_branch L_gemm")
        return
    A.label("L_gemm")
    load_tag(A, 42, 43)
    A(f"s_lshr_b32 s{sWN}, s{sWV}, 1")
    A("s_lshl_b32 s50, s3, 8")
    A("s_lshl_b32 s39, s38, 3")
    A("s_add_u32 s50, s50, s39")
    A("s_lshl_b32 s50, s50, 11")
    A(f"s_lshl_b32 s51, s{sWV}, 9")
    A("s_add_u32 s50, s50, s51")
    A(f"s_lshl_b32 s39, s{sWV}, 13")
    A(f"s_add_u32 m0, s39, {L_RT}")
    A("v_and_b32 v4, 31, v0")
    A("v_lshlrev_b32 v4, 4, v4")
    A("v_bfe_u32 v5, v0, 5, 1")
    A("v_lshl_add_u32 v5, v5, 11, v4")
    A("v_add_u32 v4, s51, v4")
    A("v_mov_b32 v6, s44")
    A("v_mov_b32 v7, s45")
    A("s_mov_b32 exec_lo, 0")
    A("v_mov_b32 v6, s80")
    A("v_mov_b32 v7, s81")
    A("s_mov_b32 exec_lo, -1")
    A("v_add_co_u32 v6, vcc, v6, v4")
    srd(A, sX, 40, 41, 4194304)
    A("v_addc_co_u32 v7, vcc, 0, v7, vcc")
    for i in range(4):
        A(f"buffer_load_dwordx4 v5, {s(sX,4)}, s50 offen {opt.get('aflag', '')} lds")
        A("s_add_u32 m0, m0, 1024")
        A("s_add_u32 s50, s50, 4096")
    A("global_load_lds_dwordx4 v[6:7], off")
    if opt.get("bwarm", 1):
        if AM:
            A("s_lshl_b32 s50, s3, 7")
        else:
            A("s_and_b32 s39, s3, 1")
            A("s_lshl_b32 s50, s39, 9")
            A("s_lshr_b32 s39, s3, 1")
            A("s_lshl_b32 s39, s39, 7")
            A("s_add_u32 s50, s50, s39")
        A("s_lshl_b32 s39, s38, 2")
        A("s_add_u32 s50, s50, s39")
        A(f"s_add_u32 s50, s50, s{sWV}")
        A("s_lshl_b32 s50, s50, 11")
        A("v_and_b32 v4, 63, v0")
        A("v_lshl_add_u32 v3, v4, 5, s50")
        A("global_load_dword v10, v3, s[68:69]")
        A("global_load_dword v11, v3, s[70:71]")
        A("s_mov_b64 s[8:9], s[72:73]")
        A("s_mov_b64 s[10:11], s[74:75]")
    A("s_mov_b64 s[52:53], s[72:73]")
    A("s_mov_b64 s[54:55], s[74:75]")
    A("s_mov_b64 s[58:59], s[78:79]")
    A("s_mov_b64 s[36:37], s[82:83]")
    A(f"v_and_b32 {v(vLane)}, 63, v0")
    A(f"s_and_b32 s{sWM}, s{sWV}, 1")
    A(f"s_lshl_b32 s{sLW}, s{sWV}, 12")
    A(f"v_lshrrev_b32 {v(vGq)}, 4, {v(vLane)}")
    rr, cc, t1, t2 = vT, vT + 1, vT + 2, vT + 3
    A(f"v_lshrrev_b32 {v(rr)}, 3, {v(vLane)}")
    A(f"v_and_b32 {v(cc)}, 7, {v(vLane)}")
    A(f"v_lshrrev_b32 {v(t1)}, 1, {v(rr)}")
    A(f"v_xor_b32 {v(cc)}, {v(cc)}, {v(t1)}")
    A(f"v_lshlrev_b32 {v(cc)}, 4, {v(cc)}")
    def emit(ls):
        for l in ls: A(l)
    srd(A, sW, 42, 43, WS_USED)
    A(f"s_lshl_b32 s38, s{sCB}, 14")
    A(f"s_add_u32 s38, s38, {WS_AGG}")
    A(f"s_add_u32 s{sAG}, s42, s38")
    A(f"s_addc_u32 s{sAG+1}, s43, 0")
    A(f"s_mov_b32 s{sAG+2}, 16384")
    A(f"s_mov_b32 s{sAG+3}, 0x20000")
    A(f"s_cmp_lt_u32 s{sWV}, 2")
    A(f"s_cselect_b32 s{sC}, s52, s54")
    A(f"s_cselect_b32 s{sC+1}, s53, s55")
    srd(A, sC, sC, sC + 1, 2097152, bias=3072)
    srd(A, sO, 36, 37, 8388608)
    A(f"v_bfe_u32 {v(t2)}, {v(vLane)}, 1, 3")
    A(f"v_xor_b32 {v(t2)}, {v(t2)}, {v(vGq)}")
    A(f"v_lshlrev_b32 {v(t2)}, 4, {v(t2)}")
    A(f"v_lshl_add_u32 {v(t2)}, {v(vL15)}, 7, {v(t2)}")
    A(f"s_lshl_b32 s38, s{sWM}, 13")
    A(f"s_lshl_b32 s39, s{sWN}, 13")
    for kk in range(2):
        A(f"v_xor_b32 {v(t1)}, {64*kk}, {v(t2)}")
        A(f"v_add_u32 {v(vRA+kk)}, s38, {v(t1)}")
        A(f"v_add_u32 {v(vRB+kk)}, s39, {v(t1)}")
        A(f"v_add_u32 {v(vRA2+kk)}, 0x10000, {v(vRA+kk)}")
        A(f"v_add_u32 {v(vRB2+kk)}, 0x10000, {v(vRB+kk)}")
    A(f"v_and_b32 {v(t1)}, 31, {v(vLane)}")
    A(f"v_lshlrev_b32 {v(vAgO)}, 4, {v(t1)}")
    A(f"s_sub_u32 s38, 15, s{sRB}")
    A("s_lshl_b32 s38, s38, 10")
    A(f"s_lshl_b32 s39, s{sWN}, 9")
    A("s_add_u32 s92, s38, s39")
    A(f"v_add_u32 {v(vAgO)}, s92, {v(vAgO)}")
    A(f"s_cmp_eq_u32 s{sWM}, 1")
    A("s_cselect_b64 s[98:99], -1, 0")

    def rd_frags(st, kk, F):
        out = []
        for op, (r1, r2) in enumerate(((vRA, vRA2), (vRB, vRB2))):
            off = ((2 * st + op) % NSLOT) * 16384
            base = r1
            if off >= 65536: off -= 65536; base = r2
            for t in range(4):
                out.append(f"ds_read_b128 {v(F + 16*op + 4*t, 4)}, {v(base+kk)} offset:{off + 2048*t}")
        return [out[0], out[4], out[5], out[6], out[7], out[1], out[2], out[3]]
    def mfmas(F, first):
        out = []
        for m in range(4):
            for n in range(4):
                d = ACC + 4 * (m * 4 + n)
                out.append(f"v_mfma_f32_16x16x32_bf16 {v(d,4)}, {v(F+4*m,4)}, {v(F+16+4*n,4)}, {'0' if first else v(d,4)}")
        return out

    B = Asm()
    lre, lim, ldt = PT, PT + 2, PT + 4
    t = PT + 6
    for r in range(6): B(f"v_lshlrev_b32 {v(PT+r)}, 16, {v(PT+r)}")
    for c in range(2):
        B(f"v_mul_f32 {v(t+c)}, {LOG2E}, {v(ldt+c)}")
    for c in range(2): B(f"v_exp_f32 {v(t+c)}, {v(t+c)}")
    B("s_nop 0")
    for c in range(2): rnd_bf16(B, t + c, t + c)
    B(pk_mul(t + 2, t, None, lre))
    B(pk_mul(t + 4, t, None, lim))
    for c in range(2):
        B(f"v_mul_f32 {v(t+2+c)}, {LOG2E}, {v(t+2+c)}")
        B(f"v_mul_f32 {v(t+4+c)}, {INV2PI}, {v(t+4+c)}")
    for c in range(2):
        B(f"v_exp_f32 {v(t+2+c)}, {v(t+2+c)}")
        B(f"v_rndne_f32 {v(t+6+c)}, {v(t+4+c)}")
    for c in range(2): B(f"v_sub_f32 {v(t+4+c)}, {v(t+4+c)}, {v(t+6+c)}")
    for c in range(2):
        B(f"v_cos_f32 {v(t+6+c)}, {v(t+4+c)}")
        B(f"v_sin_f32 {v(t+8+c)}, {v(t+4+c)}")
    B(pk_mul(t + 10, lre, None, lre))
    B(pk_fma(t + 10, lim, None, lim, t + 10))
    B(pk_mul(Lr, t + 2, None, t + 6))
    B(pk_mul(Li, t + 2, None, t + 8))
    for c in range(2): B(f"v_rcp_f32 {v(t+10+c)}, {v(t+10+c)}")
    for c in range(2): B(f"v_add_f32 {v(t+c)}, -1.0, {v(Lr+c)}")
    B(pk_add(t + 10, t + 10, t + 10))
    B(pk_mul(t + 2, t, None, lre))
    B(pk_fma(t + 2, Li, None, lim, t + 2))
    B(pk_mul(t + 4, Li, None, lre))
    B(pk_fma(t + 4, t, None, lim, t + 4, neg=True))
    B(pk_mul(Cr, t + 2, None, t + 10))
    B(pk_mul(Ci, t + 4, None, t + 10))
    a0, a1, b0, b1, c0, c1, d0, d1 = [PT + 2 * i for i in range(8)]
    pk_csq(B, a0, a1, Lr, Li)
    pk_csq(B, b0, b1, a0, a1)
    pk_csq(B, L8r, L8i, b0, b1)
    pk_csq(B, L16r, L16i, L8r, L8i)
    pk_csq(B, a0, a1, L16r, L16i)
    pk_csq(B, b0, b1, a0, a1)
    B(f"v_and_b32 {v(PT+16)}, 1, {v(vGq)}")
    B(f"v_cmp_eq_u32 s[84:85], 1, {v(PT+16)}")
    B(f"v_cmp_lt_u32 s[86:87], 1, {v(vGq)}")
    B("s_nop 0")
    def sel(dr, di, sr, si, mask):
        for c in range(2):
            B(f"v_cndmask_b32 {v(dr+c)}, 1.0, {v(sr+c)}, {mask}")
            B(f"v_cndmask_b32 {v(di+c)}, 0, {v(si+c)}, {mask}")
    e0, e1 = PT + 18, PT + 20
    sel(c0, c1, L16r, L16i, "s[84:85]")
    sel(d0, d1, a0, a1, "s[86:87]")
    pk_cmul(B, e0, e1, c0, c1, None, d0, d1)
    sel(c0, c1, b0, b1, "s[98:99]")
    pk_cmul(B, Wr, Wi, e0, e1, None, c0, c1)
    pk_csq(B, a0, a1, b0, b1)
    pk_csq(B, b0, b1, a0, a1)
    pk_csq(B, L512r, L512i, b0, b1)
    sel(c0, c1, a0, a1, "s[84:85]")
    sel(d0, d1, b0, b1, "s[86:87]")
    pk_cmul(B, Fr, Fi, c0, c1, None, d0, d1)
    for c2 in range(2):
        B(f"v_mov_b32 {v(a0)}, {v(Wr+c2)}")
        B(f"v_mov_b32 {v(a1)}, {v(Wi+c2)}")
        B(f"v_mul_f32 {v(a0+1)}, {v(L8r+c2)}, {v(Wr+c2)}")
        B(f"v_mul_f32 {v(a1+1)}, {v(L8r+c2)}, {v(Wi+c2)}")
        B(f"v_fma_f32 {v(a0+1)}, -{v(L8i+c2)}, {v(Wi+c2)}, {v(a0+1)}")
        B(f"v_fma_f32 {v(a1+1)}, {v(L8i+c2)}, {v(Wr+c2)}, {v(a1+1)}")
        pk_cmul(B, VS + 4 * c2, VS + 4 * c2 + 2, Cr, Ci, c2, a0, a1)
    par = B.lines
    B = Asm()
    B(f"s_lshl_b32 s38, s{sWN}, 8")
    B(f"s_add_u32 s38, s38, {L_EX}")
    B(f"v_lshl_add_u32 {v(eb)}, {v(vL15)}, 4, s38")
    B(f"s_lshl_b32 s39, s{sWM}, 11")
    B(f"v_lshl_add_u32 {v(ea)}, {v(vGq)}, 9, {v(eb)}")
    B(f"v_add_u32 {v(ea)}, s39, {v(ea)}")
    B(f"v_lshlrev_b32 {v(la)}, 10, {v(vGq)}")
    B(f"v_lshl_add_u32 {v(la)}, {v(vL15)}, 4, {v(la)}")
    B("s_add_u32 s38, s92, 1024")
    B(f"v_add_u32 {v(la)}, s38, {v(la)}")
    B(f"v_sub_u32 {v(t1)}, s{sRB}, {v(vGq)}")
    B(f"v_mov_b32 {v(t2)}, s{sTAG}")
    for i in range(4):
        B(f"v_cmp_lt_i32 vcc, {4*i}, {v(t1)}")
        B("s_nop 1")
        B(f"v_cndmask_b32 {v(XT+i)}, 0, {v(t2)}, vcc")
    B(f"s_mul_i32 s38, s{sWV}, 9216")
    B(f"s_add_u32 s38, s38, {L_TR}")
    B(f"v_mul_u32_u24 {v(wa)}, 144, {v(vL15)}")
    B(f"v_lshl_add_u32 {v(wa)}, {v(vGq)}, 5, {v(wa)}")
    B(f"v_add_u32 {v(wa)}, s38, {v(wa)}")
    B(f"v_bfe_u32 {v(ra)}, {v(vLane)}, 2, 2")
    B(f"v_lshl_add_u32 {v(ra)}, {v(vGq)}, 3, {v(ra)}")
    B(f"v_mul_u32_u24 {v(ra)}, 144, {v(ra)}")
    B(f"v_and_b32 {v(t1)}, 3, {v(vLane)}")
    B(f"v_lshl_add_u32 {v(ra)}, {v(t1)}, 3, {v(ra)}")
    B(f"v_add_u32 {v(ra)}, s38, {v(ra)}")
    B(f"v_lshlrev_b32 {v(ga)}, 4, {v(vLane)}")
    B(f"s_lshl_b32 s38, s{sCB}, 6")
    B(f"s_lshl_b32 s39, s{sWM}, 5")
    B("s_add_u32 s38, s38, s39")
    B(f"v_add_u32 {v(t1)}, s38, {v(rr)}")
    B(f"v_lshl_add_u32 {v(t1)}, {v(t1)}, 11, {v(cc)}")
    B(f"v_xor_b32 {v(t2)}, 64, {v(t1)}")
    for q in range(4):
        B(f"v_add_u32 {v(vDC+q)}, {8*2048*q - 1024*q + 3072}, {v(t2 if q & 1 else t1)}")
    sROT2 = 55
    B(f"s_and_b32 s{sROT2}, s{sCB}, 7")
    sE8 = 54
    B(f"s_and_b32 s{sE8}, s{sCB}, {0 if AM else 8}")
    LEAD = opt.get("lead", 0)
    if LEAD:
        def perm(lo, hi, ph):
            q = list(range(16))
            for p_ in range(lo, hi + 1):
                d = min(LEAD, hi - p_)
                if p_ % 4 == ph and d > 0: q[p_:p_ + d + 1] = [p_ + d] + list(range(p_, p_ + d))
            return q
        def pack(q): return sum(x << (4 * i) for i, x in enumerate(q))
        B(f"s_add_u32 s38, s{sRB}, s{sCB}")
        B("s_and_b32 s38, s38, 3")
        for ph in range(4):
            a = perm(opt.get("lead_lo", 1), 7, ph)[:8]; a[0] = 1
            b = perm(8, 15, ph)[8:]
            if ph == 0:
                B(f"s_mov_b32 s94, {pack(a):#x}"); B(f"s_mov_b32 s95, {pack(b):#x}")
            else:
                B(f"s_cmp_eq_u32 s38, {ph}\ns_cselect_b32 s94, {pack(a):#x}, s94\ns_cselect_b32 s95, {pack(b):#x}, s95")
        B(f"s_mul_i32 s38, s{sROT2}, 0x11111111")
        B("s_or_b32 s38, s38, 0x88888888")
        B("s_sub_u32 s38, s38, s94")
        B("s_lshr_b32 s38, s38, 3")
        B("s_and_b32 s38, s38, 0x11111111")
        B("s_sub_u32 s94, s94, s38")
        B(f"s_mul_i32 s38, s{sE8}, 0x11111111")
        B("s_or_b32 s94, s94, s38")
        B("s_xor_b32 s95, s95, s38")
    B(f"s_lshl_b32 s48, s{sRB}, 19")
    B(f"s_lshl_b32 s39, s{sCB}, 15")
    B("s_add_u32 s53, s48, s39")
    B(f"s_lshl_b32 s39, s{sWN}, 11")
    B("s_add_u32 s53, s53, s39")
    B(f"s_lshl_b32 s39, s{sWM}, 14")
    B("s_add_u32 s53, s53, s39")
    sT0, sGB, sXB = 51, 57, 56
    vXo, vGo, vDo = EP + 28, EP + 29, EP + 30
    B(f"s_lshl_b32 s{sT0}, s{sRB}, 7")
    B(f"s_lshl_b32 s38, s{sWV}, 5")
    B(f"s_add_u32 s{sT0}, s{sT0}, s38")
    B(f"s_lshl_b32 s{sGB}, s{sT0}, 3")
    B(f"s_add_u32 s{sGB}, s{sGB}, {WS_G}")
    B(f"s_lshl_b32 s{sXB}, s{sT0}, 11")
    B(f"s_lshl_b32 s39, s{sCB}, 7")
    B(f"s_add_u32 s{sXB}, s{sXB}, s39")
    B(f"v_lshlrev_b32 {v(vXo)}, 11, {v(vGq)}")
    B(f"v_lshl_add_u32 {v(vXo)}, {v(vL15)}, 3, {v(vXo)}")
    B(f"v_and_b32 {v(vGo)}, 31, {v(vLane)}")
    B(f"v_lshlrev_b32 {v(vGo)}, 3, {v(vGo)}")
    B(f"v_lshl_add_u32 {v(vDo)}, {v(vL15)}, 3, s39")
    if opt.get("pretouch", 1):
        B(f"s_not_b32 s39, s{sTAG}")
        for r in range(4): B(f"v_mov_b32 {v(60+r)}, s39")
        B(f"v_lshlrev_b32 {v(t2)}, 2, {v(vLane)}")
        B(f"s_mul_hi_u32 s8, s2, {(1 << 32) // 56 + 1}")
        B("s_mul_i32 s9, s8, 56")
        B("s_sub_u32 s9, s2, s9")
        B(f"s_lshl_b32 s10, s9, {FSH+2}")
        B(f"s_lshl_b32 s11, s8, {FSH}")
        B("s_add_u32 s10, s10, s11")
        B(f"s_add_u32 s10, s10, {WS_GF}")
        B(f"s_lshl_b32 s11, s8, {FSH+6}")
        B(f"s_lshl_b32 s9, s9, {FSH}")
        B("s_add_u32 s11, s11, s9")
        B(f"s_add_u32 s11, s11, {WS_YF}")
        B(f"s_lshl_b32 s9, s{sRB}, {FSH + 4}")
        B(f"s_lshl_b32 s38, s{sCB}, {FSH}")
        B("s_add_u32 s9, s9, s38")
        B(f"s_add_u32 s9, s9, {WS_HF}")
        B("s_cmp_ge_u32 s2, 224")
        B("s_cselect_b32 s10, s9, s10")
        B("s_cselect_b32 s11, s9, s11")
        B(f"s_cmp_eq_u32 s{sWV}, 1")
        B("s_cselect_b32 s9, s10, s9")
        B(f"s_cmp_eq_u32 s{sWV}, 3")
        B("s_cselect_b32 s9, s11, s9")
        B("s_mov_b32 exec_hi, 0")
        B(f"buffer_store_dword v60, {v(t2)}, {s(sW,4)}, s9 offen sc1")
        B(f"buffer_store_dwordx4 v[60:63], {v(vAgO)}, {s(sAG,4)}, 0 offen sc1")
        B("s_mov_b32 exec_hi, -1")
    def hpre(E):
        for k in range(8):
            part, mt = k >> 2, k & 3
            if mt % 2 == 0: E(f"s_add_u32 s39, s53, {part*4096 + (mt>>1)*8192}")
            E(f"buffer_store_dwordx4 v[60:63], {v(ga)}, {s(sW,4)}, s39 offen offset:{(mt&1)*1024} sc1")
    if opt.get("hpre") == 0: hpre(B)
    adr = B.lines

    A("s_waitcnt lgkmcnt(0)")
    make_tag(A)
    emit(adr)
    A(f"s_lshl_b32 s39, s{sWV}, 13")
    A(f"s_add_u32 s39, s39, {L_RT}")
    A(f"v_and_b32 v4, 7, {v(vLane)}")
    A("v_lshlrev_b32 v4, 9, v4")
    A(f"v_bfe_u32 v5, {v(vLane)}, 3, 1")
    A("v_lshl_add_u32 v4, v5, 6, v4")
    A(f"v_lshl_add_u32 v4, {v(vGq)}, 4, v4")
    A("v_add_u32 v4, s39, v4")
    A(f"v_and_b32 v7, 1, {v(vLane)}")
    A("v_lshlrev_b32 v5, 9, v7")
    A(f"v_bfe_u32 v6, {v(vLane)}, 1, 1")
    A("v_lshl_add_u32 v5, v6, 6, v5")
    A(f"v_lshl_add_u32 v5, {v(vGq)}, 4, v5")
    A("v_add_u32 v5, s39, v5")
    A(f"v_lshrrev_b32 v6, 1, {v(vGq)}")
    A("v_lshlrev_b32 v6, 6, v6")
    A("v_lshl_add_u32 v6, v7, 5, v6")
    A(f"v_and_b32 v7, 1, {v(vGq)}")
    A("v_lshl_add_u32 v6, v7, 4, v6")
    A(f"s_lshl_b32 s39, s{sWV}, 7")
    A(f"s_add_u32 s39, s39, {L_SCR}")
    A("v_add_u32 v6, s39, v6")
    NPRE = opt.get("par_pre", 999)
    NPT = (2 if opt.get("pretouch", 1) else 0) + (8 if opt.get("hpre") == 0 else 0)
    A(f"s_waitcnt vmcnt({NPT + (7 if opt.get('bwarm', 1) else 5)})")
    emit(par); par = []
    RGS = opt.get("rg_st", -1)
    rg1 = []
    for ks in range(4):
        rg1.append(f"ds_read_b128 {v(RX+4*ks,4)}, v4 offset:{128*ks}")
        rg1.append(f"ds_read_b128 {v(RW+4*ks,4)}, v5 offset:{4096 + 128*ks}")
    rg2 = [f"v_mfma_f32_16x16x32_bf16 {v(RD,4)}, {v(RX+4*ks,4)}, {v(RW+4*ks,4)}, {'0' if ks == 0 else v(RD,4)}" for ks in range(4)]
    rg3 = ["s_mov_b32 exec_lo, 0x00030003", "s_mov_b32 exec_hi, 0x000c000c", f"ds_write_b128 v6, {v(RD,4)}", "s_mov_b64 exec, -1"]
    if RGS < 0:
        A(f"s_waitcnt vmcnt({NPT + (2 if opt.get('bwarm', 1) else 0)})")
        emit(rg1); A("s_waitcnt lgkmcnt(0)"); emit(rg2)
        A(f"s_lshl_b32 s39, s{sWV}, 2")
        A(f"s_add_u32 s39, s39, {L_SCR - 16}")
        A("v_mov_b32 v4, s39")
        A(f"v_mov_b32 v5, s{sTAG}")
        A(f"v_mov_b32 v7, {L_SCR - 16}")
        A("s_nop 3")
        emit(rg3)
        A("ds_write_b32 v4, v5")
        X = FX
        A(f"v_lshl_add_u32 v6, {v(vL15)}, 2, v7")
        A(f"v_and_b32 {v(X+10)}, 7, {v(vLane)}")
        A("s_lshl_b32 s38, s3, 8")
        A("s_lshr_b32 s39, s2, 3")
        A("s_lshl_b32 s39, s39, 3")
        A("s_add_u32 s8, s38, s39")
        A("s_sub_u32 s38, 2047, s8")
        A(f"v_sub_u32 {v(X+11)}, s38, {v(X+10)}")
        A(f"v_lshlrev_b32 {v(X+10)}, 3, {v(X+10)}")
        A(f"v_bfe_u32 {v(X+12)}, {v(vLane)}, 3, 1")
        A(f"v_lshl_add_u32 {v(X+10)}, {v(X+12)}, 14, {v(X+10)}")
        A("s_lshl_b32 s8, s8, 3")
        A(f"s_add_u32 s8, s8, {WS_KEY}")
        A("s_mov_b32 s9, 0xffff0000")
        A(f"s_cmp_lg_u32 s{sWV}, 0")
        A("s_cbranch_scc1 L_nokey")
        A.label("L_rgw")
        A(f"ds_read_b128 {v(X+16,4)}, v7")
        for p in range(8):
            A(f"ds_read_b32 {v(X+p)}, v6 offset:{16 + 64*p}")
        A("s_waitcnt lgkmcnt(0)")
        for r in range(4): A(f"v_xor_b32 {v(X+16+r)}, s{sTAG}, {v(X+16+r)}")
        A(f"v_or3_b32 {v(X+16)}, {v(X+16)}, {v(X+17)}, {v(X+18)}")
        A(f"v_or_b32 {v(X+16)}, {v(X+16)}, {v(X+19)}")
        A(f"v_cmp_ne_u32 vcc, 0, {v(X+16)}")
        A("s_nop 1")
        A("s_cmp_eq_u64 vcc, 0")
        A("s_cbranch_scc1 L_rgo")
        spin_guard(A, "L_rgo")
        A("s_branch L_rgw")
        A.label("L_rgo")
        for r in range(4): A(f"v_not_b32 {v(X+16+r)}, s{sTAG}")
        A(f"ds_write_b128 v7, {v(X+16,4)}")
        A(pk_add(X, X, X + 2)); A(pk_add(X + 4, X + 4, X + 6)); A(pk_add(X, X, X + 4))
        A(f"v_add_f32 {v(X)}, {v(X)}, {v(X+1)}")
        rnd_bf16(A, X, X)
        sigmoid(A, X + 2, X)
        rnd_bf16(A, X + 2, X + 2)
        A(f"v_cmp_eq_u32 vcc, 1, {v(X+12)}")
        A(f"v_ashrrev_i32 {v(X+1)}, 31, {v(X)}")
        A(f"v_or_b32 {v(X+1)}, 0x80000000, {v(X+1)}")
        A(f"v_xor_b32 {v(X)}, {v(X)}, {v(X+1)}")
        A(f"v_and_or_b32 {v(X)}, {v(X)}, s9, {v(X+11)}")
        A(f"v_cndmask_b32 v4, {v(X)}, {v(X+2)}, vcc")
        A.label("L_nokey")
    if opt.get("prio", 0): A(f"s_setprio {opt.get('prio', 0)}")
    stamp(A, 1, ST and not opt.get('p2st') and not opt.get('p1st'))
    def xr(i): return PT + 2 * i
    GT, DR, GR, DS = PT + 16, PT + 18, PT + 20, PT + 28
    def gload(): A(f"buffer_load_dwordx2 {v(GT,2)}, {v(vGo)}, {s(sW,4)}, s{sGB} offen sc1")
    RSL = opt.get("rd_slots", [0, 1, 3, 4, 6, 7, 9, 10])
    for st in range(16):
        A("s_waitcnt lgkmcnt(0)" + (" vmcnt(0)" if st == RGS else ""))
        A("s_barrier")
        if st == 0:
            A(f"s_cmp_lg_u32 s{sWV}, 0")
            A("s_cbranch_scc1 L_nokey2")
            A("s_mov_b64 exec, 0xffff")
            A(f"buffer_store_dwordx2 v[4:5], {v(FX+10)}, {s(sW,4)}, s8 offen sc1")
            A("s_mov_b64 exec, -1")
            A.label("L_nokey2")
        if st > 0 and opt.get("hpre") == st: hpre(A)
        if st == 0: stamp(A, 2, ST and not opt.get('p2st') and not opt.get('p1st'))
        if opt.get("p1st") and st in (0, 1, 2, 3, 4, 6, 8, 10, 12, 14):
            stamp(A, {0: 1, 1: 2, 2: 4, 3: 5, 4: 6, 6: 7, 8: 8, 10: 9, 12: 10, 14: 11}[st], ST)
        for half in range(2):
            rds = rd_frags(st, half, FX if half == 0 else FY)
            if half == 0:
                mf = mfmas(FY, False) if st > 0 else []
            else:
                A("s_waitcnt lgkmcnt(0)")
                if st == RGS: emit(rg2)
                mf = mfmas(FX, st == 0)
            if st == RGS and half == 0: par = list(rg1)
            if not mf: emit(rds); rds = []
            for k, m in enumerate(mf):
                A(m)
                if k in RSL: A(rds.pop(0))
                else:
                    for _ in range(opt.get("par_n", 1)):
                        if par: A(par.pop(0))
            assert not rds
            if st == RGS and half == 1: emit(rg3)
        if st == opt.get("cwarm", 99):
            A("global_load_dword v10, v3, s[8:9]")
            A("global_load_dword v11, v3, s[10:11]")
    assert not par, len(par)
    A("s_waitcnt lgkmcnt(0) vmcnt(0)")
    emit(mfmas(FY, False))
    stamp(A, 3, ST)

    def ure(c2, q): return acc(q >> 1, 0, c2) + 2 * (q & 1)
    def uim(c2, q): return acc(q >> 1, 1, c2) + 2 * (q & 1)
    def uI(c2, q): return UI + 16 * c2 + 2 * q
    HS = 8
    TT = 16
    EE = 56
    PUB = 60
    PIN = EP + 24
    t9 = EP + 22
    for i in range(4): A(f"s_mov_b32 s{44+i}, {4096*i}")
    A(f"v_mov_b32 {v(PUB+1)}, s{sTAG}")
    A(f"v_mov_b32 {v(PUB+3)}, s{sTAG}")
    A(f"v_and_b32 {v(PIN)}, 31, {v(vLane)}")
    A(f"v_lshlrev_b32 {v(PIN)}, 2, {v(PIN)}")
    A(f"v_add_u32 {v(PIN)}, {L_CNT}, {v(PIN)}")
    A(f"v_mov_b32 {v(PIN+2)}, 0")
    A(f"ds_write_b32 {v(PIN)}, {v(PIN+2)}")
    for q in range(1, 8):
        for c2 in range(2):
            hr, hi, tr_, ti = HS + 4 * c2, HS + 4 * c2 + 2, TT + 4 * c2, TT + 4 * c2 + 2
            pr = ure(c2, 0) if q == 1 else hr
            pi = uim(c2, 0) if q == 1 else hi
            A(pk_fma(tr_, Li, c2, pi, ure(c2, q), neg=True))
            A(pk_fma(ti, Li, c2, pr, uim(c2, q)))
            A(pk_fma(hr, Lr, c2, pr, tr_))
            A(pk_fma(hi, Lr, c2, pi, ti))
    for c2 in range(2):
        hr, hi = HS + 4 * c2, HS + 4 * c2 + 2
        A(f"v_fma_f32 {v(EE+c2)}, -{v(L8i+c2)}, {v(hi)}, {v(hr+1)}")
        A(f"v_fma_f32 {v(EE+2+c2)}, {v(L8i+c2)}, {v(hr)}, {v(hi+1)}")
    for c2 in range(2):
        hr, hi = HS + 4 * c2, HS + 4 * c2 + 2
        A(f"v_fma_f32 {v(EE+c2)}, {v(L8r+c2)}, {v(hr)}, {v(EE+c2)}")
        A(f"v_fma_f32 {v(EE+2+c2)}, {v(L8r+c2)}, {v(hi)}, {v(EE+2+c2)}")
    A(f"ds_write_b128 {v(ea)}, {v(EE,4)}")
    A("s_waitcnt lgkmcnt(0)")
    A("s_barrier")
    PE = FY
    for sp in range(8):
        A(f"ds_read_b128 {v(PE+4*sp,4)}, {v(eb)} offset:{sp*512}")
    for sp in range(1, 8):
        A(f"s_waitcnt lgkmcnt({7-sp})")
        pr, pi, er, ei = PE + 4 * (sp - 1), PE + 4 * (sp - 1) + 2, PE + 4 * sp, PE + 4 * sp + 2
        A(pk_fma(er, L16i, None, pi, er, neg=True))
        A(pk_fma(ei, L16i, None, pr, ei))
        A(pk_fma(er, L16r, None, pr, er))
        A(pk_fma(ei, L16r, None, pi, ei))
    A(f"v_cndmask_b32 {v(PUB)}, {v(PE+28)}, {v(PE+29)}, s[84:85]")
    A(f"v_cndmask_b32 {v(PUB+2)}, {v(PE+30)}, {v(PE+31)}, s[84:85]")
    A(f"s_cmp_lg_u32 s{sWM}, 0")
    A("s_cbranch_scc1 L_nopub")
    A("s_mov_b32 exec_hi, 0")
    A(f"buffer_store_dwordx4 {v(PUB,4)}, {v(vAgO)}, {s(sAG,4)}, 0 offen sc1")
    A("s_mov_b32 exec_hi, -1")
    A.label("L_nopub")
    stamp(A, 4, ST and not opt.get('p0st') and not opt.get('p2st') and not opt.get('p1st'))
    LQ = FY
    def lb_loads():
        for c2 in range(2):
            for i in range(4):
                A(f"buffer_load_dwordx4 {v(LQ+16*c2+4*i,4)}, {v(la)}, {s(sAG,4)}, s{44+i} offen offset:{256*c2} sc1")
    B = Asm()
    for r in range(4):
        for g in range(4):
            lo = "0" if g == 0 else v(PE + 4 * (g - 1) + r)
            B(f"v_cndmask_b32 {v(TT+g)}, {lo}, {v(PE+4*(3+g)+r)}, s[98:99]")
        B(f"v_cndmask_b32 {v(TT)}, {v(TT)}, {v(TT+1)}, s[84:85]")
        B(f"v_cndmask_b32 {v(TT+2)}, {v(TT+2)}, {v(TT+3)}, s[84:85]")
        B(f"v_cndmask_b32 {v(PIN+r)}, {v(TT)}, {v(TT+2)}, s[86:87]")
    QS = 56
    for c2 in range(2):
        hr, hi = HS + 4 * c2, HS + 4 * c2 + 2
        qr, qi = TT, TT + 2
        B(f"v_mov_b32 {v(qr)}, {v(PIN+c2)}")
        B(f"v_mov_b32 {v(qi)}, {v(PIN+2+c2)}")
        B(f"v_fma_f32 {v(qr+1)}, -{v(L8i+c2)}, {v(PIN+2+c2)}, {v(hr)}")
        B(f"v_fma_f32 {v(qi+1)}, {v(L8i+c2)}, {v(PIN+c2)}, {v(hi)}")
        B(f"v_fma_f32 {v(qr+1)}, {v(L8r+c2)}, {v(PIN+c2)}, {v(qr+1)}")
        B(f"v_fma_f32 {v(qi+1)}, {v(L8r+c2)}, {v(PIN+2+c2)}, {v(qi+1)}")
        pk_cmul(B, QS + 4 * c2, QS + 4 * c2 + 2, Cr, Ci, c2, qr, qi)
    for q in range(8):
        for c2 in range(2):
            B(pk_mul(uI(c2, q), Cr, c2, uim(c2, q)))
            B(pk_fma(uI(c2, q), Ci, c2, ure(c2, q), uI(c2, q)))
            B(pk_mul(ure(c2, q), Cr, c2, ure(c2, q)))
            B(pk_fma(ure(c2, q), Ci, c2, uim(c2, q), ure(c2, q), neg=True))
    nlb = max(48, min(opt.get("lb_at", 100), len(B.lines)))
    emit(B.lines[:nlb])
    if opt.get("lb_delay"): A(f"s_sleep {opt['lb_delay']}")
    lb_loads()
    emit(B.lines[nlb:])
    gload()
    A(f"global_load_dwordx2 {v(DR,2)}, {v(vDo)}, s[58:59]")
    for i in range(8):
        A(f"buffer_load_dwordx2 {v(xr(i),2)}, {v(vXo)}, {s(sX,4)}, s{sXB} offen")
        A(f"s_add_u32 s{sXB}, s{sXB}, 8192")
    vm = Vm()
    def slot2(st): return [5, 0, 1, 2, 3][st % 5]
    def stage_cb(dst, st):
        if st == 0: return [f"s_mov_b32 s{dst}, s{sCB}"]
        if LEAD: return [f"s_bfe_u32 s{dst}, s{94 + (st >> 3)}, {(4 << 16) | (4 * (st & 7)):#x}"]
        if st < 8:
            return [f"s_cmp_le_u32 s{sROT2}, {st - 1}", f"s_cselect_b32 s{dst}, {st}, {st - 1}", f"s_or_b32 s{dst}, s{dst}, s{sE8}"]
        return [f"s_xor_b32 s{dst}, s{sE8}, {st}"]
    def cdma(st, q):
        out = []
        if q == 0:
            out.append(f"s_add_u32 m0, s{sLW}, {slot2(st) * 16384}")
            out += stage_cb(sK, st)
            out.append(f"s_lshl_b32 s{sK}, s{sK}, 7")
        out.append(f"buffer_load_dwordx4 {v(vDC+q)}, {s(sC,4)}, s{sK} offen offset:{1024*q} {opt.get('cflag', '')} lds")
        vm.add(("c", st))
        return out
    A("s_waitcnt vmcnt(10)")
    A.label("L_poll")
    for c2 in range(2):
        for i in range(4):
            A(f"v_xor_b32 {v(LQ+16*c2+4*i+1)}, {v(LQ+16*c2+4*i+1)}, {v(XT+i)}")
            A(f"v_xor_b32 {v(LQ+16*c2+4*i+3)}, {v(LQ+16*c2+4*i+3)}, {v(XT+i)}")
    A(f"v_or3_b32 {v(t9)}, {v(LQ+1)}, {v(LQ+3)}, {v(LQ+5)}")
    for i in range(7, 31, 4):
        A(f"v_or3_b32 {v(t9)}, {v(t9)}, {v(LQ+i)}, {v(LQ+i+2)}")
    A(f"v_or_b32 {v(t9)}, {v(t9)}, {v(LQ+31)}")
    A(f"v_cmp_ne_u32 vcc, 0, {v(t9)}")
    A("s_nop 1")
    A("s_cmp_eq_u64 vcc, 0")
    A("s_cbranch_scc1 L_got")
    spin_guard(A, "L_got")
    A(f"s_sleep {opt.get('lb_sleep', 1)}")
    lb_loads()
    A("s_waitcnt vmcnt(0)")
    A("s_branch L_poll")
    A.label("L_got")
    if opt.get("wprio"): A(f"s_setprio {opt['wprio']}")
    stamp(A, 5, ST and not opt.get('p1st') and not opt.get('p0st'))
    HC = TT
    for i in range(2, -1, -1):
        for c2 in range(2):
            cr_, ci_ = LQ + 16 * c2 + 4 * (i + 1), LQ + 16 * c2 + 4 * (i + 1) + 2
            ar, ai = LQ + 16 * c2 + 4 * i, LQ + 16 * c2 + 4 * i + 2
            A(f"v_fma_f32 {v(ar)}, -{v(L512i+c2)}, {v(ci_)}, {v(ar)}")
            A(f"v_fma_f32 {v(ai)}, {v(L512i+c2)}, {v(cr_)}, {v(ai)}")
            A(f"v_fma_f32 {v(ar)}, {v(L512r+c2)}, {v(cr_)}, {v(ar)}")
            A(f"v_fma_f32 {v(ai)}, {v(L512r+c2)}, {v(ci_)}, {v(ai)}")
    for c2 in range(2):
        ar, ai = LQ + 16 * c2, LQ + 16 * c2 + 2
        A(f"v_mul_f32 {v(HC+2*c2)}, {v(Fr+c2)}, {v(ar)}")
        A(f"v_mul_f32 {v(HC+2*c2+1)}, {v(Fr+c2)}, {v(ai)}")
        A(f"v_fma_f32 {v(HC+2*c2)}, -{v(Fi+c2)}, {v(ai)}, {v(HC+2*c2)}")
        A(f"v_fma_f32 {v(HC+2*c2+1)}, {v(Fi+c2)}, {v(ar)}, {v(HC+2*c2+1)}")
    xsum_groups(A, [HC + i for i in range(4)], [HC + 4 + i for i in range(4)])
    for c2 in range(2):
        qr, qi, wr, wi = QS + 4 * c2, QS + 4 * c2 + 2, VS + 4 * c2, VS + 4 * c2 + 2
        A(pk_fma(qr, HC + 2 * c2, 0, wr, qr))
        A(pk_fma(qi, HC + 2 * c2, 0, wi, qi))
        A(pk_fma(qr, HC + 2 * c2, 1, wi, qr, neg=True))
        A(pk_fma(qi, HC + 2 * c2, 1, wr, qi))
    PK = FY
    def pko(c2, part, e, j): return PK + 16 * c2 + 8 * part + 4 * e + j
    for q in range(8):
        for c2 in range(2):
            pr = QS + 4 * c2 if q == 0 else ure(c2, q - 1)
            pi = QS + 4 * c2 + 2 if q == 0 else uI(c2, q - 1)
            A(pk_fma(ure(c2, q), Li, c2, pi, ure(c2, q), neg=True))
            A(pk_fma(uI(c2, q), Li, c2, pr, uI(c2, q)))
            A(pk_fma(ure(c2, q), Lr, c2, pr, ure(c2, q)))
            A(pk_fma(uI(c2, q), Lr, c2, pi, uI(c2, q)))
        if q & 1:
            for c2 in range(2):
                for e in range(2):
                    A(f"v_cvt_pk_bf16_f32 {v(pko(c2,0,e,q>>1))}, {v(ure(c2,q-1)+e)}, {v(ure(c2,q)+e)}")
                    A(f"v_cvt_pk_bf16_f32 {v(pko(c2,1,e,q>>1))}, -{v(uI(c2,q-1)+e)}, -{v(uI(c2,q)+e)}")
    if opt.get("hpipe", 0):
        OUT = FX
        def hw(part):
            for c2 in range(2):
                for e in range(2):
                    A(f"ds_write_b128 {v(wa)}, {v(pko(c2,part,e,0),4)} offset:{part*4608 + c2*2304 + e*16}")
        def hr_(part, mt):
            for rd in range(2):
                A(f"ds_read_b64_tr_b16 {v(OUT + 16*part + 4*mt + 2*rd, 2)}, {v(ra)} offset:{part*4608 + rd*576 + mt*32}")
        hw(0)
        for mt in range(4): hr_(0, mt)
        A("s_waitcnt lgkmcnt(8)")
        hw(1)
        for k in range(8):
            part, mt = k >> 2, k & 3
            if mt % 2 == 0: A(f"s_add_u32 s39, s53, {part*4096 + (mt>>1)*8192}")
            A(f"s_waitcnt lgkmcnt({10 if part == 0 else 6 - 2*mt})")
            A(f"buffer_store_dwordx4 {v(OUT + 4*k, 4)}, {v(ga)}, {s(sW,4)}, s39 offen offset:{(mt&1)*1024} sc1")
            vm.add("hs")
            if part == 0: hr_(1, mt)
    else:
        for part in range(2):
            for c2 in range(2):
                for e in range(2):
                    A(f"ds_write_b128 {v(wa)}, {v(pko(c2,part,e,0),4)} offset:{part*4608 + c2*2304 + e*16}")
        stamp(A, 6, ST and not opt.get('p0st') and not opt.get('p2st') and not opt.get('p1st'))
        OUT = FX
        for part in range(2):
            A(f"s_waitcnt lgkmcnt({4 if part == 0 else 8})")
            for mt in range(4):
                for rd in range(2):
                    A(f"ds_read_b64_tr_b16 {v(OUT + 16*part + 4*mt + 2*rd, 2)}, {v(ra)} offset:{part*4608 + rd*576 + mt*32}")
        for k in range(8):
            part, mt = k >> 2, k & 3
            if mt % 2 == 0: A(f"s_add_u32 s39, s53, {part*4096 + (mt>>1)*8192}")
            A(f"s_waitcnt lgkmcnt({14 - 2*k})")
            A(f"buffer_store_dwordx4 {v(OUT + 4*k, 4)}, {v(ga)}, {s(sW,4)}, s39 offen offset:{(mt&1)*1024} {opt.get('hst', 'sc1')}")
            vm.add("hs")
    stamp(A, 7, ST and not opt.get('p0st') and not opt.get('p2st') and not opt.get('p1st'))

    if opt.get("wprio"): A("s_setprio 0")
    HD = 2
    vRC, vRC2 = 20, 22
    vH0, vH1 = 28, 29
    vFo, vFl = 30, 31
    ACC2, CF, HR = 128, 224, 160
    sH, sHB = 49, 50
    A("s_waitcnt vmcnt(8)")
    vG = 4
    def er(k): return ACC + 16 * (k >> 3) + 8 + (k & 7)
    A.label("L_gchk")
    A(f"v_cmp_ne_u32 vcc, s{sTAG}, {v(GT+1)}")
    A("s_nop 1")
    A("s_cmp_eq_u64 vcc, 0")
    A("s_cbranch_scc1 L_gok")
    spin_guard(A, "L_gok")
    gload()
    A("s_waitcnt vmcnt(0)")
    A("s_branch L_gchk")
    A.label("L_gok")
    A(f"v_lshlrev_b32 v6, 2, {v(vGq)}")
    GR = 36
    for i in range(8): A(f"ds_bpermute_b32 {v(GR+i)}, v6, {v(GT)} offset:{16*i}")
    A("s_mov_b32 s10, 0xffff0000")
    B = Asm()
    B(f"v_lshlrev_b32 {v(DS)}, 16, {v(DR)}")
    B(f"v_and_b32 {v(DS+1)}, s10, {v(DR)}")
    B(f"v_lshlrev_b32 {v(DS+2)}, 16, {v(DR+1)}")
    B(f"v_and_b32 {v(DS+3)}, s10, {v(DR+1)}")
    B("s_waitcnt lgkmcnt(0)")
    a0, a2, om = HS, HS + 2, HS + 4
    for i in range(8):
        B(f"v_sub_f32 {v(om)}, 1.0, {v(GR+i)}")
        rnd_bf16(B, om, om)
        for p in range(2):
            x_ = xr(i) + p
            B(f"v_lshlrev_b32 {v(a0)}, 16, {v(x_)}")
            B(f"v_and_b32 {v(a0+1)}, s10, {v(x_)}")
            B(f"v_mul_f32 {v(a2)}, {v(a0)}, {v(DS+2*p)}")
            B(f"v_mul_f32 {v(a2+1)}, {v(a0+1)}, {v(DS+2*p+1)}")
            B(f"v_cvt_pk_bf16_f32 {v(a2)}, {v(a2)}, {v(a2+1)}")
            B(f"v_mul_f32 {v(a0)}, {v(a0)}, {v(om)}")
            B(f"v_mul_f32 {v(a0+1)}, {v(a0+1)}, {v(om)}")
            B(f"v_cvt_pk_bf16_f32 {v(a0)}, {v(a0)}, {v(a0+1)}")
            B(f"v_and_b32 {v(a2+1)}, s10, {v(a2)}")
            B(f"v_lshlrev_b32 {v(a2)}, 16, {v(a2)}")
            B(f"v_and_b32 {v(a0+1)}, s10, {v(a0)}")
            B(f"v_lshlrev_b32 {v(a0)}, 16, {v(a0)}")
            B(f"v_fma_f32 {v(er(4*i+2*p))}, {v(GR+i)}, {v(a2)}, {v(a0)}")
            B(f"v_fma_f32 {v(er(4*i+2*p+1))}, {v(GR+i)}, {v(a2+1)}, {v(a0+1)}")
    el = B.lines
    cq = [(st, q) for st in range(3) for q in range(4)]
    C0 = opt.get("c_at", 0)
    for n, l in enumerate(el):
        if n >= C0 and n % opt.get("c_gap", 6) == 0 and cq:
            emit(cdma(*cq.pop(0)))
        A(l)
    el = []
    for q in range(4): A(f"v_mov_b32 {v(16+q)}, {v(vDC+q)}")
    vDC = 16
    A(f"v_mov_b32 {v(vH0)}, {v(ga)}")
    A(f"v_add_u32 {v(vH1)}, 4096, {v(ga)}")
    A(f"s_lshl_b32 s38, s{sWV}, 13")
    A(f"s_add_u32 s{sHB}, s48, s38")
    vCN, vOne, vPo = 32, 33, 34
    A(f"v_mov_b32 {v(vCN)}, {L_CNT}")
    A(f"v_mov_b32 {v(vOne)}, 1")
    A(f"v_bfe_u32 {v(t2)}, {v(vLane)}, 1, 3")
    A(f"v_xor_b32 {v(t2)}, {v(t2)}, {v(vGq)}")
    A(f"v_lshlrev_b32 {v(t2)}, 4, {v(t2)}")
    A(f"v_lshl_add_u32 {v(t2)}, {v(vL15)}, 7, {v(t2)}")
    for kk in range(2):
        A(f"v_xor_b32 {v(vRC+kk)}, {64*kk}, {v(t2)}")
        A(f"v_add_u32 {v(vRC2+kk)}, 0x10000, {v(vRC+kk)}")
    A(f"v_xor_b32 {v(vFo)}, s{sE8}, {v(vL15)}")
    A(f"v_lshlrev_b32 {v(vFo)}, {FSH}, {v(vFo)}")
    A(f"v_mov_b32 {v(t1)}, s{sTAG}")
    A(f"v_lshlrev_b32 {v(t2)}, 2, {v(vLane)}")
    A(f"s_lshl_b32 s52, s{sRB}, {FSH + 4}")
    A(f"s_add_u32 s52, s52, {WS_HF}")
    A(f"s_lshl_b32 s46, s{sCB}, {FSH}")
    A("s_add_u32 s46, s46, s52")
    vTR = 35
    wa2, ra2, oa, vTp = 44, 45, 46, 47
    A(f"s_mul_i32 s38, s{sWV}, 8704")
    A(f"v_mul_u32_u24 {v(wa2)}, 272, {v(vL15)}")
    A(f"v_lshl_add_u32 {v(wa2)}, {v(vGq)}, 4, {v(wa2)}")
    A(f"v_add_u32 {v(wa2)}, s38, {v(wa2)}")
    A(f"v_mul_u32_u24 {v(ra2)}, 272, {v(vGq)}")
    A(f"v_lshl_add_u32 {v(ra2)}, {v(vL15)}, 4, {v(ra2)}")
    A(f"v_add_u32 {v(ra2)}, s38, {v(ra2)}")
    A(f"v_lshlrev_b32 {v(oa)}, 12, {v(vGq)}")
    A(f"v_lshl_add_u32 {v(oa)}, {v(vL15)}, 4, {v(oa)}")
    A(f"v_lshlrev_b32 {v(vTp)}, 2, {v(vLane)}")
    A(f"v_add_u32 {v(vTp)}, {L_TOP}, {v(vTp)}")
    A(f"s_lshl_b32 s56, s{sT0}, 12")
    A(f"s_lshl_b32 s39, s{sCB}, 8")
    A("s_add_u32 s56, s56, s39")
    A(f"s_sub_u32 s38, s{sWN}, s{sWV}")
    A("s_mul_i32 s38, s38, 9216")
    A(f"s_lshl_b32 s39, s{sWM}, 6")
    A("s_add_u32 s38, s38, s39")
    A(f"v_add_u32 {v(vTR)}, s38, {v(ra)}")
    A(f"s_waitcnt vmcnt({vm.need('hs')})")
    lds_arrive_last(A, vCN, vT + 1, C_HF, "L_nohf")
    flag_store(A, t1, t2, sW, 46)
    assert not cq
    A("s_waitcnt vmcnt(1)")
    A("s_branch L_hfd")
    A.label("L_nohf")
    A("s_waitcnt vmcnt(0)")
    A.label("L_hfd")
    stamp(A, 8, ST and not opt.get('p0st') and not opt.get('p2st') and not opt.get('p1st'))
    while cq: emit(cdma(*cq.pop(0)))
    MW = 0xffff if AM else 0xff
    if opt.get("noown"):
        A(f"s_mov_b64 s[8:9], {MW}")
        A(f"s_bitset0_b32 s8, s{sROT2}")
        MW = "s[8:9]"
    def fpoll(mask):
        A(f"s_mov_b64 exec, {mask}")
        A(f"buffer_load_dword {v(vFl)}, {v(vFo)}, {s(sW,4)}, s52 offen sc1")
        A("s_mov_b64 exec, -1")
    SPL = opt.get("split", 1)
    def creads(g):
        st, ks = g >> 2, g & 3
        off = slot2(st) * 16384 + (ks >> 1) * 8192
        base = vRC
        if off >= 65536: off -= 65536; base = vRC2
        F = CF + (g & 1) * 16
        return [f"ds_read_b128 {v(F+4*dt,4)}, {v(base + (ks & 1))} offset:{off + 2048*dt}" for dt in range(4)]
    def mm(g, tt):
        st, ks = g >> 2, g & 3
        F = CF + (g & 1) * 16
        hr = HR + (st % HD) * 32 + 4 * ((4 * tt + ks) if SPL and st == 15 else (2 * ks + tt))
        return [f"v_mfma_f32_16x16x32_bf16 {v(ACC2+4*(tt*4+dt),4)}, {v(F+4*dt,4)}, {v(hr,4)}, {'0' if g == 0 else v(ACC2+4*(tt*4+dt),4)}" for dt in range(4)]
    lds_add(A, vCN, vOne, C_HL)
    fpoll(MW)
    lds_wait(A, vCN, vPo, C_HL, 4, "sync0", 0)
    for j in range(8):
        part, wn, tt = j >> 2, (j >> 1) & 1, j & 1
        for rd in range(2):
            A(f"ds_read_b64_tr_b16 {v(HR + 4*j + 2*rd, 2)}, {v(vTR)} offset:{wn*18432 + part*4608 + rd*576 + tt*32}")
        if j == 3: A("s_waitcnt lgkmcnt(4)")
    lds_add(A, vCN, vOne, C_GO)
    A("s_waitcnt lgkmcnt(4)")
    emit(creads(0))
    for g in range(4):
        emit(creads(g + 1))
        A("s_waitcnt lgkmcnt(4)")
        emit(mm(g, 0)); emit(mm(g, 1))
    A.label("L_hpoll")
    A("s_waitcnt vmcnt(0)")
    A(f"v_cmp_ne_u32 vcc, s{sTAG}, {v(vFl)}")
    A("s_nop 1")
    A(f"s_and_b32 s38, vcc_lo, {'s8' if opt.get('noown') else MW}")
    A("s_cbranch_scc0 L_hgo")
    spin_guard(A, "L_hgo")
    A(f"s_sleep {opt.get('h_sleep', 1)}")
    fpoll(MW)
    A("s_branch L_hpoll")
    A.label("L_hgo")
    stamp(A, 9, ST and not opt.get('p1st'))
    def hload(st, j):
        out = []
        if j == 0:
            out += stage_cb(sH, st)
            out.append(f"s_lshl_b32 s{sH}, s{sH}, 15")
            out.append(f"s_add_u32 s{sH}, s{sH}, s{sHB}")
        r = HR + (st % HD) * 32 + 4 * j
        f = (2 * (j & 3) + (j >> 2)) if SPL and st == 15 else j
        out.append(f"buffer_load_dwordx4 {v(r,4)}, {v(vH0 if f < 4 else vH1)}, {s(sW,4)}, s{sH} offen offset:{1024*(f&3)} {opt.get('hld', 'sc1')}")
        vm.add(("h", st, j))
        return out
    for j in range(8): emit(hload(1, j))
    lds_wait(A, vCN, vPo, C_GO, 4, "sync1", 0)
    stamp(A, 10, ST and not opt.get('p1st'))
    for j in range(8): emit(hload(2, j))
    def fixup():
        Y = 48
        lds_wait(A, vCN, vPo, C_TOP, 1, "topw")
        A(f"ds_read_b32 {v(vT+4)}, {v(vTp)}")
        A(f"s_sub_u32 s38, 2047, s{sT0}")
        A("s_waitcnt lgkmcnt(0)")
        A(f"v_and_b32 {v(vT+4)}, 0x7ff, {v(vT+4)}")
        A(f"v_sub_u32 {v(vT+4)}, s38, {v(vT+4)}")
        A(f"v_cmp_gt_u32 vcc, 32, {v(vT+4)}")
        A("s_nop 1")
        A("s_and_b32 s57, vcc_lo, 0xff")
        if opt.get("x_nofix"): A("s_mov_b32 s57, 0")
        A.label("L_fix")
        A("s_cmp_eq_u32 s57, 0")
        A("s_cbranch_scc1 L_fixd")
        A("s_ff1_i32_b32 s8, s57")
        A("s_bitset0_b32 s57, s8")
        A(f"v_readlane_b32 s9, {v(vT+4)}, s8")
        A(f"v_lshl_add_u32 {v(Y+4)}, s8, 2, {v(vCN)}")
        lds_wait(A, Y + 4, Y + 5, C_DF, 1, "dfw", 2)
        A("s_lshl_b32 s38, s8, 8")
        A(f"s_add_u32 s38, s38, {L_DEL}")
        A(f"v_lshl_add_u32 {v(Y+4)}, {v(vL15)}, 4, s38")
        A(f"ds_read_b128 {v(Y,4)}, {v(Y+4)}")
        A("s_and_b32 s38, s9, 3")
        A("s_lshl_b32 s38, s38, 4")
        A("s_lshl_b64 s[10:11], 0xffff, s38")
        A("s_lshr_b32 s9, s9, 2")
        A("s_waitcnt lgkmcnt(0)")
        A("s_mov_b64 exec, s[10:11]")
        for i in range(8):
            A(f"s_cmp_lg_u32 s9, {i}")
            A(f"s_cbranch_scc1 L_fx{i}")
            A(pk_add(er(4 * i), er(4 * i), Y))
            A(pk_add(er(4 * i + 2), er(4 * i + 2), Y + 2))
            A.label(f"L_fx{i}")
        A("s_mov_b64 exec, -1")
        A("s_branch L_fix")
        A.label("L_fixd")
    LA = 4
    cq = [(st, q) for st in (3, 4) for q in range(4)]
    for g in range(4, 60 if SPL else 64):
        st, ks = g >> 2, g & 3
        if opt.get("p2st") and g in (8, 16, 24, 32, 48):
            stamp(A, {8: 1, 16: 2, 24: 4, 32: 7, 48: 8}[g], ST)
        gchk = 999 if AM else 4 * (8 - HD)
        if g == gchk - 3:
            fpoll("0xff00"); vm.add("f")
        if g == gchk:
            A(f"s_waitcnt vmcnt({vm.need('f')})")
            A.label("L_h2poll")
            A(f"v_cmp_ne_u32 vcc, s{sTAG}, {v(vFl)}")
            A("s_nop 1")
            A("s_and_b32 s38, vcc_lo, 0xff00")
            A("s_cbranch_scc0 L_h2go")
            spin_guard(A, "L_h2go")
            A("s_sleep 2")
            fpoll("0xff00")
            A("s_waitcnt vmcnt(0)")
            A("s_branch L_h2poll")
            A.label("L_h2go")
            if opt.get("p2st"): stamp(A, 6, ST)
        if g == opt.get("fix_at", 63): fixup()
        hn = vm.need(('h', st, 2*ks+1))
        if st < 15 and ks == 1:
            assert vm.ops.count(("c", st + 1)) == 4
            emit(creads(g + 1))
            A(f"s_waitcnt vmcnt({min(hn, vm.need(('c', st + 1)))}) lgkmcnt(4)")
            lds_add(A, vCN, vOne, C_ST)
        elif st < 15 and ks == 3:
            A("s_waitcnt lgkmcnt(0)")
            A(f"v_readfirstlane_b32 s38, {v(vPo)}")
            A("s_nop 1")
            A(f"s_cmp_ge_u32 s38, {4 * st}")
            A(f"s_cbranch_scc1 L_st{st}_ok")
            lds_wait(A, vCN, vPo, C_ST, 4 * st, f"st{st}", 0)
            if st + LA < 16: cq += [(st + LA, q) for q in range(4)]
            emit(creads(g + 1))
            A(f"s_waitcnt vmcnt({hn})")
        elif g + 1 < 64:
            emit(creads(g + 1))
            A(f"s_waitcnt vmcnt({hn}) lgkmcnt(4)")
        else:
            A(f"s_waitcnt vmcnt({hn}) lgkmcnt(0)")
        for tt in range(2):
            emit(mm(g, tt))
            if st < 15 and ks == 2 and tt == 0: A(f"ds_read_b32 {v(vPo)}, {v(vCN)} offset:{C_ST}")
            if st + HD < 16: emit(hload(st + HD, 2 * ks + tt))
            if cq and (tt == 0 or len(cq) > 4): emit(cdma(*cq.pop(0)))
    assert not el and not cq
    stamp(A, 11, ST and not opt.get('p1st'))
    assert slot2(15) == 5 and slot2(14) == 3
    stf = opt.get("ostore", "sc1 nt")
    if SPL:
        for tt in range(2):
            for ks in range(4):
                nx = 60 + ks + 1 if ks < 3 else (60 if tt == 0 else None)
                if nx: emit(creads(nx))
                A(f"s_waitcnt vmcnt({vm.need(('h', 15, 4 * tt + ks))}) lgkmcnt({4 if nx else 0})")
                emit(mm(60 + ks, tt))
            if tt == 0: fixup()
            A("s_nop 7")
            for dt in range(4):
                A(f"ds_write_b128 {v(wa2)}, {v(ACC2+4*(tt*4+dt),4)} offset:{tt*16*272 + dt*64}")
            for i in range(4 * tt, 4 * tt + 4):
                A(f"ds_read_b128 {v(HR+4*i,4)}, {v(ra2)} offset:{i*4*272}")
            for i in range(4 * tt, 4 * tt + 4):
                A(f"s_waitcnt lgkmcnt({4 * tt + 3 - i})")
                A(pk_fma(HR + 4 * i, GR + (i & ~1), i & 1, HR + 4 * i, er(4 * i)))
                A(pk_fma(HR + 4 * i + 2, GR + (i & ~1), i & 1, HR + 4 * i + 2, er(4 * i + 2)))
                A(f"buffer_store_dwordx4 {v(HR+4*i,4)}, {v(oa)}, {s(sO,4)}, s56 offen {stf}"); vm.add("o")
                A("s_add_u32 s56, s56, 16384")
    else:
        A("s_nop 3")
        for tt in range(2):
            for dt in range(4):
                A(f"ds_write_b128 {v(wa2)}, {v(ACC2+4*(tt*4+dt),4)} offset:{tt*16*272 + dt*64}")
            for i in range(4 * tt, 4 * tt + 4):
                A(f"ds_read_b128 {v(HR+4*i,4)}, {v(ra2)} offset:{i*4*272}")
        stf = opt.get("ostore", "sc1 nt")
        for i in range(8):
            A(f"s_waitcnt lgkmcnt({(11 - i) if i < 4 else (7 - i)})")
            A(pk_fma(HR + 4 * i, GR + (i & ~1), i & 1, HR + 4 * i, er(4 * i)))
            A(pk_fma(HR + 4 * i + 2, GR + (i & ~1), i & 1, HR + 4 * i + 2, er(4 * i + 2)))
            if i < opt.get("x_nst", 8): A(f"buffer_store_dwordx4 {v(HR+4*i,4)}, {v(oa)}, {s(sO,4)}, s56 offen {stf}")
            A("s_add_u32 s56, s56, 16384")
    stamp(A, 12, ST and not opt.get('p1st'))
    stamp_out(A, ST, sW, sWV, 0)
    A("s_endpgm")
```
